```python
import torch

def _softmax(x, axis=-1):
    return torch.softmax(x, dim=axis)
def _gelu(x):
    return torch.nn.functional.gelu(x, approximate="tanh")
def _silu(x):
    return torch.nn.functional.silu(x)
def _sigmoid(x):
    return torch.sigmoid(x)
def _layernorm(x, axis=-1, eps=1e-5):
    m = x.mean(dim=axis, keepdim=True)
    v = x.var(dim=axis, keepdim=True, unbiased=False)
    return (x - m) / torch.sqrt(v + eps)
def _scatter_add(tgt, idx, src, axis=0):
    return tgt.clone().index_add_(axis, idx, src)
def _segment_sum(src, seg, n):
    out = torch.zeros((n,) + src.shape[1:], dtype=src.dtype)
    return out.index_add_(0, seg, src)
def _pad(x, pw):
    flat = tuple(v for pair in reversed(pw) for v in pair)
    return torch.nn.functional.pad(x, flat)

kernel_name = 'sequential_preLN__gqa_block_cached__mixer_channel_mlp__decode'

def setup_inputs():

    _w = (lambda a: (lambda t: t.to(torch.bfloat16) if t.is_floating_point() else t)(torch.as_tensor(a)))
    def _A_setup():
        B, Sq, D = 4, 1, 512
        Hq, Hkv, Sk, Dh = 32, 8, 4096, 128
        assert Hq % Hkv == 0, (Hq, Hkv)
        return {
            "x": _w((lambda *s: torch.randn(*s, dtype=torch.bfloat16) * 0.05)(B, Sq, D)),
            "k_cache": _w((lambda *s: torch.randn(*s, dtype=torch.bfloat16) * 3.2)(B, Hkv, Sk, Dh)),
            "v_cache": _w((lambda *s: torch.randn(*s, dtype=torch.bfloat16) * 0.4)(B, Hkv, Sk, Dh)),
            "wq": _w((lambda *s: torch.randn(*s, dtype=torch.bfloat16) * 3.2)(D, Hq * Dh) * (D ** -0.5)),
            "wo": _w((lambda *s: torch.randn(*s, dtype=torch.bfloat16) * 0.4)(Hq * Dh, D) * ((Hq * Dh) ** -0.5)),
        }
    _A_in = _A_setup()

    def _B_setup():
        B, S, D, F = 4, 1, 512, 1792
        return {
            "x": _w((lambda *s: torch.randn(*s, dtype=torch.bfloat16) * 0.05)(B, S, D)),
            "w1": _w((lambda *s: torch.randn(*s, dtype=torch.bfloat16) * 3.2)(D, F) * (D ** -0.5)),
            "b1": _w((lambda *s: torch.randn(*s, dtype=torch.bfloat16) * 3.2)(F)),
            "w2": _w((lambda *s: torch.randn(*s, dtype=torch.bfloat16) * 0.4)(F, D) * (F ** -0.5)),
            "b2": _w((lambda *s: torch.randn(*s, dtype=torch.bfloat16) * 0.8)(D)),
        }
    _B_in = _B_setup()

    return {
        "A_x": _A_in["x"],
        "A_k_cache": _A_in["k_cache"],
        "A_v_cache": _A_in["v_cache"],
        "A_wq": _A_in["wq"],
        "A_wo": _A_in["wo"],
        "B_x": _B_in["x"],
        "B_w1": _B_in["w1"],
        "B_b1": _B_in["b1"],
        "B_w2": _B_in["w2"],
        "B_b2": _B_in["b2"],
    }

def reference(A_x, A_k_cache, A_v_cache, A_wq, A_wo, B_x, B_w1, B_b1, B_w2, B_b2):
    def _A_ref(x, k_cache, v_cache, wq, wo):
        B, Sq, D = x.shape
        Hq, Dh = 32, 128
        Hkv = k_cache.shape[1]
        rep = Hq // Hkv
        q = (lambda x, *d: x.permute(*d))((x @ wq).reshape(B, Sq, Hq, Dh), 0, 2, 1, 3)
        k = (lambda x, n, axis: torch.repeat_interleave(x, n, dim=axis))(k_cache, rep, axis=1)
        v = (lambda x, n, axis: torch.repeat_interleave(x, n, dim=axis))(v_cache, rep, axis=1)
        scores = torch.einsum("bhqd,bhkd->bhqk", q, k) * (Dh ** -0.5)
        p = _softmax(scores, axis=-1)
        o = torch.einsum("bhqk,bhkd->bhqd", p, v)
        return (lambda x, *d: x.permute(*d))(o, 0, 2, 1, 3).reshape(B, Sq, Hq * Dh) @ wo

    def _B_ref(x, w1, b1, w2, b2):
        y = _layernorm(x, axis=-1)
        h = _gelu(torch.einsum("bsd,df->bsf", y, w1) + b1)
        return torch.einsum("bsf,fd->bsd", h, w2) + b2

    x = A_x
    h = x + _A_ref(_layernorm(x, axis=-1), A_k_cache, A_v_cache, A_wq, A_wo)
    h2 = h + _B_ref(_layernorm(h, axis=-1), B_w1, B_b1, B_w2, B_b2)
    return h2
```

```python
import re

class Asm:
    def __init__(self):
        self.lines = []
    def __call__(self, s):
        for ln in s.strip().split("\n"):
            ln = ln.strip()
            if not ln: continue
            self._check_offsets(ln)
            self.lines.append(ln)
    def label(self, name):
        self.lines.append(name + ":")
    def comment(self, s):
        self.lines.append("; " + s)
    def _check_offsets(self, ln):
        code = ln.split(";")[0]
        m = re.search(r"\boffset:(\d+)", code)
        if m:
            off = int(m.group(1))
            if code.startswith("buffer_"):
                assert off < 4096, ln
            elif code.startswith("ds_"):
                assert off < 65536, ln
            elif code.startswith("global_"):
                assert off < 4096, ln
        for m in re.finditer(r"\boffset[01]:(\d+)", code):
            assert int(m.group(1)) < 256, ln
    def text(self):
        out = []
        for ln in self.lines:
            if ln.endswith(":") or ln.startswith(";"):
                out.append(ln)
            else:
                out.append("    " + ln)
        return "\n".join(out)

REG_RE = re.compile(r"^(v|s|a)(\d+)$")
RNG_RE = re.compile(r"^(v|s|a)\[(\d+):(\d+)\]$")
def regs(tok):
    tok = tok.strip()
    neg = tok.lstrip("-|").rstrip("|")
    if neg.startswith("abs("): neg = neg[4:-1]
    m = REG_RE.match(neg)
    if m: return {(m.group(1), int(m.group(2)))}
    m = RNG_RE.match(neg)
    if m: return {(m.group(1), i) for i in range(int(m.group(2)), int(m.group(3)) + 1)}
    if neg == "vcc": return {("s", 106), ("s", 107)}
    if neg == "exec": return {("s", 126), ("s", 127)}
    if neg == "exec_lo": return {("s", 126)}
    if neg == "exec_hi": return {("s", 127)}
    if neg == "m0": return {("s", 124)}
    return set()

TRANS = ("v_exp_f32", "v_log_f32", "v_rcp_f32", "v_rsq_f32", "v_sqrt_f32", "v_sin_f32", "v_cos_f32")

def parse(ln):
    code = ln.split(";")[0].strip()
    parts = code.split(None, 1)
    op = parts[0]
    rest = parts[1] if len(parts) > 1 else ""
    ops = []; cur = ""; depth = 0
    for ch in rest:
        if ch == "[": depth += 1
        if ch == "]": depth -= 1
        if ch == "," and depth == 0:
            ops.append(cur.strip()); cur = ""
        else:
            cur += ch
    if cur.strip(): ops.append(cur.strip())
    mods = ""
    if ops:
        last = ops[-1].split(None, 1)
        ops[-1] = last[0]
        mods = last[1] if len(last) > 1 else ""
    return op, ops, mods

def classify(ln):
    op, ops, mods = parse(ln)
    d = dict(op=op, kind="other", wr=set(), rd=set(), states=1, mods=mods, ops=ops)
    if op == "s_nop":
        d["states"] = int(ops[0], 0) + 1; d["kind"] = "salu"; return d
    if op.startswith("v_mfma"):
        d["kind"] = "mfma"; d["wr"] = regs(ops[0]); d["A"] = regs(ops[1]); d["B"] = regs(ops[2]); d["C"] = regs(ops[3])
        d["rd"] = d["A"] | d["B"] | d["C"]; return d
    if op.startswith("v_cmp"):
        d["kind"] = "valu"; d["wr"] = regs(ops[0]); d["rd"] = set().union(*[regs(o) for o in ops[1:]])
        if op.startswith("v_cmpx"): d["wr"] |= regs("exec")
        return d
    if op.startswith("v_readlane") or op.startswith("v_readfirstlane"):
        d["kind"] = "valu"; d["lane"] = True; d["wr"] = regs(ops[0]); d["rd"] = set().union(*[regs(o) for o in ops[1:]]); return d
    if op.startswith("v_permlane"):
        d["kind"] = "valu"; d["perm"] = True; d["wr"] = regs(ops[0]) | regs(ops[1]); d["rd"] = set(d["wr"]); return d
    if op.startswith("v_"):
        d["kind"] = "valu"; d["wr"] = regs(ops[0])
        rd = set().union(*[regs(o) for o in ops[1:]]) if len(ops) > 1 else set()
        if op.startswith(("v_add_co", "v_sub_co", "v_addc_co", "v_subb_co")):
            d["wr"] |= regs(ops[1]); rd = set().union(*[regs(o) for o in ops[2:]])
        if op.startswith(("v_fmac", "v_mac", "v_pk_fmac", "v_dot2c")): rd |= regs(ops[0])
        if "_dpp" in op or "row_" in mods or "quad_perm" in mods:
            d["dpp"] = True; rd |= regs(ops[0])
        if op.startswith("v_cndmask") and len(ops) == 3: rd |= regs("vcc")
        d["rd"] = rd
        if op.split("_e")[0] in TRANS or op in TRANS: d["trans"] = True
        return d
    if op.startswith(("buffer_", "global_")):
        d["kind"] = "vmem"
        allr = [regs(o) for o in ops]
        if "load" in op and " lds" not in (" " + mods) and "lds" not in mods.split():
            d["wr"] = allr[0]; d["rd"] = set().union(*allr[1:])
        elif "load" in op:
            d["rd"] = set().union(*allr) | regs("m0"); d["ldsdma"] = True
        elif "atomic" in op:
            d["rd"] = set().union(*allr)
            if "sc0" in mods.split(): d["wr"] = allr[0]
        else:
            d["rd"] = set().union(*allr)
            if "x4" in op or "x3" in op: d["widestore"] = allr[0]
        return d
    if op.startswith("ds_"):
        d["kind"] = "ds"
        allr = [regs(o) for o in ops]
        if op.startswith(("ds_read", "ds_bpermute", "ds_permute", "ds_swizzle")) or "_rtn" in op:
            d["wr"] = allr[0]; d["rd"] = set().union(*allr[1:])
        else:
            d["rd"] = set().union(*allr)
        return d
    if op.startswith("s_"):
        d["kind"] = "salu"
        if op.startswith(("s_cmp", "s_cbranch", "s_branch", "s_waitcnt", "s_barrier", "s_endpgm", "s_setprio", "s_sleep", "s_bitcmp")):
            d["rd"] = set().union(*[regs(o) for o in ops]) if ops else set()
        else:
            d["wr"] = regs(ops[0]) if ops else set()
            d["rd"] = set().union(*[regs(o) for o in ops[1:]]) if len(ops) > 1 else set()
            if "saveexec" in op: d["wr"] |= regs("exec")
        return d
    return d

def check_hazards(lines, verbose=True):
    hist = []
    problems = []
    for ln in lines:
        if ln.endswith(":") or ln.startswith(";"): continue
        c = classify(ln)
        dist = 0
        for p, pl in reversed(hist):
            if dist > 20: break
            need = 0; why = ""
            pk = p["kind"]
            vw = {r for r in p["wr"] if r[0] in "va"}
            sw = {r for r in p["wr"] if r[0] == "s"}
            if pk == "valu":
                if c["kind"] == "mfma" and vw & c["rd"]: need, why = 2, "VALU->MFMA src"
                if c.get("dpp") and vw & c["rd"]: need, why = max(need, 2), "VALU->DPP"
                if c.get("perm") and vw & c["rd"]: need, why = max(need, 2), "VALU->permlane"
                if c.get("lane") and vw & c["rd"]: need, why = max(need, 1), "VALU->readlane"
                if p.get("trans") and c["kind"] in ("valu",) and not c.get("trans") and vw & c["rd"]: need, why = max(need, 1), "trans->VALU"
                if p.get("trans") and c["kind"] in ("mfma",) and vw & c["rd"]: need, why = max(need, 2), "trans->mfma"
                if sw:
                    if c["kind"] == "valu" and sw & c["rd"]:
                        need, why = max(need, 4 if c.get("lane") else 2), "VALU sgpr->VALU"
                    if c["kind"] == "vmem" and sw & c["rd"]: need, why = max(need, 5), "VALU sgpr->VMEM"
                    if c["kind"] == "salu" and sw & c["rd"] and not c["op"].startswith("s_cbranch"): need, why = max(need, 1), "VALU sgpr->SALU(pad)"
                    if (("s", 126) in sw) and c.get("dpp"): need, why = max(need, 5), "VALU exec->DPP"
            if pk == "mfma":
                D = p["wr"]
                if c["kind"] == "mfma":
                    if D & (c["A"] | c["B"]): need, why = 8, "MFMA D->MFMA A/B"
                    elif D & c["C"] and not (c["C"] == D): need, why = 6, "MFMA D->MFMA C overlap"
                    elif D & c["wr"] and not (c["C"] == D) : need, why = 6, "MFMA D WAW"
                else:
                    if D & (c["rd"] | c["wr"]): need, why = 8, "MFMA D->VALU/mem"
                if c["kind"] == "valu" and p["C"] & c["wr"]: need, why = max(need, 3), "MFMA C WAR"
            if p.get("widestore") and c["kind"] == "valu" and p["widestore"] & c["wr"]: need, why = max(need, 2), "wide store WAR"
            if pk == "salu" and ("s", 124) in p["wr"] and c.get("ldsdma"): need, why = max(need, 1), "M0->LDS DMA"
            if pk == "salu" and (("s", 126) in sw or ("s",127) in sw) and c.get("dpp"):
                pass
            if need > dist:
                problems.append(f"HAZARD {why}: need {need} have {dist}\n    {pl}\n    {ln}")
            dist += p["states"]
        hist.append((c, ln))
        if len(hist) > 40: hist.pop(0)
    if verbose:
        for p in problems: print(p)
    return problems
```

```python
import sys
from asmlib import Asm, check_hazards

NAME = "sequential_preLN__gqa_block_cached__mixer_channel_mlp__decode"

WS_EPOCH = 0
WS_QB = 0x1000
WS_ML = 0x20000
WS_OP = 0x40000
WS_HP = 0x100000
WS_GP = 0x140000
WS_STAMP = 0x400000
L_WO = 0
L_W1 = 65536
L_W2 = 98304
L_WQ = 131072
L_RED = 131072
L_YB = 147456
L_PB = 151552
L_QL = 155648
L_QP = 156672
L_FLAGS = 157696
F_Y, F_QP, F_Q, F_ML, F_P, F_W, F_O = 0, 16, 32, 48, 64, 80, 96
L_MLB = 157952
L_S1R = 158080
L_STAT = 159104
L_Y2 = 159232
L_HB = 160256
L_T1 = 161280
L_GB = 162304
LDS_BYTES = 163840

LOG2E = 0x3fb8aa3b
SCALE = 0x3db504f3
EPS = 0x3727c5ac
TAGC = 0x9E3779B9
POLL_MAX = 20000

def gen(stamps=False, kv_nt=True, w_nt=False, prio=True):
    a = Asm()
    KVF = " nt" if kv_nt else ""
    WF = " nt" if w_nt else ""
    nstamp = [0]
    def stamp(idx):
        if stamps:
            a(f"s_memrealtime s[78:79]")
            a("s_waitcnt lgkmcnt(0)")
            a(f"s_mov_b32 s{80+idx}, s78")
    uid = [0]
    def lab(p):
        uid[0] += 1
        return f"L_{p}_{uid[0]}"

    def allreduce(op, rs, tmps):
        k = len(rs)
        for rot in (8, 4, 2, 1):
            if k < 3: a(f"s_nop {2 - k + 0 if k < 3 and (2-k) >= 0 else 0}") if k == 1 else (a("s_nop 0") if k == 2 else None)
            for r in rs:
                a(f"{op}_dpp v{r}, v{r}, v{r} row_ror:{rot} row_mask:0xf bank_mask:0xf")
        for sw in ("v_permlane16_swap_b32", "v_permlane32_swap_b32"):
            if k == 1: a("s_nop 0")
            for r, t in zip(rs, tmps):
                a(f"v_mov_b32 v{t}, v{r}")
            a("s_nop 1")
            for r, t in zip(rs, tmps):
                a(f"{sw} v{r}, v{t}")
            for r, t in zip(rs, tmps):
                a(f"{op} v{r}, v{r}, v{t}")

    def rb(dst, src):
        a(f"v_cvt_pk_bf16_f32 v{dst}, v{src}, v{src}")
        a(f"v_lshlrev_b32 v{dst}, 16, v{dst}")

    def wait_flags4(off, tmp, areg):
        L = lab("wf")
        a.label(L)
        a(f"ds_read_b128 v[{tmp}:{tmp+3}], v{areg} offset:{off}")
        a("s_waitcnt lgkmcnt(0)")
        a(f"v_and_b32 v{tmp}, v{tmp}, v{tmp+1}")
        a(f"v_and_b32 v{tmp+2}, v{tmp+2}, v{tmp+3}")
        a(f"v_and_b32 v{tmp}, v{tmp}, v{tmp+2}")
        a("s_nop 0")
        a(f"v_readfirstlane_b32 s10, v{tmp}")
        a("s_nop 0")
        a("s_cmp_eq_u32 s10, 1")
        a(f"s_cbranch_scc0 {L}")
    def wait_flag1(off, tmp, areg):
        L = lab("wf")
        a.label(L)
        a(f"ds_read_b32 v{tmp}, v{areg} offset:{off}")
        a("s_waitcnt lgkmcnt(0)")
        a(f"v_readfirstlane_b32 s10, v{tmp}")
        a("s_nop 0")
        a("s_cmp_eq_u32 s10, 1")
        a(f"s_cbranch_scc0 {L}")

    def tagcheck(tagregs, acc, t1, retry_label, cnt):
        first = True
        i = 0
        while i < len(tagregs):
            if i + 1 < len(tagregs):
                a(f"v_xor_b32 v{t1}, s8, v{tagregs[i]}")
                if first:
                    a(f"v_xor_b32 v{acc}, s8, v{tagregs[i+1]}")
                    a(f"v_or_b32 v{acc}, v{acc}, v{t1}")
                else:
                    a(f"v_xor_b32 v{t1+1}, s8, v{tagregs[i+1]}")
                    a(f"v_or3_b32 v{acc}, v{acc}, v{t1}, v{t1+1}")
                i += 2
            else:
                if first:
                    a(f"v_xor_b32 v{acc}, s8, v{tagregs[i]}")
                else:
                    a(f"v_xor_b32 v{t1}, s8, v{tagregs[i]}")
                    a(f"v_or_b32 v{acc}, v{acc}, v{t1}")
                i += 1
            first = False
        a(f"v_cmp_ne_u32 vcc, 0, v{acc}")
        done = lab("pd")
        a(f"s_cbranch_vccz {done}")
        a(f"s_add_u32 s{cnt}, s{cnt}, 1")
        a(f"s_cmp_lt_u32 s{cnt}, {POLL_MAX}")
        a(f"s_cbranch_scc1 {retry_label}")
        a.label(done)

    a("s_cmp_ge_u32 s2, 256")
    a("s_cbranch_scc1 L_end")
    if stamps:
        a("s_memrealtime s[78:79]")
    for (sr, off) in ((16, 0), (20, 8), (24, 16), (28, 24), (32, 32), (36, 48), (40, 56), (44, 64), (48, 72), (52, 80), (56, 96)):
        a(f"s_load_dwordx2 s[{sr}:{sr+1}], s[0:1], {off}")
    a("v_lshrrev_b32 v4, 6, v0")
    a("v_and_b32 v1, 63, v0")
    a("v_readfirstlane_b32 s3, v4")
    a("v_and_b32 v2, 15, v1")
    a("v_lshrrev_b32 v3, 4, v1")
    a("s_and_b32 s4, s2, 7")
    a("s_lshr_b32 s7, s2, 3")
    a("s_lshr_b32 s5, s7, 3")
    a("s_and_b32 s6, s7, 7")
    a("s_mul_i32 s9, s4, 7"); a("s_add_u32 s9, s9, s6")
    sizes = {16: 4096, 20: 33554432, 24: 33554432, 28: 4194304, 32: 4194304, 36: 1835008, 40: 3584, 44: 1835008, 48: 1024, 52: 4096, 56: 268435456}
    for sr, sz in sizes.items():
        a(f"s_mov_b32 s{sr+2}, {sz}")
        a(f"s_mov_b32 s{sr+3}, 0x20000")
    a("v_lshlrev_b32 v5, 2, v1")
    a(f"v_add_u32 v5, {L_FLAGS}, v5")
    a("v_mov_b32 v6, 0")
    a("ds_write_b32 v5, v6")
    a(f"v_mov_b32 v7, {L_FLAGS}")
    a("v_mov_b32 v15, 1")
    a("s_waitcnt lgkmcnt(0)")
    if stamps: a("s_mov_b32 s80, s78")
    a("s_barrier")
    a("s_cmp_ge_u32 s3, 4")
    a("s_cbranch_scc1 L_vwave")

    if prio: a("s_setprio 3")
    a("v_mov_b32 v6, 0")
    a(f"buffer_load_dword v5, v6, s[56:59], 0 offen sc1")
    a("v_lshlrev_b32 v8, 4, v1")
    a("s_lshl_b32 s10, s3, 10")
    a("buffer_load_dwordx4 v[16:19], v8, s[16:19], s10 offen")
    a("v_lshlrev_b32 v9, 2, v1")
    a("s_lshl_b32 s10, s5, 10"); a("s_lshl_b32 s11, s3, 8"); a("s_add_u32 s10, s10, s11")
    a("buffer_load_dword v12, v9, s[16:19], s10 offen")
    a("v_and_b32 v10, 31, v1"); a("v_lshlrev_b32 v10, 1, v10")
    a("s_lshl_b32 s10, s9, 6")
    a("buffer_load_ushort v13, v10, s[40:43], s10 offen")
    a("v_and_b32 v10, 7, v1"); a("v_lshlrev_b32 v10, 1, v10")
    a("s_lshl_b32 s10, s4, 3"); a("s_add_u32 s10, s10, s6"); a("s_lshl_b32 s62, s10, 3")
    a("s_lshl_b32 s10, s62, 1")
    a("buffer_load_ushort v14, v10, s[48:51], s10 offen")
    a("v_lshrrev_b32 v10, 1, v1"); a("v_lshlrev_b32 v10, 13, v10")
    a("v_and_b32 v11, 1, v1"); a("v_lshlrev_b32 v11, 4, v11"); a("v_add_u32 v10, v10, v11")
    a("s_lshl_b32 s10, s3, 20")
    a("s_lshl_b32 s11, s4, 10"); a("s_add_u32 s10, s10, s11")
    a("s_lshl_b32 s11, s7, 5"); a("s_add_u32 s10, s10, s11")
    a("s_lshl_b32 s11, s3, 12"); a(f"s_add_u32 s11, s11, {L_WQ}")
    for i in range(4):
        a("s_mov_b32 m0, s11")
        if i < 3: a("s_add_u32 s11, s11, 1024")
        else: a("s_nop 0")
        a(f"buffer_load_dwordx4 v10, s[28:31], s10 offen lds")
        if i < 3: a("s_add_u32 s10, s10, 0x40000")
    a("s_mov_b32 s60, 0x05040100"); a("s_mov_b32 s61, 0x07060302")
    a("s_mov_b32 s63, 0xffff0000")
    a("s_waitcnt vmcnt(7)")
    a("v_readfirstlane_b32 s8, v5")
    a("s_nop 1")
    a(f"s_add_u32 s8, s8, {TAGC}")
    for i in range(4):
        a(f"v_lshlrev_b32 v{20+2*i}, 16, v{16+i}")
        a(f"v_and_b32 v{21+2*i}, s63, v{16+i}")
    a("v_add_f32 v28, v20, v21"); a("v_add_f32 v29, v22, v23"); a("v_add_f32 v30, v24, v25"); a("v_add_f32 v31, v26, v27")
    a("v_add_f32 v28, v28, v29"); a("v_add_f32 v30, v30, v31"); a("v_add_f32 v28, v28, v30")
    allreduce("v_add_f32", [28], [29])
    a("v_mul_f32 v28, 0x3b000000, v28")
    for i in range(8):
        a(f"v_sub_f32 v{32+i}, v{20+i}, v28")
    a("v_mul_f32 v30, v32, v32")
    for i in range(1, 8):
        a(f"v_fmac_f32 v30, v{32+i}, v{32+i}")
    allreduce("v_add_f32", [30], [29])
    a("v_mul_f32 v30, 0x3b000000, v30")
    rb(28, 28)
    rb(30, 30)
    a(f"v_add_f32 v30, {EPS}, v30")
    rb(30, 30)
    a("v_sqrt_f32 v30, v30"); a("s_nop 0")
    rb(30, 30)
    a("v_rcp_f32 v30, v30")
    for i in range(8):
        a(f"v_sub_f32 v{32+i}, v{20+i}, v28")
    for i in range(4):
        a(f"v_cvt_pk_bf16_f32 v{40+i}, v{32+2*i}, v{33+2*i}")
    for i in range(4):
        a(f"v_lshlrev_b32 v{32+2*i}, 16, v{40+i}")
        a(f"v_and_b32 v{33+2*i}, s63, v{40+i}")
    for i in range(8):
        a(f"v_mul_f32 v{32+i}, v{32+i}, v30")
    for i in range(4):
        a(f"v_cvt_pk_bf16_f32 v{40+i}, v{32+2*i}, v{33+2*i}")
    a("s_lshl_b32 s10, s3, 10"); a(f"s_add_u32 s10, s10, {L_YB}")
    a("v_add_u32 v9, s10, v8")
    a("ds_write_b128 v9, v[40:43]")
    a("s_lshl_b32 s10, s3, 2")
    a("v_add_u32 v11, s10, v7")
    a(f"ds_write_b32 v11, v15 offset:{F_Y}")
    a("v_lshrrev_b32 v9, 2, v2")
    a("v_lshlrev_b32 v10, 3, v3")
    a("v_add_u32 v9, v9, v10")
    a("v_lshlrev_b32 v44, 5, v9")
    a("v_and_b32 v10, 3, v2"); a("v_lshlrev_b32 v10, 3, v10")
    a("v_add_u32 v44, v44, v10")
    a("s_lshl_b32 s10, s3, 12"); a(f"s_add_u32 s10, s10, {L_WQ}")
    a("v_add_u32 v44, s10, v44")
    a("s_waitcnt vmcnt(0)")
    for kt in range(4):
        a(f"ds_read_b64_tr_b16 v[{48+4*kt}:{49+4*kt}], v44 offset:{kt*1024}")
        a(f"ds_read_b64_tr_b16 v[{50+4*kt}:{51+4*kt}], v44 offset:{kt*1024+128}")
    a("v_and_b32 v45, 3, v2"); a("v_lshlrev_b32 v45, 10, v45")
    a("v_lshlrev_b32 v46, 4, v3"); a("v_add_u32 v45, v45, v46")
    a("s_lshl_b32 s10, s3, 8"); a(f"s_add_u32 s10, s10, {L_YB}")
    a("v_add_u32 v45, s10, v45")
    wait_flags4(F_Y, 40, 7)
    for kt in range(4):
        a(f"ds_read_b128 v[{64+4*kt}:{67+4*kt}], v45 offset:{kt*64}")
    a("s_waitcnt lgkmcnt(0)")
    for kt in range(4):
        c = "0" if kt == 0 else "v[40:43]"
        a(f"v_mfma_f32_16x16x32_bf16 v[40:43], v[{64+4*kt}:{67+4*kt}], v[{48+4*kt}:{51+4*kt}], {c}")
    a("v_lshlrev_b32 v46, 4, v2")
    a("s_lshl_b32 s10, s3, 8"); a(f"s_add_u32 s10, s10, {L_QP}")
    a("v_add_u32 v46, s10, v46")
    a("s_nop 4")
    a("ds_write_b128 v46, v[40:43]")
    a(f"ds_write_b32 v11, v15 offset:{F_QP}")
    a("s_lshl_b32 s64, s5, 3"); a("s_add_u32 s64, s64, s4"); a("s_lshl_b32 s64, s64, 20")
    a("s_lshl_b32 s10, s6, 17"); a("s_add_u32 s64, s64, s10")
    a("s_lshl_b32 s10, s3, 15"); a("s_add_u32 s65, s64, s10")
    a("v_lshlrev_b32 v47, 8, v2"); a("v_lshlrev_b32 v10, 4, v3"); a("v_add_u32 v47, v47, v10")
    a("v_lshlrev_b32 v46, 4, v2")
    a("s_lshl_b32 s10, s3, 2"); a(f"s_add_u32 s10, s10, {L_QP}")
    a("v_add_u32 v46, s10, v46")
    wait_flags4(F_QP, 40, 7)
    for w in range(4):
        a(f"ds_read_b32 v{40+w}, v46 offset:{w*256}")
    a("s_waitcnt lgkmcnt(0)")
    a("v_add_f32 v40, v40, v41"); a("v_add_f32 v42, v42, v43"); a("v_add_f32 v40, v40, v42")
    a("s_nop 1")
    a("v_mov_b32_dpp v41, v40 quad_perm:[1,0,3,2] row_mask:0xf bank_mask:0xf")
    a("v_cvt_pk_bf16_f32 v40, v40, v41")
    a("v_mov_b32 v41, s8")
    a("s_lshl_b32 s10, s4, 2"); a("s_add_u32 s10, s10, s3"); a("s_lshl_b32 s10, s10, 11")
    a("s_lshl_b32 s11, s7, 6"); a("s_add_u32 s10, s10, s11"); a(f"s_add_u32 s10, s10, {WS_QB}")
    a("v_lshlrev_b32 v42, 2, v2")
    a("s_mov_b64 exec, 0x5555")
    a("buffer_store_dwordx2 v[40:41], v42, s[56:59], s10 offen sc1")
    a("s_mov_b64 exec, -1")
    stamp(1)
    for t in range(8):
        for i in range(4):
            r = 64 + 16*t + 4*i
            a(f"buffer_load_dwordx4 v[{r}:{r+3}], v47, s[20:23], s65 offen offset:{i*64}{KVF}")
        if t < 7: a("s_add_u32 s65, s65, 4096")
    stamp(2)
    a("s_lshl_b32 s10, s4, 2"); a("s_add_u32 s10, s10, s5"); a("s_lshl_b32 s10, s10, 11")
    a("s_lshl_b32 s11, s3, 9"); a("s_add_u32 s10, s10, s11"); a(f"s_add_u32 s66, s10, {WS_QB}")
    a("v_lshlrev_b32 v9, 3, v1")
    a("s_mov_b32 s67, 0")
    Lq = lab("qg")
    a.label(Lq)
    a("buffer_load_dwordx2 v[40:41], v9, s[56:59], s66 offen sc1")
    a("s_waitcnt vmcnt(0)")
    tagcheck([41], 42, 44, Lq, 67)
    a("s_lshl_b32 s10, s3, 8"); a(f"s_add_u32 s10, s10, {L_QL}")
    a("v_lshlrev_b32 v10, 2, v1"); a("v_add_u32 v10, s10, v10")
    a("ds_write_b32 v10, v40")
    a(f"ds_write_b32 v11, v15 offset:{F_Q}")
    stamp(3)
    a("v_and_b32 v10, 3, v2"); a("v_lshlrev_b32 v10, 8, v10"); a("v_lshlrev_b32 v44, 4, v3"); a("v_add_u32 v10, v10, v44")
    a(f"v_add_u32 v10, {L_QL}, v10")
    wait_flags4(F_Q, 40, 7)
    for i in range(4):
        a(f"ds_read_b128 v[{16+4*i}:{19+4*i}], v10 offset:{i*64}")
    a("s_waitcnt lgkmcnt(0)")
    for t in range(8):
        for i in range(4):
            r = 64 + 16*t + 4*i
            c = "0" if i == 0 else f"v[{32+4*t}:{35+4*t}]"
            a(f"v_mfma_f32_16x16x32_bf16 v[{32+4*t}:{35+4*t}], v[{16+4*i}:{19+4*i}], v[{r}:{r+3}], {c}")
    a("s_nop 7")
    for aa in range(2):
        for q in range(1, 4):
            for h in range(4):
                a(f"v_mov_b32_dpp v{32+16*aa+h}, v{32+16*aa+4*q+h} quad_perm:[0,1,2,3] row_mask:{hex(1<<q)} bank_mask:0xf")
    S = [[32+16*aa+h for h in range(4)] for aa in range(2)]
    a(f"s_mov_b32 s68, {SCALE}")
    for rnd in range(2):
        for aa in range(2):
            for hp in range(2):
                r0, r1 = S[aa][2*hp], S[aa][2*hp+1]
                a(f"v_cvt_pk_bf16_f32 v{36+2*aa+hp}, v{r0}, v{r1}")
        for aa in range(2):
            for hp in range(2):
                r0, r1 = S[aa][2*hp], S[aa][2*hp+1]
                a(f"v_lshlrev_b32 v{r0}, 16, v{36+2*aa+hp}")
                a(f"v_and_b32 v{r1}, s63, v{36+2*aa+hp}")
        if rnd == 0:
            for aa in range(2):
                for h in range(4):
                    a(f"v_mul_f32 v{S[aa][h]}, s68, v{S[aa][h]}")
    for h in range(4):
        a(f"v_max_f32 v{40+h}, v{S[0][h]}, v{S[1][h]}")
    allreduce("v_max_f32", [40, 41, 42, 43], [44, 45, 46, 47])
    a(f"s_mov_b32 s69, {LOG2E}")
    for aa in range(2):
        for h in range(4):
            a(f"v_sub_f32 v{S[aa][h]}, v{S[aa][h]}, v{40+h}")
    for aa in range(2):
        for h in range(4):
            a(f"v_mul_f32 v{S[aa][h]}, s69, v{S[aa][h]}")
    for aa in range(2):
        for h in range(4):
            a(f"v_exp_f32 v{S[aa][h]}, v{S[aa][h]}")
    a("s_nop 0")
    for h in range(4):
        a(f"v_add_f32 v{52+h}, v{S[0][h]}, v{S[1][h]}")
    allreduce("v_add_f32", [52, 53, 54, 55], [44, 45, 46, 47])
    for h in range(4):
        a(f"v_mov_b32 v{56+2*h}, v{40+h}")
        a(f"v_mov_b32 v{57+2*h}, v{52+h}")
    a("s_lshl_b32 s10, s3, 5"); a(f"s_add_u32 s10, s10, {L_MLB}")
    a("v_mov_b32 v10, s10")
    a("ds_write_b128 v10, v[56:59]")
    a("ds_write_b128 v10, v[60:63] offset:16")
    a(f"ds_write_b32 v11, v15 offset:{F_ML}")
    wait_flags4(F_ML, 44, 7)
    a("v_lshlrev_b32 v10, 3, v2"); a(f"v_add_u32 v10, {L_MLB}, v10")
    a("ds_read_b64 v[192:193], v10")
    a("s_waitcnt lgkmcnt(0)")
    a("v_mov_b32 v194, v192")
    a("s_nop 1")
    a("v_max_f32_dpp v194, v194, v194 row_ror:4 row_mask:0xf bank_mask:0xf")
    a("s_nop 1")
    a("v_max_f32_dpp v194, v194, v194 row_ror:8 row_mask:0xf bank_mask:0xf")
    a("v_sub_f32 v195, v192, v194"); a("v_mul_f32 v195, s69, v195"); a("v_exp_f32 v195, v195"); a("s_nop 0")
    a("v_mul_f32 v196, v193, v195")
    a("s_nop 1")
    a("v_add_f32_dpp v196, v196, v196 row_ror:4 row_mask:0xf bank_mask:0xf")
    a("s_nop 1")
    a("v_add_f32_dpp v196, v196, v196 row_ror:8 row_mask:0xf bank_mask:0xf")
    a("v_rcp_f32 v197, v196"); a("s_nop 0")
    a("v_mul_f32 v197, v197, v195")
    a("v_mov_b32 v56, v194"); a("v_mov_b32 v57, s8"); a("v_mov_b32 v58, v196"); a("v_mov_b32 v59, s8")
    a("s_lshl_b32 s10, s5, 3"); a("s_add_u32 s70, s10, s4")
    a("s_lshl_b32 s10, s70, 3"); a("s_add_u32 s10, s10, s6"); a("s_lshl_b32 s10, s10, 6")
    a("s_lshl_b32 s11, s3, 4"); a("s_add_u32 s10, s10, s11"); a(f"s_add_u32 s10, s10, {WS_ML}")
    a("s_lshl_b64 s[12:13], 1, s3")
    a("v_mov_b32 v10, 0")
    a("s_mov_b64 exec, s[12:13]")
    a("buffer_store_dwordx4 v[56:59], v10, s[56:59], s10 offen sc1")
    a("s_mov_b64 exec, -1")
    a("s_lshl_b32 s10, s3, 2")
    for h in range(4):
        a(f"s_add_u32 s11, s10, {h}")
        a(f"v_readlane_b32 s{72+h}, v197, s11")
    a("s_nop 1")
    for aa in range(2):
        for h in range(4):
            a(f"v_mul_f32 v{S[aa][h]}, s{72+h}, v{S[aa][h]}")
    for aa in range(2):
        for hp in range(2):
            a(f"v_cvt_pk_bf16_f32 v{36+2*aa+hp}, v{S[aa][2*hp]}, v{S[aa][2*hp+1]}")
    a("v_lshrrev_b32 v10, 5, v1"); a("v_lshlrev_b32 v10, 8, v10")
    a("v_and_b32 v44, 3, v1"); a("v_lshlrev_b32 v44, 4, v44"); a("v_add_u32 v10, v10, v44")
    a("v_and_b32 v44, 31, v1"); a("v_lshrrev_b32 v44, 2, v44"); a("v_lshlrev_b32 v44, 1, v44"); a("v_add_u32 v10, v10, v44")
    a("s_lshl_b32 s10, s3, 10"); a(f"s_add_u32 s10, s10, {L_PB}")
    a("v_add_u32 v10, s10, v10")
    for aa in range(2):
        for hp in range(2):
            a(f"ds_write_b16 v10, v{36+2*aa+hp} offset:{aa*512 + (2*hp)*64}")
            a(f"ds_write_b16_d16_hi v10, v{36+2*aa+hp} offset:{aa*512 + (2*hp+1)*64}")
    a(f"ds_write_b32 v11, v15 offset:{F_P}")
    stamp(4)
    wait_flag1(F_W, 40, 11)
    a("v_lshrrev_b32 v9, 2, v2"); a("v_lshlrev_b32 v10, 3, v3"); a("v_add_u32 v9, v9, v10")
    a("v_and_b32 v10, 3, v2"); a("v_lshlrev_b32 v10, 3, v10")
    a("v_lshlrev_b32 v44, 7, v9"); a("v_add_u32 v44, v44, v10"); a("s_lshl_b32 s10, s3, 14"); a("v_add_u32 v44, s10, v44")
    for kt in range(4):
        for nt in range(4):
            r = 64 + (kt*4+nt)*4
            a(f"ds_read_b64_tr_b16 v[{r}:{r+1}], v44 offset:{L_WO + kt*4096 + nt*32}")
            a(f"ds_read_b64_tr_b16 v[{r+2}:{r+3}], v44 offset:{L_WO + kt*4096 + nt*32 + 512}")
        a("s_waitcnt lgkmcnt(0)")
    a("s_cmp_eq_u32 s6, 7")
    a("s_cbranch_scc1 L_now12")
    a("v_lshlrev_b32 v44, 6, v9"); a("v_add_u32 v44, v44, v10"); a("s_lshl_b32 s10, s3, 13"); a(f"s_add_u32 s10, s10, {L_W1}"); a("v_add_u32 v44, s10, v44")
    for kt in range(4):
        for nt in range(2):
            r = 128 + (kt*2+nt)*4
            a(f"ds_read_b64_tr_b16 v[{r}:{r+1}], v44 offset:{kt*2048 + nt*32}")
            a(f"ds_read_b64_tr_b16 v[{r+2}:{r+3}], v44 offset:{kt*2048 + nt*32 + 256}")
    a("s_waitcnt lgkmcnt(0)")
    a("v_lshlrev_b32 v44, 8, v9"); a("v_add_u32 v44, v44, v10"); a("s_lshl_b32 s10, s3, 13"); a(f"s_add_u32 s10, s10, {L_W2}"); a("v_add_u32 v44, s10, v44")
    for nt in range(8):
        r = 160 + nt*4
        a(f"ds_read_b64_tr_b16 v[{r}:{r+1}], v44 offset:{nt*32}")
        a(f"ds_read_b64_tr_b16 v[{r+2}:{r+3}], v44 offset:{nt*32 + 1024}")
        if nt == 3: a("s_waitcnt lgkmcnt(0)")
    a("s_waitcnt lgkmcnt(0)")
    a.label("L_now12")
    stamp(5)
    a("v_and_b32 v10, 1, v3"); a("v_lshlrev_b32 v10, 8, v10")
    a("s_lshl_b32 s10, s70, 9"); a("s_lshl_b32 s11, s3, 4"); a("s_add_u32 s10, s10, s11"); a(f"s_add_u32 s66, s10, {WS_ML}")
    a("s_mov_b32 s67, 0")
    Lm = lab("mg")
    a.label(Lm)
    for r in range(4):
        a(f"buffer_load_dwordx4 v[{192+4*r}:{195+4*r}], v10, s[56:59], s66 offen offset:{r*64} sc1")
    a("s_waitcnt vmcnt(0)")
    tagcheck([193, 195, 197, 199, 201, 203, 205, 207], 40, 44, Lm, 67)
    a("v_max_f32 v40, v192, v196"); a("v_max_f32 v41, v200, v204"); a("v_max_f32 v40, v40, v41")
    a("v_mov_b32 v41, v40"); a("s_nop 1"); a("v_permlane16_swap_b32 v40, v41"); a("v_max_f32 v40, v40, v41")
    for r in range(4):
        a(f"v_sub_f32 v{48+r}, v{192+4*r}, v40")
    for r in range(4):
        a(f"v_mul_f32 v{48+r}, s69, v{48+r}")
    for r in range(4):
        a(f"v_exp_f32 v{48+r}, v{48+r}")
    a("s_nop 0")
    for r in range(4):
        a(f"v_mul_f32 v{48+r}, v{48+r}, v{194+4*r}")
    a("v_add_f32 v40, v48, v49"); a("v_add_f32 v41, v50, v51"); a("v_add_f32 v40, v40, v41")
    a("v_mov_b32 v41, v40"); a("s_nop 1"); a("v_permlane16_swap_b32 v40, v41"); a("v_add_f32 v40, v40, v41")
    a("v_rcp_f32 v40, v40"); a("s_nop 0")
    for r in range(4):
        a(f"v_mul_f32 v{48+r}, v{48+r}, v40")
    stamp(6)
    for i in range(16):
        a(f"v_mov_b32 v{208+i}, 0")
    a("v_and_b32 v10, 7, v2"); a("v_lshlrev_b32 v10, 11, v10")
    a("v_lshrrev_b32 v44, 3, v2"); a("v_lshlrev_b32 v44, 7, v44"); a("v_add_u32 v10, v10, v44")
    a("v_lshlrev_b32 v44, 5, v3"); a("v_add_u32 v10, v10, v44")
    a("s_lshl_b32 s10, s70, 14"); a("s_lshl_b32 s11, s3, 9"); a("s_add_u32 s10, s10, s11"); a(f"s_add_u32 s66, s10, {WS_OP}")
    a("v_and_b32 v44, 1, v3"); a("v_lshlrev_b32 v44, 1, v44"); a("v_lshrrev_b32 v45, 1, v3"); a("v_or_b32 v44, v44, v45")
    a("v_lshlrev_b32 v44, 4, v44"); a("v_add_u32 v44, v44, v2"); a("v_lshlrev_b32 v44, 2, v44")
    a("s_lshl_b32 s10, s3, 8"); a(f"s_add_u32 s10, s10, {L_S1R}"); a("v_add_u32 v52, s10, v44")
    a("v_lshlrev_b32 v53, 2, v1"); a(f"v_add_u32 v53, {L_S1R}, v53")
    a("v_lshlrev_b32 v54, 3, v1")
    a("s_lshl_b32 s10, s70, 12"); a("s_lshl_b32 s11, s6, 9"); a("s_add_u32 s10, s10, s11"); a(f"s_add_u32 s71, s10, {WS_HP}")
    a("s_lshl_b32 s10, s3, 10"); a("v_lshlrev_b32 v55, 4, v1"); a("v_add_u32 v55, s10, v55")
    a("s_lshl_b32 s10, s5, 15"); a(f"s_add_u32 s88, s10, {WS_HP}")
    for k in range(1, 8):
        a(f"s_add_u32 s{88+k}, s88, {k*4096}")
    a("s_mov_b32 s67, 0")
    Lo = lab("og")
    a.label(Lo)
    for aa in range(2):
        a(f"buffer_load_dwordx4 v[{192+8*aa}:{195+8*aa}], v10, s[56:59], s66 offen offset:{aa*256} sc1")
        a(f"buffer_load_dwordx4 v[{196+8*aa}:{199+8*aa}], v10, s[56:59], s66 offen offset:{aa*256+16} sc1")
    a("s_waitcnt vmcnt(0)")
    tagcheck([193, 195, 197, 199, 201, 203, 205, 207], 40, 44, Lo, 67)
    stamp(7)
    for aa in range(2):
        for ktl in range(2):
            for i in range(4):
                src = 192 + 8*aa + 2*i
                a(f"v_mov_b32_dpp v{208+aa*8+ktl*4+i}, v{src} quad_perm:[0,1,2,3] row_mask:0xf bank_mask:{'0x3' if ktl == 0 else '0xc'}")
    a("s_nop 1")
    first = [True]*4
    for aa in range(2):
        for ktl in range(2):
            for nt in range(4):
                kt = 2*aa + ktl
                b = 64 + (kt*4+nt)*4
                A = 208 + aa*8 + ktl*4
                c = "0" if first[nt] else f"v[{32+4*nt}:{35+4*nt}]"
                first[nt] = False
                a(f"v_mfma_f32_16x16x32_bf16 v[{32+4*nt}:{35+4*nt}], v[{A}:{A+3}], v[{b}:{b+3}], {c}")
    a("s_nop 4")
    for r in range(4):
        for nt in range(4):
            if r == 0: a(f"v_mul_f32 v{56+nt}, v48, v{32+4*nt}")
            else: a(f"v_fmac_f32 v{56+nt}, v{48+r}, v{32+4*nt+r}")
    a("s_nop 1")
    a("v_permlane32_swap_b32 v56, v57")
    a("v_permlane32_swap_b32 v58, v59")
    a("v_add_f32 v56, v56, v57"); a("v_add_f32 v58, v58, v59")
    a("s_nop 1")
    a("v_permlane16_swap_b32 v56, v58")
    a("v_add_f32 v56, v56, v58")
    a("ds_write_b32 v52, v56")
    a("s_waitcnt lgkmcnt(0)")
    a("s_barrier")
    a("s_cmp_lg_u32 s3, 0")
    a("s_cbranch_scc1 L_s1done")
    for w in range(4):
        a(f"ds_read_b32 v{56+w}, v53 offset:{w*256}")
    a("s_waitcnt lgkmcnt(0)")
    a("v_add_f32 v56, v56, v57"); a("v_add_f32 v58, v58, v59"); a("v_add_f32 v56, v56, v58")
    a("v_mov_b32 v57, s8")
    a("buffer_store_dwordx2 v[56:57], v54, s[56:59], s71 offen sc1")
    a.label("L_s1done")
    stamp(8)
    a("s_mov_b32 s67, 0")
    Lh = lab("hg")
    a.label(Lh)
    for k in range(8):
        a(f"buffer_load_dwordx4 v[{192+4*k}:{195+4*k}], v55, s[56:59], s{88+k} offen sc1")
    a("s_waitcnt vmcnt(0)")
    tagcheck([193+2*i for i in range(16)], 40, 44, Lh, 67)
    stamp(9)
    for c in range(2):
        o = 192 + 2*c
        a(f"v_add_f32 v{40+c}, v{o}, v{o+4}"); a(f"v_add_f32 v{42+c}, v{o+8}, v{o+12}")
        a(f"v_add_f32 v{44+c}, v{o+16}, v{o+20}"); a(f"v_add_f32 v{46+c}, v{o+24}, v{o+28}")
    for c in range(2):
        a(f"v_add_f32 v{40+c}, v{40+c}, v{42+c}"); a(f"v_add_f32 v{44+c}, v{44+c}, v{46+c}")
    for c in range(2):
        a(f"v_add_f32 v{40+c}, v{40+c}, v{44+c}")
    a("v_cvt_pk_bf16_f32 v42, v40, v41")
    a("v_lshlrev_b32 v40, 16, v42"); a("v_and_b32 v41, s63, v42")
    a("v_lshlrev_b32 v43, 16, v12"); a("v_and_b32 v44, s63, v12")
    a("v_add_f32 v40, v40, v43"); a("v_add_f32 v41, v41, v44")
    a("v_cvt_pk_bf16_f32 v42, v40, v41")
    a("v_lshlrev_b32 v40, 16, v42"); a("v_and_b32 v41, s63, v42")
    a("s_lshl_b32 s10, s3, 8"); a("v_lshlrev_b32 v45, 2, v1"); a("v_add_u32 v45, s10, v45")
    a(f"v_add_u32 v46, {L_HB}, v45")
    a("ds_write_b32 v46, v42")
    a("v_add_f32 v43, v40, v41")
    allreduce("v_add_f32", [43], [44])
    a("v_mul_f32 v43, 0x3c000000, v43")
    a("v_sub_f32 v46, v40, v43"); a("v_sub_f32 v47, v41, v43")
    a("v_mul_f32 v46, v46, v46"); a("v_fmac_f32 v46, v47, v47")
    allreduce("v_add_f32", [46], [44])
    a("v_mov_b32 v56, v43"); a("v_mov_b32 v57, v46")
    a("s_lshl_b32 s10, s3, 3"); a(f"s_add_u32 s10, s10, {L_STAT}"); a("v_mov_b32 v47, s10")
    a("ds_write_b64 v47, v[56:57]")
    a("s_waitcnt lgkmcnt(0)")
    a("s_barrier")
    a("s_cmp_eq_u32 s6, 7")
    a("s_cbranch_scc1 L_s4")
    a(f"v_mov_b32 v47, {L_STAT}")
    a("ds_read_b128 v[56:59], v47"); a("ds_read_b128 v[60:63], v47 offset:16")
    a("s_waitcnt lgkmcnt(0)")
    a("v_add_f32 v43, v56, v58"); a("v_add_f32 v44, v60, v62"); a("v_add_f32 v43, v43, v44"); a("v_mul_f32 v43, 0.25, v43")
    a.lines[-1] = "v_mul_f32 v43, 0x3e800000, v43"
    for k in range(4):
        a(f"v_sub_f32 v{56+2*k}, v{56+2*k}, v43")
    a("v_mul_f32 v44, v56, v56"); a("v_fmac_f32 v44, v58, v58"); a("v_fmac_f32 v44, v60, v60"); a("v_fmac_f32 v44, v62, v62")
    a("v_add_f32 v46, v57, v59"); a("v_add_f32 v47, v61, v63"); a("v_add_f32 v46, v46, v47")
    a("v_mov_b32 v47, 0x43000000")
    a("v_fmac_f32 v46, v44, v47")
    a("v_mul_f32 v46, 0x3b000000, v46")
    rb(43, 43); rb(46, 46)
    a(f"v_add_f32 v46, {EPS}, v46"); rb(46, 46)
    a("v_sqrt_f32 v46, v46"); a("s_nop 0"); rb(46, 46)
    a("v_rcp_f32 v46, v46")
    a("v_sub_f32 v40, v40, v43"); a("v_sub_f32 v41, v41, v43")
    a("v_cvt_pk_bf16_f32 v42, v40, v41")
    a("v_lshlrev_b32 v40, 16, v42"); a("v_and_b32 v41, s63, v42")
    a("v_mul_f32 v40, v40, v46"); a("v_mul_f32 v41, v41, v46")
    a("v_cvt_pk_bf16_f32 v42, v40, v41")
    a(f"v_add_u32 v46, {L_Y2}, v45")
    a("ds_write_b32 v46, v42")
    a("s_lshl_b32 s10, s3, 8"); a(f"s_add_u32 s10, s10, {L_Y2}"); a("v_lshlrev_b32 v47, 4, v3"); a("v_add_u32 v47, s10, v47")
    for kt in range(4):
        a(f"ds_read_b128 v[{208+4*kt}:{211+4*kt}], v47 offset:{kt*64}")
    a("s_waitcnt lgkmcnt(0)")
    for kt in range(4):
        for nt in range(2):
            b = 128 + (kt*2+nt)*4
            c = "0" if kt == 0 else f"v[{32+4*nt}:{35+4*nt}]"
            a(f"v_mfma_f32_16x16x32_bf16 v[{32+4*nt}:{35+4*nt}], v[{208+4*kt}:{211+4*kt}], v[{b}:{b+3}], {c}")
    a("s_nop 7")
    a("v_mov_b32_dpp v32, v36 quad_perm:[0,1,2,3] row_mask:0x2 bank_mask:0xf")
    a(f"v_add_u32 v46, {L_T1}, v45")
    a("ds_write_b32 v46, v32")
    a("s_waitcnt lgkmcnt(0)")
    a("s_barrier")
    a("v_and_b32 v46, 31, v1"); a("v_lshlrev_b32 v46, 2, v46"); a(f"v_add_u32 v46, {L_T1}, v46")
    for w in range(4):
        a(f"ds_read_b32 v{40+w}, v46 offset:{w*256}")
    a("s_waitcnt lgkmcnt(0)")
    a("v_add_f32 v40, v40, v41"); a("v_add_f32 v42, v42, v43"); a("v_add_f32 v40, v40, v42")
    rb(40, 40)
    a("v_lshlrev_b32 v41, 16, v13")
    a("v_add_f32 v40, v40, v41")
    rb(40, 40)
    a("v_mul_f32 v41, v40, v40")
    a("v_mov_b32 v42, 0x3d372713")
    a("v_fma_f32 v41, v41, v42, 1.0")
    a("v_mul_f32 v41, v41, v40")
    a("v_mul_f32 v41, 0xc0135761, v41")
    a("v_exp_f32 v41, v41"); a("s_nop 0")
    a("v_add_f32 v41, 1.0, v41")
    a("v_rcp_f32 v41, v41"); a("s_nop 0")
    a("v_mul_f32 v40, v40, v41")
    a("v_cvt_pk_bf16_f32 v40, v40, v40")
    a("v_and_b32 v46, 31, v1"); a("v_lshlrev_b32 v46, 1, v46"); a("s_lshl_b32 s10, s3, 6"); a(f"s_add_u32 s10, s10, {L_GB}"); a("v_add_u32 v46, s10, v46")
    a("ds_write_b16 v46, v40")
    a("v_lshlrev_b32 v47, 4, v3"); a("v_add_u32 v47, s10, v47")
    a("ds_read_b128 v[44:47], v47")
    a("s_waitcnt lgkmcnt(0)")
    for nt in range(8):
        b = 160 + nt*4
        a(f"v_mfma_f32_16x16x32_bf16 v[{192+4*nt}:{195+4*nt}], v[44:47], v[{b}:{b+3}], 0")
    a("s_mul_i32 s10, s5, 56"); a("s_add_u32 s10, s10, s9"); a("s_lshl_b32 s10, s10, 12"); a("s_lshl_b32 s11, s3, 10"); a("s_add_u32 s10, s10, s11"); a(f"s_add_u32 s10, s10, {WS_GP}")
    a("s_nop 2")
    for q in range(1, 4):
        for aa in range(2):
            a(f"v_mov_b32_dpp v{192+16*aa}, v{192+16*aa+4*q} quad_perm:[0,1,2,3] row_mask:{hex(1<<q)} bank_mask:0xf")
        a("s_nop 0")
    a("v_mov_b32 v193, s8"); a("v_mov_b32 v209, s8")
    a("buffer_store_dwordx2 v[192:193], v54, s[56:59], s10 offen sc1")
    a("buffer_store_dwordx2 v[208:209], v54, s[56:59], s10 offen offset:512 sc1")
    stamp(10)
    a.label("L_s4")
    a("s_cmp_lg_u32 s3, 0")
    a("s_cbranch_scc1 L_kend")
    a("v_lshrrev_b32 v46, 3, v1"); a("v_lshlrev_b32 v46, 12, v46"); a("v_and_b32 v47, 7, v1"); a("v_lshlrev_b32 v44, 3, v47"); a("v_add_u32 v46, v46, v44")
    a(f"s_mul_i32 s10, s5, {56*4096}"); a("s_lshl_b32 s11, s62, 3"); a("s_add_u32 s10, s10, s11"); a(f"s_add_u32 s88, s10, {WS_GP}")
    for t in range(1, 7):
        a(f"s_add_u32 s{88+t}, s88, {t*32768}")
    a("s_lshl_b32 s10, s62, 1"); a(f"s_add_u32 s10, s10, {L_HB}"); a("v_lshlrev_b32 v44, 1, v47"); a("v_add_u32 v44, s10, v44")
    a("ds_read_u16 v45, v44")
    a("s_mov_b32 s67, 0")
    Lg = lab("gg")
    a.label(Lg)
    for t in range(7):
        a(f"buffer_load_dwordx2 v[{192+2*t}:{193+2*t}], v46, s[56:59], s{88+t} offen sc1")
    a("s_waitcnt vmcnt(0)")
    tagcheck([193+2*t for t in range(7)], 40, 42, Lg, 67)
    stamp(11)
    a("v_add_f32 v40, v192, v194"); a("v_add_f32 v41, v196, v198"); a("v_add_f32 v42, v200, v202")
    a("v_add_f32 v40, v40, v41"); a("v_add_f32 v42, v42, v204"); a("v_add_f32 v40, v40, v42")
    a("s_nop 1")
    a("v_add_f32_dpp v40, v40, v40 row_ror:8 row_mask:0xf bank_mask:0xf")
    for sw in ("v_permlane16_swap_b32", "v_permlane32_swap_b32"):
        a("v_mov_b32 v41, v40"); a("s_nop 1"); a(f"{sw} v40, v41"); a("v_add_f32 v40, v40, v41")
    rb(40, 40)
    a("v_lshlrev_b32 v41, 16, v14"); a("v_add_f32 v40, v40, v41"); rb(40, 40)
    a("s_waitcnt lgkmcnt(0)")
    a("v_lshlrev_b32 v45, 16, v45"); a("v_add_f32 v40, v40, v45")
    a("s_nop 1")
    a("v_mov_b32_dpp v41, v40 quad_perm:[1,0,3,2] row_mask:0xf bank_mask:0xf")
    a("v_cvt_pk_bf16_f32 v40, v40, v41")
    a("s_lshl_b32 s10, s5, 10"); a("s_lshl_b32 s11, s62, 1"); a("s_add_u32 s10, s10, s11")
    a("v_lshlrev_b32 v44, 1, v47")
    a("s_mov_b64 exec, 0x55")
    a("buffer_store_dword v40, v44, s[52:55], s10 offen")
    a("s_mov_b64 exec, -1")
    a("s_cmp_lg_u32 s2, 0")
    a("s_cbranch_scc1 L_kend")
    a("v_mov_b32 v40, s8"); a("v_mov_b32 v44, 0")
    a("s_mov_b64 exec, 1")
    a("buffer_store_dword v40, v44, s[56:59], 0 offen sc1")
    a("s_mov_b64 exec, -1")
    a.label("L_kend")
    if stamps:
        stamp(12)
        emit_stamps(a)
    a("s_endpgm")

    a.label("L_vwave")
    a("s_sub_u32 s11, s3, 4")
    a("s_mov_b32 s60, 0x05040100"); a("s_mov_b32 s61, 0x07060302")
    a("v_lshrrev_b32 v8, 3, v1"); a("v_lshlrev_b32 v8, 10, v8"); a("v_and_b32 v9, 7, v1"); a("v_lshlrev_b32 v9, 4, v9"); a("v_add_u32 v8, v8, v9")
    a("s_lshl_b32 s12, s4, 19"); a("s_lshl_b32 s13, s11, 17"); a("s_add_u32 s12, s12, s13"); a("s_lshl_b32 s13, s6, 7"); a("s_add_u32 s12, s12, s13")
    a("s_lshl_b32 s13, s11, 14"); a(f"s_add_u32 s13, s13, {L_WO}") if L_WO else None
    ndma = 0
    for i in range(16):
        a("s_mov_b32 m0, s13"); a("s_add_u32 s13, s13, 1024")
        a(f"buffer_load_dwordx4 v8, s[32:35], s12 offen{WF} lds"); ndma += 1
        a("s_add_u32 s12, s12, 8192")
    a("s_cmp_eq_u32 s6, 7")
    a("s_cbranch_scc1 L_nodma12")
    a("v_lshrrev_b32 v8, 2, v1"); a("v_mul_u32_u24 v8, 3584, v8"); a("v_and_b32 v9, 3, v1"); a("v_lshlrev_b32 v9, 4, v9"); a("v_add_u32 v8, v8, v9")
    a(f"s_mul_i32 s12, s11, {128*3584}"); a("s_lshl_b32 s13, s9, 6"); a("s_add_u32 s12, s12, s13")
    a("s_lshl_b32 s13, s11, 13"); a(f"s_add_u32 s13, s13, {L_W1}")
    for i in range(8):
        a("s_mov_b32 m0, s13"); a("s_add_u32 s13, s13, 1024")
        a(f"buffer_load_dwordx4 v8, s[36:39], s12 offen{WF} lds")
        a(f"s_add_u32 s12, s12, {16*3584}")
    a("v_lshrrev_b32 v8, 4, v1"); a("v_lshlrev_b32 v8, 10, v8"); a("v_and_b32 v9, 15, v1"); a("v_lshlrev_b32 v9, 4, v9"); a("v_add_u32 v8, v8, v9")
    a("s_lshl_b32 s12, s9, 15"); a("s_lshl_b32 s13, s11, 8"); a("s_add_u32 s12, s12, s13")
    a("s_lshl_b32 s13, s11, 13"); a(f"s_add_u32 s13, s13, {L_W2}")
    for i in range(8):
        a("s_mov_b32 m0, s13"); a("s_add_u32 s13, s13, 1024")
        a(f"buffer_load_dwordx4 v8, s[44:47], s12 offen{WF} lds")
        a("s_add_u32 s12, s12, 4096")
    a.label("L_nodma12")
    stamp(1)
    a("s_lshl_b32 s64, s5, 3"); a("s_add_u32 s70, s64, s4"); a("s_lshl_b32 s64, s70, 20")
    a("s_lshl_b32 s10, s6, 17"); a("s_add_u32 s64, s64, s10")
    a("s_lshl_b32 s10, s11, 15"); a("s_add_u32 s65, s64, s10")
    a("v_lshlrev_b32 v8, 4, v1")
    n = 0
    for T in range(4):
        for t in range(8):
            r = 64 + 32*T + 4*t
            a(f"buffer_load_dwordx4 v[{r}:{r+3}], v8, s[24:27], s65 offen offset:{(t%4)*1024}{KVF}")
            n += 1
            if t % 4 == 3 and n < 32: a("s_add_u32 s65, s65, 4096")
            if n == 16:
                a("s_waitcnt vmcnt(16)")
                a("s_lshl_b32 s10, s11, 2"); a("v_add_u32 v11, s10, v7")
                a(f"ds_write_b32 v11, v15 offset:{F_W}")
    stamp(2)
    a("v_mov_b32 v6, 0")
    a("buffer_load_dword v5, v6, s[56:59], 0 offen sc1")
    wait_flag1(F_P, 40, 11)
    a("v_lshrrev_b32 v10, 2, v2"); a("v_lshlrev_b32 v10, 6, v10"); a("v_lshlrev_b32 v12, 4, v3"); a("v_add_u32 v10, v10, v12")
    a("s_lshl_b32 s10, s11, 10"); a(f"s_add_u32 s10, s10, {L_PB}"); a("v_add_u32 v10, s10, v10")
    for T in range(4):
        a(f"ds_read_b128 v[{16+4*T}:{19+4*T}], v10 offset:{T*256}")
    stamp(3)
    def perms(T, dst, ulist):
        raw = 64 + 32*T
        for u in ulist:
            for jj in range(4):
                s1 = raw + 4*(2*u) + jj; s0 = raw + 4*(2*u+1) + jj
                a(f"v_perm_b32 v{dst + 4*(2*jj) + u}, v{s0}, v{s1}, s60")
                a(f"v_perm_b32 v{dst + 4*(2*jj+1) + u}, v{s0}, v{s1}, s61")
    def mfmas(T, src, js):
        for j in js:
            c = "0" if T == 0 else f"v[{224+4*j}:{227+4*j}]"
            a(f"v_mfma_f32_16x16x32_bf16 v[{224+4*j}:{227+4*j}], v[{16+4*T}:{19+4*T}], v[{src+4*j}:{src+4*j+3}], {c}")
    F = [192, 64, 96, 128]
    a("s_waitcnt vmcnt(25)")
    perms(0, F[0], range(4))
    a("s_waitcnt vmcnt(17) lgkmcnt(0)")
    for u in range(4):
        perms(1, F[1], [u]); mfmas(0, F[0], [2*u, 2*u+1])
    a("s_waitcnt vmcnt(9)")
    for u in range(4):
        perms(2, F[2], [u]); mfmas(1, F[1], [2*u, 2*u+1])
    for u in range(4):
        a(f"s_waitcnt vmcnt({7-2*u})")
        perms(3, F[3], [u]); mfmas(2, F[2], [2*u, 2*u+1])
    a("s_nop 1")
    mfmas(3, F[3], range(8))
    stamp(4)
    a("v_lshlrev_b32 v10, 9, v3"); a("v_lshlrev_b32 v12, 5, v2"); a("v_add_u32 v10, v10, v12")
    a("s_lshl_b32 s10, s11, 11"); a(f"s_add_u32 s10, s10, {L_RED}"); a("v_add_u32 v10, s10, v10")
    a("s_waitcnt vmcnt(0)")
    a("v_readfirstlane_b32 s8, v5")
    a("s_nop 3")
    a(f"s_add_u32 s8, s8, {TAGC}")
    for j in range(0, 8, 2):
        a(f"ds_write2_b32 v10, v{224+4*j}, v{224+4*(j+1)} offset0:{j} offset1:{j+1}")
    a(f"ds_write_b32 v11, v15 offset:{F_O}")
    wait_flags4(F_O, 40, 7)
    a("v_lshlrev_b32 v10, 3, v1"); a("s_lshl_b32 s10, s11, 9"); a(f"s_add_u32 s10, s10, {L_RED}"); a("v_add_u32 v12, s10, v10")
    for w in range(4):
        a(f"ds_read_b64 v[{40+2*w}:{41+2*w}], v12 offset:{w*2048}")
    a("s_waitcnt lgkmcnt(0)")
    for c in range(2):
        a(f"v_add_f32 v{40+c}, v{40+c}, v{42+c}"); a(f"v_add_f32 v{44+c}, v{44+c}, v{46+c}")
    for c in range(2):
        a(f"v_add_f32 v{40+c}, v{40+c}, v{44+c}")
    a("v_cvt_pk_bf16_f32 v40, v40, v41")
    a("v_mov_b32 v41, s8")
    a("s_lshl_b32 s10, s70, 3"); a("s_add_u32 s10, s10, s6"); a("s_lshl_b32 s10, s10, 11"); a("s_lshl_b32 s12, s11, 9"); a("s_add_u32 s10, s10, s12"); a(f"s_add_u32 s10, s10, {WS_OP}")
    a("buffer_store_dwordx2 v[40:41], v10, s[56:59], s10 offen sc1")
    if stamps:
        stamp(5)
        emit_stamps(a)
    a("s_endpgm")
    a.label("L_end")
    a("s_endpgm")
    return a

def emit_stamps(a):
    for i in range(13):
        a(f"v_mov_b32 v{192+i}, s{80+i}")
    for i in range(13, 16):
        a(f"v_mov_b32 v{192+i}, 0")
    a("s_lshl_b32 s10, s2, 3"); a("s_add_u32 s10, s10, s3"); a("s_lshl_b32 s10, s10, 6"); a(f"s_add_u32 s10, s10, {WS_STAMP}")
    a("v_mov_b32 v44, 0")
    a("s_mov_b64 exec, 1")
    for i in range(4):
        a(f"buffer_store_dwordx4 v[{192+4*i}:{195+4*i}], v44, s[56:59], s10 offen offset:{16*i}")
    a("s_mov_b64 exec, -1")

HDR = """; Fused pre-LN GQA decode attention + channel-MLP block, single persistent launch (256 workgroups x 8 waves).
; @launch grid=(256,1,1) block=(512,1,1) lds={lds}
.amdgcn_target "amdgcn-amd-amdhsa--gfx950"
.text
.globl {name}_kernel
.p2align 8
.type {name}_kernel,@function
{name}_kernel:
"""
FTR = """
.section .rodata,"a"
.p2align 6
.amdhsa_kernel {name}_kernel
  .amdhsa_next_free_vgpr 256
  .amdhsa_next_free_sgpr 102
  .amdhsa_accum_offset 256
  .amdhsa_group_segment_fixed_size 0
  .amdhsa_kernarg_size 104
  .amdhsa_user_sgpr_count 2
  .amdhsa_user_sgpr_kernarg_segment_ptr 1
  .amdhsa_system_sgpr_workgroup_id_x 1
.end_amdhsa_kernel
"""
def build(path, **kw):
    a = gen(**kw)
    probs = check_hazards(a.lines)
    open(path, "w").write(HDR.format(name=NAME, lds=LDS_BYTES) + a.text() + FTR.format(name=NAME))
    return probs

if __name__ == "__main__":
    out = sys.argv[1] if len(sys.argv) > 1 else "k.s"
    stamps = "stamps" in sys.argv
    probs = build(out, stamps=stamps)
    print("hazards:", len(probs))
```

```python
import sys
from asmlib import Asm, check_hazards

NAME = "sequential_preLN__gqa_block_cached__mixer_channel_mlp__decode"

WS_EPOCH = 0
WS_QB = 0x100000
WS_ML = 0x20000
WS_OP = 0x40000
WS_HP = 0x180000
WS_H  = 0x30000
WS_GP = 0x200000
WS_STAMP = 0x400000
L_W = 0
L_W2 = 32768
L_WQ = 65536
L_RED = 81920
L_R1 = 90112
L_YB = 98304
L_QPB = 102400
L_PB = 106496
L_T1 = 110592
L_GB = 114688
L_QL = 116736
L_FLAGS = 117760
L_MLB = 118016
LDS_BYTES = 122880
F_Y, F_QP, F_Q, F_ML, F_P, F_W, F_O, F_WR, F_KI = 0, 16, 32, 48, 64, 80, 96, 112, 128
L_WR = 118784

LOG2E = 0x3fb8aa3b
SCALE = 0x3db504f3
EPS = 0x3727c5ac
TAGC = 0x9E3779B9
POLL_MAX = 20000

def gen(stamps=False, psleep=2, tsleep=1, vearly=0, qearly=6, woprio=0, vhold=0):
    a = Asm()
    NT = " nt"
    uid = [0]
    def lab(p):
        uid[0] += 1
        return f"L_{p}_{uid[0]}"
    SB = 240
    def stamp(idx):
        if stamps:
            a("s_memrealtime s[78:79]")
            a("s_waitcnt lgkmcnt(0)")
            a(f"v_mov_b32 v{SB+idx}, s78")

    def allreduce(op, rs, tmps):
        k = len(rs)
        for rot in (8, 4, 2, 1):
            if k == 1: a("s_nop 1")
            elif k == 2: a("s_nop 0")
            for r in rs:
                a(f"{op}_dpp v{r}, v{r}, v{r} row_ror:{rot} row_mask:0xf bank_mask:0xf")
        for sw in ("v_permlane16_swap_b32", "v_permlane32_swap_b32"):
            for r, t in zip(rs, tmps):
                a(f"v_mov_b32 v{t}, v{r}")
            a("s_nop 1")
            for r, t in zip(rs, tmps):
                a(f"{sw} v{r}, v{t}")
            for r, t in zip(rs, tmps):
                a(f"{op} v{r}, v{r}, v{t}")
    def rb(dst, src):
        a(f"v_cvt_pk_bf16_f32 v{dst}, v{src}, v{src}")
        a(f"v_lshlrev_b32 v{dst}, 16, v{dst}")
    def wait_flags4(off, tmp, sleep=0):
        L = lab("wf")
        a.label(L)
        if sleep: a(f"s_sleep {sleep}")
        a(f"ds_read_b128 v[{tmp}:{tmp+3}], v7 offset:{off}")
        a("s_waitcnt lgkmcnt(0)")
        a(f"v_and_b32 v{tmp}, v{tmp}, v{tmp+1}")
        a(f"v_and_b32 v{tmp+2}, v{tmp+2}, v{tmp+3}")
        a(f"v_and_b32 v{tmp}, v{tmp}, v{tmp+2}")
        a("s_nop 0")
        a(f"v_readfirstlane_b32 s77, v{tmp}")
        a("s_nop 0")
        a("s_cmp_eq_u32 s77, 1")
        a(f"s_cbranch_scc0 {L}")
    def wait_flag1(off, tmp, sleep=0):
        L = lab("wf")
        a.label(L)
        if sleep: a(f"s_sleep {sleep}")
        a(f"ds_read_b32 v{tmp}, v11 offset:{off}")
        a("s_waitcnt lgkmcnt(0)")
        a(f"v_readfirstlane_b32 s77, v{tmp}")
        a("s_nop 0")
        a("s_cmp_eq_u32 s77, 1")
        a(f"s_cbranch_scc0 {L}")
    def tagcheck(tagregs, acc, t1, retry_label, cnt=67, sleep=0):
        first = True; i = 0
        while i < len(tagregs):
            if i + 1 < len(tagregs):
                a(f"v_xor_b32 v{t1}, s8, v{tagregs[i]}")
                if first:
                    a(f"v_xor_b32 v{acc}, s8, v{tagregs[i+1]}")
                    a(f"v_or_b32 v{acc}, v{acc}, v{t1}")
                else:
                    a(f"v_xor_b32 v{t1+1}, s8, v{tagregs[i+1]}")
                    a(f"v_or3_b32 v{acc}, v{acc}, v{t1}, v{t1+1}")
                i += 2
            else:
                if first: a(f"v_xor_b32 v{acc}, s8, v{tagregs[i]}")
                else:
                    a(f"v_xor_b32 v{t1}, s8, v{tagregs[i]}")
                    a(f"v_or_b32 v{acc}, v{acc}, v{t1}")
                i += 1
            first = False
        a(f"v_cmp_ne_u32 vcc, 0, v{acc}")
        done = lab("pd")
        a(f"s_cbranch_vccz {done}")
        if sleep: a(f"s_sleep {sleep}")
        a(f"s_add_u32 s{cnt}, s{cnt}, 1")
        a(f"s_cmp_lt_u32 s{cnt}, {POLL_MAX}")
        a(f"s_cbranch_scc1 {retry_label}")
        a.label(done)
    def layernorm8(e, tmp):
        t = tmp
        a(f"v_add_f32 v{t}, v{e}, v{e+1}"); a(f"v_add_f32 v{t+1}, v{e+2}, v{e+3}"); a(f"v_add_f32 v{t+2}, v{e+4}, v{e+5}"); a(f"v_add_f32 v{t+3}, v{e+6}, v{e+7}")
        a(f"v_add_f32 v{t}, v{t}, v{t+1}"); a(f"v_add_f32 v{t+2}, v{t+2}, v{t+3}"); a(f"v_add_f32 v{t}, v{t}, v{t+2}")
        allreduce("v_add_f32", [t], [t+1])
        a(f"v_mul_f32 v{t}, 0x3b000000, v{t}")
        a(f"v_sub_f32 v{t+3}, v{e}, v{t}"); a(f"v_mul_f32 v{t+2}, v{t+3}, v{t+3}")
        for i in range(1, 8):
            a(f"v_sub_f32 v{t+3+(i&1)}, v{e+i}, v{t}")
            a(f"v_fmac_f32 v{t+2}, v{t+3+(i&1)}, v{t+3+(i&1)}")
        allreduce("v_add_f32", [t+2], [t+1])
        a(f"v_mul_f32 v{t+2}, 0x3b000000, v{t+2}")
        rb(t, t); rb(t+2, t+2)
        a(f"v_add_f32 v{t+2}, {EPS}, v{t+2}"); rb(t+2, t+2)
        a(f"v_sqrt_f32 v{t+2}, v{t+2}"); a("s_nop 0"); rb(t+2, t+2)
        a(f"v_rcp_f32 v{t+2}, v{t+2}")
        for i in range(8): a(f"v_sub_f32 v{e+i}, v{e+i}, v{t}")
        for i in range(4): a(f"v_cvt_pk_bf16_f32 v{t+8+i}, v{e+2*i}, v{e+2*i+1}")
        for i in range(4):
            a(f"v_lshlrev_b32 v{e+2*i}, 16, v{t+8+i}"); a(f"v_and_b32 v{e+2*i+1}, s63, v{t+8+i}")
        for i in range(8): a(f"v_mul_f32 v{e+i}, v{e+i}, v{t+2}")
        for i in range(4): a(f"v_cvt_pk_bf16_f32 v{t+8+i}, v{e+2*i}, v{e+2*i+1}")

    a("s_cmp_ge_u32 s2, 256")
    a("s_cbranch_scc1 L_end")
    if stamps: a("s_memrealtime s[78:79]")
    for (sr, off) in ((24, 16), (20, 8), (56, 96), (16, 0), (28, 24), (32, 32), (36, 48), (40, 56), (44, 64), (48, 72), (52, 80)):
        a(f"s_load_dwordx2 s[{sr}:{sr+1}], s[0:1], {off}")
    a("v_lshrrev_b32 v4, 6, v0")
    a("v_and_b32 v1, 63, v0")
    a("v_readfirstlane_b32 s3, v4")
    a("v_and_b32 v2, 15, v1")
    a("v_lshrrev_b32 v3, 4, v1")
    a("s_and_b32 s4, s2, 7")
    a("s_lshr_b32 s7, s2, 3")
    a("s_lshr_b32 s5, s7, 3")
    a("s_and_b32 s6, s7, 7")
    sizes = {16: 4096, 20: 33554432, 24: 33554432, 28: 4194304, 32: 4194304, 36: 1835008, 40: 3584, 44: 1835008, 48: 1024, 52: 4096, 56: 268435456}
    for sr, sz in sizes.items():
        a(f"s_mov_b32 s{sr+2}, {sz}")
        a(f"s_mov_b32 s{sr+3}, 0x20000")
    a("v_lshlrev_b32 v5, 2, v1")
    a(f"v_add_u32 v5, {L_FLAGS}, v5")
    a("v_mov_b32 v6, 0")
    a("ds_write_b32 v5, v6")
    a(f"v_mov_b32 v7, {L_FLAGS}")
    a("v_mov_b32 v15, 1")
    a("s_and_b32 s11, s3, 3")
    a("s_lshl_b32 s10, s11, 2"); a("v_add_u32 v11, s10, v7")
    a("s_mov_b32 s60, 0x05040100"); a("s_mov_b32 s61, 0x07060302"); a("s_mov_b32 s63, 0xffff0000")
    a("s_lshl_b32 s70, s5, 3"); a("s_add_u32 s70, s70, s4")
    a("s_lshl_b32 s64, s70, 20"); a("s_lshl_b32 s10, s6, 17"); a("s_add_u32 s64, s64, s10")
    a("s_lshl_b32 s10, s11, 15"); a("s_add_u32 s65, s64, s10")
    a("s_lshl_b32 s10, s4, 3"); a("s_add_u32 s10, s10, s6")
    a("s_lshr_b32 s76, s10, 4"); a("s_and_b32 s10, s10, 15"); a("s_lshl_b32 s62, s10, 5")
    a("s_waitcnt lgkmcnt(0)")
    if stamps:
        for i in range(16): a(f"v_mov_b32 v{SB+i}, 0")
        a(f"v_mov_b32 v{SB}, s78")
    a("s_barrier")
    a("s_cmp_ge_u32 s3, 4")
    a("s_cbranch_scc1 L_vwave")

    a("s_setprio 2")
    a("v_mov_b32 v6, 0")
    a("buffer_load_dword v5, v6, s[56:59], 0 offen sc1")
    a("v_lshlrev_b32 v47, 8, v2"); a("v_lshlrev_b32 v10, 4, v3"); a("v_add_u32 v47, v47, v10")
    a("s_lshl_b32 s10, s4, 2"); a("s_add_u32 s10, s10, s5"); a("s_lshl_b32 s10, s10, 14"); a("s_lshl_b32 s12, s11, 10"); a("s_add_u32 s10, s10, s12"); a(f"s_add_u32 s66, s10, {WS_QB}")
    for k in range(1, 4): a(f"s_add_u32 s{71+k}, s66, {k*4096}")
    a("v_lshlrev_b32 v9, 4, v1")
    def qloads():
        for k in range(4):
            a(f"buffer_load_dwordx4 v[{16+4*k}:{19+4*k}], v9, s[56:59], s{66 if k == 0 else 71+k} offen sc1")
    for t in range(8):
        for i in range(4):
            r = 64 + 16*t + 4*i
            a(f"buffer_load_dwordx4 v[{r}:{r+3}], v47, s[20:23], s65 offen offset:{i*64}{NT}")
        if t < 7: a("s_add_u32 s65, s65, 4096")
        if t == qearly - 1: qloads()
        if vhold and t == vhold - 1: a(f"ds_write_b32 v11, v15 offset:{F_KI}")
    stamp(2)
    nafter = (8 - qearly) * 4
    a(f"s_waitcnt vmcnt({nafter})")
    a("v_readfirstlane_b32 s8, v5")
    a("s_mov_b32 s67, 0")
    a(f"s_add_u32 s8, s8, {TAGC}")
    Lq = lab("qg"); Lq2 = lab("qg2")
    a(f"s_branch {Lq2}")
    a.label(Lq)
    qloads()
    a("s_waitcnt vmcnt(0)")
    a.label(Lq2)
    tagcheck([17+2*i for i in range(8)], 40, 44, Lq, sleep=psleep)
    if stamps: a(f"v_mov_b32 v{SB+1}, s67")
    a("v_add_f32 v16, v16, v20"); a("v_add_f32 v24, v24, v28"); a("v_add_f32 v18, v18, v22"); a("v_add_f32 v26, v26, v30")
    a("v_add_f32 v16, v16, v24"); a("v_add_f32 v18, v18, v26")
    a("v_cvt_pk_bf16_f32 v40, v16, v18")
    a("s_lshl_b32 s10, s11, 8"); a(f"s_add_u32 s10, s10, {L_QL}")
    a("v_lshlrev_b32 v10, 2, v1"); a("v_add_u32 v10, s10, v10")
    a("ds_write_b32 v10, v40")
    a(f"ds_write_b32 v11, v15 offset:{F_Q}")
    stamp(3)
    a("v_and_b32 v10, 3, v2"); a("v_lshlrev_b32 v10, 8, v10"); a("v_lshlrev_b32 v44, 4, v3"); a("v_add_u32 v10, v10, v44")
    a(f"v_add_u32 v10, {L_QL}, v10")
    wait_flags4(F_Q, 40)
    for i in range(4):
        a(f"ds_read_b128 v[{16+4*i}:{19+4*i}], v10 offset:{i*64}")
    a("s_waitcnt lgkmcnt(0)")
    for t in range(8):
        if t >= qearly: a(f"s_waitcnt vmcnt({(7-t)*4})")
        for i in range(4):
            r = 64 + 16*t + 4*i
            c = "0" if i == 0 else f"v[{32+4*t}:{35+4*t}]"
            a(f"v_mfma_f32_16x16x32_bf16 v[{32+4*t}:{35+4*t}], v[{16+4*i}:{19+4*i}], v[{r}:{r+3}], {c}")
    a("s_nop 7")
    for aa in range(2):
        for q in range(1, 4):
            for h in range(4):
                a(f"v_mov_b32_dpp v{32+16*aa+h}, v{32+16*aa+4*q+h} quad_perm:[0,1,2,3] row_mask:{hex(1<<q)} bank_mask:0xf")
    S = [[32+16*aa+h for h in range(4)] for aa in range(2)]
    a(f"s_mov_b32 s68, {SCALE}")
    for rnd in range(2):
        for aa in range(2):
            for hp in range(2):
                a(f"v_cvt_pk_bf16_f32 v{36+2*aa+hp}, v{S[aa][2*hp]}, v{S[aa][2*hp+1]}")
        for aa in range(2):
            for hp in range(2):
                a(f"v_lshlrev_b32 v{S[aa][2*hp]}, 16, v{36+2*aa+hp}")
                a(f"v_and_b32 v{S[aa][2*hp+1]}, s63, v{36+2*aa+hp}")
        if rnd == 0:
            for aa in range(2):
                for h in range(4):
                    a(f"v_mul_f32 v{S[aa][h]}, s68, v{S[aa][h]}")
    for h in range(4): a(f"v_max_f32 v{40+h}, v{S[0][h]}, v{S[1][h]}")
    allreduce("v_max_f32", [40, 41, 42, 43], [44, 45, 46, 47])
    a(f"s_mov_b32 s69, {LOG2E}")
    for aa in range(2):
        for h in range(4): a(f"v_sub_f32 v{S[aa][h]}, v{S[aa][h]}, v{40+h}")
    for aa in range(2):
        for h in range(4): a(f"v_mul_f32 v{S[aa][h]}, s69, v{S[aa][h]}")
    for aa in range(2):
        for h in range(4): a(f"v_exp_f32 v{S[aa][h]}, v{S[aa][h]}")
    a("s_nop 0")
    for h in range(4): a(f"v_add_f32 v{52+h}, v{S[0][h]}, v{S[1][h]}")
    allreduce("v_add_f32", [52, 53, 54, 55], [44, 45, 46, 47])
    for h in range(4):
        a(f"v_mov_b32 v{56+2*h}, v{40+h}"); a(f"v_mov_b32 v{57+2*h}, v{52+h}")
    a("s_lshl_b32 s10, s11, 5"); a(f"s_add_u32 s10, s10, {L_MLB}")
    a("v_mov_b32 v10, s10")
    a("ds_write_b128 v10, v[56:59]")
    a("ds_write_b128 v10, v[60:63] offset:16")
    a(f"ds_write_b32 v11, v15 offset:{F_ML}")
    a("v_lshlrev_b32 v10, 3, v2"); a(f"v_add_u32 v10, {L_MLB}, v10")
    wait_flags4(F_ML, 44)
    a("ds_read_b64 v[192:193], v10")
    a("s_waitcnt lgkmcnt(0)")
    a("v_mov_b32 v194, v192")
    a("s_nop 1")
    a("v_max_f32_dpp v194, v194, v194 row_ror:4 row_mask:0xf bank_mask:0xf")
    a("s_nop 1")
    a("v_max_f32_dpp v194, v194, v194 row_ror:8 row_mask:0xf bank_mask:0xf")
    a("v_sub_f32 v195, v192, v194"); a("v_mul_f32 v195, s69, v195"); a("v_exp_f32 v195, v195"); a("s_nop 0")
    a("v_mul_f32 v196, v193, v195")
    a("s_nop 1")
    a("v_add_f32_dpp v196, v196, v196 row_ror:4 row_mask:0xf bank_mask:0xf")
    a("s_nop 1")
    a("v_add_f32_dpp v196, v196, v196 row_ror:8 row_mask:0xf bank_mask:0xf")
    a("v_rcp_f32 v197, v196"); a("s_nop 0")
    a("v_mul_f32 v197, v197, v195")
    a("s_lshl_b32 s10, s11, 2")
    for h in range(4):
        a(f"s_add_u32 s12, s10, {h}")
        a(f"v_readlane_b32 s{72+h}, v197, s12")
    a("v_mov_b32 v56, v194"); a("v_mov_b32 v57, s8"); a("v_mov_b32 v58, v196"); a("v_mov_b32 v59, s8")
    for aa in range(2):
        for h in range(4): a(f"v_mul_f32 v{S[aa][h]}, s{72+h}, v{S[aa][h]}")
    for aa in range(2):
        for hp in range(2): a(f"v_cvt_pk_bf16_f32 v{36+2*aa+hp}, v{S[aa][2*hp]}, v{S[aa][2*hp+1]}")
    a("v_lshrrev_b32 v10, 5, v1"); a("v_lshlrev_b32 v10, 8, v10")
    a("v_and_b32 v44, 3, v1"); a("v_lshlrev_b32 v44, 4, v44"); a("v_add_u32 v10, v10, v44")
    a("v_and_b32 v44, 31, v1"); a("v_lshrrev_b32 v44, 2, v44"); a("v_lshlrev_b32 v44, 1, v44"); a("v_add_u32 v10, v10, v44")
    a("s_lshl_b32 s10, s11, 10"); a(f"s_add_u32 s10, s10, {L_PB}")
    a("v_add_u32 v10, s10, v10")
    for aa in range(2):
        for hp in range(2):
            a(f"ds_write_b16 v10, v{36+2*aa+hp} offset:{aa*512 + (2*hp)*64}")
            a(f"ds_write_b16_d16_hi v10, v{36+2*aa+hp} offset:{aa*512 + (2*hp+1)*64}")
    a(f"ds_write_b32 v11, v15 offset:{F_P}")
    a("s_lshl_b32 s10, s70, 3"); a("s_add_u32 s10, s10, s6"); a("s_lshl_b32 s10, s10, 6")
    a("s_lshl_b32 s12, s11, 4"); a("s_add_u32 s10, s10, s12"); a(f"s_add_u32 s10, s10, {WS_ML}")
    a("s_lshl_b64 s[12:13], 1, s11")
    a("v_mov_b32 v10, 0")
    a("s_mov_b64 exec, s[12:13]")
    a("buffer_store_dwordx4 v[56:59], v10, s[56:59], s10 offen sc1")
    a("s_mov_b64 exec, -1")
    a(f"s_setprio {woprio}")
    stamp(4)
    a("s_cmp_lt_u32 s7, 16"); a("s_cbranch_scc1 L_dmaA")
    a("s_cmp_lt_u32 s7, 23"); a("s_cbranch_scc1 L_dmaB")
    a("s_branch L_fin")
    a.label("L_dmaA")
    a("v_lshrrev_b32 v40, 1, v2"); a("v_xor_b32 v40, v40, v3"); a("v_lshlrev_b32 v40, 5, v40")
    a("v_lshlrev_b32 v41, 10, v3"); a("v_add_u32 v40, v40, v41"); a("v_and_b32 v41, 1, v1"); a("v_lshlrev_b32 v41, 4, v41"); a("v_add_u32 v40, v40, v41")
    a("v_xor_b32 v41, 0x80, v40")
    a("s_lshl_b32 s12, s4, 2"); a("s_lshr_b32 s13, s7, 2"); a("s_add_u32 s12, s12, s13"); a("s_lshl_b32 s12, s12, 17")
    a("s_lshl_b32 s13, s11, 15"); a("s_add_u32 s12, s12, s13"); a("s_and_b32 s13, s7, 3"); a("s_lshl_b32 s13, s13, 8"); a("s_add_u32 s12, s12, s13")
    a("s_lshl_b32 s13, s11, 13")
    if L_W: a(f"s_add_u32 s13, s13, {L_W}")
    for i in range(8):
        a("s_mov_b32 m0, s13"); a("s_add_u32 s13, s13, 1024")
        a(f"buffer_load_dwordx4 v{40 + ((i>>1)&1)}, s[32:35], s12 offen{NT} lds"); a("s_add_u32 s12, s12, 4096")
    a("s_lshr_b32 s72, s7, 2")
    a("v_lshlrev_b32 v14, 4, v1")
    a("v_lshrrev_b32 v10, 1, v3"); a("v_lshlrev_b32 v10, 12, v10"); a("v_and_b32 v9, 1, v3"); a("v_lshlrev_b32 v9, 8, v9"); a("v_add_u32 v10, v10, v9")
    a("s_lshl_b32 s12, s4, 9"); a("s_lshl_b32 s10, s72, 4"); a("s_add_u32 s10, s10, s12"); a(f"s_add_u32 s66, s10, {WS_ML}"); a("s_add_u32 s68, s66, 8192")
    a("s_mov_b32 s67, 0")
    Lm = lab("mg"); Lm2 = lab("mg2")
    for rs in range(2):
        for r in range(4):
            a(f"buffer_load_dwordx4 v[{192+16*rs+4*r}:{195+16*rs+4*r}], v10, s[56:59], s{66 if rs == 0 else 68} offen offset:{r*64} sc1")
    a("s_waitcnt vmcnt(8)")
    a(f"ds_write_b32 v11, v15 offset:{F_W}")
    stamp(5)
    a(f"s_branch {Lm2}")
    a.label(Lm)
    for rs in range(2):
        for r in range(4):
            a(f"buffer_load_dwordx4 v[{192+16*rs+4*r}:{195+16*rs+4*r}], v10, s[56:59], s{66 if rs == 0 else 68} offen offset:{r*64} sc1")
    a.label(Lm2)
    a("s_waitcnt vmcnt(0)")
    tagcheck([193+2*i for i in range(16)], 40, 44, Lm, sleep=4)
    for rs in range(2):
        B = 192 + 16*rs; W = 48 + 4*rs; T = 40 + 2*rs
        a(f"v_max_f32 v{T}, v{B}, v{B+4}"); a(f"v_max_f32 v{T+1}, v{B+8}, v{B+12}"); a(f"v_max_f32 v{T}, v{T}, v{T+1}")
        a(f"v_mov_b32 v{T+1}, v{T}"); a("s_nop 1"); a(f"v_permlane16_swap_b32 v{T}, v{T+1}"); a(f"v_max_f32 v{T}, v{T}, v{T+1}")
        for r in range(4): a(f"v_sub_f32 v{W+r}, v{B+4*r}, v{T}")
        for r in range(4): a(f"v_mul_f32 v{W+r}, s69, v{W+r}")
        for r in range(4): a(f"v_exp_f32 v{W+r}, v{W+r}")
        a("s_nop 0")
        for r in range(4): a(f"v_mul_f32 v{W+r}, v{W+r}, v{B+4*r+2}")
        a(f"v_add_f32 v{T}, v{W}, v{W+1}"); a(f"v_add_f32 v{T+1}, v{W+2}, v{W+3}"); a(f"v_add_f32 v{T}, v{T}, v{T+1}")
        a(f"v_mov_b32 v{T+1}, v{T}"); a("s_nop 1"); a(f"v_permlane16_swap_b32 v{T}, v{T+1}"); a(f"v_add_f32 v{T}, v{T}, v{T+1}")
        a(f"v_rcp_f32 v{T}, v{T}"); a("s_nop 0")
        for r in range(4): a(f"v_mul_f32 v{W+r}, v{W+r}, v{T}")
    a("s_lshl_b32 s10, s11, 10"); a(f"s_add_u32 s10, s10, {L_WR}"); a("v_add_u32 v9, s10, v14")
    a("ds_write_b128 v9, v[52:55]")
    a(f"ds_write_b32 v11, v15 offset:{F_WR}")
    a("s_branch L_tail")
    a.label("L_dmaB")
    wait_flags4(F_O, 44, sleep=2)
    a("s_mul_i32 s9, s4, 7"); a("s_add_u32 s9, s9, s7"); a("s_sub_u32 s9, s9, 16")
    a("v_lshrrev_b32 v40, 2, v1"); a("v_mul_u32_u24 v40, 3584, v40")
    a("v_lshrrev_b32 v41, 1, v1"); a("v_and_b32 v41, 1, v41"); a("v_lshrrev_b32 v42, 5, v1"); a("v_xor_b32 v41, v41, v42"); a("v_lshlrev_b32 v41, 5, v41"); a("v_add_u32 v40, v40, v41")
    a("v_and_b32 v41, 1, v1"); a("v_lshlrev_b32 v41, 4, v41"); a("v_add_u32 v40, v40, v41")
    a(f"s_mul_i32 s12, s11, {128*3584}"); a("s_lshl_b32 s13, s9, 6"); a("s_add_u32 s12, s12, s13")
    a("s_lshl_b32 s13, s11, 13")
    if L_W: a(f"s_add_u32 s13, s13, {L_W}")
    for i in range(8):
        a("s_mov_b32 m0, s13"); a("s_add_u32 s13, s13, 1024")
        a(f"buffer_load_dwordx4 v40, s[36:39], s12 offen{NT} lds"); a(f"s_add_u32 s12, s12, {16*3584}")
    a("v_lshlrev_b32 v40, 4, v1"); a("s_and_b32 s12, s11, 1"); a("s_lshl_b32 s12, s12, 7"); a("v_xor_b32 v40, s12, v40")
    a("v_xor_b32 v41, 32, v40"); a("v_xor_b32 v42, 64, v40"); a("v_xor_b32 v43, 0x60, v40")
    a("s_lshl_b32 s12, s9, 15"); a("s_lshl_b32 s13, s11, 13"); a("s_add_u32 s12, s12, s13")
    a("s_lshl_b32 s13, s11, 13"); a(f"s_add_u32 s13, s13, {L_W2}")
    for i in range(8):
        a("s_mov_b32 m0, s13"); a("s_add_u32 s13, s13, 1024")
        a(f"buffer_load_dwordx4 v{40 + (i&3)}, s[44:47], s12 offen{NT} lds"); a("s_add_u32 s12, s12, 1024")
    a.label("L_dmadone")
    a("s_waitcnt vmcnt(0)")
    a(f"ds_write_b32 v11, v15 offset:{F_W}")
    stamp(5)
    a("s_branch L_tail")

    a.label("L_vwave")
    a("s_setprio 3")
    a("v_mov_b32 v6, 0")
    a("buffer_load_dword v5, v6, s[56:59], 0 offen sc1")
    a("v_lshlrev_b32 v14, 4, v1")
    a("s_lshl_b32 s10, s11, 10")
    a("buffer_load_dwordx4 v[16:19], v14, s[16:19], s10 offen")
    a("v_lshrrev_b32 v10, 3, v1"); a("v_lshlrev_b32 v10, 13, v10"); a("v_and_b32 v9, 7, v1"); a("v_lshlrev_b32 v9, 4, v9"); a("v_add_u32 v10, v10, v9")
    a("s_lshl_b32 s10, s5, 20"); a("s_lshl_b32 s12, s11, 18"); a("s_add_u32 s10, s10, s12")
    a("s_lshl_b32 s12, s4, 10"); a("s_add_u32 s10, s10, s12"); a("s_lshl_b32 s12, s6, 7"); a("s_add_u32 s10, s10, s12")
    a("s_lshl_b32 s12, s11, 12"); a(f"s_add_u32 s12, s12, {L_WQ}")
    for i in range(4):
        a("s_mov_b32 m0, s12"); a("s_add_u32 s12, s12, 1024")
        a(f"buffer_load_dwordx4 v10, s[28:31], s10 offen{NT} lds"); a("s_add_u32 s10, s10, 0x10000")
    nv = [0]
    def vloads(n):
        for _ in range(n):
            k = nv[0]; r = 64 + 4*k
            a(f"buffer_load_dwordx4 v[{r}:{r+3}], v14, s[24:27], s65 offen offset:{(k%4)*1024}{NT}")
            nv[0] += 1
            if nv[0] % 4 == 0 and nv[0] < 32: a("s_add_u32 s65, s65, 4096")
    a("s_setprio 1")
    vloads(vearly)
    a("s_setprio 3")
    a(f"s_waitcnt vmcnt({4+vearly})")
    stamp(6)
    a("v_readfirstlane_b32 s8, v5")
    for i in range(4):
        a(f"v_lshlrev_b32 v{20+2*i}, 16, v{16+i}"); a(f"v_and_b32 v{21+2*i}, s63, v{16+i}")
    a(f"s_add_u32 s8, s8, {TAGC}")
    layernorm8(20, 32)
    a("s_lshl_b32 s10, s11, 10"); a(f"s_add_u32 s10, s10, {L_YB}")
    a("v_add_u32 v9, s10, v14")
    a("ds_write_b128 v9, v[40:43]")
    a(f"ds_write_b32 v11, v15 offset:{F_Y}")
    a("v_lshrrev_b32 v9, 2, v2"); a("v_lshlrev_b32 v10, 3, v3"); a("v_add_u32 v9, v9, v10"); a("v_lshlrev_b32 v44, 7, v9")
    a("v_and_b32 v10, 3, v2"); a("v_lshlrev_b32 v10, 3, v10"); a("v_add_u32 v44, v44, v10")
    a("s_lshl_b32 s10, s11, 12"); a(f"s_add_u32 s10, s10, {L_WQ}"); a("v_add_u32 v44, s10, v44")
    a("v_and_b32 v45, 3, v2"); a("v_lshlrev_b32 v45, 10, v45"); a("v_lshlrev_b32 v46, 4, v3"); a("v_add_u32 v45, v45, v46")
    a("s_lshl_b32 s10, s5, 8"); a("s_lshl_b32 s12, s11, 6"); a("s_add_u32 s10, s10, s12"); a(f"s_add_u32 s10, s10, {L_YB}"); a("v_add_u32 v45, s10, v45")
    wait_flags4(F_Y, 40)
    a("ds_read_b128 v[192:195], v45")
    a(f"s_waitcnt vmcnt({vearly})")
    stamp(7)
    for nt in range(4):
        a(f"ds_read_b64_tr_b16 v[{196+4*nt}:{197+4*nt}], v44 offset:{nt*32}")
        a(f"ds_read_b64_tr_b16 v[{198+4*nt}:{199+4*nt}], v44 offset:{nt*32+512}")
    a("v_lshlrev_b32 v46, 4, v2"); a("s_lshl_b32 s10, s11, 10"); a(f"s_add_u32 s10, s10, {L_QPB}"); a("v_add_u32 v46, s10, v46")
    a("s_lshl_b32 s10, s11, 2"); a(f"s_add_u32 s10, s10, {L_QPB}"); a("v_add_u32 v47, s10, v14")
    a("s_waitcnt lgkmcnt(0)")
    for nt in range(4):
        a(f"v_mfma_f32_16x16x32_bf16 v[{212+4*nt}:{215+4*nt}], v[192:195], v[{196+4*nt}:{199+4*nt}], 0")
    a("s_lshl_b32 s10, s4, 2"); a("s_add_u32 s10, s10, s11"); a("s_lshl_b32 s10, s10, 2"); a("s_add_u32 s10, s10, s5"); a("s_lshl_b32 s10, s10, 12")
    a("s_lshl_b32 s12, s6, 9"); a("s_add_u32 s10, s10, s12"); a(f"s_add_u32 s10, s10, {WS_QB}")
    a("v_lshlrev_b32 v13, 3, v1")
    for nt in range(4):
        a(f"ds_write_b128 v46, v[{212+4*nt}:{215+4*nt}] offset:{nt*256}")
    a(f"ds_write_b32 v11, v15 offset:{F_QP}")
    wait_flags4(F_QP, 40)
    for w in range(4): a(f"ds_read_b32 v{40+w}, v47 offset:{w*1024}")
    a("v_mov_b32 v45, s8")
    a("s_waitcnt lgkmcnt(0)")
    a("v_add_f32 v40, v40, v41"); a("v_add_f32 v42, v42, v43"); a("v_add_f32 v44, v40, v42")
    a("buffer_store_dwordx2 v[44:45], v13, s[56:59], s10 offen sc1")
    a("s_setprio 1")
    stamp(1)
    if vhold: wait_flag1(F_KI, 40, sleep=2)
    vloads(32 - vearly)
    stamp(2)
    a("v_lshlrev_b32 v10, 2, v2")
    a("s_lshl_b32 s10, s76, 10"); a("s_lshl_b32 s12, s62, 1"); a("s_add_u32 s10, s10, s12")
    a("buffer_load_dword v12, v10, s[16:19], s10 offen")
    a("buffer_load_dword v8, v10, s[48:51], s12 offen")
    wait_flag1(F_P, 40, sleep=1)
    a("v_lshrrev_b32 v10, 2, v2"); a("v_lshlrev_b32 v10, 6, v10"); a("v_lshlrev_b32 v9, 4, v3"); a("v_add_u32 v10, v10, v9")
    a("s_lshl_b32 s10, s11, 10"); a(f"s_add_u32 s10, s10, {L_PB}"); a("v_add_u32 v10, s10, v10")
    for T in range(4): a(f"ds_read_b128 v[{16+4*T}:{19+4*T}], v10 offset:{T*256}")
    stamp(3)
    def perms(T, dst, ulist):
        raw = 64 + 32*T
        for u in ulist:
            for jj in range(4):
                s1 = raw + 4*(2*u) + jj; s0 = raw + 4*(2*u+1) + jj
                a(f"v_perm_b32 v{dst + 4*(2*jj) + u}, v{s0}, v{s1}, s60")
                a(f"v_perm_b32 v{dst + 4*(2*jj+1) + u}, v{s0}, v{s1}, s61")
    ACC = 32
    def mfmas(T, src, js):
        for j in js:
            c = "0" if T == 0 else f"v[{ACC+4*j}:{ACC+4*j+3}]"
            a(f"v_mfma_f32_16x16x32_bf16 v[{ACC+4*j}:{ACC+4*j+3}], v[{16+4*T}:{19+4*T}], v[{src+4*j}:{src+4*j+3}], {c}")
    F = [192, 64, 96, 128]
    def after(k):
        n = (31 - k) + 2
        if k < vearly: n += 1
        return min(63, n)
    a(f"s_waitcnt vmcnt({after(7)})")
    perms(0, F[0], range(4))
    a(f"s_waitcnt vmcnt({after(15)}) lgkmcnt(0)")
    for u in range(4):
        perms(1, F[1], [u]); mfmas(0, F[0], [2*u, 2*u+1])
    a(f"s_waitcnt vmcnt({after(23)})")
    for u in range(4):
        perms(2, F[2], [u]); mfmas(1, F[1], [2*u, 2*u+1])
    for u in range(4):
        a(f"s_waitcnt vmcnt({after(24+2*u+1)})")
        perms(3, F[3], [u]); mfmas(2, F[2], [2*u, 2*u+1])
    a("s_nop 1")
    mfmas(3, F[3], range(8))
    stamp(4)
    a("v_lshlrev_b32 v10, 9, v3"); a("v_lshlrev_b32 v9, 5, v2"); a("v_add_u32 v10, v10, v9")
    a("s_lshl_b32 s10, s11, 11"); a(f"s_add_u32 s10, s10, {L_RED}"); a("v_add_u32 v10, s10, v10")
    a("s_lshl_b32 s10, s11, 9"); a(f"s_add_u32 s10, s10, {L_RED}"); a("v_add_u32 v9, s10, v13")
    a("s_lshl_b32 s10, s70, 3"); a("s_add_u32 s10, s10, s6"); a("s_lshl_b32 s10, s10, 11"); a("s_lshl_b32 s12, s11, 9"); a("s_add_u32 s10, s10, s12"); a(f"s_add_u32 s10, s10, {WS_OP}")
    for j in range(0, 8, 2):
        a(f"ds_write2_b32 v10, v{ACC+4*j}, v{ACC+4*(j+1)} offset0:{j} offset1:{j+1}")
    a(f"ds_write_b32 v11, v15 offset:{F_O}")
    wait_flags4(F_O, 16)
    for w in range(4): a(f"ds_read_b64 v[{16+2*w}:{17+2*w}], v9 offset:{w*2048}")
    a("s_waitcnt lgkmcnt(0)")
    for c in range(2):
        a(f"v_add_f32 v{16+c}, v{16+c}, v{18+c}"); a(f"v_add_f32 v{20+c}, v{20+c}, v{22+c}")
    for c in range(2): a(f"v_add_f32 v{16+c}, v{16+c}, v{20+c}")
    a("v_cvt_pk_bf16_f32 v16, v16, v17")
    a("v_mov_b32 v17, s8")
    a("buffer_store_dwordx2 v[16:17], v13, s[56:59], s10 offen sc1")
    stamp(5)

    a.label("L_tail")
    a("s_setprio 3")
    a("v_lshlrev_b32 v13, 3, v1")
    a("v_lshlrev_b32 v14, 4, v1")
    a(f"s_mov_b32 s69, {LOG2E}")
    a("s_cmp_lt_u32 s7, 16"); a("s_cbranch_scc1 L_roleA")
    a("s_cmp_lt_u32 s7, 23"); a("s_cbranch_scc1 L_roleB")
    a("s_cmp_lt_u32 s7, 24"); a("s_cbranch_scc1 L_fin")
    a("s_cmp_eq_u32 s3, 7"); a("s_cbranch_scc1 L_s2")
    a("s_branch L_fin")

    a.label("L_roleA")
    a("s_lshr_b32 s71, s3, 2")
    a("s_lshr_b32 s72, s7, 2")
    a("s_and_b32 s73, s7, 3")
    a("v_lshrrev_b32 v21, 3, v2"); a("v_lshlrev_b32 v21, 17, v21"); a("v_and_b32 v9, 7, v2"); a("v_lshlrev_b32 v9, 11, v9"); a("v_add_u32 v21, v21, v9")
    a("v_lshlrev_b32 v9, 5, v3"); a("v_add_u32 v21, v21, v9")
    a("s_lshl_b32 s10, s71, 18"); a("s_lshl_b32 s12, s4, 14"); a("s_add_u32 s10, s10, s12"); a("s_lshl_b32 s12, s72, 9"); a("s_add_u32 s10, s10, s12")
    a("s_lshl_b32 s12, s11, 7"); a("s_add_u32 s10, s10, s12"); a(f"s_add_u32 s75, s10, {WS_OP}")
    a("s_cmp_lt_u32 s3, 4"); a("s_cbranch_scc1 L_A_common")
    a("buffer_load_dwordx4 v[192:195], v21, s[56:59], s75 offen sc1")
    a("buffer_load_dwordx4 v[196:199], v21, s[56:59], s75 offen offset:16 sc1")
    a.label("L_A_common")
    a("v_lshrrev_b32 v9, 2, v2"); a("v_lshlrev_b32 v10, 3, v3"); a("v_add_u32 v10, v10, v9"); a("v_lshlrev_b32 v10, 8, v10")
    a("v_and_b32 v44, 3, v2"); a("v_lshlrev_b32 v44, 3, v44"); a("v_add_u32 v10, v10, v44")
    a("v_and_b32 v44, 1, v3"); a("v_lshlrev_b32 v44, 2, v44"); a("v_or_b32 v44, v44, v9"); a("v_lshlrev_b32 v44, 5, v44"); a("v_add_u32 v10, v10, v44")
    a("s_lshl_b32 s10, s11, 13")
    if L_W: a(f"s_add_u32 s10, s10, {L_W}")
    a("v_add_u32 v24, s10, v10")
    for nt in range(1, 8): a(f"v_xor_b32 v{24+nt}, {nt*32}, v24")
    wait_flag1(F_W, 40, sleep=1)
    stamp(12)
    for nt in range(8):
        a(f"ds_read_b64_tr_b16 v[{64+4*nt}:{65+4*nt}], v{24+nt}")
        a(f"ds_read_b64_tr_b16 v[{66+4*nt}:{67+4*nt}], v{24+nt} offset:1024")
        if nt == 3: a("s_waitcnt lgkmcnt(0)")
    a("v_lshrrev_b32 v9, 1, v3"); a("v_lshlrev_b32 v9, 9, v9"); a("v_and_b32 v44, 1, v3"); a("v_lshlrev_b32 v44, 6, v44"); a("v_add_u32 v9, v9, v44")
    a("v_lshlrev_b32 v44, 2, v2"); a("v_add_u32 v9, v9, v44")
    a("s_lshl_b32 s10, s11, 11"); a("s_lshl_b32 s12, s71, 10"); a("s_add_u32 s10, s10, s12"); a(f"s_add_u32 s10, s10, {L_R1}"); a("v_add_u32 v60, s10, v9")
    a("s_lshl_b32 s10, s3, 8"); a(f"s_add_u32 s10, s10, {L_R1}"); a("v_lshlrev_b32 v9, 2, v1"); a("v_add_u32 v61, s10, v9")
    a("s_lshr_b32 s10, s3, 1"); a("s_lshl_b32 s10, s10, 5"); a("s_lshl_b32 s12, s4, 2"); a("s_add_u32 s10, s10, s12"); a("s_add_u32 s10, s10, s72"); a("s_lshl_b32 s10, s10, 12")
    a("s_lshl_b32 s12, s73, 10"); a("s_add_u32 s10, s10, s12"); a("s_and_b32 s12, s3, 1"); a("s_lshl_b32 s12, s12, 9"); a("s_add_u32 s10, s10, s12"); a(f"s_add_u32 s74, s10, {WS_HP}")
    a("s_mov_b32 s67, 0")
    a("s_cmp_lt_u32 s3, 4"); a("s_cbranch_scc1 L_A_k2")
    wait_flag1(F_WR, 40)
    a("s_lshl_b32 s10, s11, 10"); a(f"s_add_u32 s10, s10, {L_WR}"); a("v_add_u32 v9, s10, v14")
    a("ds_read_b128 v[48:51], v9")
    Lo = lab("og"); Lo2 = lab("og2")
    a(f"s_branch {Lo2}")
    a.label("L_A_k2")
    a("s_waitcnt lgkmcnt(0)")
    wait_flags4(F_O, 40, sleep=1)
    a.label(Lo)
    a("buffer_load_dwordx4 v[192:195], v21, s[56:59], s75 offen sc1")
    a("buffer_load_dwordx4 v[196:199], v21, s[56:59], s75 offen offset:16 sc1")
    a.label(Lo2)
    if stamps: a(f"v_cmp_eq_u32 vcc, 0, v{SB+13}");
    if stamps:
        Lsk = lab("sk"); a(f"s_cbranch_vccz {Lsk}"); stamp(13); a.label(Lsk)
    a("s_waitcnt vmcnt(0) lgkmcnt(0)")
    tagcheck([193, 195, 197, 199], 40, 44, Lo, sleep=tsleep)
    stamp(8)
    a("v_mov_b32 v200, v192"); a("v_mov_b32 v201, v194"); a("v_mov_b32 v202, v196"); a("v_mov_b32 v203, v198")
    a("s_nop 1")
    for nt in range(8):
        a(f"v_mfma_f32_16x16x32_bf16 v[{96+4*nt}:{99+4*nt}], v[200:203], v[{64+4*nt}:{67+4*nt}], 0")
    a("s_nop 0")
    for r in range(4):
        for nt in range(8):
            if r == 0: a(f"v_mul_f32 v{128+nt}, v48, v{96+4*nt}")
            else: a(f"v_fmac_f32 v{128+nt}, v{48+r}, v{96+4*nt+r}")
    a("s_nop 0")
    for p in range(4): a(f"v_permlane16_swap_b32 v{128+2*p}, v{129+2*p}")
    for p in range(4): a(f"v_add_f32 v{128+2*p}, v{128+2*p}, v{129+2*p}")
    for p in range(4): a(f"ds_write_b32 v60, v{128+2*p} offset:{p*128}")
    a("s_waitcnt lgkmcnt(0)")
    a("s_barrier")
    for kt in range(4): a(f"ds_read_b32 v{40+kt}, v61 offset:{kt*2048}")
    a("v_mov_b32 v45, s8")
    a("s_waitcnt lgkmcnt(0)")
    a("v_add_f32 v40, v40, v41"); a("v_add_f32 v42, v42, v43"); a("v_add_f32 v44, v40, v42")
    a("buffer_store_dwordx2 v[44:45], v13, s[56:59], s74 offen sc1")
    stamp(9)
    a("s_branch L_fin")

    a.label("L_roleB")
    a("s_mul_i32 s9, s4, 7"); a("s_add_u32 s9, s9, s7"); a("s_sub_u32 s9, s9, 16")
    a("v_and_b32 v10, 31, v1"); a("v_lshlrev_b32 v10, 1, v10"); a("s_lshl_b32 s10, s9, 6")
    a("buffer_load_ushort v16, v10, s[40:43], s10 offen")
    a("v_lshrrev_b32 v9, 2, v2"); a("v_lshlrev_b32 v10, 3, v3"); a("v_add_u32 v9, v10, v9")
    a("v_and_b32 v44, 3, v2"); a("v_lshlrev_b32 v44, 3, v44")
    a("v_lshlrev_b32 v10, 6, v9"); a("v_add_u32 v10, v10, v44"); a("v_and_b32 v45, 1, v3"); a("v_lshlrev_b32 v46, 5, v45"); a("v_add_u32 v10, v10, v46")
    a("s_lshl_b32 s10, s3, 12")
    if L_W: a(f"s_add_u32 s10, s10, {L_W}")
    a("v_add_u32 v52, s10, v10"); a("v_xor_b32 v53, 32, v52")
    a("v_lshlrev_b32 v10, 10, v9"); a("v_add_u32 v10, v10, v44")
    a("v_lshrrev_b32 v46, 2, v2"); a("v_lshlrev_b32 v45, 2, v45"); a("v_or_b32 v46, v46, v45"); a("v_lshlrev_b32 v46, 5, v46"); a("v_add_u32 v10, v10, v46")
    a("s_lshl_b32 s10, s3, 7"); a("v_xor_b32 v10, s10, v10"); a(f"v_add_u32 v54, {L_W2}, v10")
    for q in range(1, 4): a(f"v_xor_b32 v{54+q}, {q*32}, v54")
    wait_flags4(F_W, 40, sleep=1)
    for kt in range(2):
        for nt in range(2):
            r = 64 + (kt*2+nt)*4
            a(f"ds_read_b64_tr_b16 v[{r}:{r+1}], v{52+nt} offset:{kt*2048}")
            a(f"ds_read_b64_tr_b16 v[{r+2}:{r+3}], v{52+nt} offset:{kt*2048+256}")
    for q in range(4):
        r = 80 + 4*q
        a(f"ds_read_b64_tr_b16 v[{r}:{r+1}], v{54+q}")
        a(f"ds_read_b64_tr_b16 v[{r+2}:{r+3}], v{54+q} offset:4096")
    a("v_and_b32 v58, 3, v2"); a("v_lshlrev_b32 v58, 10, v58"); a("v_lshlrev_b32 v9, 4, v3"); a("v_add_u32 v58, v58, v9")
    a("s_lshl_b32 s10, s3, 7"); a(f"s_add_u32 s10, s10, {L_YB}"); a("v_add_u32 v58, s10, v58")
    a("v_lshlrev_b32 v59, 4, v2"); a("s_lshl_b32 s10, s3, 9"); a(f"s_add_u32 s10, s10, {L_T1}"); a("v_add_u32 v59, s10, v59")
    a("v_and_b32 v60, 31, v1"); a("v_lshlrev_b32 v60, 4, v60"); a("v_lshrrev_b32 v9, 5, v1"); a("v_lshlrev_b32 v9, 11, v9"); a("v_add_u32 v60, v60, v9"); a(f"v_add_u32 v60, {L_T1}, v60")
    a("v_and_b32 v61, 31, v1"); a("v_lshlrev_b32 v61, 1, v61"); a("v_lshrrev_b32 v9, 5, v1"); a("v_lshlrev_b32 v9, 7, v9"); a("v_add_u32 v61, v61, v9")
    a("s_lshl_b32 s10, s3, 8"); a(f"s_add_u32 s10, s10, {L_GB}"); a("v_add_u32 v61, s10, v61")
    a("v_and_b32 v62, 3, v2"); a("v_lshlrev_b32 v62, 6, v62"); a("v_lshlrev_b32 v9, 4, v3"); a("v_add_u32 v62, v62, v9"); a("v_add_u32 v62, s10, v62")
    a("s_lshl_b32 s10, s9, 12"); a("s_lshl_b32 s12, s3, 9"); a("s_add_u32 s10, s10, s12"); a(f"s_add_u32 s72, s10, {WS_GP}")
    for bb in range(1, 4): a(f"s_add_u32 s{72+bb}, s72, {bb*56*4096}")
    a("s_waitcnt lgkmcnt(0)")
    a("s_cmp_ge_u32 s3, 4"); a("s_cbranch_scc1 L_B_ln_done")
    a("v_lshlrev_b32 v10, 5, v1"); a("s_lshl_b32 s10, s3, 11"); a(f"s_add_u32 s66, s10, {WS_H}")
    a("s_mov_b32 s67, 0")
    Lh = lab("hg"); a.label(Lh)
    a("buffer_load_dwordx4 v[192:195], v10, s[56:59], s66 offen sc1")
    a("buffer_load_dwordx4 v[196:199], v10, s[56:59], s66 offen offset:16 sc1")
    a("s_waitcnt vmcnt(0)")
    tagcheck([193, 195, 197, 199], 40, 44, Lh, sleep=tsleep)
    stamp(10)
    for i in range(4):
        a(f"v_lshlrev_b32 v{20+2*i}, 16, v{192+2*i}"); a(f"v_and_b32 v{21+2*i}, s63, v{192+2*i}")
    layernorm8(20, 32)
    a("s_lshl_b32 s10, s3, 10"); a(f"s_add_u32 s10, s10, {L_YB}"); a("v_add_u32 v9, s10, v14")
    a("ds_write_b128 v9, v[40:43]")
    a.label("L_B_ln_done")
    a("s_waitcnt vmcnt(0) lgkmcnt(0)")
    a("s_barrier")
    for kt in range(2): a(f"ds_read_b128 v[{192+4*kt}:{195+4*kt}], v58 offset:{kt*64}")
    a("s_waitcnt lgkmcnt(0)")
    for kt in range(2):
        for nt in range(2):
            r = 64 + (kt*2+nt)*4
            c = "0" if kt == 0 else f"v[{96+4*nt}:{99+4*nt}]"
            a(f"v_mfma_f32_16x16x32_bf16 v[{96+4*nt}:{99+4*nt}], v[{192+4*kt}:{195+4*kt}], v[{r}:{r+3}], {c}")
    a("v_lshlrev_b32 v16, 16, v16")
    a("s_nop 6")
    for nt in range(2): a(f"ds_write_b128 v59, v[{96+4*nt}:{99+4*nt}] offset:{nt*256}")
    a("s_waitcnt lgkmcnt(0)")
    a("s_barrier")
    for i in range(4): a(f"ds_read_b128 v[{192+4*i}:{195+4*i}], v60 offset:{i*512}")
    a("s_waitcnt lgkmcnt(0)")
    for c in range(4):
        a(f"v_add_f32 v{192+c}, v{192+c}, v{196+c}"); a(f"v_add_f32 v{200+c}, v{200+c}, v{204+c}")
    for c in range(4): a(f"v_add_f32 v{192+c}, v{192+c}, v{200+c}")
    a("s_nop 1")
    a("v_permlane32_swap_b32 v192, v194"); a("v_permlane32_swap_b32 v193, v195")
    a("v_add_f32 v40, v192, v194"); a("v_add_f32 v41, v193, v195")
    a("v_cvt_pk_bf16_f32 v42, v40, v41"); a("v_lshlrev_b32 v40, 16, v42"); a("v_and_b32 v41, s63, v42")
    a("v_add_f32 v40, v40, v16"); a("v_add_f32 v41, v41, v16")
    a("v_cvt_pk_bf16_f32 v42, v40, v41"); a("v_lshlrev_b32 v40, 16, v42"); a("v_and_b32 v41, s63, v42")
    a("v_mov_b32 v46, 0x3d372713")
    for c in range(2): a(f"v_mul_f32 v{42+c}, v{40+c}, v{40+c}")
    for c in range(2): a(f"v_fma_f32 v{42+c}, v{42+c}, v46, 1.0")
    for c in range(2): a(f"v_mul_f32 v{42+c}, v{42+c}, v{40+c}")
    for c in range(2): a(f"v_mul_f32 v{42+c}, 0xc0135761, v{42+c}")
    for c in range(2): a(f"v_exp_f32 v{42+c}, v{42+c}")
    a("s_nop 0")
    for c in range(2): a(f"v_add_f32 v{42+c}, 1.0, v{42+c}")
    for c in range(2): a(f"v_rcp_f32 v{42+c}, v{42+c}")
    a("s_nop 0")
    for c in range(2): a(f"v_mul_f32 v{40+c}, v{40+c}, v{42+c}")
    a("v_cvt_pk_bf16_f32 v40, v40, v41")
    a("ds_write_b16 v61, v40"); a("ds_write_b16_d16_hi v61, v40 offset:64")
    a("ds_read_b128 v[192:195], v62")
    a("s_waitcnt lgkmcnt(0)")
    for q in range(4):
        a(f"v_mfma_f32_16x16x32_bf16 v[{96+4*q}:{99+4*q}], v[192:195], v[{80+4*q}:{83+4*q}], 0")
    for r in range(4): a(f"v_mov_b32 v{113+2*r}, s8")
    a("s_nop 3")
    for q in range(1, 4):
        for r in range(4):
            a(f"v_mov_b32_dpp v{96+r}, v{96+4*q+r} quad_perm:[0,1,2,3] row_mask:{hex(1<<q)} bank_mask:0xf")
    for r in range(4): a(f"v_mov_b32 v{112+2*r}, v{96+r}")
    for r in range(4): a(f"buffer_store_dwordx2 v[{112+2*r}:{113+2*r}], v13, s[56:59], s{72+r} offen sc1")
    stamp(11)
    a("s_branch L_fin")

    a.label("L_s2")
    a("v_lshlrev_b32 v10, 12, v3"); a("v_lshlrev_b32 v9, 4, v2"); a("v_add_u32 v18, v10, v9")
    a("s_lshl_b32 s10, s76, 17"); a("s_lshl_b32 s12, s62, 3"); a("s_add_u32 s10, s10, s12"); a(f"s_add_u32 s80, s10, {WS_HP}")
    for t in range(1, 8): a(f"s_add_u32 s{80+t}, s80, {t*16384}")
    a(f"s_mul_i32 s10, s76, {56*4096}"); a("s_lshl_b32 s12, s62, 3"); a("s_add_u32 s10, s10, s12"); a(f"s_add_u32 s88, s10, {WS_GP}")
    for t in range(1, 14): a(f"s_add_u32 s{88+t}, s88, {t*16384}")
    a("s_lshl_b32 s10, s76, 11"); a("s_lshl_b32 s12, s62, 2"); a("s_add_u32 s10, s10, s12"); a(f"s_add_u32 s72, s10, {WS_H}")
    a("v_lshlrev_b32 v17, 3, v2")
    a("s_lshl_b32 s10, s76, 10"); a("s_lshl_b32 s12, s62, 1"); a("s_add_u32 s73, s10, s12")
    a("v_lshlrev_b32 v16, 2, v2")
    a("s_mov_b32 s67, 0")
    Ls = lab("sg"); a.label(Ls)
    for t in range(8): a(f"buffer_load_dwordx4 v[{64+4*t}:{67+4*t}], v18, s[56:59], s{80+t} offen sc1")
    a("s_waitcnt vmcnt(0)")
    tagcheck([65+2*i for i in range(16)], 40, 44, Ls, sleep=tsleep)
    stamp(12)
    def tree(c, n):
        regs = [64 + 4*t + 2*c for t in range(n)]
        while len(regs) > 1:
            nxt = []
            for i in range(0, len(regs) - 1, 2):
                a(f"v_add_f32 v{regs[i]}, v{regs[i]}, v{regs[i+1]}"); nxt.append(regs[i])
            if len(regs) % 2: nxt.append(regs[-1])
            regs = nxt
        return regs[0]
    def tree2(n):
        ra = [64 + 4*t for t in range(n)]
        while len(ra) > 1:
            nxt = []
            for i in range(0, len(ra) - 1, 2):
                a(f"v_add_f32 v{ra[i]}, v{ra[i]}, v{ra[i+1]}"); a(f"v_add_f32 v{ra[i]+2}, v{ra[i]+2}, v{ra[i+1]+2}"); nxt.append(ra[i])
            if len(ra) % 2: nxt.append(ra[-1])
            ra = nxt
    def xrow():
        a("s_nop 1")
        a("v_permlane32_swap_b32 v64, v66")
        a("v_add_f32 v64, v64, v66")
        a("v_mov_b32 v66, v64"); a("s_nop 1")
        a("v_permlane16_swap_b32 v64, v66")
        a("v_add_f32 v64, v64, v66")
        a("v_mov_b32 v66, v64"); a("s_nop 1")
        a("v_permlane32_swap_b32 v64, v66")
    tree2(8)
    xrow()
    a("v_cvt_pk_bf16_f32 v40, v64, v66")
    a("v_lshlrev_b32 v41, 16, v40"); a("v_and_b32 v42, s63, v40")
    a("v_lshlrev_b32 v43, 16, v12"); a("v_and_b32 v44, s63, v12")
    a("v_add_f32 v41, v41, v43"); a("v_add_f32 v42, v42, v44")
    a("v_cvt_pk_bf16_f32 v40, v41, v42")
    a("v_mov_b32 v41, s8")
    a("s_mov_b64 exec, 0xffff")
    a("buffer_store_dwordx2 v[40:41], v17, s[56:59], s72 offen sc1")
    a("s_mov_b64 exec, -1")
    a("v_lshlrev_b32 v19, 16, v40"); a("v_and_b32 v20, s63, v40")
    stamp(13)
    a("s_mov_b32 s67, 0")
    Lg = lab("gg"); a.label(Lg)
    for t in range(14): a(f"buffer_load_dwordx4 v[{64+4*t}:{67+4*t}], v18, s[56:59], s{88+t} offen sc1")
    a("s_waitcnt vmcnt(0)")
    tagcheck([65+2*i for i in range(28)], 40, 44, Lg, sleep=tsleep)
    stamp(14)
    tree2(14)
    xrow()
    a("v_cvt_pk_bf16_f32 v40, v64, v66")
    a("v_lshlrev_b32 v41, 16, v40"); a("v_and_b32 v42, s63, v40")
    a("v_lshlrev_b32 v43, 16, v8"); a("v_and_b32 v44, s63, v8")
    a("v_add_f32 v41, v41, v43"); a("v_add_f32 v42, v42, v44")
    a("v_cvt_pk_bf16_f32 v40, v41, v42")
    a("v_lshlrev_b32 v41, 16, v40"); a("v_and_b32 v42, s63, v40")
    a("v_add_f32 v41, v41, v19"); a("v_add_f32 v42, v42, v20")
    a("v_cvt_pk_bf16_f32 v40, v41, v42")
    a("s_mov_b64 exec, 0xffff")
    a("buffer_store_dword v40, v16, s[52:55], s73 offen")
    a("s_mov_b64 exec, -1")
    a("s_cmp_lg_u32 s2, 192"); a("s_cbranch_scc1 L_fin")
    a("v_mov_b32 v40, s8"); a("v_mov_b32 v44, 0")
    a("s_mov_b64 exec, 1")
    a("buffer_store_dword v40, v44, s[56:59], 0 offen sc1")
    a("s_mov_b64 exec, -1")
    a.label("L_fin")
    if stamps:
        stamp(15)
        a("s_lshl_b32 s10, s2, 3"); a("s_add_u32 s10, s10, s3"); a("s_lshl_b32 s10, s10, 6"); a(f"s_add_u32 s10, s10, {WS_STAMP}")
        a("v_mov_b32 v44, 0")
        a("s_mov_b64 exec, 1")
        for i in range(4): a(f"buffer_store_dwordx4 v[{SB+4*i}:{SB+3+4*i}], v44, s[56:59], s10 offen offset:{16*i}")
        a("s_mov_b64 exec, -1")
    a.label("L_end")
    a("s_endpgm")
    return a

HDR = """; Fused pre-LN GQA decode attention + channel-MLP block, single persistent launch (256 workgroups x 8 waves).
; @launch grid=(256,1,1) block=(512,1,1) lds={lds}
.amdgcn_target "amdgcn-amd-amdhsa--gfx950"
.text
.globl {name}_kernel
.p2align 8
.type {name}_kernel,@function
{name}_kernel:
"""
FTR = """
.section .rodata,"a"
.p2align 6
.amdhsa_kernel {name}_kernel
  .amdhsa_next_free_vgpr 256
  .amdhsa_next_free_sgpr 102
  .amdhsa_accum_offset 256
  .amdhsa_group_segment_fixed_size 0
  .amdhsa_kernarg_size 104
  .amdhsa_user_sgpr_count 2
  .amdhsa_user_sgpr_kernarg_segment_ptr 1
  .amdhsa_system_sgpr_workgroup_id_x 1
.end_amdhsa_kernel
"""
def build(path, **kw):
    a = gen(**kw)
    probs = check_hazards(a.lines)
    open(path, "w").write(HDR.format(name=NAME, lds=LDS_BYTES) + a.text() + FTR.format(name=NAME))
    return probs

if __name__ == "__main__":
    out = sys.argv[1] if len(sys.argv) > 1 else "k2.s"
    kw = {}
    for arg in sys.argv[2:]:
        if arg == "stamps": kw["stamps"] = True
        elif "=" in arg:
            k, v = arg.split("="); kw[k] = eval(v)
    probs = build(out, **kw)
    print("hazards:", len(probs))
```

```python
import sys
from asmlib import Asm, check_hazards

NAME = "sequential_preLN__gqa_block_cached__mixer_channel_mlp__decode"

WS_EPOCH = 0
WS_ML = 0x1000
WS_H  = 0x1E8000
WS_OP = 0x8000
WS_HP = 0x88000
WS_QB = 0x108000
WS_GP = 0x108000
WS_STAMP = 0x400000
L_W = 0
L_W2 = 32768
L_WQ = 65536
L_RED = 81920
L_R1 = 90112
L_YB = 98304
L_QPB = 102400
L_PB = 106496
L_T1 = 110592
L_GB = 114688
L_QL = 116736
L_FLAGS = 117760
L_MLB = 118016
L_WR = 118784
LDS_BYTES = 122880
F_Y, F_QP, F_Q, F_ML, F_P, F_W, F_O, F_WR = 0, 16, 32, 48, 64, 80, 96, 112

LOG2E = 0x3fb8aa3b
SCALE = 0x3db504f3
EPS = 0x3727c5ac
TAGC = 0x9E3779B9
POLL_MAX = 20000

def gen(stamps=False, psleep=2, tsleep=1, qearly=6, mlsleep=8, rot=True, no_w=False, no_pwait=False, no_q=False, khold=0, lanemask=True):
    a = Asm()
    NT = " nt"
    uid = [0]
    def lab(p):
        uid[0] += 1
        return f"L_{p}_{uid[0]}"
    SB = 240
    def stamp(idx):
        if stamps:
            a("s_memrealtime s[78:79]")
            a("s_waitcnt lgkmcnt(0)")
            a(f"v_mov_b32 v{SB+idx}, s78")
    def allreduce(op, rs, tmps):
        k = len(rs)
        for rot in (8, 4, 2, 1):
            if k == 1: a("s_nop 1")
            elif k == 2: a("s_nop 0")
            for r in rs:
                a(f"{op}_dpp v{r}, v{r}, v{r} row_ror:{rot} row_mask:0xf bank_mask:0xf")
        for sw in ("v_permlane16_swap_b32", "v_permlane32_swap_b32"):
            for r, t in zip(rs, tmps): a(f"v_mov_b32 v{t}, v{r}")
            a("s_nop 1" if k == 1 else "s_nop 0")
            if k == 2: pass
            for r, t in zip(rs, tmps): a(f"{sw} v{r}, v{t}")
            for r, t in zip(rs, tmps): a(f"{op} v{r}, v{r}, v{t}")
    def rb(dst, src):
        a(f"v_cvt_pk_bf16_f32 v{dst}, v{src}, v{src}")
        a(f"v_lshlrev_b32 v{dst}, 16, v{dst}")
    def setflag(off): a(f"ds_write_b32 v11, v0 offset:{off}")
    def wait_flags4(off, tmp, sleep=0):
        L = lab("wf")
        a.label(L)
        if sleep: a(f"s_sleep {sleep}")
        a(f"ds_read_b128 v[{tmp}:{tmp+3}], v7 offset:{off}")
        a("s_waitcnt lgkmcnt(0)")
        a(f"v_and_b32 v{tmp}, v{tmp}, v{tmp+1}"); a(f"v_and_b32 v{tmp+2}, v{tmp+2}, v{tmp+3}")
        a(f"v_and_b32 v{tmp}, v{tmp}, v{tmp+2}")
        a(f"v_cmp_ne_u32 vcc, 1, v{tmp}")
        a(f"s_cbranch_vccnz {L}")
    def wait_flag1(off, tmp, sleep=0):
        L = lab("wf")
        a.label(L)
        if sleep: a(f"s_sleep {sleep}")
        a(f"ds_read_b32 v{tmp}, v11 offset:{off}")
        a("s_waitcnt lgkmcnt(0)")
        a(f"v_cmp_ne_u32 vcc, 1, v{tmp}")
        a(f"s_cbranch_vccnz {L}")
    def tagcheck(tagregs, acc, t1, retry_label, cnt=67, sleep=0, tag="s8"):
        first = True; i = 0
        while i < len(tagregs):
            if i + 1 < len(tagregs):
                a(f"v_xor_b32 v{t1}, {tag}, v{tagregs[i]}")
                if first:
                    a(f"v_xor_b32 v{acc}, {tag}, v{tagregs[i+1]}")
                    a(f"v_or_b32 v{acc}, v{acc}, v{t1}")
                else:
                    a(f"v_xor_b32 v{t1+1}, {tag}, v{tagregs[i+1]}")
                    a(f"v_or3_b32 v{acc}, v{acc}, v{t1}, v{t1+1}")
                i += 2
            else:
                if first: a(f"v_xor_b32 v{acc}, {tag}, v{tagregs[i]}")
                else:
                    a(f"v_xor_b32 v{t1}, {tag}, v{tagregs[i]}")
                    a(f"v_or_b32 v{acc}, v{acc}, v{t1}")
                i += 1
            first = False
        a(f"v_cmp_ne_u32 vcc, 0, v{acc}")
        done = lab("pd")
        a(f"s_cbranch_vccz {done}")
        if lanemask: a("s_mov_b64 exec, vcc")
        if sleep: a(f"s_sleep {sleep}")
        a(f"s_add_u32 s{cnt}, s{cnt}, 1")
        a(f"s_cmp_lt_u32 s{cnt}, {POLL_MAX}")
        a(f"s_cbranch_scc1 {retry_label}")
        a.label(done)
        if lanemask: a("s_mov_b64 exec, -1")
    def layernorm8(e, t):
        a(f"v_readfirstlane_b32 s12, v{e}")
        a("s_nop 1")
        for i in range(8): a(f"v_subrev_f32 v{t+4+(i&3)+ (0)}, s12, v{e+i}") if False else None
        a(f"v_subrev_f32 v{t+2}, s12, v{e}"); a(f"v_subrev_f32 v{t+3}, s12, v{e+1}")
        a(f"v_add_f32 v{t}, v{t+2}, v{t+3}"); a(f"v_mul_f32 v{t+1}, v{t+2}, v{t+2}"); a(f"v_fmac_f32 v{t+1}, v{t+3}, v{t+3}")
        for i in range(2, 8, 2):
            a(f"v_subrev_f32 v{t+2}, s12, v{e+i}"); a(f"v_subrev_f32 v{t+3}, s12, v{e+i+1}")
            a(f"v_add_f32 v{t}, v{t}, v{t+2}"); a(f"v_fmac_f32 v{t+1}, v{t+2}, v{t+2}")
            a(f"v_add_f32 v{t}, v{t}, v{t+3}"); a(f"v_fmac_f32 v{t+1}, v{t+3}, v{t+3}")
        allreduce("v_add_f32", [t, t+1], [t+2, t+3])
        a(f"v_mul_f32 v{t}, 0x3b000000, v{t}")
        a(f"v_mul_f32 v{t+1}, 0x3b000000, v{t+1}")
        a(f"v_fma_f32 v{t+1}, -v{t}, v{t}, v{t+1}")
        a(f"v_add_f32 v{t}, s12, v{t}")
        a(f"v_max_f32 v{t+1}, 0, v{t+1}")
        a(f"v_cvt_pk_bf16_f32 v{t+2}, v{t}, v{t+1}")
        a(f"v_and_b32 v{t+1}, s63, v{t+2}")
        a(f"v_lshlrev_b32 v{t}, 16, v{t+2}")
        a(f"v_add_f32 v{t+1}, {EPS}, v{t+1}")
        for i in range(4): a(f"v_sub_f32 v{e+i}, v{e+i}, v{t}")
        rb(t+1, t+1)
        a(f"v_sqrt_f32 v{t+1}, v{t+1}")
        for i in range(4, 8): a(f"v_sub_f32 v{e+i}, v{e+i}, v{t}")
        rb(t+1, t+1)
        a(f"v_rcp_f32 v{t+1}, v{t+1}")
        for i in range(4): a(f"v_cvt_pk_bf16_f32 v{t+8+i}, v{e+2*i}, v{e+2*i+1}")
        for i in range(4):
            a(f"v_lshlrev_b32 v{e+2*i}, 16, v{t+8+i}"); a(f"v_and_b32 v{e+2*i+1}, s63, v{t+8+i}")
        for i in range(8): a(f"v_mul_f32 v{e+i}, v{e+i}, v{t+1}")
        for i in range(4): a(f"v_cvt_pk_bf16_f32 v{t+8+i}, v{e+2*i}, v{e+2*i+1}")
    def kvstep():
        a("s_add_u32 s83, s83, 4096"); a("s_and_b32 s83, s83, 0x7fff"); a("s_add_u32 s65, s64, s83")
    def srd(sr, sz):
        a(f"s_mov_b32 s{sr+2}, {sz}"); a(f"s_mov_b32 s{sr+3}, 0x20000")
    SZ = {16: 4096, 20: 33554432, 24: 33554432, 28: 4194304, 32: 4194304, 36: 1835008, 40: 3584, 44: 1835008, 48: 1024, 52: 4096, 56: 268435456}

    if stamps: a("s_memrealtime s[78:79]")
    for (sr, off) in ((56, 96), (20, 8), (16, 0), (28, 24), (24, 16), (32, 32), (36, 48), (40, 56), (44, 64), (48, 72), (52, 80)):
        a(f"s_load_dwordx2 s[{sr}:{sr+1}], s[0:1], {off}")
    a("s_cmp_ge_u32 s2, 256")
    a("s_cbranch_scc1 L_end")
    a("v_lshrrev_b32 v4, 6, v0")
    a("v_and_b32 v1, 63, v0")
    a("v_readfirstlane_b32 s3, v4")
    a("v_and_b32 v2, 15, v1")
    a("v_lshrrev_b32 v3, 4, v1")
    a("s_and_b32 s4, s2, 7")
    a("s_lshr_b32 s7, s2, 3")
    a("s_lshr_b32 s5, s7, 3")
    a("s_and_b32 s6, s7, 7")
    srd(56, SZ[56]); srd(20, SZ[20]); srd(16, SZ[16]); srd(28, SZ[28])
    a("s_and_b32 s11, s3, 3")
    a("s_lshl_b32 s70, s5, 3"); a("s_add_u32 s70, s70, s4")
    a("s_lshl_b32 s64, s70, 20"); a("s_lshl_b32 s10, s6, 17"); a("s_add_u32 s64, s64, s10")
    a("s_lshl_b32 s10, s11, 15"); a("s_add_u32 s64, s64, s10")
    a("s_lshl_b32 s83, s5, 13") if rot else a("s_mov_b32 s83, 0")
    a("s_add_u32 s65, s64, s83")
    a("v_mov_b32 v6, 0")
    a("v_lshlrev_b32 v14, 4, v1")
    a("s_cmp_ge_u32 s3, 4")
    a("s_cbranch_scc1 L_v1")
    a("v_lshlrev_b32 v47, 8, v2"); a("v_lshlrev_b32 v10, 4, v3"); a("v_add_u32 v47, v47, v10")
    a("s_lshl_b32 s10, s4, 2"); a("s_add_u32 s10, s10, s5"); a("s_lshl_b32 s10, s10, 14"); a("s_lshl_b32 s12, s11, 10"); a("s_add_u32 s10, s10, s12"); a(f"s_add_u32 s66, s10, {WS_QB}")
    for k in range(1, 4): a(f"s_add_u32 s{71+k}, s66, {k*4096}")
    a("s_setprio 2")
    a("s_waitcnt lgkmcnt(0)")
    a("buffer_load_dword v5, v6, s[56:59], 0 offen sc1")
    def qloads():
        for k in range(4):
            a(f"buffer_load_dwordx4 v[{16+4*k}:{19+4*k}], v14, s[56:59], s{66 if k == 0 else 71+k} offen sc1")
    for t in range(8):
        for i in range(4):
            r = 64 + 16*t + 4*i
            a(f"buffer_load_dwordx4 v[{r}:{r+3}], v47, s[20:23], s65 offen offset:{i*64}{NT}")
        if t < 7: kvstep()
        if t == 1:
            a("v_lshlrev_b32 v9, 2, v1"); a(f"v_add_u32 v9, {L_FLAGS}, v9"); a("ds_write_b32 v9, v6"); a("v_mov_b32 v0, 1")
            a("s_waitcnt lgkmcnt(0)"); a("s_barrier")
        if t == qearly - 1: qloads()
    a("s_branch L_k2")
    a.label("L_v1")
    a("v_lshrrev_b32 v10, 3, v1"); a("v_lshlrev_b32 v10, 13, v10"); a("v_and_b32 v9, 7, v1"); a("v_lshlrev_b32 v9, 4, v9"); a("v_add_u32 v10, v10, v9")
    a("s_lshl_b32 s13, s5, 20"); a("s_lshl_b32 s12, s11, 18"); a("s_add_u32 s13, s13, s12")
    a("s_lshl_b32 s12, s4, 10"); a("s_add_u32 s13, s13, s12"); a("s_lshl_b32 s12, s6, 7"); a("s_add_u32 s13, s13, s12")
    a("s_lshl_b32 s12, s11, 12"); a(f"s_add_u32 s12, s12, {L_WQ}")
    a("s_lshl_b32 s10, s11, 10")
    a("s_setprio 3")
    a("s_waitcnt lgkmcnt(0)")
    a("buffer_load_dword v5, v6, s[56:59], 0 offen sc1")
    a("buffer_load_dwordx4 v[16:19], v14, s[16:19], s10 offen")
    for i in range(4):
        a("s_mov_b32 m0, s12"); a("s_add_u32 s12, s12, 1024")
        a(f"buffer_load_dwordx4 v10, s[28:31], s13 offen{NT} lds"); a("s_add_u32 s13, s13, 0x10000")
    a("v_lshlrev_b32 v9, 2, v1"); a(f"v_add_u32 v9, {L_FLAGS}, v9"); a("ds_write_b32 v9, v6"); a("v_mov_b32 v0, 1")
    a("s_waitcnt lgkmcnt(0)"); a("s_barrier")

    if stamps:
        a("s_waitcnt lgkmcnt(0)")
        for i in range(16): a(f"v_mov_b32 v{SB+i}, 0")
        a(f"v_mov_b32 v{SB}, s78")
    for sr in (24, 32, 36, 40, 44, 48, 52): srd(sr, SZ[sr])
    a("s_mov_b32 s60, 0x05040100"); a("s_mov_b32 s61, 0x07060302"); a("s_mov_b32 s63, 0xffff0000")
    a(f"v_mov_b32 v7, {L_FLAGS}"); a("s_lshl_b32 s10, s11, 2"); a("v_add_u32 v11, s10, v7")
    a("v_lshlrev_b32 v13, 3, v1")
    a("v_lshrrev_b32 v9, 2, v2"); a("v_lshlrev_b32 v10, 3, v3"); a("v_add_u32 v9, v9, v10"); a("v_lshlrev_b32 v44, 7, v9")
    a("v_and_b32 v10, 3, v2"); a("v_lshlrev_b32 v10, 3, v10"); a("v_add_u32 v44, v44, v10")
    a("s_lshl_b32 s10, s11, 12"); a(f"s_add_u32 s10, s10, {L_WQ}"); a("v_add_u32 v44, s10, v44")
    a("v_and_b32 v45, 3, v2"); a("v_lshlrev_b32 v45, 10, v45"); a("v_lshlrev_b32 v46, 4, v3"); a("v_add_u32 v45, v45, v46")
    a("s_lshl_b32 s10, s5, 8"); a("s_lshl_b32 s12, s11, 6"); a("s_add_u32 s10, s10, s12"); a(f"s_add_u32 s10, s10, {L_YB}"); a("v_add_u32 v45, s10, v45")
    a("v_lshlrev_b32 v46, 4, v2"); a("s_lshl_b32 s10, s11, 10"); a(f"s_add_u32 s10, s10, {L_QPB}"); a("v_add_u32 v46, s10, v46")
    a("s_lshl_b32 s10, s11, 2"); a(f"s_add_u32 s10, s10, {L_QPB}"); a("v_add_u32 v47, s10, v14")
    a("s_lshl_b32 s10, s11, 10"); a(f"s_add_u32 s10, s10, {L_YB}"); a("v_add_u32 v9, s10, v14")
    a("s_lshl_b32 s10, s4, 2"); a("s_add_u32 s10, s10, s11"); a("s_lshl_b32 s10, s10, 2"); a("s_add_u32 s10, s10, s5"); a("s_lshl_b32 s10, s10, 12")
    a("s_lshl_b32 s12, s6, 9"); a("s_add_u32 s10, s10, s12"); a(f"s_add_u32 s66, s10, {WS_QB}")
    a("s_waitcnt vmcnt(4)")
    stamp(6)
    a("v_readfirstlane_b32 s8, v5")
    for i in range(4):
        a(f"v_lshlrev_b32 v{20+2*i}, 16, v{16+i}"); a(f"v_and_b32 v{21+2*i}, s63, v{16+i}")
    a(f"s_add_u32 s8, s8, {TAGC}")
    a("v_mov_b32 v15, s8")
    layernorm8(20, 32)
    a("ds_write_b128 v9, v[40:43]")
    setflag(F_Y)
    wait_flags4(F_Y, 40)
    a("ds_read_b128 v[192:195], v45")
    a("s_waitcnt vmcnt(0)")
    stamp(7)
    for nt in range(4):
        a(f"ds_read_b64_tr_b16 v[{196+4*nt}:{197+4*nt}], v44 offset:{nt*32}")
        a(f"ds_read_b64_tr_b16 v[{198+4*nt}:{199+4*nt}], v44 offset:{nt*32+512}")
    a("s_waitcnt lgkmcnt(0)")
    for nt in range(4):
        a(f"v_mfma_f32_16x16x32_bf16 v[{212+4*nt}:{215+4*nt}], v[192:195], v[{196+4*nt}:{199+4*nt}], 0")
    a("v_mov_b32 v45, s8")
    a("s_nop 3")
    for nt in range(4): a(f"ds_write_b128 v46, v[{212+4*nt}:{215+4*nt}] offset:{nt*256}")
    setflag(F_QP)
    wait_flags4(F_QP, 40)
    for w in range(4): a(f"ds_read_b32 v{40+w}, v47 offset:{w*1024}")
    a("s_waitcnt lgkmcnt(0)")
    a("v_add_f32 v40, v40, v41"); a("v_add_f32 v42, v42, v43"); a("v_add_f32 v44, v40, v42")
    a("buffer_store_dwordx2 v[44:45], v13, s[56:59], s66 offen sc1")
    a("s_setprio 1")
    stamp(1)
    for k in range(32):
        r = 64 + 4*k
        a(f"buffer_load_dwordx4 v[{r}:{r+3}], v14, s[24:27], s65 offen offset:{(k%4)*1024}{NT}")
        if k % 4 == 3 and k < 31: kvstep()
    stamp(2)
    a("s_lshl_b32 s10, s4, 3"); a("s_add_u32 s10, s10, s6")
    a("s_lshr_b32 s76, s10, 4"); a("s_and_b32 s10, s10, 15"); a("s_lshl_b32 s62, s10, 5")
    a("v_lshlrev_b32 v10, 2, v2")
    a("s_lshl_b32 s10, s76, 10"); a("s_lshl_b32 s12, s62, 1"); a("s_add_u32 s10, s10, s12")
    a("buffer_load_dword v12, v10, s[16:19], s10 offen")
    a("buffer_load_dword v8, v10, s[48:51], s12 offen")
    a("buffer_load_dword v4, v10, s[52:55], s10 offen")
    NSM = 3
    a("v_lshlrev_b32 v20, 9, v3"); a("v_lshlrev_b32 v9, 5, v2"); a("v_add_u32 v20, v20, v9")
    a("s_lshl_b32 s10, s11, 11"); a(f"s_add_u32 s10, s10, {L_RED}"); a("v_add_u32 v20, s10, v20")
    a("s_lshl_b32 s10, s11, 9"); a(f"s_add_u32 s10, s10, {L_RED}"); a("v_add_u32 v21, s10, v13")
    a("s_lshl_b32 s10, s70, 3"); a("s_add_u32 s10, s10, s6"); a("s_lshl_b32 s10, s10, 11"); a("s_lshl_b32 s12, s11, 9"); a("s_add_u32 s10, s10, s12"); a(f"s_add_u32 s66, s10, {WS_OP}")
    a("v_lshrrev_b32 v10, 2, v2"); a("v_lshlrev_b32 v10, 6, v10"); a("v_lshlrev_b32 v9, 4, v3"); a("v_add_u32 v10, v10, v9")
    a("s_lshl_b32 s10, s11, 10"); a(f"s_add_u32 s10, s10, {L_PB}"); a("v_add_u32 v10, s10, v10")
    if not no_pwait: wait_flag1(F_P, 40, sleep=1)
    PF = 224
    for T in range(4): a(f"ds_read_b128 v[{PF+4*T}:{PF+3+4*T}], v10 offset:{T*256}")
    stamp(3)
    def perms(T, dst, ulist):
        raw = 64 + 32*T
        for u in ulist:
            for jj in range(4):
                s1 = raw + 4*(2*u) + jj; s0 = raw + 4*(2*u+1) + jj
                a(f"v_perm_b32 v{dst + 4*(2*jj) + u}, v{s0}, v{s1}, s60")
                a(f"v_perm_b32 v{dst + 4*(2*jj+1) + u}, v{s0}, v{s1}, s61")
    ACC = 32
    def mfmas(T, src, js):
        for j in js:
            c = "0" if T == 0 else f"v[{ACC+4*j}:{ACC+4*j+3}]"
            a(f"v_mfma_f32_16x16x32_bf16 v[{ACC+4*j}:{ACC+4*j+3}], v[{PF+4*T}:{PF+3+4*T}], v[{src+4*j}:{src+4*j+3}], {c}")
    F = [192, 64, 96, 128]
    def after(k): return min(63, (31 - k) + NSM)
    a(f"s_waitcnt vmcnt({after(7)})")
    perms(0, F[0], range(4))
    a(f"s_waitcnt vmcnt({after(15)}) lgkmcnt(0)")
    for u in range(4):
        perms(1, F[1], [u]); mfmas(0, F[0], [2*u, 2*u+1])
    a(f"s_waitcnt vmcnt({after(23)})")
    for u in range(4):
        perms(2, F[2], [u]); mfmas(1, F[1], [2*u, 2*u+1])
    mfmas(2, F[2], range(4))
    for u in range(4):
        a(f"s_waitcnt vmcnt({after(24+2*u+1)})")
        perms(3, F[3], [u])
        mfmas(2, F[2], [4+u])
    a("s_nop 0")
    mfmas(3, F[3], range(8))
    stamp(4)
    a("v_mov_b32 v17, s8")
    a("s_nop 6")
    for j in range(0, 8, 2):
        a(f"ds_write2_b32 v20, v{ACC+4*j}, v{ACC+4*(j+1)} offset0:{j} offset1:{j+1}")
    setflag(F_O)
    wait_flags4(F_O, 24)
    for w in range(4): a(f"ds_read_b64 v[{24+2*w}:{25+2*w}], v21 offset:{w*2048}")
    a("s_waitcnt lgkmcnt(0)")
    for c in range(2):
        a(f"v_add_f32 v{24+c}, v{24+c}, v{26+c}"); a(f"v_add_f32 v{28+c}, v{28+c}, v{30+c}")
    for c in range(2): a(f"v_add_f32 v{24+c}, v{24+c}, v{28+c}")
    a("v_cvt_pk_bf16_f32 v16, v24, v25")
    a("buffer_store_dwordx2 v[16:17], v13, s[56:59], s66 offen sc1")
    stamp(5)
    a("s_setprio 3")
    a(f"s_mov_b32 s69, {LOG2E}")
    a("s_cmp_lt_u32 s7, 16"); a("s_cbranch_scc1 L_roleA")
    a("s_cmp_lt_u32 s7, 23"); a("s_cbranch_scc1 L_roleB")
    a("s_cmp_ge_u32 s7, 24"); a("s_cbranch_scc1 L_roleC")
    a("s_branch L_fin")

    a.label("L_k2")
    if stamps:
        a("s_waitcnt lgkmcnt(0)")
        for i in range(16): a(f"v_mov_b32 v{SB+i}, 0")
        a(f"v_mov_b32 v{SB}, s78")
    stamp(2)
    if stamps:
        a("s_getreg_b32 s12, hwreg(HW_REG_HW_ID)"); a(f"v_mov_b32 v{SB+6}, s12")
        a("s_getreg_b32 s12, hwreg(HW_REG_XCC_ID)"); a("s_add_u32 s12, s12, 1"); a(f"v_mov_b32 v{SB+7}, s12")
    for sr in (24, 32, 36, 40, 44, 48, 52): srd(sr, SZ[sr])
    a("s_mov_b32 s63, 0xffff0000")
    a(f"v_mov_b32 v7, {L_FLAGS}"); a("s_lshl_b32 s10, s11, 2"); a("v_add_u32 v11, s10, v7")
    a("v_lshlrev_b32 v13, 3, v1")
    a(f"s_waitcnt vmcnt({(8 - qearly) * 4})")
    a("v_readfirstlane_b32 s8, v5")
    a("s_mov_b32 s67, 0")
    a(f"s_add_u32 s8, s8, {TAGC}")
    a("v_mov_b32 v15, s8")
    Lq = lab("qg"); Lq2 = lab("qg2")
    a(f"s_branch {Lq2}")
    a.label(Lq)
    qloads()
    a("s_waitcnt vmcnt(0)")
    a.label(Lq2)
    tagcheck([17+2*i for i in range(8)], 40, 44, Lq, sleep=psleep)
    if stamps: a(f"v_mov_b32 v{SB+1}, s67")
    a("v_add_f32 v16, v16, v20"); a("v_add_f32 v24, v24, v28"); a("v_add_f32 v18, v18, v22"); a("v_add_f32 v26, v26, v30")
    a("v_add_f32 v16, v16, v24"); a("v_add_f32 v18, v18, v26")
    a("v_cvt_pk_bf16_f32 v40, v16, v18")
    a("s_lshl_b32 s10, s11, 8"); a(f"s_add_u32 s10, s10, {L_QL}")
    a("v_lshlrev_b32 v10, 2, v1"); a("v_add_u32 v10, s10, v10")
    a("ds_write_b32 v10, v40")
    setflag(F_Q)
    stamp(3)
    a("v_and_b32 v10, 3, v2"); a("v_lshlrev_b32 v10, 8, v10"); a("v_lshlrev_b32 v44, 4, v3"); a("v_add_u32 v10, v10, v44")
    a(f"v_add_u32 v10, {L_QL}, v10")
    wait_flags4(F_Q, 40)
    for i in range(4): a(f"ds_read_b128 v[{16+4*i}:{19+4*i}], v10 offset:{i*64}")
    a("s_waitcnt lgkmcnt(0)")
    for t in range(8):
        if t >= qearly: a(f"s_waitcnt vmcnt({(7-t)*4})")
        for i in range(4):
            r = 64 + 16*t + 4*i
            c = "0" if i == 0 else f"v[{32+4*t}:{35+4*t}]"
            a(f"v_mfma_f32_16x16x32_bf16 v[{32+4*t}:{35+4*t}], v[{16+4*i}:{19+4*i}], v[{r}:{r+3}], {c}")
    a(f"s_mov_b32 s68, {SCALE}"); a(f"s_mov_b32 s69, {LOG2E}")
    a("s_nop 5")
    for aa in range(2):
        for q in range(1, 4):
            for h in range(4):
                a(f"v_mov_b32_dpp v{32+16*aa+h}, v{32+16*aa+4*q+h} quad_perm:[0,1,2,3] row_mask:{hex(1<<q)} bank_mask:0xf")
    S = [[32+16*aa+h for h in range(4)] for aa in range(2)]
    for rnd in range(2):
        for aa in range(2):
            for hp in range(2): a(f"v_cvt_pk_bf16_f32 v{36+2*aa+hp}, v{S[aa][2*hp]}, v{S[aa][2*hp+1]}")
        for aa in range(2):
            for hp in range(2):
                a(f"v_lshlrev_b32 v{S[aa][2*hp]}, 16, v{36+2*aa+hp}")
                a(f"v_and_b32 v{S[aa][2*hp+1]}, s63, v{36+2*aa+hp}")
        if rnd == 0:
            for aa in range(2):
                for h in range(4): a(f"v_mul_f32 v{S[aa][h]}, s68, v{S[aa][h]}")
    for h in range(4): a(f"v_max_f32 v{40+h}, v{S[0][h]}, v{S[1][h]}")
    allreduce("v_max_f32", [40, 41, 42, 43], [44, 45, 46, 47])
    for aa in range(2):
        for h in range(4): a(f"v_sub_f32 v{S[aa][h]}, v{S[aa][h]}, v{40+h}")
    for aa in range(2):
        for h in range(4): a(f"v_mul_f32 v{S[aa][h]}, s69, v{S[aa][h]}")
    for aa in range(2):
        for h in range(4): a(f"v_exp_f32 v{S[aa][h]}, v{S[aa][h]}")
    a("s_nop 0")
    for h in range(4): a(f"v_add_f32 v{52+h}, v{S[0][h]}, v{S[1][h]}")
    allreduce("v_add_f32", [52, 53, 54, 55], [44, 45, 46, 47])
    for h in range(4):
        a(f"v_mov_b32 v{56+2*h}, v{40+h}"); a(f"v_mov_b32 v{57+2*h}, v{52+h}")
    a("s_lshl_b32 s10, s11, 5"); a(f"s_add_u32 s10, s10, {L_MLB}")
    a("v_mov_b32 v10, s10")
    a("ds_write_b128 v10, v[56:59]")
    a("ds_write_b128 v10, v[60:63] offset:16")
    setflag(F_ML)
    a("v_lshlrev_b32 v10, 3, v2"); a(f"v_add_u32 v10, {L_MLB}, v10")
    a("v_lshrrev_b32 v9, 5, v1"); a("v_lshlrev_b32 v9, 8, v9")
    a("v_and_b32 v44, 3, v1"); a("v_lshlrev_b32 v44, 4, v44"); a("v_add_u32 v9, v9, v44")
    a("v_and_b32 v44, 31, v1"); a("v_lshrrev_b32 v44, 2, v44"); a("v_lshlrev_b32 v44, 1, v44"); a("v_add_u32 v9, v9, v44")
    a("s_lshl_b32 s10, s11, 10"); a(f"s_add_u32 s10, s10, {L_PB}"); a("v_add_u32 v9, s10, v9")
    wait_flags4(F_ML, 44)
    a("ds_read_b64 v[192:193], v10")
    a("s_waitcnt lgkmcnt(0)")
    a("v_mov_b32 v194, v192")
    a("s_nop 1")
    a("v_max_f32_dpp v194, v194, v194 row_ror:4 row_mask:0xf bank_mask:0xf")
    a("s_nop 1")
    a("v_max_f32_dpp v194, v194, v194 row_ror:8 row_mask:0xf bank_mask:0xf")
    a("v_sub_f32 v195, v192, v194"); a("v_mul_f32 v195, s69, v195"); a("v_exp_f32 v195, v195"); a("s_nop 0")
    a("v_mul_f32 v196, v193, v195")
    a("s_nop 1")
    a("v_add_f32_dpp v196, v196, v196 row_ror:4 row_mask:0xf bank_mask:0xf")
    a("s_nop 1")
    a("v_add_f32_dpp v196, v196, v196 row_ror:8 row_mask:0xf bank_mask:0xf")
    a("v_rcp_f32 v197, v196"); a("s_nop 0")
    a("v_mul_f32 v197, v197, v195")
    a("s_lshl_b32 s10, s11, 2")
    for h in range(4):
        a(f"s_add_u32 s12, s10, {h}")
        a(f"v_readlane_b32 s{72+h}, v197, s12")
    a("v_mov_b32 v56, v194"); a("v_mov_b32 v57, s8"); a("v_mov_b32 v58, v196"); a("v_mov_b32 v59, s8")
    for aa in range(2):
        for h in range(4): a(f"v_mul_f32 v{S[aa][h]}, s{72+h}, v{S[aa][h]}")
    for aa in range(2):
        for hp in range(2): a(f"v_cvt_pk_bf16_f32 v{36+2*aa+hp}, v{S[aa][2*hp]}, v{S[aa][2*hp+1]}")
    for aa in range(2):
        for hp in range(2):
            a(f"ds_write_b16 v9, v{36+2*aa+hp} offset:{aa*512 + (2*hp)*64}")
            a(f"ds_write_b16_d16_hi v9, v{36+2*aa+hp} offset:{aa*512 + (2*hp+1)*64}")
    setflag(F_P)
    a("s_lshl_b32 s10, s70, 3"); a("s_add_u32 s10, s10, s6"); a("s_lshl_b32 s10, s10, 6")
    a("s_lshl_b32 s12, s11, 4"); a("s_add_u32 s10, s10, s12"); a(f"s_add_u32 s10, s10, {WS_ML}")
    a("s_lshl_b64 s[12:13], 1, s11")
    a("s_mov_b64 exec, s[12:13]")
    a("buffer_store_dwordx4 v[56:59], v6, s[56:59], s10 offen sc1")
    a("s_mov_b64 exec, -1")
    stamp(4)
    a("s_cmp_lt_u32 s7, 16"); a("s_cbranch_scc1 L_kA")
    a("s_cmp_lt_u32 s7, 23"); a("s_cbranch_scc1 L_kB")
    a("s_branch L_fin")

    a.label("L_kA")
    a("s_lshr_b32 s72, s7, 2")
    a("v_lshrrev_b32 v22, 1, v2"); a("v_xor_b32 v22, v22, v3"); a("v_lshlrev_b32 v22, 5, v22")
    a("v_lshlrev_b32 v23, 10, v3"); a("v_add_u32 v22, v22, v23"); a("v_and_b32 v23, 1, v1"); a("v_lshlrev_b32 v23, 4, v23"); a("v_add_u32 v22, v22, v23")
    a("v_xor_b32 v23, 0x80, v22")
    a("s_lshl_b32 s14, s4, 2"); a("s_add_u32 s14, s14, s72"); a("s_lshl_b32 s14, s14, 17")
    a("s_lshl_b32 s13, s11, 15"); a("s_add_u32 s14, s14, s13"); a("s_and_b32 s13, s7, 3"); a("s_lshl_b32 s13, s13, 8"); a("s_add_u32 s14, s14, s13")
    a("s_lshl_b32 s15, s11, 13")
    if L_W: a(f"s_add_u32 s15, s15, {L_W}")
    a("s_cmp_lg_u32 s3, 0"); a("s_cbranch_scc1 L_kA_dma")
    a("v_lshrrev_b32 v10, 3, v1"); a("v_and_b32 v10, 3, v10"); a("v_lshlrev_b32 v10, 12, v10"); a("v_and_b32 v9, 7, v1"); a("v_lshlrev_b32 v9, 6, v9"); a("v_add_u32 v10, v10, v9")
    a("s_lshl_b32 s12, s4, 9"); a("s_lshl_b32 s10, s72, 4"); a("s_add_u32 s10, s10, s12"); a(f"s_add_u32 s66, s10, {WS_ML}")
    a("s_mov_b32 s67, 0")
    Lm = lab("mg"); a.label(Lm)
    a(f"s_sleep {mlsleep}")
    a("buffer_load_dwordx4 v[192:195], v10, s[56:59], s66 offen sc1")
    a("s_waitcnt vmcnt(0)")
    tagcheck([193, 195], 40, 44, Lm, sleep=0)
    def red8(op, r, t):
        for mod in ("quad_perm:[1,0,3,2]", "quad_perm:[2,3,0,1]", "row_half_mirror"):
            a("s_nop 1")
            a(f"{op}_dpp v{r}, v{r}, v{r} {mod} row_mask:0xf bank_mask:0xf")
    a("v_mov_b32 v40, v192")
    red8("v_max_f32", 40, 41)
    a("v_sub_f32 v41, v192, v40"); a("v_mul_f32 v41, s69, v41"); a("v_exp_f32 v41, v41"); a("s_nop 0")
    a("v_mul_f32 v41, v41, v194")
    a("v_mov_b32 v42, v41")
    red8("v_add_f32", 42, 43)
    a("v_rcp_f32 v42, v42"); a("s_nop 0")
    a("v_mul_f32 v41, v41, v42")
    a("v_and_b32 v9, 31, v1"); a("v_lshlrev_b32 v9, 2, v9"); a(f"v_add_u32 v9, {L_WR}, v9")
    a("ds_write_b32 v9, v41")
    setflag(F_WR)
    a.label("L_kA_dma")
    a("s_setprio 0")
    for i in range(8):
        a("s_mov_b32 m0, s15"); a("s_add_u32 s15, s15, 1024")
        if not no_w: a(f"buffer_load_dwordx4 v{22 + ((i>>1)&1)}, s[32:35], s14 offen{NT} lds")
        a("s_add_u32 s14, s14, 4096")
    a("s_branch L_roleA")

    a.label("L_kB")
    a("s_setprio 0")
    a("s_mul_i32 s9, s4, 7"); a("s_add_u32 s9, s9, s7"); a("s_sub_u32 s9, s9, 16")
    a("v_lshrrev_b32 v22, 2, v1"); a("v_mul_u32_u24 v22, 3584, v22")
    a("v_lshrrev_b32 v23, 1, v1"); a("v_and_b32 v23, 1, v23"); a("v_lshrrev_b32 v24, 5, v1"); a("v_xor_b32 v23, v23, v24"); a("v_lshlrev_b32 v23, 5, v23"); a("v_add_u32 v22, v22, v23")
    a("v_and_b32 v23, 1, v1"); a("v_lshlrev_b32 v23, 4, v23"); a("v_add_u32 v22, v22, v23")
    a(f"s_mul_i32 s12, s11, {128*3584}"); a("s_lshl_b32 s13, s9, 6"); a("s_add_u32 s12, s12, s13")
    a("s_lshl_b32 s13, s11, 13")
    if L_W: a(f"s_add_u32 s13, s13, {L_W}")
    a("s_and_b32 s10, s11, 1"); a("s_lshl_b32 s10, s10, 7"); a("v_xor_b32 v24, s10, v14")
    a("v_xor_b32 v25, 32, v24"); a("v_xor_b32 v26, 64, v24"); a("v_xor_b32 v27, 0x60, v24")
    a("s_lshl_b32 s14, s9, 15"); a("s_lshl_b32 s15, s11, 13"); a("s_add_u32 s14, s14, s15"); a(f"s_add_u32 s15, s15, {L_W2}")
    wait_flags4(F_O, 44, sleep=2)
    for i in range(8):
        a("s_mov_b32 m0, s13"); a("s_add_u32 s13, s13, 1024")
        if not no_w: a(f"buffer_load_dwordx4 v22, s[36:39], s12 offen{NT} lds")
        a(f"s_add_u32 s12, s12, {16*3584}")
    for i in range(8):
        a("s_mov_b32 m0, s15"); a("s_add_u32 s15, s15, 1024")
        if not no_w: a(f"buffer_load_dwordx4 v{24 + (i&3)}, s[44:47], s14 offen{NT} lds")
        a("s_add_u32 s14, s14, 1024")
    a("s_waitcnt vmcnt(0)")
    setflag(F_W)
    stamp(5)
    a("s_branch L_roleB")

    a.label("L_roleA")
    a("s_lshr_b32 s71, s3, 2")
    a("s_lshr_b32 s72, s7, 2")
    a("s_and_b32 s73, s7, 3")
    a("v_lshrrev_b32 v21, 3, v2"); a("v_lshlrev_b32 v21, 17, v21"); a("v_and_b32 v9, 7, v2"); a("v_lshlrev_b32 v9, 11, v9"); a("v_add_u32 v21, v21, v9")
    a("v_lshlrev_b32 v9, 5, v3"); a("v_add_u32 v21, v21, v9")
    a("s_lshl_b32 s10, s71, 18"); a("s_lshl_b32 s12, s4, 14"); a("s_add_u32 s10, s10, s12"); a("s_lshl_b32 s12, s72, 9"); a("s_add_u32 s10, s10, s12")
    a("s_lshl_b32 s12, s11, 7"); a("s_add_u32 s10, s10, s12"); a(f"s_add_u32 s75, s10, {WS_OP}")
    a("s_cmp_lt_u32 s3, 4"); a("s_cbranch_scc1 L_A_common")
    a("buffer_load_dwordx4 v[192:195], v21, s[56:59], s75 offen sc1")
    a("buffer_load_dwordx4 v[196:199], v21, s[56:59], s75 offen offset:16 sc1")
    a.label("L_A_common")
    a("v_lshrrev_b32 v9, 2, v2"); a("v_lshlrev_b32 v10, 3, v3"); a("v_add_u32 v10, v10, v9"); a("v_lshlrev_b32 v10, 8, v10")
    a("v_and_b32 v44, 3, v2"); a("v_lshlrev_b32 v44, 3, v44"); a("v_add_u32 v10, v10, v44")
    a("v_and_b32 v44, 1, v3"); a("v_lshlrev_b32 v44, 2, v44"); a("v_or_b32 v44, v44, v9"); a("v_lshlrev_b32 v44, 5, v44"); a("v_add_u32 v10, v10, v44")
    a("s_lshl_b32 s10, s11, 13")
    if L_W: a(f"s_add_u32 s10, s10, {L_W}")
    a("v_add_u32 v24, s10, v10")
    for nt in range(1, 8): a(f"v_xor_b32 v{24+nt}, {nt*32}, v24")
    a("v_lshrrev_b32 v9, 1, v3"); a("v_lshlrev_b32 v9, 9, v9"); a("v_and_b32 v44, 1, v3"); a("v_lshlrev_b32 v44, 6, v44"); a("v_add_u32 v9, v9, v44")
    a("v_lshlrev_b32 v44, 2, v2"); a("v_add_u32 v9, v9, v44")
    a("s_lshl_b32 s10, s11, 11"); a("s_lshl_b32 s12, s71, 10"); a("s_add_u32 s10, s10, s12"); a(f"s_add_u32 s10, s10, {L_R1}"); a("v_add_u32 v60, s10, v9")
    a("s_lshl_b32 s10, s3, 8"); a(f"s_add_u32 s10, s10, {L_R1}"); a("v_lshlrev_b32 v9, 2, v1"); a("v_add_u32 v61, s10, v9")
    a("s_lshr_b32 s10, s3, 1"); a("s_lshl_b32 s10, s10, 5"); a("s_lshl_b32 s12, s4, 2"); a("s_add_u32 s10, s10, s12"); a("s_add_u32 s10, s10, s72"); a("s_lshl_b32 s10, s10, 12")
    a("s_lshl_b32 s12, s73, 10"); a("s_add_u32 s10, s10, s12"); a("s_and_b32 s12, s3, 1"); a("s_lshl_b32 s12, s12, 9"); a("s_add_u32 s10, s10, s12"); a(f"s_add_u32 s74, s10, {WS_HP}")
    a("v_mov_b32 v63, s8")
    a("s_mov_b32 s67, 0")
    a("v_lshlrev_b32 v62, 4, v3"); a("s_lshl_b32 s10, s71, 6"); a(f"s_add_u32 s10, s10, {L_WR}"); a("v_add_u32 v62, s10, v62")
    def wr_read():
        L = lab("wr"); a.label(L)
        a(f"ds_read_b32 v40, v7 offset:{F_WR}")
        a("s_waitcnt lgkmcnt(0)")
        a("v_cmp_ne_u32 vcc, 1, v40")
        a(f"s_cbranch_vccnz {L}")
        a("ds_read_b128 v[48:51], v62")
    a("s_cmp_lt_u32 s3, 4"); a("s_cbranch_scc1 L_A_k")
    wait_flag1(F_W, 40)
    for nt in range(8):
        a(f"ds_read_b64_tr_b16 v[{64+4*nt}:{65+4*nt}], v{24+nt}")
        a(f"ds_read_b64_tr_b16 v[{66+4*nt}:{67+4*nt}], v{24+nt} offset:1024")
        if nt == 3: a("s_waitcnt lgkmcnt(0)")
    wr_read()
    Lo = lab("og"); Lo2 = lab("og2")
    stamp(13)
    a(f"s_branch {Lo2}")
    a.label("L_A_k")
    a("s_waitcnt vmcnt(0)")
    setflag(F_W)
    stamp(5)
    a("s_setprio 3")
    for nt in range(8):
        a(f"ds_read_b64_tr_b16 v[{64+4*nt}:{65+4*nt}], v{24+nt}")
        a(f"ds_read_b64_tr_b16 v[{66+4*nt}:{67+4*nt}], v{24+nt} offset:1024")
        if nt == 3: a("s_waitcnt lgkmcnt(0)")
    wr_read()
    wait_flags4(F_O, 40, sleep=1)
    stamp(13)
    a.label(Lo)
    a("buffer_load_dwordx4 v[192:195], v21, s[56:59], s75 offen sc1")
    a("buffer_load_dwordx4 v[196:199], v21, s[56:59], s75 offen offset:16 sc1")
    a.label(Lo2)
    a("s_waitcnt vmcnt(0) lgkmcnt(0)")
    tagcheck([193, 195, 197, 199], 40, 44, Lo, sleep=tsleep)
    stamp(8)
    a("v_mov_b32 v193, v194"); a("v_mov_b32 v194, v196"); a("v_mov_b32 v195, v198")
    a("s_nop 1")
    for nt in range(8):
        a(f"v_mfma_f32_16x16x32_bf16 v[{96+4*nt}:{99+4*nt}], v[192:195], v[{64+4*nt}:{67+4*nt}], 0")
    a("s_nop 0")
    for r in range(4):
        for nt in range(8):
            if r == 0: a(f"v_mul_f32 v{128+nt}, v48, v{96+4*nt}")
            else: a(f"v_fmac_f32 v{128+nt}, v{48+r}, v{96+4*nt+r}")
    for p in range(4): a(f"v_permlane16_swap_b32 v{128+2*p}, v{129+2*p}") if p else (a("s_nop 0"), a(f"v_permlane16_swap_b32 v128, v129"))
    for p in range(4): a(f"v_add_f32 v{128+2*p}, v{128+2*p}, v{129+2*p}")
    stamp(10)
    for p in range(4): a(f"ds_write_b32 v60, v{128+2*p} offset:{p*128}")
    a("s_waitcnt lgkmcnt(0)")
    a("s_barrier")
    stamp(11)
    for kt in range(4): a(f"ds_read_b32 v{40+kt}, v61 offset:{kt*2048}")
    a("s_waitcnt lgkmcnt(0)")
    a("v_add_f32 v40, v40, v41"); a("v_add_f32 v42, v42, v43"); a("v_add_f32 v62, v40, v42")
    a("buffer_store_dwordx2 v[62:63], v13, s[56:59], s74 offen sc1")
    stamp(9)
    a("s_branch L_fin")

    a.label("L_roleB")
    a("s_setprio 3")
    a("s_mul_i32 s9, s4, 7"); a("s_add_u32 s9, s9, s7"); a("s_sub_u32 s9, s9, 16")
    a("s_add_u32 s96, s8, 1")
    a("v_and_b32 v10, 31, v1"); a("v_lshlrev_b32 v10, 1, v10"); a("s_lshl_b32 s10, s9, 6")
    a("buffer_load_ushort v16, v10, s[40:43], s10 offen")
    a("v_lshrrev_b32 v9, 2, v2"); a("v_lshlrev_b32 v10, 3, v3"); a("v_add_u32 v9, v10, v9")
    a("v_and_b32 v44, 3, v2"); a("v_lshlrev_b32 v44, 3, v44")
    a("v_lshlrev_b32 v10, 6, v9"); a("v_add_u32 v10, v10, v44"); a("v_and_b32 v45, 1, v3"); a("v_lshlrev_b32 v46, 5, v45"); a("v_add_u32 v10, v10, v46")
    a("s_lshl_b32 s10, s3, 12")
    if L_W: a(f"s_add_u32 s10, s10, {L_W}")
    a("v_add_u32 v52, s10, v10"); a("v_xor_b32 v53, 32, v52")
    a("v_lshlrev_b32 v10, 10, v9"); a("v_add_u32 v10, v10, v44")
    a("v_lshrrev_b32 v46, 2, v2"); a("v_lshlrev_b32 v45, 2, v45"); a("v_or_b32 v46, v46, v45"); a("v_lshlrev_b32 v46, 5, v46"); a("v_add_u32 v10, v10, v46")
    a("s_lshl_b32 s10, s3, 7"); a("v_xor_b32 v10, s10, v10"); a(f"v_add_u32 v54, {L_W2}, v10")
    for q in range(1, 4): a(f"v_xor_b32 v{54+q}, {q*32}, v54")
    a("v_and_b32 v58, 3, v2"); a("v_lshlrev_b32 v58, 10, v58"); a("v_lshlrev_b32 v9, 4, v3"); a("v_add_u32 v58, v58, v9")
    a("s_lshl_b32 s10, s3, 7"); a(f"s_add_u32 s10, s10, {L_YB}"); a("v_add_u32 v58, s10, v58")
    a("v_lshlrev_b32 v59, 4, v2"); a("s_lshl_b32 s10, s3, 9"); a(f"s_add_u32 s10, s10, {L_T1}"); a("v_add_u32 v59, s10, v59")
    a("v_and_b32 v60, 31, v1"); a("v_lshlrev_b32 v60, 4, v60"); a("v_lshrrev_b32 v9, 5, v1"); a("v_lshlrev_b32 v9, 11, v9"); a("v_add_u32 v60, v60, v9"); a(f"v_add_u32 v60, {L_T1}, v60")
    a("v_and_b32 v61, 31, v1"); a("v_lshlrev_b32 v61, 1, v61"); a("v_lshrrev_b32 v9, 5, v1"); a("v_lshlrev_b32 v9, 7, v9"); a("v_add_u32 v61, v61, v9")
    a("s_lshl_b32 s10, s3, 8"); a(f"s_add_u32 s10, s10, {L_GB}"); a("v_add_u32 v61, s10, v61")
    a("v_and_b32 v62, 3, v2"); a("v_lshlrev_b32 v62, 6, v62"); a("v_lshlrev_b32 v9, 4, v3"); a("v_add_u32 v62, v62, v9"); a("v_add_u32 v62, s10, v62")
    a("s_lshl_b32 s10, s9, 12"); a("s_lshl_b32 s12, s3, 9"); a("s_add_u32 s10, s10, s12"); a(f"s_add_u32 s72, s10, {WS_GP}")
    for bb in range(1, 4): a(f"s_add_u32 s{72+bb}, s72, {bb*56*4096}")
    for r in range(4): a(f"v_mov_b32 v{113+2*r}, s96")
    a("v_mov_b32 v46, 0x3d372713")
    a("s_lshl_b32 s10, s3, 10"); a(f"s_add_u32 s10, s10, {L_YB}"); a("v_add_u32 v63, s10, v14")
    a("v_lshlrev_b32 v10, 5, v1"); a("s_lshl_b32 s10, s3, 11"); a("s_lshl_b32 s12, s4, 13"); a("s_add_u32 s10, s10, s12"); a(f"s_add_u32 s66, s10, {WS_H}")
    wait_flags4(F_W, 40, sleep=1)
    for kt in range(2):
        for nt in range(2):
            r = 64 + (kt*2+nt)*4
            a(f"ds_read_b64_tr_b16 v[{r}:{r+1}], v{52+nt} offset:{kt*2048}")
            a(f"ds_read_b64_tr_b16 v[{r+2}:{r+3}], v{52+nt} offset:{kt*2048+256}")
    for q in range(4):
        r = 80 + 4*q
        a(f"ds_read_b64_tr_b16 v[{r}:{r+1}], v{54+q}")
        a(f"ds_read_b64_tr_b16 v[{r+2}:{r+3}], v{54+q} offset:4096")
    a("s_waitcnt vmcnt(0) lgkmcnt(0)")
    a("v_lshlrev_b32 v16, 16, v16")
    a("s_cmp_ge_u32 s3, 4"); a("s_cbranch_scc1 L_B_ln_done")
    a("s_mov_b32 s67, 0")
    Lh = lab("hg"); a.label(Lh)
    a("buffer_load_dwordx4 v[192:195], v10, s[56:59], s66 offen sc1")
    a("buffer_load_dwordx4 v[196:199], v10, s[56:59], s66 offen offset:16 sc1")
    a("s_waitcnt vmcnt(0)")
    tagcheck([193, 195, 197, 199], 40, 44, Lh, sleep=tsleep)
    stamp(10)
    for i in range(4):
        a(f"v_lshlrev_b32 v{20+2*i}, 16, v{192+2*i}"); a(f"v_and_b32 v{21+2*i}, s63, v{192+2*i}")
    layernorm8(20, 32)
    a("ds_write_b128 v63, v[40:43]")
    a("s_waitcnt lgkmcnt(0)")
    stamp(12)
    a.label("L_B_ln_done")
    a("s_barrier")
    for kt in range(2): a(f"ds_read_b128 v[{192+4*kt}:{195+4*kt}], v58 offset:{kt*64}")
    a("s_waitcnt lgkmcnt(0)")
    for kt in range(2):
        for nt in range(2):
            r = 64 + (kt*2+nt)*4
            c = "0" if kt == 0 else f"v[{96+4*nt}:{99+4*nt}]"
            a(f"v_mfma_f32_16x16x32_bf16 v[{96+4*nt}:{99+4*nt}], v[{192+4*kt}:{195+4*kt}], v[{r}:{r+3}], {c}")
    a("s_nop 6")
    a("ds_write_b128 v59, v[96:99]")
    a("s_nop 0")
    a("ds_write_b128 v59, v[100:103] offset:256")
    a("s_waitcnt lgkmcnt(0)")
    stamp(13)
    a("s_barrier")
    stamp(14)
    for i in range(4): a(f"ds_read_b128 v[{192+4*i}:{195+4*i}], v60 offset:{i*512}")
    a("s_waitcnt lgkmcnt(0)")
    for c in range(4):
        a(f"v_add_f32 v{192+c}, v{192+c}, v{196+c}"); a(f"v_add_f32 v{200+c}, v{200+c}, v{204+c}")
    for c in range(4): a(f"v_add_f32 v{192+c}, v{192+c}, v{200+c}")
    a("s_nop 0")
    a("v_permlane32_swap_b32 v192, v194"); a("v_permlane32_swap_b32 v193, v195")
    a("v_add_f32 v40, v192, v194"); a("v_add_f32 v41, v193, v195")
    a("v_cvt_pk_bf16_f32 v42, v40, v41"); a("v_lshlrev_b32 v40, 16, v42"); a("v_and_b32 v41, s63, v42")
    a("v_add_f32 v40, v40, v16"); a("v_add_f32 v41, v41, v16")
    a("v_cvt_pk_bf16_f32 v42, v40, v41"); a("v_lshlrev_b32 v40, 16, v42"); a("v_and_b32 v41, s63, v42")
    for c in range(2): a(f"v_mul_f32 v{42+c}, v{40+c}, v{40+c}")
    for c in range(2): a(f"v_fma_f32 v{42+c}, v{42+c}, v46, 1.0")
    for c in range(2): a(f"v_mul_f32 v{42+c}, v{42+c}, v{40+c}")
    for c in range(2): a(f"v_mul_f32 v{42+c}, 0xc0135761, v{42+c}")
    for c in range(2): a(f"v_exp_f32 v{42+c}, v{42+c}")
    a("s_nop 0")
    for c in range(2): a(f"v_add_f32 v{42+c}, 1.0, v{42+c}")
    for c in range(2): a(f"v_rcp_f32 v{42+c}, v{42+c}")
    a("s_nop 0")
    for c in range(2): a(f"v_mul_f32 v{40+c}, v{40+c}, v{42+c}")
    a("v_cvt_pk_bf16_f32 v40, v40, v41")
    stamp(8)
    a("ds_write_b16 v61, v40"); a("ds_write_b16_d16_hi v61, v40 offset:64")
    a("ds_read_b128 v[192:195], v62")
    a("s_waitcnt lgkmcnt(0)")
    for q in range(4):
        a(f"v_mfma_f32_16x16x32_bf16 v[{96+4*q}:{99+4*q}], v[192:195], v[{80+4*q}:{83+4*q}], 0")
    a("s_nop 4")
    for r in range(4): a(f"v_mov_b32 v{112+2*r}, v{96+r}")
    for q in range(1, 4):
        for r in range(4):
            a(f"v_mov_b32_dpp v{112+2*r}, v{96+4*q+r} quad_perm:[0,1,2,3] row_mask:{hex(1<<q)} bank_mask:0xf")
    for r in range(4): a(f"buffer_store_dwordx2 v[{112+2*r}:{113+2*r}], v13, s[56:59], s{72+r} offen sc1")
    stamp(11)
    a("s_branch L_fin")

    a.label("L_roleC")
    a("s_cmp_lg_u32 s3, 7"); a("s_cbranch_scc1 L_fin")
    a("s_setprio 3")
    a("s_add_u32 s96, s8, 1")
    a("v_lshlrev_b32 v10, 12, v3"); a("v_lshlrev_b32 v9, 4, v2"); a("v_add_u32 v18, v10, v9")
    a("s_lshl_b32 s10, s76, 17"); a("s_lshl_b32 s12, s62, 3"); a("s_add_u32 s10, s10, s12"); a(f"s_add_u32 s80, s10, {WS_HP}")
    for t in range(1, 8): a(f"s_add_u32 s{80+t}, s80, {t*16384}")
    a("s_lshl_b32 s10, s76, 11"); a("s_lshl_b32 s12, s62, 2"); a("s_add_u32 s10, s10, s12"); a(f"s_add_u32 s72, s10, {WS_H}"); a("s_add_u32 s74, s72, 32768")
    a("v_lshlrev_b32 v17, 3, v2"); a("v_lshlrev_b32 v9, 13, v3"); a("v_add_u32 v17, v17, v9")
    a("s_lshl_b32 s10, s76, 10"); a("s_lshl_b32 s12, s62, 1"); a("s_add_u32 s73, s10, s12")
    a("v_lshlrev_b32 v16, 2, v2")
    a("s_mov_b32 s67, 0")
    Ls = lab("sg"); a.label(Ls)
    for t in range(8): a(f"buffer_load_dwordx4 v[{64+4*t}:{67+4*t}], v18, s[56:59], s{80+t} offen sc1")
    a("s_waitcnt vmcnt(0)")
    tagcheck([65+2*i for i in range(16)], 40, 44, Ls, sleep=tsleep)
    stamp(12)
    def tree2(n):
        ra = [64 + 4*t for t in range(n)]
        while len(ra) > 1:
            nxt = []
            for i in range(0, len(ra) - 1, 2):
                a(f"v_add_f32 v{ra[i]}, v{ra[i]}, v{ra[i+1]}"); a(f"v_add_f32 v{ra[i]+2}, v{ra[i]+2}, v{ra[i+1]+2}"); nxt.append(ra[i])
            if len(ra) % 2: nxt.append(ra[-1])
            ra = nxt
    def xrow():
        a("s_nop 1")
        a("v_permlane32_swap_b32 v64, v66")
        a("v_add_f32 v64, v64, v66")
        a("v_mov_b32 v66, v64"); a("s_nop 1")
        a("v_permlane16_swap_b32 v64, v66")
        a("v_add_f32 v64, v64, v66")
        a("v_mov_b32 v66, v64"); a("s_nop 1")
        a("v_permlane32_swap_b32 v64, v66")
    tree2(8)
    xrow()
    a("v_cvt_pk_bf16_f32 v40, v64, v66")
    a("v_lshlrev_b32 v43, 16, v12"); a("v_and_b32 v44, s63, v12")
    a("v_lshlrev_b32 v41, 16, v40"); a("v_and_b32 v42, s63, v40")
    a("v_add_f32 v41, v41, v43"); a("v_add_f32 v42, v42, v44")
    a("v_cvt_pk_bf16_f32 v40, v41, v42")
    a("v_mov_b32 v41, v15")
    a("buffer_store_dwordx2 v[40:41], v17, s[56:59], s72 offen sc1")
    a("buffer_store_dwordx2 v[40:41], v17, s[56:59], s74 offen sc1")
    a("v_lshlrev_b32 v21, 16, v40"); a("v_and_b32 v22, s63, v40")
    stamp(13)
    a(f"s_mul_i32 s10, s76, {56*4096}"); a("s_lshl_b32 s12, s62, 3"); a("s_add_u32 s10, s10, s12"); a(f"s_add_u32 s80, s10, {WS_GP}")
    for t in range(1, 14): a(f"s_add_u32 s{80+t}, s80, {t*16384}")
    a("s_mov_b32 s67, 0")
    Lg = lab("gg"); a.label(Lg)
    for t in range(14): a(f"buffer_load_dwordx4 v[{64+4*t}:{67+4*t}], v18, s[56:59], s{80+t} offen sc1")
    a("s_waitcnt vmcnt(0)")
    tagcheck([65+2*i for i in range(28)], 40, 44, Lg, sleep=tsleep, tag="s96")
    stamp(14)
    tree2(14)
    xrow()
    a("v_cvt_pk_bf16_f32 v40, v64, v66")
    a("v_lshlrev_b32 v43, 16, v8"); a("v_and_b32 v44, s63, v8")
    a("v_lshlrev_b32 v41, 16, v40"); a("v_and_b32 v42, s63, v40")
    a("v_add_f32 v41, v41, v43"); a("v_add_f32 v42, v42, v44")
    a("v_cvt_pk_bf16_f32 v40, v41, v42")
    a("v_lshlrev_b32 v41, 16, v40"); a("v_and_b32 v42, s63, v40")
    a("v_add_f32 v41, v41, v21"); a("v_add_f32 v42, v42, v22")
    a("v_cvt_pk_bf16_f32 v40, v41, v42")
    a("s_mov_b64 exec, 0xffff")
    a("buffer_store_dword v40, v16, s[52:55], s73 offen")
    a("s_mov_b64 exec, -1")
    a("s_cmp_lg_u32 s2, 192"); a("s_cbranch_scc1 L_fin")
    a("s_mov_b64 exec, 1")
    a("buffer_store_dword v15, v6, s[56:59], 0 offen sc1")
    a("s_mov_b64 exec, -1")
    a.label("L_fin")
    if stamps:
        stamp(15)
        a("s_lshl_b32 s10, s2, 3"); a("s_add_u32 s10, s10, s3"); a("s_lshl_b32 s10, s10, 6"); a(f"s_add_u32 s10, s10, {WS_STAMP}")
        a("v_mov_b32 v44, 0")
        a("s_mov_b64 exec, 1")
        for i in range(4): a(f"buffer_store_dwordx4 v[{SB+4*i}:{SB+3+4*i}], v44, s[56:59], s10 offen offset:{16*i}")
        a("s_mov_b64 exec, -1")
    a.label("L_end")
    a("s_endpgm")
    return a

HDR = """; Fused pre-LN GQA decode attention + channel-MLP block, single persistent launch (256 workgroups x 8 waves).
; @launch grid=(256,1,1) block=(512,1,1) lds={lds}
.amdgcn_target "amdgcn-amd-amdhsa--gfx950"
.text
.globl {name}_kernel
.p2align 8
.type {name}_kernel,@function
{name}_kernel:
"""
FTR = """
.section .rodata,"a"
.p2align 6
.amdhsa_kernel {name}_kernel
  .amdhsa_next_free_vgpr 256
  .amdhsa_next_free_sgpr 102
  .amdhsa_accum_offset 256
  .amdhsa_group_segment_fixed_size 0
  .amdhsa_kernarg_size 104
  .amdhsa_user_sgpr_count 2
  .amdhsa_user_sgpr_kernarg_segment_ptr 1
  .amdhsa_system_sgpr_workgroup_id_x 1
.end_amdhsa_kernel
"""
def build(path, **kw):
    a = gen(**kw)
    probs = check_hazards(a.lines)
    open(path, "w").write(HDR.format(name=NAME, lds=LDS_BYTES) + a.text() + FTR.format(name=NAME))
    return probs

if __name__ == "__main__":
    out = sys.argv[1] if len(sys.argv) > 1 else "k3.s"
    kw = {}
    for arg in sys.argv[2:]:
        if arg == "stamps": kw["stamps"] = True
        elif "=" in arg:
            k, v = arg.split("="); kw[k] = eval(v)
    probs = build(out, **kw)
    print("hazards:", len(probs))
```

```python
import sys
from asmlib import Asm, check_hazards

NAME = "sequential_preLN__gqa_block_cached__mixer_channel_mlp__decode"

WS_EPOCH = 0
WS_ML = 0x1000
WS_H  = 0x1E8000
WS_OP = 0x8000
WS_HP = 0x88000
WS_QB = 0x108000
WS_GP = 0x108000
WS_STAMP = 0x400000
L_W = 0
L_W2 = 32768
L_WQ = 65536
L_RED = 81920
L_R1 = 90112
L_YB = 98304
L_QPB = 102400
L_PB = 106496
L_T1 = 110592
L_GB = 114688
L_QL = 116736
L_FLAGS = 117760
L_MLB = 118016
L_WR = 118784
LDS_BYTES = 122880
F_Y, F_QP, F_Q, F_ML, F_P, F_W, F_O, F_WR = 0, 16, 32, 48, 64, 80, 96, 112

LOG2E = 0x3fb8aa3b
SCALE = 0x3db504f3
EPS = 0x3727c5ac
TAGC = 0x9E3779B9
POLL_MAX = 20000

def gen(stamps=False, psleep=2, tsleep=1, qearly=6, mlsleep=8, rot=True, no_w=False, no_pwait=False, no_q=False, khold=0, lanemask=True, NAE=16, NAL=16):
    a = Asm()
    NT = " nt"
    uid = [0]
    def lab(p):
        uid[0] += 1
        return f"L_{p}_{uid[0]}"
    SB = 240
    def stamp(idx):
        if stamps:
            a("s_memrealtime s[78:79]")
            a("s_waitcnt lgkmcnt(0)")
            a(f"v_mov_b32 v{SB+idx}, s78")
    def allreduce(op, rs, tmps):
        k = len(rs)
        for rot in (8, 4, 2, 1):
            if k == 1: a("s_nop 1")
            elif k == 2: a("s_nop 0")
            for r in rs:
                a(f"{op}_dpp v{r}, v{r}, v{r} row_ror:{rot} row_mask:0xf bank_mask:0xf")
        for sw in ("v_permlane16_swap_b32", "v_permlane32_swap_b32"):
            for r, t in zip(rs, tmps): a(f"v_mov_b32 v{t}, v{r}")
            a("s_nop 1" if k == 1 else "s_nop 0")
            if k == 2: pass
            for r, t in zip(rs, tmps): a(f"{sw} v{r}, v{t}")
            for r, t in zip(rs, tmps): a(f"{op} v{r}, v{r}, v{t}")
    def rb(dst, src):
        a(f"v_cvt_pk_bf16_f32 v{dst}, v{src}, v{src}")
        a(f"v_lshlrev_b32 v{dst}, 16, v{dst}")
    def setflag(off): a(f"ds_write_b32 v11, v0 offset:{off}")
    def wait_flags4(off, tmp, sleep=0):
        L = lab("wf")
        a.label(L)
        if sleep: a(f"s_sleep {sleep}")
        a(f"ds_read_b128 v[{tmp}:{tmp+3}], v7 offset:{off}")
        a("s_waitcnt lgkmcnt(0)")
        a(f"v_and_b32 v{tmp}, v{tmp}, v{tmp+1}"); a(f"v_and_b32 v{tmp+2}, v{tmp+2}, v{tmp+3}")
        a(f"v_and_b32 v{tmp}, v{tmp}, v{tmp+2}")
        a(f"v_cmp_ne_u32 vcc, 1, v{tmp}")
        a(f"s_cbranch_vccnz {L}")
    def wait_flag1(off, tmp, sleep=0):
        L = lab("wf")
        a.label(L)
        if sleep: a(f"s_sleep {sleep}")
        a(f"ds_read_b32 v{tmp}, v11 offset:{off}")
        a("s_waitcnt lgkmcnt(0)")
        a(f"v_cmp_ne_u32 vcc, 1, v{tmp}")
        a(f"s_cbranch_vccnz {L}")
    def tagcheck(tagregs, acc, t1, retry_label, cnt=67, sleep=0, tag="s8"):
        first = True; i = 0
        while i < len(tagregs):
            if i + 1 < len(tagregs):
                a(f"v_xor_b32 v{t1}, {tag}, v{tagregs[i]}")
                if first:
                    a(f"v_xor_b32 v{acc}, {tag}, v{tagregs[i+1]}")
                    a(f"v_or_b32 v{acc}, v{acc}, v{t1}")
                else:
                    a(f"v_xor_b32 v{t1+1}, {tag}, v{tagregs[i+1]}")
                    a(f"v_or3_b32 v{acc}, v{acc}, v{t1}, v{t1+1}")
                i += 2
            else:
                if first: a(f"v_xor_b32 v{acc}, {tag}, v{tagregs[i]}")
                else:
                    a(f"v_xor_b32 v{t1}, {tag}, v{tagregs[i]}")
                    a(f"v_or_b32 v{acc}, v{acc}, v{t1}")
                i += 1
            first = False
        a(f"v_cmp_ne_u32 vcc, 0, v{acc}")
        done = lab("pd")
        a(f"s_cbranch_vccz {done}")
        if lanemask: a("s_mov_b64 exec, vcc")
        if sleep: a(f"s_sleep {sleep}")
        a(f"s_add_u32 s{cnt}, s{cnt}, 1")
        a(f"s_cmp_lt_u32 s{cnt}, {POLL_MAX}")
        a(f"s_cbranch_scc1 {retry_label}")
        a.label(done)
        if lanemask: a("s_mov_b64 exec, -1")
    def layernorm8(e, t):
        a(f"v_readfirstlane_b32 s12, v{e}")
        a("s_nop 1")
        for i in range(8): a(f"v_subrev_f32 v{t+4+(i&3)+ (0)}, s12, v{e+i}") if False else None
        a(f"v_subrev_f32 v{t+2}, s12, v{e}"); a(f"v_subrev_f32 v{t+3}, s12, v{e+1}")
        a(f"v_add_f32 v{t}, v{t+2}, v{t+3}"); a(f"v_mul_f32 v{t+1}, v{t+2}, v{t+2}"); a(f"v_fmac_f32 v{t+1}, v{t+3}, v{t+3}")
        for i in range(2, 8, 2):
            a(f"v_subrev_f32 v{t+2}, s12, v{e+i}"); a(f"v_subrev_f32 v{t+3}, s12, v{e+i+1}")
            a(f"v_add_f32 v{t}, v{t}, v{t+2}"); a(f"v_fmac_f32 v{t+1}, v{t+2}, v{t+2}")
            a(f"v_add_f32 v{t}, v{t}, v{t+3}"); a(f"v_fmac_f32 v{t+1}, v{t+3}, v{t+3}")
        allreduce("v_add_f32", [t, t+1], [t+2, t+3])
        a(f"v_mul_f32 v{t}, 0x3b000000, v{t}")
        a(f"v_mul_f32 v{t+1}, 0x3b000000, v{t+1}")
        a(f"v_fma_f32 v{t+1}, -v{t}, v{t}, v{t+1}")
        a(f"v_add_f32 v{t}, s12, v{t}")
        a(f"v_max_f32 v{t+1}, 0, v{t+1}")
        a(f"v_cvt_pk_bf16_f32 v{t+2}, v{t}, v{t+1}")
        a(f"v_and_b32 v{t+1}, s63, v{t+2}")
        a(f"v_lshlrev_b32 v{t}, 16, v{t+2}")
        a(f"v_add_f32 v{t+1}, {EPS}, v{t+1}")
        for i in range(4): a(f"v_sub_f32 v{e+i}, v{e+i}, v{t}")
        rb(t+1, t+1)
        a(f"v_sqrt_f32 v{t+1}, v{t+1}")
        for i in range(4, 8): a(f"v_sub_f32 v{e+i}, v{e+i}, v{t}")
        rb(t+1, t+1)
        a(f"v_rcp_f32 v{t+1}, v{t+1}")
        for i in range(4): a(f"v_cvt_pk_bf16_f32 v{t+8+i}, v{e+2*i}, v{e+2*i+1}")
        for i in range(4):
            a(f"v_lshlrev_b32 v{e+2*i}, 16, v{t+8+i}"); a(f"v_and_b32 v{e+2*i+1}, s63, v{t+8+i}")
        for i in range(8): a(f"v_mul_f32 v{e+i}, v{e+i}, v{t+1}")
        for i in range(4): a(f"v_cvt_pk_bf16_f32 v{t+8+i}, v{e+2*i}, v{e+2*i+1}")
    def kvstep():
        a("s_add_u32 s83, s83, 4096"); a("s_and_b32 s83, s83, 0x7fff"); a("s_add_u32 s65, s64, s83")
    def role_setup():
        NCE = 32 - NAE - 7; NCL = (64 - 4*NCE) // 4
        assert 4*NAE + 4*NAL == 128 and NAL + 7 + NCL <= 32 and NCE >= 0
        a("s_and_b32 s87, s4, 3")
        a("s_cmp_lt_u32 s4, 4")
        a(f"s_cselect_b32 s10, {NAE}, {NAL}")
        a(f"s_cselect_b32 s12, 0, {4*NAE}")
        a(f"s_cselect_b32 s13, {NCE}, {NCL}")
        a(f"s_cselect_b32 s14, 0, {4*NCE}")
        a("s_mul_i32 s15, s87, s10"); a("s_add_u32 s15, s15, s12"); a("s_add_u32 s15, s15, s7")
        a("s_sub_u32 s12, s7, s10")
        a("s_mul_i32 s9, s4, 7"); a("s_add_u32 s9, s9, s12")
        a("s_sub_u32 s76, s12, 7")
        a("s_mov_b32 s97, 3")
        a("s_cmp_lt_u32 s76, s13"); a("s_cselect_b32 s97, 2, s97")
        a("s_cmp_lt_u32 s12, 7"); a("s_cselect_b32 s97, 1, s97")
        a("s_cmp_lt_u32 s7, s10"); a("s_cselect_b32 s97, 0, s97")
        a("s_mul_i32 s13, s87, s13"); a("s_add_u32 s13, s13, s14"); a("s_add_u32 s13, s13, s76")
        a("s_lshr_b32 s84, s15, 4"); a("s_and_b32 s84, s84, 7")
        a("s_lshr_b32 s85, s15, 2"); a("s_and_b32 s85, s85, 3")
        a("s_and_b32 s86, s15, 3")
        a("s_lshr_b32 s76, s13, 4"); a("s_and_b32 s76, s76, 3")
        a("s_and_b32 s10, s13, 15"); a("s_lshl_b32 s62, s10, 5")
        a("s_mov_b32 s87, s13")
    def role_branch(la, lb, lc):
        a("s_cmp_eq_u32 s97, 0"); a(f"s_cbranch_scc1 {la}")
        a("s_cmp_eq_u32 s97, 1"); a(f"s_cbranch_scc1 {lb}")
        if lc: a("s_cmp_eq_u32 s97, 2"); a(f"s_cbranch_scc1 {lc}") if lc else None
        a("s_branch L_fin")
    def srd(sr, sz):
        a(f"s_mov_b32 s{sr+2}, {sz}"); a(f"s_mov_b32 s{sr+3}, 0x20000")
    SZ = {16: 4096, 20: 33554432, 24: 33554432, 28: 4194304, 32: 4194304, 36: 1835008, 40: 3584, 44: 1835008, 48: 1024, 52: 4096, 56: 268435456}

    if stamps: a("s_memrealtime s[78:79]")
    for (sr, off) in ((56, 96), (20, 8), (16, 0), (28, 24), (24, 16), (32, 32), (36, 48), (40, 56), (44, 64), (48, 72), (52, 80)):
        a(f"s_load_dwordx2 s[{sr}:{sr+1}], s[0:1], {off}")
    a("s_cmp_ge_u32 s2, 256")
    a("s_cbranch_scc1 L_end")
    a("v_lshrrev_b32 v4, 6, v0")
    a("v_and_b32 v1, 63, v0")
    a("v_readfirstlane_b32 s3, v4")
    a("v_and_b32 v2, 15, v1")
    a("v_lshrrev_b32 v3, 4, v1")
    a("s_and_b32 s4, s2, 7")
    a("s_lshr_b32 s7, s2, 3")
    a("s_lshr_b32 s5, s7, 3")
    a("s_and_b32 s6, s7, 7")
    srd(56, SZ[56]); srd(20, SZ[20]); srd(16, SZ[16]); srd(28, SZ[28])
    a("s_and_b32 s11, s3, 3")
    a("s_lshl_b32 s70, s5, 3"); a("s_add_u32 s70, s70, s4")
    a("s_lshl_b32 s64, s70, 20"); a("s_lshl_b32 s10, s6, 17"); a("s_add_u32 s64, s64, s10")
    a("s_lshl_b32 s10, s11, 15"); a("s_add_u32 s64, s64, s10")
    a("s_lshl_b32 s83, s5, 13") if rot else a("s_mov_b32 s83, 0")
    a("s_add_u32 s65, s64, s83")
    a("v_mov_b32 v6, 0")
    a("v_lshlrev_b32 v14, 4, v1")
    a("s_cmp_ge_u32 s3, 4")
    a("s_cbranch_scc1 L_v1")
    a("v_lshlrev_b32 v47, 8, v2"); a("v_lshlrev_b32 v10, 4, v3"); a("v_add_u32 v47, v47, v10")
    a("s_lshl_b32 s10, s4, 2"); a("s_add_u32 s10, s10, s5"); a("s_lshl_b32 s10, s10, 14"); a("s_lshl_b32 s12, s11, 10"); a("s_add_u32 s10, s10, s12"); a(f"s_add_u32 s66, s10, {WS_QB}")
    for k in range(1, 4): a(f"s_add_u32 s{71+k}, s66, {k*4096}")
    a("s_setprio 2")
    a("s_waitcnt lgkmcnt(0)")
    a("buffer_load_dword v5, v6, s[56:59], 0 offen sc1")
    def qloads():
        for k in range(4):
            a(f"buffer_load_dwordx4 v[{16+4*k}:{19+4*k}], v14, s[56:59], s{66 if k == 0 else 71+k} offen sc1")
    for t in range(8):
        for i in range(4):
            r = 64 + 16*t + 4*i
            a(f"buffer_load_dwordx4 v[{r}:{r+3}], v47, s[20:23], s65 offen offset:{i*64}{NT}")
        if t < 7: kvstep()
        if t == 1:
            a("v_lshlrev_b32 v9, 2, v1"); a(f"v_add_u32 v9, {L_FLAGS}, v9"); a("ds_write_b32 v9, v6"); a("v_mov_b32 v0, 1")
            a("s_waitcnt lgkmcnt(0)"); a("s_barrier")
        if t == qearly - 1: qloads()
    a("s_branch L_k2")
    a.label("L_v1")
    a("v_lshrrev_b32 v10, 3, v1"); a("v_lshlrev_b32 v10, 13, v10"); a("v_and_b32 v9, 7, v1"); a("v_lshlrev_b32 v9, 4, v9"); a("v_add_u32 v10, v10, v9")
    a("s_lshl_b32 s13, s5, 20"); a("s_lshl_b32 s12, s11, 18"); a("s_add_u32 s13, s13, s12")
    a("s_lshl_b32 s12, s4, 10"); a("s_add_u32 s13, s13, s12"); a("s_lshl_b32 s12, s6, 7"); a("s_add_u32 s13, s13, s12")
    a("s_lshl_b32 s12, s11, 12"); a(f"s_add_u32 s12, s12, {L_WQ}")
    a("s_lshl_b32 s10, s11, 10")
    a("s_setprio 3")
    a("s_waitcnt lgkmcnt(0)")
    a("buffer_load_dword v5, v6, s[56:59], 0 offen sc1")
    a("buffer_load_dwordx4 v[16:19], v14, s[16:19], s10 offen")
    for i in range(4):
        a("s_mov_b32 m0, s12"); a("s_add_u32 s12, s12, 1024")
        a(f"buffer_load_dwordx4 v10, s[28:31], s13 offen{NT} lds"); a("s_add_u32 s13, s13, 0x10000")
    a("v_lshlrev_b32 v9, 2, v1"); a(f"v_add_u32 v9, {L_FLAGS}, v9"); a("ds_write_b32 v9, v6"); a("v_mov_b32 v0, 1")
    a("s_waitcnt lgkmcnt(0)"); a("s_barrier")

    if stamps:
        a("s_waitcnt lgkmcnt(0)")
        for i in range(16): a(f"v_mov_b32 v{SB+i}, 0")
        a(f"v_mov_b32 v{SB}, s78")
    for sr in (24, 32, 36, 40, 44, 48, 52): srd(sr, SZ[sr])
    role_setup()
    a("s_mov_b32 s60, 0x05040100"); a("s_mov_b32 s61, 0x07060302"); a("s_mov_b32 s63, 0xffff0000")
    a(f"v_mov_b32 v7, {L_FLAGS}"); a("s_lshl_b32 s10, s11, 2"); a("v_add_u32 v11, s10, v7")
    a("v_lshlrev_b32 v13, 3, v1")
    a("v_lshrrev_b32 v9, 2, v2"); a("v_lshlrev_b32 v10, 3, v3"); a("v_add_u32 v9, v9, v10"); a("v_lshlrev_b32 v44, 7, v9")
    a("v_and_b32 v10, 3, v2"); a("v_lshlrev_b32 v10, 3, v10"); a("v_add_u32 v44, v44, v10")
    a("s_lshl_b32 s10, s11, 12"); a(f"s_add_u32 s10, s10, {L_WQ}"); a("v_add_u32 v44, s10, v44")
    a("v_and_b32 v45, 3, v2"); a("v_lshlrev_b32 v45, 10, v45"); a("v_lshlrev_b32 v46, 4, v3"); a("v_add_u32 v45, v45, v46")
    a("s_lshl_b32 s10, s5, 8"); a("s_lshl_b32 s12, s11, 6"); a("s_add_u32 s10, s10, s12"); a(f"s_add_u32 s10, s10, {L_YB}"); a("v_add_u32 v45, s10, v45")
    a("v_lshlrev_b32 v46, 4, v2"); a("s_lshl_b32 s10, s11, 10"); a(f"s_add_u32 s10, s10, {L_QPB}"); a("v_add_u32 v46, s10, v46")
    a("s_lshl_b32 s10, s11, 2"); a(f"s_add_u32 s10, s10, {L_QPB}"); a("v_add_u32 v47, s10, v14")
    a("s_lshl_b32 s10, s11, 10"); a(f"s_add_u32 s10, s10, {L_YB}"); a("v_add_u32 v9, s10, v14")
    a("s_lshl_b32 s10, s4, 2"); a("s_add_u32 s10, s10, s11"); a("s_lshl_b32 s10, s10, 2"); a("s_add_u32 s10, s10, s5"); a("s_lshl_b32 s10, s10, 12")
    a("s_lshl_b32 s12, s6, 9"); a("s_add_u32 s10, s10, s12"); a(f"s_add_u32 s66, s10, {WS_QB}")
    a("s_waitcnt vmcnt(4)")
    stamp(6)
    a("v_readfirstlane_b32 s8, v5")
    for i in range(4):
        a(f"v_lshlrev_b32 v{20+2*i}, 16, v{16+i}"); a(f"v_and_b32 v{21+2*i}, s63, v{16+i}")
    a(f"s_add_u32 s8, s8, {TAGC}")
    a("v_mov_b32 v15, s8")
    layernorm8(20, 32)
    a("ds_write_b128 v9, v[40:43]")
    setflag(F_Y)
    wait_flags4(F_Y, 40)
    a("ds_read_b128 v[192:195], v45")
    a("s_waitcnt vmcnt(0)")
    stamp(7)
    for nt in range(4):
        a(f"ds_read_b64_tr_b16 v[{196+4*nt}:{197+4*nt}], v44 offset:{nt*32}")
        a(f"ds_read_b64_tr_b16 v[{198+4*nt}:{199+4*nt}], v44 offset:{nt*32+512}")
    a("s_waitcnt lgkmcnt(0)")
    for nt in range(4):
        a(f"v_mfma_f32_16x16x32_bf16 v[{212+4*nt}:{215+4*nt}], v[192:195], v[{196+4*nt}:{199+4*nt}], 0")
    a("v_mov_b32 v45, s8")
    a("s_nop 3")
    for nt in range(4): a(f"ds_write_b128 v46, v[{212+4*nt}:{215+4*nt}] offset:{nt*256}")
    setflag(F_QP)
    wait_flags4(F_QP, 40)
    for w in range(4): a(f"ds_read_b32 v{40+w}, v47 offset:{w*1024}")
    a("s_waitcnt lgkmcnt(0)")
    a("v_add_f32 v40, v40, v41"); a("v_add_f32 v42, v42, v43"); a("v_add_f32 v44, v40, v42")
    a("buffer_store_dwordx2 v[44:45], v13, s[56:59], s66 offen sc1")
    a("s_setprio 1")
    stamp(1)
    for k in range(32):
        r = 64 + 4*k
        a(f"buffer_load_dwordx4 v[{r}:{r+3}], v14, s[24:27], s65 offen offset:{(k%4)*1024}{NT}")
        if k % 4 == 3 and k < 31: kvstep()
    stamp(2)
    a("v_lshlrev_b32 v10, 2, v2")
    a("s_lshl_b32 s10, s76, 10"); a("s_lshl_b32 s12, s62, 1"); a("s_add_u32 s10, s10, s12")
    a("buffer_load_dword v12, v10, s[16:19], s10 offen")
    a("buffer_load_dword v8, v10, s[48:51], s12 offen")
    a("buffer_load_dword v4, v10, s[52:55], s10 offen")
    NSM = 3
    a("v_lshlrev_b32 v20, 9, v3"); a("v_lshlrev_b32 v9, 5, v2"); a("v_add_u32 v20, v20, v9")
    a("s_lshl_b32 s10, s11, 11"); a(f"s_add_u32 s10, s10, {L_RED}"); a("v_add_u32 v20, s10, v20")
    a("s_lshl_b32 s10, s11, 9"); a(f"s_add_u32 s10, s10, {L_RED}"); a("v_add_u32 v21, s10, v13")
    a("s_lshl_b32 s10, s70, 3"); a("s_add_u32 s10, s10, s6"); a("s_lshl_b32 s10, s10, 11"); a("s_lshl_b32 s12, s11, 9"); a("s_add_u32 s10, s10, s12"); a(f"s_add_u32 s66, s10, {WS_OP}")
    a("v_lshrrev_b32 v10, 2, v2"); a("v_lshlrev_b32 v10, 6, v10"); a("v_lshlrev_b32 v9, 4, v3"); a("v_add_u32 v10, v10, v9")
    a("s_lshl_b32 s10, s11, 10"); a(f"s_add_u32 s10, s10, {L_PB}"); a("v_add_u32 v10, s10, v10")
    if not no_pwait: wait_flag1(F_P, 40, sleep=1)
    PF = 224
    for T in range(4): a(f"ds_read_b128 v[{PF+4*T}:{PF+3+4*T}], v10 offset:{T*256}")
    stamp(3)
    def perms(T, dst, ulist):
        raw = 64 + 32*T
        for u in ulist:
            for jj in range(4):
                s1 = raw + 4*(2*u) + jj; s0 = raw + 4*(2*u+1) + jj
                a(f"v_perm_b32 v{dst + 4*(2*jj) + u}, v{s0}, v{s1}, s60")
                a(f"v_perm_b32 v{dst + 4*(2*jj+1) + u}, v{s0}, v{s1}, s61")
    ACC = 32
    def mfmas(T, src, js):
        for j in js:
            c = "0" if T == 0 else f"v[{ACC+4*j}:{ACC+4*j+3}]"
            a(f"v_mfma_f32_16x16x32_bf16 v[{ACC+4*j}:{ACC+4*j+3}], v[{PF+4*T}:{PF+3+4*T}], v[{src+4*j}:{src+4*j+3}], {c}")
    F = [192, 64, 96, 128]
    def after(k): return min(63, (31 - k) + NSM)
    a(f"s_waitcnt vmcnt({after(7)})")
    perms(0, F[0], range(4))
    a(f"s_waitcnt vmcnt({after(15)}) lgkmcnt(0)")
    for u in range(4):
        perms(1, F[1], [u]); mfmas(0, F[0], [2*u, 2*u+1])
    a(f"s_waitcnt vmcnt({after(23)})")
    for u in range(4):
        perms(2, F[2], [u]); mfmas(1, F[1], [2*u, 2*u+1])
    mfmas(2, F[2], range(4))
    for u in range(4):
        a(f"s_waitcnt vmcnt({after(24+2*u+1)})")
        perms(3, F[3], [u])
        mfmas(2, F[2], [4+u])
    a("s_nop 0")
    mfmas(3, F[3], range(8))
    stamp(4)
    a("v_mov_b32 v17, s8")
    a("s_nop 6")
    for j in range(0, 8, 2):
        a(f"ds_write2_b32 v20, v{ACC+4*j}, v{ACC+4*(j+1)} offset0:{j} offset1:{j+1}")
    setflag(F_O)
    wait_flags4(F_O, 24)
    for w in range(4): a(f"ds_read_b64 v[{24+2*w}:{25+2*w}], v21 offset:{w*2048}")
    a("s_waitcnt lgkmcnt(0)")
    for c in range(2):
        a(f"v_add_f32 v{24+c}, v{24+c}, v{26+c}"); a(f"v_add_f32 v{28+c}, v{28+c}, v{30+c}")
    for c in range(2): a(f"v_add_f32 v{24+c}, v{24+c}, v{28+c}")
    a("v_cvt_pk_bf16_f32 v16, v24, v25")
    a("buffer_store_dwordx2 v[16:17], v13, s[56:59], s66 offen sc1")
    stamp(5)
    a("s_setprio 3")
    a(f"s_mov_b32 s69, {LOG2E}")
    role_branch("L_roleA", "L_roleB", "L_roleC")

    a.label("L_k2")
    if stamps:
        a("s_waitcnt lgkmcnt(0)")
        for i in range(16): a(f"v_mov_b32 v{SB+i}, 0")
        a(f"v_mov_b32 v{SB}, s78")
    stamp(2)
    if stamps:
        a("s_getreg_b32 s12, hwreg(HW_REG_HW_ID)"); a(f"v_mov_b32 v{SB+6}, s12")
        a("s_getreg_b32 s12, hwreg(HW_REG_XCC_ID)"); a("s_add_u32 s12, s12, 1"); a(f"v_mov_b32 v{SB+7}, s12")
    for sr in (24, 32, 36, 40, 44, 48, 52): srd(sr, SZ[sr])
    role_setup()
    a("s_mov_b32 s63, 0xffff0000")
    a(f"v_mov_b32 v7, {L_FLAGS}"); a("s_lshl_b32 s10, s11, 2"); a("v_add_u32 v11, s10, v7")
    a("v_lshlrev_b32 v13, 3, v1")
    a(f"s_waitcnt vmcnt({(8 - qearly) * 4})")
    a("v_readfirstlane_b32 s8, v5")
    a("s_mov_b32 s67, 0")
    a(f"s_add_u32 s8, s8, {TAGC}")
    a("v_mov_b32 v15, s8")
    Lq = lab("qg"); Lq2 = lab("qg2")
    a(f"s_branch {Lq2}")
    a.label(Lq)
    qloads()
    a("s_waitcnt vmcnt(0)")
    a.label(Lq2)
    tagcheck([17+2*i for i in range(8)], 40, 44, Lq, sleep=psleep)
    if stamps: a(f"v_mov_b32 v{SB+1}, s67")
    a("v_add_f32 v16, v16, v20"); a("v_add_f32 v24, v24, v28"); a("v_add_f32 v18, v18, v22"); a("v_add_f32 v26, v26, v30")
    a("v_add_f32 v16, v16, v24"); a("v_add_f32 v18, v18, v26")
    a("v_cvt_pk_bf16_f32 v40, v16, v18")
    a("s_lshl_b32 s10, s11, 8"); a(f"s_add_u32 s10, s10, {L_QL}")
    a("v_lshlrev_b32 v10, 2, v1"); a("v_add_u32 v10, s10, v10")
    a("ds_write_b32 v10, v40")
    setflag(F_Q)
    stamp(3)
    a("v_and_b32 v10, 3, v2"); a("v_lshlrev_b32 v10, 8, v10"); a("v_lshlrev_b32 v44, 4, v3"); a("v_add_u32 v10, v10, v44")
    a(f"v_add_u32 v10, {L_QL}, v10")
    wait_flags4(F_Q, 40)
    for i in range(4): a(f"ds_read_b128 v[{16+4*i}:{19+4*i}], v10 offset:{i*64}")
    a("s_waitcnt lgkmcnt(0)")
    for t in range(8):
        if t >= qearly: a(f"s_waitcnt vmcnt({(7-t)*4})")
        for i in range(4):
            r = 64 + 16*t + 4*i
            c = "0" if i == 0 else f"v[{32+4*t}:{35+4*t}]"
            a(f"v_mfma_f32_16x16x32_bf16 v[{32+4*t}:{35+4*t}], v[{16+4*i}:{19+4*i}], v[{r}:{r+3}], {c}")
    a(f"s_mov_b32 s68, {SCALE}"); a(f"s_mov_b32 s69, {LOG2E}")
    a("s_nop 5")
    for aa in range(2):
        for q in range(1, 4):
            for h in range(4):
                a(f"v_mov_b32_dpp v{32+16*aa+h}, v{32+16*aa+4*q+h} quad_perm:[0,1,2,3] row_mask:{hex(1<<q)} bank_mask:0xf")
    S = [[32+16*aa+h for h in range(4)] for aa in range(2)]
    for rnd in range(2):
        for aa in range(2):
            for hp in range(2): a(f"v_cvt_pk_bf16_f32 v{36+2*aa+hp}, v{S[aa][2*hp]}, v{S[aa][2*hp+1]}")
        for aa in range(2):
            for hp in range(2):
                a(f"v_lshlrev_b32 v{S[aa][2*hp]}, 16, v{36+2*aa+hp}")
                a(f"v_and_b32 v{S[aa][2*hp+1]}, s63, v{36+2*aa+hp}")
        if rnd == 0:
            for aa in range(2):
                for h in range(4): a(f"v_mul_f32 v{S[aa][h]}, s68, v{S[aa][h]}")
    for h in range(4): a(f"v_max_f32 v{40+h}, v{S[0][h]}, v{S[1][h]}")
    allreduce("v_max_f32", [40, 41, 42, 43], [44, 45, 46, 47])
    for aa in range(2):
        for h in range(4): a(f"v_sub_f32 v{S[aa][h]}, v{S[aa][h]}, v{40+h}")
    for aa in range(2):
        for h in range(4): a(f"v_mul_f32 v{S[aa][h]}, s69, v{S[aa][h]}")
    for aa in range(2):
        for h in range(4): a(f"v_exp_f32 v{S[aa][h]}, v{S[aa][h]}")
    a("s_nop 0")
    for h in range(4): a(f"v_add_f32 v{52+h}, v{S[0][h]}, v{S[1][h]}")
    allreduce("v_add_f32", [52, 53, 54, 55], [44, 45, 46, 47])
    for h in range(4):
        a(f"v_mov_b32 v{56+2*h}, v{40+h}"); a(f"v_mov_b32 v{57+2*h}, v{52+h}")
    a("s_lshl_b32 s10, s11, 5"); a(f"s_add_u32 s10, s10, {L_MLB}")
    a("v_mov_b32 v10, s10")
    a("ds_write_b128 v10, v[56:59]")
    a("ds_write_b128 v10, v[60:63] offset:16")
    setflag(F_ML)
    a("v_lshlrev_b32 v10, 3, v2"); a(f"v_add_u32 v10, {L_MLB}, v10")
    a("v_lshrrev_b32 v9, 5, v1"); a("v_lshlrev_b32 v9, 8, v9")
    a("v_and_b32 v44, 3, v1"); a("v_lshlrev_b32 v44, 4, v44"); a("v_add_u32 v9, v9, v44")
    a("v_and_b32 v44, 31, v1"); a("v_lshrrev_b32 v44, 2, v44"); a("v_lshlrev_b32 v44, 1, v44"); a("v_add_u32 v9, v9, v44")
    a("s_lshl_b32 s10, s11, 10"); a(f"s_add_u32 s10, s10, {L_PB}"); a("v_add_u32 v9, s10, v9")
    wait_flags4(F_ML, 44)
    a("ds_read_b64 v[192:193], v10")
    a("s_waitcnt lgkmcnt(0)")
    a("v_mov_b32 v194, v192")
    a("s_nop 1")
    a("v_max_f32_dpp v194, v194, v194 row_ror:4 row_mask:0xf bank_mask:0xf")
    a("s_nop 1")
    a("v_max_f32_dpp v194, v194, v194 row_ror:8 row_mask:0xf bank_mask:0xf")
    a("v_sub_f32 v195, v192, v194"); a("v_mul_f32 v195, s69, v195"); a("v_exp_f32 v195, v195"); a("s_nop 0")
    a("v_mul_f32 v196, v193, v195")
    a("s_nop 1")
    a("v_add_f32_dpp v196, v196, v196 row_ror:4 row_mask:0xf bank_mask:0xf")
    a("s_nop 1")
    a("v_add_f32_dpp v196, v196, v196 row_ror:8 row_mask:0xf bank_mask:0xf")
    a("v_rcp_f32 v197, v196"); a("s_nop 0")
    a("v_mul_f32 v197, v197, v195")
    a("s_lshl_b32 s10, s11, 2")
    for h in range(4):
        a(f"s_add_u32 s12, s10, {h}")
        a(f"v_readlane_b32 s{72+h}, v197, s12")
    a("v_mov_b32 v56, v194"); a("v_mov_b32 v57, s8"); a("v_mov_b32 v58, v196"); a("v_mov_b32 v59, s8")
    for aa in range(2):
        for h in range(4): a(f"v_mul_f32 v{S[aa][h]}, s{72+h}, v{S[aa][h]}")
    for aa in range(2):
        for hp in range(2): a(f"v_cvt_pk_bf16_f32 v{36+2*aa+hp}, v{S[aa][2*hp]}, v{S[aa][2*hp+1]}")
    for aa in range(2):
        for hp in range(2):
            a(f"ds_write_b16 v9, v{36+2*aa+hp} offset:{aa*512 + (2*hp)*64}")
            a(f"ds_write_b16_d16_hi v9, v{36+2*aa+hp} offset:{aa*512 + (2*hp+1)*64}")
    setflag(F_P)
    a("s_lshl_b32 s10, s70, 3"); a("s_add_u32 s10, s10, s6"); a("s_lshl_b32 s10, s10, 6")
    a("s_lshl_b32 s12, s11, 4"); a("s_add_u32 s10, s10, s12"); a(f"s_add_u32 s10, s10, {WS_ML}")
    a("s_lshl_b64 s[12:13], 1, s11")
    a("s_mov_b64 exec, s[12:13]")
    a("buffer_store_dwordx4 v[56:59], v6, s[56:59], s10 offen sc1")
    a("s_mov_b64 exec, -1")
    stamp(4)
    role_branch("L_kA", "L_kB", None)

    a.label("L_kA")
    a("s_mov_b32 s72, s85")
    a("v_lshrrev_b32 v22, 1, v2"); a("v_xor_b32 v22, v22, v3"); a("v_lshlrev_b32 v22, 5, v22")
    a("v_lshlrev_b32 v23, 10, v3"); a("v_add_u32 v22, v22, v23"); a("v_and_b32 v23, 1, v1"); a("v_lshlrev_b32 v23, 4, v23"); a("v_add_u32 v22, v22, v23")
    a("v_xor_b32 v23, 0x80, v22")
    a("s_lshl_b32 s14, s84, 2"); a("s_add_u32 s14, s14, s72"); a("s_lshl_b32 s14, s14, 17")
    a("s_lshl_b32 s13, s11, 15"); a("s_add_u32 s14, s14, s13"); a("s_lshl_b32 s13, s86, 8"); a("s_add_u32 s14, s14, s13")
    a("s_lshl_b32 s15, s11, 13")
    if L_W: a(f"s_add_u32 s15, s15, {L_W}")
    a("s_cmp_lg_u32 s3, 0"); a("s_cbranch_scc1 L_kA_dma")
    a("v_lshrrev_b32 v10, 3, v1"); a("v_and_b32 v10, 3, v10"); a("v_lshlrev_b32 v10, 12, v10"); a("v_and_b32 v9, 7, v1"); a("v_lshlrev_b32 v9, 6, v9"); a("v_add_u32 v10, v10, v9")
    a("s_lshl_b32 s12, s84, 9"); a("s_lshl_b32 s10, s72, 4"); a("s_add_u32 s10, s10, s12"); a(f"s_add_u32 s66, s10, {WS_ML}")
    a("s_mov_b32 s67, 0")
    Lm = lab("mg"); a.label(Lm)
    a(f"s_sleep {mlsleep}")
    a("buffer_load_dwordx4 v[192:195], v10, s[56:59], s66 offen sc1")
    a("s_waitcnt vmcnt(0)")
    tagcheck([193, 195], 40, 44, Lm, sleep=0)
    def red8(op, r, t):
        for mod in ("quad_perm:[1,0,3,2]", "quad_perm:[2,3,0,1]", "row_half_mirror"):
            a("s_nop 1")
            a(f"{op}_dpp v{r}, v{r}, v{r} {mod} row_mask:0xf bank_mask:0xf")
    a("v_mov_b32 v40, v192")
    red8("v_max_f32", 40, 41)
    a("v_sub_f32 v41, v192, v40"); a("v_mul_f32 v41, s69, v41"); a("v_exp_f32 v41, v41"); a("s_nop 0")
    a("v_mul_f32 v41, v41, v194")
    a("v_mov_b32 v42, v41")
    red8("v_add_f32", 42, 43)
    a("v_rcp_f32 v42, v42"); a("s_nop 0")
    a("v_mul_f32 v41, v41, v42")
    a("v_and_b32 v9, 31, v1"); a("v_lshlrev_b32 v9, 2, v9"); a(f"v_add_u32 v9, {L_WR}, v9")
    a("ds_write_b32 v9, v41")
    setflag(F_WR)
    a.label("L_kA_dma")
    a("s_setprio 0")
    for i in range(8):
        a("s_mov_b32 m0, s15"); a("s_add_u32 s15, s15, 1024")
        if not no_w: a(f"buffer_load_dwordx4 v{22 + ((i>>1)&1)}, s[32:35], s14 offen{NT} lds")
        a("s_add_u32 s14, s14, 4096")
    a("s_branch L_roleA")

    a.label("L_kB")
    a("s_setprio 0")
    a("v_lshrrev_b32 v22, 2, v1"); a("v_mul_u32_u24 v22, 3584, v22")
    a("v_lshrrev_b32 v23, 1, v1"); a("v_and_b32 v23, 1, v23"); a("v_lshrrev_b32 v24, 5, v1"); a("v_xor_b32 v23, v23, v24"); a("v_lshlrev_b32 v23, 5, v23"); a("v_add_u32 v22, v22, v23")
    a("v_and_b32 v23, 1, v1"); a("v_lshlrev_b32 v23, 4, v23"); a("v_add_u32 v22, v22, v23")
    a(f"s_mul_i32 s12, s11, {128*3584}"); a("s_lshl_b32 s13, s9, 6"); a("s_add_u32 s12, s12, s13")
    a("s_lshl_b32 s13, s11, 13")
    if L_W: a(f"s_add_u32 s13, s13, {L_W}")
    a("s_and_b32 s10, s11, 1"); a("s_lshl_b32 s10, s10, 7"); a("v_xor_b32 v24, s10, v14")
    a("v_xor_b32 v25, 32, v24"); a("v_xor_b32 v26, 64, v24"); a("v_xor_b32 v27, 0x60, v24")
    a("s_lshl_b32 s14, s9, 15"); a("s_lshl_b32 s15, s11, 13"); a("s_add_u32 s14, s14, s15"); a(f"s_add_u32 s15, s15, {L_W2}")
    wait_flags4(F_O, 44, sleep=2)
    for i in range(8):
        a("s_mov_b32 m0, s13"); a("s_add_u32 s13, s13, 1024")
        if not no_w: a(f"buffer_load_dwordx4 v22, s[36:39], s12 offen{NT} lds")
        a(f"s_add_u32 s12, s12, {16*3584}")
    for i in range(8):
        a("s_mov_b32 m0, s15"); a("s_add_u32 s15, s15, 1024")
        if not no_w: a(f"buffer_load_dwordx4 v{24 + (i&3)}, s[44:47], s14 offen{NT} lds")
        a("s_add_u32 s14, s14, 1024")
    a("s_waitcnt vmcnt(0)")
    setflag(F_W)
    stamp(5)
    a("s_branch L_roleB")

    a.label("L_roleA")
    a("s_lshr_b32 s71, s3, 2")
    a("s_mov_b32 s72, s85")
    a("s_mov_b32 s73, s86")
    a("v_lshrrev_b32 v21, 3, v2"); a("v_lshlrev_b32 v21, 17, v21"); a("v_and_b32 v9, 7, v2"); a("v_lshlrev_b32 v9, 11, v9"); a("v_add_u32 v21, v21, v9")
    a("v_lshlrev_b32 v9, 5, v3"); a("v_add_u32 v21, v21, v9")
    a("s_lshl_b32 s10, s71, 18"); a("s_lshl_b32 s12, s84, 14"); a("s_add_u32 s10, s10, s12"); a("s_lshl_b32 s12, s72, 9"); a("s_add_u32 s10, s10, s12")
    a("s_lshl_b32 s12, s11, 7"); a("s_add_u32 s10, s10, s12"); a(f"s_add_u32 s75, s10, {WS_OP}")
    a("s_cmp_lt_u32 s3, 4"); a("s_cbranch_scc1 L_A_common")
    a("buffer_load_dwordx4 v[192:195], v21, s[56:59], s75 offen sc1")
    a("buffer_load_dwordx4 v[196:199], v21, s[56:59], s75 offen offset:16 sc1")
    a.label("L_A_common")
    a("v_lshrrev_b32 v9, 2, v2"); a("v_lshlrev_b32 v10, 3, v3"); a("v_add_u32 v10, v10, v9"); a("v_lshlrev_b32 v10, 8, v10")
    a("v_and_b32 v44, 3, v2"); a("v_lshlrev_b32 v44, 3, v44"); a("v_add_u32 v10, v10, v44")
    a("v_and_b32 v44, 1, v3"); a("v_lshlrev_b32 v44, 2, v44"); a("v_or_b32 v44, v44, v9"); a("v_lshlrev_b32 v44, 5, v44"); a("v_add_u32 v10, v10, v44")
    a("s_lshl_b32 s10, s11, 13")
    if L_W: a(f"s_add_u32 s10, s10, {L_W}")
    a("v_add_u32 v24, s10, v10")
    for nt in range(1, 8): a(f"v_xor_b32 v{24+nt}, {nt*32}, v24")
    a("v_lshrrev_b32 v9, 1, v3"); a("v_lshlrev_b32 v9, 9, v9"); a("v_and_b32 v44, 1, v3"); a("v_lshlrev_b32 v44, 6, v44"); a("v_add_u32 v9, v9, v44")
    a("v_lshlrev_b32 v44, 2, v2"); a("v_add_u32 v9, v9, v44")
    a("s_lshl_b32 s10, s11, 11"); a("s_lshl_b32 s12, s71, 10"); a("s_add_u32 s10, s10, s12"); a(f"s_add_u32 s10, s10, {L_R1}"); a("v_add_u32 v60, s10, v9")
    a("s_lshl_b32 s10, s3, 8"); a(f"s_add_u32 s10, s10, {L_R1}"); a("v_lshlrev_b32 v9, 2, v1"); a("v_add_u32 v61, s10, v9")
    a("s_lshr_b32 s10, s3, 1"); a("s_lshl_b32 s10, s10, 5"); a("s_lshl_b32 s12, s84, 2"); a("s_add_u32 s10, s10, s12"); a("s_add_u32 s10, s10, s72"); a("s_lshl_b32 s10, s10, 12")
    a("s_lshl_b32 s12, s73, 10"); a("s_add_u32 s10, s10, s12"); a("s_and_b32 s12, s3, 1"); a("s_lshl_b32 s12, s12, 9"); a("s_add_u32 s10, s10, s12"); a(f"s_add_u32 s74, s10, {WS_HP}")
    a("v_mov_b32 v63, s8")
    a("s_mov_b32 s67, 0")
    a("v_lshlrev_b32 v62, 4, v3"); a("s_lshl_b32 s10, s71, 6"); a(f"s_add_u32 s10, s10, {L_WR}"); a("v_add_u32 v62, s10, v62")
    def wr_read():
        L = lab("wr"); a.label(L)
        a(f"ds_read_b32 v40, v7 offset:{F_WR}")
        a("s_waitcnt lgkmcnt(0)")
        a("v_cmp_ne_u32 vcc, 1, v40")
        a(f"s_cbranch_vccnz {L}")
        a("ds_read_b128 v[48:51], v62")
    a("s_cmp_lt_u32 s3, 4"); a("s_cbranch_scc1 L_A_k")
    wait_flag1(F_W, 40)
    for nt in range(8):
        a(f"ds_read_b64_tr_b16 v[{64+4*nt}:{65+4*nt}], v{24+nt}")
        a(f"ds_read_b64_tr_b16 v[{66+4*nt}:{67+4*nt}], v{24+nt} offset:1024")
        if nt == 3: a("s_waitcnt lgkmcnt(0)")
    wr_read()
    Lo = lab("og"); Lo2 = lab("og2")
    stamp(13)
    a(f"s_branch {Lo2}")
    a.label("L_A_k")
    a("s_waitcnt vmcnt(0)")
    setflag(F_W)
    stamp(5)
    a("s_setprio 3")
    for nt in range(8):
        a(f"ds_read_b64_tr_b16 v[{64+4*nt}:{65+4*nt}], v{24+nt}")
        a(f"ds_read_b64_tr_b16 v[{66+4*nt}:{67+4*nt}], v{24+nt} offset:1024")
        if nt == 3: a("s_waitcnt lgkmcnt(0)")
    wr_read()
    wait_flags4(F_O, 40, sleep=1)
    stamp(13)
    a.label(Lo)
    a("buffer_load_dwordx4 v[192:195], v21, s[56:59], s75 offen sc1")
    a("buffer_load_dwordx4 v[196:199], v21, s[56:59], s75 offen offset:16 sc1")
    a.label(Lo2)
    a("s_waitcnt vmcnt(0) lgkmcnt(0)")
    tagcheck([193, 195, 197, 199], 40, 44, Lo, sleep=tsleep)
    stamp(8)
    a("v_mov_b32 v193, v194"); a("v_mov_b32 v194, v196"); a("v_mov_b32 v195, v198")
    a("s_nop 1")
    for nt in range(8):
        a(f"v_mfma_f32_16x16x32_bf16 v[{96+4*nt}:{99+4*nt}], v[192:195], v[{64+4*nt}:{67+4*nt}], 0")
    a("s_nop 0")
    for r in range(4):
        for nt in range(8):
            if r == 0: a(f"v_mul_f32 v{128+nt}, v48, v{96+4*nt}")
            else: a(f"v_fmac_f32 v{128+nt}, v{48+r}, v{96+4*nt+r}")
    for p in range(4): a(f"v_permlane16_swap_b32 v{128+2*p}, v{129+2*p}") if p else (a("s_nop 0"), a(f"v_permlane16_swap_b32 v128, v129"))
    for p in range(4): a(f"v_add_f32 v{128+2*p}, v{128+2*p}, v{129+2*p}")
    stamp(10)
    for p in range(4): a(f"ds_write_b32 v60, v{128+2*p} offset:{p*128}")
    a("s_waitcnt lgkmcnt(0)")
    a("s_barrier")
    stamp(11)
    for kt in range(4): a(f"ds_read_b32 v{40+kt}, v61 offset:{kt*2048}")
    a("s_waitcnt lgkmcnt(0)")
    a("v_add_f32 v40, v40, v41"); a("v_add_f32 v42, v42, v43"); a("v_add_f32 v62, v40, v42")
    a("buffer_store_dwordx2 v[62:63], v13, s[56:59], s74 offen sc1")
    stamp(9)
    a("s_branch L_fin")

    a.label("L_roleB")
    a("s_setprio 3")
    a("s_add_u32 s96, s8, 1")
    a("v_and_b32 v10, 31, v1"); a("v_lshlrev_b32 v10, 1, v10"); a("s_lshl_b32 s10, s9, 6")
    a("buffer_load_ushort v16, v10, s[40:43], s10 offen")
    a("v_lshrrev_b32 v9, 2, v2"); a("v_lshlrev_b32 v10, 3, v3"); a("v_add_u32 v9, v10, v9")
    a("v_and_b32 v44, 3, v2"); a("v_lshlrev_b32 v44, 3, v44")
    a("v_lshlrev_b32 v10, 6, v9"); a("v_add_u32 v10, v10, v44"); a("v_and_b32 v45, 1, v3"); a("v_lshlrev_b32 v46, 5, v45"); a("v_add_u32 v10, v10, v46")
    a("s_lshl_b32 s10, s3, 12")
    if L_W: a(f"s_add_u32 s10, s10, {L_W}")
    a("v_add_u32 v52, s10, v10"); a("v_xor_b32 v53, 32, v52")
    a("v_lshlrev_b32 v10, 10, v9"); a("v_add_u32 v10, v10, v44")
    a("v_lshrrev_b32 v46, 2, v2"); a("v_lshlrev_b32 v45, 2, v45"); a("v_or_b32 v46, v46, v45"); a("v_lshlrev_b32 v46, 5, v46"); a("v_add_u32 v10, v10, v46")
    a("s_lshl_b32 s10, s3, 7"); a("v_xor_b32 v10, s10, v10"); a(f"v_add_u32 v54, {L_W2}, v10")
    for q in range(1, 4): a(f"v_xor_b32 v{54+q}, {q*32}, v54")
    a("v_and_b32 v58, 3, v2"); a("v_lshlrev_b32 v58, 10, v58"); a("v_lshlrev_b32 v9, 4, v3"); a("v_add_u32 v58, v58, v9")
    a("s_lshl_b32 s10, s3, 7"); a(f"s_add_u32 s10, s10, {L_YB}"); a("v_add_u32 v58, s10, v58")
    a("v_lshlrev_b32 v59, 4, v2"); a("s_lshl_b32 s10, s3, 9"); a(f"s_add_u32 s10, s10, {L_T1}"); a("v_add_u32 v59, s10, v59")
    a("v_and_b32 v60, 31, v1"); a("v_lshlrev_b32 v60, 4, v60"); a("v_lshrrev_b32 v9, 5, v1"); a("v_lshlrev_b32 v9, 11, v9"); a("v_add_u32 v60, v60, v9"); a(f"v_add_u32 v60, {L_T1}, v60")
    a("v_and_b32 v61, 31, v1"); a("v_lshlrev_b32 v61, 1, v61"); a("v_lshrrev_b32 v9, 5, v1"); a("v_lshlrev_b32 v9, 7, v9"); a("v_add_u32 v61, v61, v9")
    a("s_lshl_b32 s10, s3, 8"); a(f"s_add_u32 s10, s10, {L_GB}"); a("v_add_u32 v61, s10, v61")
    a("v_and_b32 v62, 3, v2"); a("v_lshlrev_b32 v62, 6, v62"); a("v_lshlrev_b32 v9, 4, v3"); a("v_add_u32 v62, v62, v9"); a("v_add_u32 v62, s10, v62")
    a("s_lshl_b32 s10, s9, 12"); a("s_lshl_b32 s12, s3, 9"); a("s_add_u32 s10, s10, s12"); a(f"s_add_u32 s72, s10, {WS_GP}")
    for bb in range(1, 4): a(f"s_add_u32 s{72+bb}, s72, {bb*56*4096}")
    for r in range(4): a(f"v_mov_b32 v{113+2*r}, s96")
    a("v_mov_b32 v46, 0x3d372713")
    a("s_lshl_b32 s10, s3, 10"); a(f"s_add_u32 s10, s10, {L_YB}"); a("v_add_u32 v63, s10, v14")
    a("v_lshlrev_b32 v10, 5, v1"); a("s_lshl_b32 s10, s3, 11"); a("s_lshl_b32 s12, s4, 13"); a("s_add_u32 s10, s10, s12"); a(f"s_add_u32 s66, s10, {WS_H}")
    wait_flags4(F_W, 40, sleep=1)
    for kt in range(2):
        for nt in range(2):
            r = 64 + (kt*2+nt)*4
            a(f"ds_read_b64_tr_b16 v[{r}:{r+1}], v{52+nt} offset:{kt*2048}")
            a(f"ds_read_b64_tr_b16 v[{r+2}:{r+3}], v{52+nt} offset:{kt*2048+256}")
    for q in range(4):
        r = 80 + 4*q
        a(f"ds_read_b64_tr_b16 v[{r}:{r+1}], v{54+q}")
        a(f"ds_read_b64_tr_b16 v[{r+2}:{r+3}], v{54+q} offset:4096")
    a("s_waitcnt vmcnt(0) lgkmcnt(0)")
    a("v_lshlrev_b32 v16, 16, v16")
    a("s_cmp_ge_u32 s3, 4"); a("s_cbranch_scc1 L_B_ln_done")
    a("s_mov_b32 s67, 0")
    Lh = lab("hg"); a.label(Lh)
    a("buffer_load_dwordx4 v[192:195], v10, s[56:59], s66 offen sc1")
    a("buffer_load_dwordx4 v[196:199], v10, s[56:59], s66 offen offset:16 sc1")
    a("s_waitcnt vmcnt(0)")
    tagcheck([193, 195, 197, 199], 40, 44, Lh, sleep=tsleep)
    stamp(10)
    for i in range(4):
        a(f"v_lshlrev_b32 v{20+2*i}, 16, v{192+2*i}"); a(f"v_and_b32 v{21+2*i}, s63, v{192+2*i}")
    layernorm8(20, 32)
    a("ds_write_b128 v63, v[40:43]")
    a("s_waitcnt lgkmcnt(0)")
    stamp(12)
    a.label("L_B_ln_done")
    a("s_barrier")
    for kt in range(2): a(f"ds_read_b128 v[{192+4*kt}:{195+4*kt}], v58 offset:{kt*64}")
    a("s_waitcnt lgkmcnt(0)")
    for kt in range(2):
        for nt in range(2):
            r = 64 + (kt*2+nt)*4
            c = "0" if kt == 0 else f"v[{96+4*nt}:{99+4*nt}]"
            a(f"v_mfma_f32_16x16x32_bf16 v[{96+4*nt}:{99+4*nt}], v[{192+4*kt}:{195+4*kt}], v[{r}:{r+3}], {c}")
    a("s_nop 6")
    a("ds_write_b128 v59, v[96:99]")
    a("s_nop 0")
    a("ds_write_b128 v59, v[100:103] offset:256")
    a("s_waitcnt lgkmcnt(0)")
    stamp(13)
    a("s_barrier")
    stamp(14)
    for i in range(4): a(f"ds_read_b128 v[{192+4*i}:{195+4*i}], v60 offset:{i*512}")
    a("s_waitcnt lgkmcnt(0)")
    for c in range(4):
        a(f"v_add_f32 v{192+c}, v{192+c}, v{196+c}"); a(f"v_add_f32 v{200+c}, v{200+c}, v{204+c}")
    for c in range(4): a(f"v_add_f32 v{192+c}, v{192+c}, v{200+c}")
    a("s_nop 0")
    a("v_permlane32_swap_b32 v192, v194"); a("v_permlane32_swap_b32 v193, v195")
    a("v_add_f32 v40, v192, v194"); a("v_add_f32 v41, v193, v195")
    a("v_cvt_pk_bf16_f32 v42, v40, v41"); a("v_lshlrev_b32 v40, 16, v42"); a("v_and_b32 v41, s63, v42")
    a("v_add_f32 v40, v40, v16"); a("v_add_f32 v41, v41, v16")
    a("v_cvt_pk_bf16_f32 v42, v40, v41"); a("v_lshlrev_b32 v40, 16, v42"); a("v_and_b32 v41, s63, v42")
    for c in range(2): a(f"v_mul_f32 v{42+c}, v{40+c}, v{40+c}")
    for c in range(2): a(f"v_fma_f32 v{42+c}, v{42+c}, v46, 1.0")
    for c in range(2): a(f"v_mul_f32 v{42+c}, v{42+c}, v{40+c}")
    for c in range(2): a(f"v_mul_f32 v{42+c}, 0xc0135761, v{42+c}")
    for c in range(2): a(f"v_exp_f32 v{42+c}, v{42+c}")
    a("s_nop 0")
    for c in range(2): a(f"v_add_f32 v{42+c}, 1.0, v{42+c}")
    for c in range(2): a(f"v_rcp_f32 v{42+c}, v{42+c}")
    a("s_nop 0")
    for c in range(2): a(f"v_mul_f32 v{40+c}, v{40+c}, v{42+c}")
    a("v_cvt_pk_bf16_f32 v40, v40, v41")
    stamp(8)
    a("ds_write_b16 v61, v40"); a("ds_write_b16_d16_hi v61, v40 offset:64")
    a("ds_read_b128 v[192:195], v62")
    a("s_waitcnt lgkmcnt(0)")
    for q in range(4):
        a(f"v_mfma_f32_16x16x32_bf16 v[{96+4*q}:{99+4*q}], v[192:195], v[{80+4*q}:{83+4*q}], 0")
    a("s_nop 4")
    for r in range(4): a(f"v_mov_b32 v{112+2*r}, v{96+r}")
    for q in range(1, 4):
        for r in range(4):
            a(f"v_mov_b32_dpp v{112+2*r}, v{96+4*q+r} quad_perm:[0,1,2,3] row_mask:{hex(1<<q)} bank_mask:0xf")
    for r in range(4): a(f"buffer_store_dwordx2 v[{112+2*r}:{113+2*r}], v13, s[56:59], s{72+r} offen sc1")
    stamp(11)
    a("s_branch L_fin")

    a.label("L_roleC")
    a("s_cmp_lg_u32 s3, 7"); a("s_cbranch_scc1 L_fin")
    a("s_setprio 3")
    a("s_add_u32 s96, s8, 1")
    a("s_mov_b32 s94, s87")
    a("v_lshlrev_b32 v10, 12, v3"); a("v_lshlrev_b32 v9, 4, v2"); a("v_add_u32 v18, v10, v9")
    a("s_lshl_b32 s10, s76, 17"); a("s_lshl_b32 s12, s62, 3"); a("s_add_u32 s10, s10, s12"); a(f"s_add_u32 s80, s10, {WS_HP}")
    for t in range(1, 8): a(f"s_add_u32 s{80+t}, s80, {t*16384}")
    a("s_lshl_b32 s10, s76, 11"); a("s_lshl_b32 s12, s62, 2"); a("s_add_u32 s10, s10, s12"); a(f"s_add_u32 s72, s10, {WS_H}"); a("s_add_u32 s74, s72, 32768")
    a("v_lshlrev_b32 v17, 3, v2"); a("v_lshlrev_b32 v9, 13, v3"); a("v_add_u32 v17, v17, v9")
    a("s_lshl_b32 s10, s76, 10"); a("s_lshl_b32 s12, s62, 1"); a("s_add_u32 s73, s10, s12")
    a("v_lshlrev_b32 v16, 2, v2")
    a("s_mov_b32 s67, 0")
    Ls = lab("sg"); a.label(Ls)
    for t in range(8): a(f"buffer_load_dwordx4 v[{64+4*t}:{67+4*t}], v18, s[56:59], s{80+t} offen sc1")
    a("s_waitcnt vmcnt(0)")
    tagcheck([65+2*i for i in range(16)], 40, 44, Ls, sleep=tsleep)
    stamp(12)
    def tree2(n):
        ra = [64 + 4*t for t in range(n)]
        while len(ra) > 1:
            nxt = []
            for i in range(0, len(ra) - 1, 2):
                a(f"v_add_f32 v{ra[i]}, v{ra[i]}, v{ra[i+1]}"); a(f"v_add_f32 v{ra[i]+2}, v{ra[i]+2}, v{ra[i+1]+2}"); nxt.append(ra[i])
            if len(ra) % 2: nxt.append(ra[-1])
            ra = nxt
    def xrow():
        a("s_nop 1")
        a("v_permlane32_swap_b32 v64, v66")
        a("v_add_f32 v64, v64, v66")
        a("v_mov_b32 v66, v64"); a("s_nop 1")
        a("v_permlane16_swap_b32 v64, v66")
        a("v_add_f32 v64, v64, v66")
        a("v_mov_b32 v66, v64"); a("s_nop 1")
        a("v_permlane32_swap_b32 v64, v66")
    tree2(8)
    xrow()
    a("v_cvt_pk_bf16_f32 v40, v64, v66")
    a("v_lshlrev_b32 v43, 16, v12"); a("v_and_b32 v44, s63, v12")
    a("v_lshlrev_b32 v41, 16, v40"); a("v_and_b32 v42, s63, v40")
    a("v_add_f32 v41, v41, v43"); a("v_add_f32 v42, v42, v44")
    a("v_cvt_pk_bf16_f32 v40, v41, v42")
    a("v_mov_b32 v41, v15")
    a("buffer_store_dwordx2 v[40:41], v17, s[56:59], s72 offen sc1")
    a("buffer_store_dwordx2 v[40:41], v17, s[56:59], s74 offen sc1")
    a("v_lshlrev_b32 v21, 16, v40"); a("v_and_b32 v22, s63, v40")
    stamp(13)
    a(f"s_mul_i32 s10, s76, {56*4096}"); a("s_lshl_b32 s12, s62, 3"); a("s_add_u32 s10, s10, s12"); a(f"s_add_u32 s80, s10, {WS_GP}")
    for t in range(1, 14): a(f"s_add_u32 s{80+t}, s80, {t*16384}")
    a("s_mov_b32 s67, 0")
    Lg = lab("gg"); a.label(Lg)
    for t in range(14): a(f"buffer_load_dwordx4 v[{64+4*t}:{67+4*t}], v18, s[56:59], s{80+t} offen sc1")
    a("s_waitcnt vmcnt(0)")
    tagcheck([65+2*i for i in range(28)], 40, 44, Lg, sleep=tsleep, tag="s96")
    stamp(14)
    tree2(14)
    xrow()
    a("v_cvt_pk_bf16_f32 v40, v64, v66")
    a("v_lshlrev_b32 v43, 16, v8"); a("v_and_b32 v44, s63, v8")
    a("v_lshlrev_b32 v41, 16, v40"); a("v_and_b32 v42, s63, v40")
    a("v_add_f32 v41, v41, v43"); a("v_add_f32 v42, v42, v44")
    a("v_cvt_pk_bf16_f32 v40, v41, v42")
    a("v_lshlrev_b32 v41, 16, v40"); a("v_and_b32 v42, s63, v40")
    a("v_add_f32 v41, v41, v21"); a("v_add_f32 v42, v42, v22")
    a("v_cvt_pk_bf16_f32 v40, v41, v42")
    a("s_mov_b64 exec, 0xffff")
    a("buffer_store_dword v40, v16, s[52:55], s73 offen")
    a("s_mov_b64 exec, -1")
    a("s_cmp_lg_u32 s94, 0"); a("s_cbranch_scc1 L_fin")
    a("s_mov_b64 exec, 1")
    a("buffer_store_dword v15, v6, s[56:59], 0 offen sc1")
    a("s_mov_b64 exec, -1")
    a.label("L_fin")
    if stamps:
        stamp(15)
        a("s_lshl_b32 s10, s2, 3"); a("s_add_u32 s10, s10, s3"); a("s_lshl_b32 s10, s10, 6"); a(f"s_add_u32 s10, s10, {WS_STAMP}")
        a("v_mov_b32 v44, 0")
        a("s_mov_b64 exec, 1")
        for i in range(4): a(f"buffer_store_dwordx4 v[{SB+4*i}:{SB+3+4*i}], v44, s[56:59], s10 offen offset:{16*i}")
        a("s_mov_b64 exec, -1")
    a.label("L_end")
    a("s_endpgm")
    return a

HDR = """; Fused pre-LN GQA decode attention + channel-MLP block, single persistent launch (256 workgroups x 8 waves).
; @launch grid=(256,1,1) block=(512,1,1) lds={lds}
.amdgcn_target "amdgcn-amd-amdhsa--gfx950"
.text
.globl {name}_kernel
.p2align 8
.type {name}_kernel,@function
{name}_kernel:
"""
FTR = """
.section .rodata,"a"
.p2align 6
.amdhsa_kernel {name}_kernel
  .amdhsa_next_free_vgpr 256
  .amdhsa_next_free_sgpr 102
  .amdhsa_accum_offset 256
  .amdhsa_group_segment_fixed_size 0
  .amdhsa_kernarg_size 104
  .amdhsa_user_sgpr_count 2
  .amdhsa_user_sgpr_kernarg_segment_ptr 1
  .amdhsa_system_sgpr_workgroup_id_x 1
.end_amdhsa_kernel
"""
def build(path, **kw):
    a = gen(**kw)
    probs = check_hazards(a.lines)
    open(path, "w").write(HDR.format(name=NAME, lds=LDS_BYTES) + a.text() + FTR.format(name=NAME))
    return probs

if __name__ == "__main__":
    out = sys.argv[1] if len(sys.argv) > 1 else "k3.s"
    kw = {}
    for arg in sys.argv[2:]:
        if arg == "stamps": kw["stamps"] = True
        elif "=" in arg:
            k, v = arg.split("="); kw[k] = eval(v)
    probs = build(out, **kw)
    print("hazards:", len(probs))
```

```python
import sys
from asmlib import Asm, check_hazards

NAME = "sequential_preLN__gqa_block_cached__mixer_channel_mlp__decode"

WS_EPOCH = 0
WS_ML = 0x1000
WS_H  = 0x1E8000
WS_OP = 0x8000
WS_HP = 0x88000
WS_QB = 0x108000
WS_GP = 0x108000
WS_STAMP = 0x400000
L_W = 0
L_W2 = 32768
L_WQ = 65536
L_RED = 81920
L_R1 = 90112
L_YB = 98304
L_QPB = 102400
L_PB = 106496
L_T1 = 110592
L_GB = 114688
L_QL = 116736
L_FLAGS = 117760
L_MLB = 118016
L_WR = 118784
LDS_BYTES = 122880
F_Y, F_QP, F_Q, F_ML, F_P, F_W, F_O, F_WR = 0, 16, 32, 48, 64, 80, 96, 112

LOG2E = 0x3fb8aa3b
SCALE = 0x3db504f3
EPS = 0x3727c5ac
TAGC = 0x9E3779B9
POLL_MAX = 20000

def gen(stamps=False, psleep=2, tsleep=1, qearly=6, mlsleep=8, rot=True, no_w=False, no_pwait=False, no_q=False, khold=0, lanemask=True, NAE=25, NAL=7):
    a = Asm()
    NT = " nt"
    uid = [0]
    def lab(p):
        uid[0] += 1
        return f"L_{p}_{uid[0]}"
    SB = 240
    def stamp(idx):
        if stamps:
            a("s_memrealtime s[78:79]")
            a("s_waitcnt lgkmcnt(0)")
            a(f"v_mov_b32 v{SB+idx}, s78")
    def allreduce(op, rs, tmps):
        k = len(rs)
        for rot in (8, 4, 2, 1):
            if k == 1: a("s_nop 1")
            elif k == 2: a("s_nop 0")
            for r in rs:
                a(f"{op}_dpp v{r}, v{r}, v{r} row_ror:{rot} row_mask:0xf bank_mask:0xf")
        for sw in ("v_permlane16_swap_b32", "v_permlane32_swap_b32"):
            for r, t in zip(rs, tmps): a(f"v_mov_b32 v{t}, v{r}")
            a("s_nop 1" if k == 1 else "s_nop 0")
            if k == 2: pass
            for r, t in zip(rs, tmps): a(f"{sw} v{r}, v{t}")
            for r, t in zip(rs, tmps): a(f"{op} v{r}, v{r}, v{t}")
    def rb(dst, src):
        a(f"v_cvt_pk_bf16_f32 v{dst}, v{src}, v{src}")
        a(f"v_lshlrev_b32 v{dst}, 16, v{dst}")
    def setflag(off): a(f"ds_write_b32 v11, v0 offset:{off}")
    def wait_flags4(off, tmp, sleep=0):
        L = lab("wf")
        a.label(L)
        if sleep: a(f"s_sleep {sleep}")
        a(f"ds_read_b128 v[{tmp}:{tmp+3}], v7 offset:{off}")
        a("s_waitcnt lgkmcnt(0)")
        a(f"v_and_b32 v{tmp}, v{tmp}, v{tmp+1}"); a(f"v_and_b32 v{tmp+2}, v{tmp+2}, v{tmp+3}")
        a(f"v_and_b32 v{tmp}, v{tmp}, v{tmp+2}")
        a(f"v_cmp_ne_u32 vcc, 1, v{tmp}")
        a(f"s_cbranch_vccnz {L}")
    def wait_flag1(off, tmp, sleep=0):
        L = lab("wf")
        a.label(L)
        if sleep: a(f"s_sleep {sleep}")
        a(f"ds_read_b32 v{tmp}, v11 offset:{off}")
        a("s_waitcnt lgkmcnt(0)")
        a(f"v_cmp_ne_u32 vcc, 1, v{tmp}")
        a(f"s_cbranch_vccnz {L}")
    def tagcheck(tagregs, acc, t1, retry_label, cnt=67, sleep=0, tag="s8"):
        first = True; i = 0
        while i < len(tagregs):
            if i + 1 < len(tagregs):
                a(f"v_xor_b32 v{t1}, {tag}, v{tagregs[i]}")
                if first:
                    a(f"v_xor_b32 v{acc}, {tag}, v{tagregs[i+1]}")
                    a(f"v_or_b32 v{acc}, v{acc}, v{t1}")
                else:
                    a(f"v_xor_b32 v{t1+1}, {tag}, v{tagregs[i+1]}")
                    a(f"v_or3_b32 v{acc}, v{acc}, v{t1}, v{t1+1}")
                i += 2
            else:
                if first: a(f"v_xor_b32 v{acc}, {tag}, v{tagregs[i]}")
                else:
                    a(f"v_xor_b32 v{t1}, {tag}, v{tagregs[i]}")
                    a(f"v_or_b32 v{acc}, v{acc}, v{t1}")
                i += 1
            first = False
        a(f"v_cmp_ne_u32 vcc, 0, v{acc}")
        done = lab("pd")
        a(f"s_cbranch_vccz {done}")
        if lanemask: a("s_mov_b64 exec, vcc")
        if sleep: a(f"s_sleep {sleep}")
        a(f"s_add_u32 s{cnt}, s{cnt}, 1")
        a(f"s_cmp_lt_u32 s{cnt}, {POLL_MAX}")
        a(f"s_cbranch_scc1 {retry_label}")
        a.label(done)
        if lanemask: a("s_mov_b64 exec, -1")
    def layernorm8(e, t):
        a(f"v_readfirstlane_b32 s12, v{e}")
        a("s_nop 1")
        for i in range(8): a(f"v_subrev_f32 v{t+4+(i&3)+ (0)}, s12, v{e+i}") if False else None
        a(f"v_subrev_f32 v{t+2}, s12, v{e}"); a(f"v_subrev_f32 v{t+3}, s12, v{e+1}")
        a(f"v_add_f32 v{t}, v{t+2}, v{t+3}"); a(f"v_mul_f32 v{t+1}, v{t+2}, v{t+2}"); a(f"v_fmac_f32 v{t+1}, v{t+3}, v{t+3}")
        for i in range(2, 8, 2):
            a(f"v_subrev_f32 v{t+2}, s12, v{e+i}"); a(f"v_subrev_f32 v{t+3}, s12, v{e+i+1}")
            a(f"v_add_f32 v{t}, v{t}, v{t+2}"); a(f"v_fmac_f32 v{t+1}, v{t+2}, v{t+2}")
            a(f"v_add_f32 v{t}, v{t}, v{t+3}"); a(f"v_fmac_f32 v{t+1}, v{t+3}, v{t+3}")
        allreduce("v_add_f32", [t, t+1], [t+2, t+3])
        a(f"v_mul_f32 v{t}, 0x3b000000, v{t}")
        a(f"v_mul_f32 v{t+1}, 0x3b000000, v{t+1}")
        a(f"v_fma_f32 v{t+1}, -v{t}, v{t}, v{t+1}")
        a(f"v_add_f32 v{t}, s12, v{t}")
        a(f"v_max_f32 v{t+1}, 0, v{t+1}")
        a(f"v_cvt_pk_bf16_f32 v{t+2}, v{t}, v{t+1}")
        a(f"v_and_b32 v{t+1}, s63, v{t+2}")
        a(f"v_lshlrev_b32 v{t}, 16, v{t+2}")
        a(f"v_add_f32 v{t+1}, {EPS}, v{t+1}")
        for i in range(4): a(f"v_sub_f32 v{e+i}, v{e+i}, v{t}")
        rb(t+1, t+1)
        a(f"v_sqrt_f32 v{t+1}, v{t+1}")
        for i in range(4, 8): a(f"v_sub_f32 v{e+i}, v{e+i}, v{t}")
        rb(t+1, t+1)
        a(f"v_rcp_f32 v{t+1}, v{t+1}")
        for i in range(4): a(f"v_cvt_pk_bf16_f32 v{t+8+i}, v{e+2*i}, v{e+2*i+1}")
        for i in range(4):
            a(f"v_lshlrev_b32 v{e+2*i}, 16, v{t+8+i}"); a(f"v_and_b32 v{e+2*i+1}, s63, v{t+8+i}")
        for i in range(8): a(f"v_mul_f32 v{e+i}, v{e+i}, v{t+1}")
        for i in range(4): a(f"v_cvt_pk_bf16_f32 v{t+8+i}, v{e+2*i}, v{e+2*i+1}")
    def kvstep():
        a("s_add_u32 s83, s83, 4096"); a("s_and_b32 s83, s83, 0x7fff"); a("s_add_u32 s65, s64, s83")
    def role_setup():
        NCE = 32 - NAE - 7; NCL = (64 - 4*NCE) // 4
        assert 4*NAE + 4*NAL == 128 and NAL + 7 + NCL <= 32 and NCE >= 0
        a("s_and_b32 s87, s4, 3")
        a("s_cmp_lt_u32 s4, 4")
        a(f"s_cselect_b32 s10, {NAE}, {NAL}")
        a(f"s_cselect_b32 s12, 0, {4*NAE}")
        a(f"s_cselect_b32 s13, {NCE}, {NCL}")
        a(f"s_cselect_b32 s14, 0, {4*NCE}")
        a("s_mul_i32 s15, s87, s10"); a("s_add_u32 s15, s15, s12"); a("s_add_u32 s15, s15, s7")
        a("s_sub_u32 s12, s7, s10")
        a("s_mul_i32 s9, s4, 7"); a("s_add_u32 s9, s9, s12")
        a("s_sub_u32 s76, s12, 7")
        a("s_mov_b32 s97, 3")
        a("s_cmp_lt_u32 s76, s13"); a("s_cselect_b32 s97, 2, s97")
        a("s_cmp_lt_u32 s12, 7"); a("s_cselect_b32 s97, 1, s97")
        a("s_cmp_lt_u32 s7, s10"); a("s_cselect_b32 s97, 0, s97")
        a("s_mul_i32 s13, s87, s13"); a("s_add_u32 s13, s13, s14"); a("s_add_u32 s13, s13, s76")
        a("s_lshr_b32 s84, s15, 4"); a("s_and_b32 s84, s84, 7")
        a("s_lshr_b32 s85, s15, 2"); a("s_and_b32 s85, s85, 3")
        a("s_and_b32 s86, s15, 3")
        a("s_lshr_b32 s76, s13, 4"); a("s_and_b32 s76, s76, 3")
        a("s_and_b32 s10, s13, 15"); a("s_lshl_b32 s62, s10, 5")
        a("s_mov_b32 s87, s13")
    def role_branch(la, lb, lc):
        a("s_cmp_eq_u32 s97, 0"); a(f"s_cbranch_scc1 {la}")
        a("s_cmp_eq_u32 s97, 1"); a(f"s_cbranch_scc1 {lb}")
        if lc: a("s_cmp_eq_u32 s97, 2"); a(f"s_cbranch_scc1 {lc}")
        a("s_branch L_endrole" if lc else "s_branch L_fin")
    def srd(sr, sz):
        a(f"s_mov_b32 s{sr+2}, {sz}"); a(f"s_mov_b32 s{sr+3}, 0x20000")
    SZ = {16: 4096, 20: 33554432, 24: 33554432, 28: 4194304, 32: 4194304, 36: 1835008, 40: 3584, 44: 1835008, 48: 1024, 52: 4096, 56: 268435456}

    if stamps: a("s_memrealtime s[78:79]")
    for (sr, off) in ((56, 96), (20, 8), (16, 0), (28, 24), (24, 16), (32, 32), (36, 48), (40, 56), (44, 64), (48, 72), (52, 80)):
        a(f"s_load_dwordx2 s[{sr}:{sr+1}], s[0:1], {off}")
    a("s_cmp_ge_u32 s2, 256")
    a("s_cbranch_scc1 L_end")
    a("v_lshrrev_b32 v4, 6, v0")
    a("v_and_b32 v1, 63, v0")
    a("v_readfirstlane_b32 s3, v4")
    a("v_and_b32 v2, 15, v1")
    a("v_lshrrev_b32 v3, 4, v1")
    a("s_and_b32 s4, s2, 7")
    a("s_lshr_b32 s7, s2, 3")
    a("s_lshr_b32 s5, s7, 3")
    a("s_and_b32 s6, s7, 7")
    srd(56, SZ[56]); srd(20, SZ[20]); srd(16, SZ[16]); srd(28, SZ[28])
    a("s_and_b32 s11, s3, 3")
    a("s_lshl_b32 s70, s5, 3"); a("s_add_u32 s70, s70, s4")
    a("s_lshl_b32 s64, s70, 20"); a("s_lshl_b32 s10, s6, 17"); a("s_add_u32 s64, s64, s10")
    a("s_lshl_b32 s10, s11, 15"); a("s_add_u32 s64, s64, s10")
    a("s_lshl_b32 s83, s5, 13") if rot else a("s_mov_b32 s83, 0")
    a("s_add_u32 s65, s64, s83")
    a("v_mov_b32 v6, 0")
    a("v_lshlrev_b32 v14, 4, v1")
    a("s_cmp_ge_u32 s3, 4")
    a("s_cbranch_scc1 L_v1")
    a("v_lshlrev_b32 v47, 8, v2"); a("v_lshlrev_b32 v10, 4, v3"); a("v_add_u32 v47, v47, v10")
    a("s_lshl_b32 s10, s4, 2"); a("s_add_u32 s10, s10, s5"); a("s_lshl_b32 s10, s10, 14"); a("s_lshl_b32 s12, s11, 10"); a("s_add_u32 s10, s10, s12"); a(f"s_add_u32 s66, s10, {WS_QB}")
    for k in range(1, 4): a(f"s_add_u32 s{71+k}, s66, {k*4096}")
    a("s_setprio 2")
    a("s_waitcnt lgkmcnt(0)")
    a("buffer_load_dword v5, v6, s[56:59], 0 offen sc1")
    def qloads():
        for k in range(4):
            a(f"buffer_load_dwordx4 v[{16+4*k}:{19+4*k}], v14, s[56:59], s{66 if k == 0 else 71+k} offen sc1")
    for t in range(8):
        for i in range(4):
            r = 64 + 16*t + 4*i
            a(f"buffer_load_dwordx4 v[{r}:{r+3}], v47, s[20:23], s65 offen offset:{i*64}{NT}")
        if t < 7: kvstep()
        if t == 1:
            a("v_lshlrev_b32 v9, 2, v1"); a(f"v_add_u32 v9, {L_FLAGS}, v9"); a("ds_write_b32 v9, v6"); a("v_mov_b32 v0, 1")
            a("s_waitcnt lgkmcnt(0)"); a("s_barrier")
        if t == qearly - 1: qloads()
    a("s_branch L_k2")
    a.label("L_v1")
    a("v_lshrrev_b32 v10, 3, v1"); a("v_lshlrev_b32 v10, 13, v10"); a("v_and_b32 v9, 7, v1"); a("v_lshlrev_b32 v9, 4, v9"); a("v_add_u32 v10, v10, v9")
    a("s_lshl_b32 s13, s5, 20"); a("s_lshl_b32 s12, s11, 18"); a("s_add_u32 s13, s13, s12")
    a("s_lshl_b32 s12, s4, 10"); a("s_add_u32 s13, s13, s12"); a("s_lshl_b32 s12, s6, 7"); a("s_add_u32 s13, s13, s12")
    a("s_lshl_b32 s12, s11, 12"); a(f"s_add_u32 s12, s12, {L_WQ}")
    a("s_lshl_b32 s10, s11, 10")
    a("s_setprio 3")
    a("s_waitcnt lgkmcnt(0)")
    a("buffer_load_dword v5, v6, s[56:59], 0 offen sc1")
    a("buffer_load_dwordx4 v[16:19], v14, s[16:19], s10 offen")
    for i in range(4):
        a("s_mov_b32 m0, s12"); a("s_add_u32 s12, s12, 1024")
        a(f"buffer_load_dwordx4 v10, s[28:31], s13 offen{NT} lds"); a("s_add_u32 s13, s13, 0x10000")
    a("v_lshlrev_b32 v9, 2, v1"); a(f"v_add_u32 v9, {L_FLAGS}, v9"); a("ds_write_b32 v9, v6"); a("v_mov_b32 v0, 1")
    a("s_waitcnt lgkmcnt(0)"); a("s_barrier")

    if stamps:
        a("s_waitcnt lgkmcnt(0)")
        for i in range(16): a(f"v_mov_b32 v{SB+i}, 0")
        a(f"v_mov_b32 v{SB}, s78")
    for sr in (24, 32, 36, 40, 44, 48, 52): srd(sr, SZ[sr])
    role_setup()
    a("s_mov_b32 s60, 0x05040100"); a("s_mov_b32 s61, 0x07060302"); a("s_mov_b32 s63, 0xffff0000")
    a(f"v_mov_b32 v7, {L_FLAGS}"); a("s_lshl_b32 s10, s11, 2"); a("v_add_u32 v11, s10, v7")
    a("v_lshlrev_b32 v13, 3, v1")
    a("v_lshrrev_b32 v9, 2, v2"); a("v_lshlrev_b32 v10, 3, v3"); a("v_add_u32 v9, v9, v10"); a("v_lshlrev_b32 v44, 7, v9")
    a("v_and_b32 v10, 3, v2"); a("v_lshlrev_b32 v10, 3, v10"); a("v_add_u32 v44, v44, v10")
    a("s_lshl_b32 s10, s11, 12"); a(f"s_add_u32 s10, s10, {L_WQ}"); a("v_add_u32 v44, s10, v44")
    a("v_and_b32 v45, 3, v2"); a("v_lshlrev_b32 v45, 10, v45"); a("v_lshlrev_b32 v46, 4, v3"); a("v_add_u32 v45, v45, v46")
    a("s_lshl_b32 s10, s5, 8"); a("s_lshl_b32 s12, s11, 6"); a("s_add_u32 s10, s10, s12"); a(f"s_add_u32 s10, s10, {L_YB}"); a("v_add_u32 v45, s10, v45")
    a("v_lshlrev_b32 v46, 4, v2"); a("s_lshl_b32 s10, s11, 10"); a(f"s_add_u32 s10, s10, {L_QPB}"); a("v_add_u32 v46, s10, v46")
    a("s_lshl_b32 s10, s11, 2"); a(f"s_add_u32 s10, s10, {L_QPB}"); a("v_add_u32 v47, s10, v14")
    a("s_lshl_b32 s10, s11, 10"); a(f"s_add_u32 s10, s10, {L_YB}"); a("v_add_u32 v9, s10, v14")
    a("s_lshl_b32 s10, s4, 2"); a("s_add_u32 s10, s10, s11"); a("s_lshl_b32 s10, s10, 2"); a("s_add_u32 s10, s10, s5"); a("s_lshl_b32 s10, s10, 12")
    a("s_lshl_b32 s12, s6, 9"); a("s_add_u32 s10, s10, s12"); a(f"s_add_u32 s66, s10, {WS_QB}")
    a("s_waitcnt vmcnt(4)")
    stamp(6)
    a("v_readfirstlane_b32 s8, v5")
    for i in range(4):
        a(f"v_lshlrev_b32 v{20+2*i}, 16, v{16+i}"); a(f"v_and_b32 v{21+2*i}, s63, v{16+i}")
    a(f"s_add_u32 s8, s8, {TAGC}")
    a("v_mov_b32 v15, s8")
    layernorm8(20, 32)
    a("ds_write_b128 v9, v[40:43]")
    setflag(F_Y)
    wait_flags4(F_Y, 40)
    a("ds_read_b128 v[192:195], v45")
    a("s_waitcnt vmcnt(0)")
    stamp(7)
    for nt in range(4):
        a(f"ds_read_b64_tr_b16 v[{196+4*nt}:{197+4*nt}], v44 offset:{nt*32}")
        a(f"ds_read_b64_tr_b16 v[{198+4*nt}:{199+4*nt}], v44 offset:{nt*32+512}")
    a("s_waitcnt lgkmcnt(0)")
    for nt in range(4):
        a(f"v_mfma_f32_16x16x32_bf16 v[{212+4*nt}:{215+4*nt}], v[192:195], v[{196+4*nt}:{199+4*nt}], 0")
    a("v_mov_b32 v45, s8")
    a("s_nop 3")
    for nt in range(4): a(f"ds_write_b128 v46, v[{212+4*nt}:{215+4*nt}] offset:{nt*256}")
    setflag(F_QP)
    wait_flags4(F_QP, 40)
    for w in range(4): a(f"ds_read_b32 v{40+w}, v47 offset:{w*1024}")
    a("s_waitcnt lgkmcnt(0)")
    a("v_add_f32 v40, v40, v41"); a("v_add_f32 v42, v42, v43"); a("v_add_f32 v44, v40, v42")
    a("buffer_store_dwordx2 v[44:45], v13, s[56:59], s66 offen sc1")
    a("s_setprio 1")
    stamp(1)
    for k in range(32):
        r = 64 + 4*k
        a(f"buffer_load_dwordx4 v[{r}:{r+3}], v14, s[24:27], s65 offen offset:{(k%4)*1024}{NT}")
        if k % 4 == 3 and k < 31: kvstep()
    stamp(2)
    a("v_lshlrev_b32 v10, 2, v2")
    a("s_lshl_b32 s10, s76, 10"); a("s_lshl_b32 s12, s62, 1"); a("s_add_u32 s10, s10, s12")
    a("buffer_load_dword v12, v10, s[16:19], s10 offen")
    a("s_lshl_b32 s95, s4, 3"); a("s_add_u32 s95, s95, s6"); a("s_lshl_b32 s95, s95, 3")
    a("v_and_b32 v9, 3, v1"); a("v_lshlrev_b32 v9, 2, v9"); a("s_lshl_b32 s12, s95, 1")
    a("buffer_load_dword v8, v9, s[48:51], s12 offen")
    a("buffer_load_dword v4, v9, s[52:55], s12 offen")
    NSM = 3
    a("v_lshlrev_b32 v20, 9, v3"); a("v_lshlrev_b32 v9, 5, v2"); a("v_add_u32 v20, v20, v9")
    a("s_lshl_b32 s10, s11, 11"); a(f"s_add_u32 s10, s10, {L_RED}"); a("v_add_u32 v20, s10, v20")
    a("s_lshl_b32 s10, s11, 9"); a(f"s_add_u32 s10, s10, {L_RED}"); a("v_add_u32 v21, s10, v13")
    a("s_lshl_b32 s10, s70, 3"); a("s_add_u32 s10, s10, s6"); a("s_lshl_b32 s10, s10, 11"); a("s_lshl_b32 s12, s11, 9"); a("s_add_u32 s10, s10, s12"); a(f"s_add_u32 s66, s10, {WS_OP}")
    a("v_lshrrev_b32 v10, 2, v2"); a("v_lshlrev_b32 v10, 6, v10"); a("v_lshlrev_b32 v9, 4, v3"); a("v_add_u32 v10, v10, v9")
    a("s_lshl_b32 s10, s11, 10"); a(f"s_add_u32 s10, s10, {L_PB}"); a("v_add_u32 v10, s10, v10")
    if not no_pwait: wait_flag1(F_P, 40, sleep=1)
    PF = 224
    for T in range(4): a(f"ds_read_b128 v[{PF+4*T}:{PF+3+4*T}], v10 offset:{T*256}")
    stamp(3)
    def perms(T, dst, ulist):
        raw = 64 + 32*T
        for u in ulist:
            for jj in range(4):
                s1 = raw + 4*(2*u) + jj; s0 = raw + 4*(2*u+1) + jj
                a(f"v_perm_b32 v{dst + 4*(2*jj) + u}, v{s0}, v{s1}, s60")
                a(f"v_perm_b32 v{dst + 4*(2*jj+1) + u}, v{s0}, v{s1}, s61")
    ACC = 32
    def mfmas(T, src, js):
        for j in js:
            c = "0" if T == 0 else f"v[{ACC+4*j}:{ACC+4*j+3}]"
            a(f"v_mfma_f32_16x16x32_bf16 v[{ACC+4*j}:{ACC+4*j+3}], v[{PF+4*T}:{PF+3+4*T}], v[{src+4*j}:{src+4*j+3}], {c}")
    F = [192, 64, 96, 128]
    def after(k): return min(63, (31 - k) + NSM)
    a(f"s_waitcnt vmcnt({after(7)})")
    perms(0, F[0], range(4))
    a(f"s_waitcnt vmcnt({after(15)}) lgkmcnt(0)")
    for u in range(4):
        perms(1, F[1], [u]); mfmas(0, F[0], [2*u, 2*u+1])
    a(f"s_waitcnt vmcnt({after(23)})")
    for u in range(4):
        perms(2, F[2], [u]); mfmas(1, F[1], [2*u, 2*u+1])
    mfmas(2, F[2], range(4))
    for u in range(4):
        a(f"s_waitcnt vmcnt({after(24+2*u+1)})")
        perms(3, F[3], [u])
        mfmas(2, F[2], [4+u])
    a("s_nop 0")
    mfmas(3, F[3], range(8))
    stamp(4)
    a("v_mov_b32 v17, s8")
    a("s_nop 6")
    for j in range(0, 8, 2):
        a(f"ds_write2_b32 v20, v{ACC+4*j}, v{ACC+4*(j+1)} offset0:{j} offset1:{j+1}")
    setflag(F_O)
    wait_flags4(F_O, 24)
    for w in range(4): a(f"ds_read_b64 v[{24+2*w}:{25+2*w}], v21 offset:{w*2048}")
    a("s_waitcnt lgkmcnt(0)")
    for c in range(2):
        a(f"v_add_f32 v{24+c}, v{24+c}, v{26+c}"); a(f"v_add_f32 v{28+c}, v{28+c}, v{30+c}")
    for c in range(2): a(f"v_add_f32 v{24+c}, v{24+c}, v{28+c}")
    a("v_cvt_pk_bf16_f32 v16, v24, v25")
    a("buffer_store_dwordx2 v[16:17], v13, s[56:59], s66 offen sc1")
    stamp(5)
    a("s_setprio 3")
    a(f"s_mov_b32 s69, {LOG2E}")
    role_branch("L_roleA", "L_roleB", "L_roleC")

    a.label("L_k2")
    if stamps:
        a("s_waitcnt lgkmcnt(0)")
        for i in range(16): a(f"v_mov_b32 v{SB+i}, 0")
        a(f"v_mov_b32 v{SB}, s78")
    stamp(2)
    if stamps:
        a("s_getreg_b32 s12, hwreg(HW_REG_HW_ID)"); a(f"v_mov_b32 v{SB+6}, s12")
        a("s_getreg_b32 s12, hwreg(HW_REG_XCC_ID)"); a("s_add_u32 s12, s12, 1"); a(f"v_mov_b32 v{SB+7}, s12")
    for sr in (24, 32, 36, 40, 44, 48, 52): srd(sr, SZ[sr])
    role_setup()
    a("s_mov_b32 s63, 0xffff0000")
    a(f"v_mov_b32 v7, {L_FLAGS}"); a("s_lshl_b32 s10, s11, 2"); a("v_add_u32 v11, s10, v7")
    a("v_lshlrev_b32 v13, 3, v1")
    a(f"s_waitcnt vmcnt({(8 - qearly) * 4})")
    a("v_readfirstlane_b32 s8, v5")
    a("s_mov_b32 s67, 0")
    a(f"s_add_u32 s8, s8, {TAGC}")
    a("v_mov_b32 v15, s8")
    Lq = lab("qg"); Lq2 = lab("qg2")
    a(f"s_branch {Lq2}")
    a.label(Lq)
    qloads()
    a("s_waitcnt vmcnt(0)")
    a.label(Lq2)
    tagcheck([17+2*i for i in range(8)], 40, 44, Lq, sleep=psleep)
    if stamps: a(f"v_mov_b32 v{SB+1}, s67")
    a("v_add_f32 v16, v16, v20"); a("v_add_f32 v24, v24, v28"); a("v_add_f32 v18, v18, v22"); a("v_add_f32 v26, v26, v30")
    a("v_add_f32 v16, v16, v24"); a("v_add_f32 v18, v18, v26")
    a("v_cvt_pk_bf16_f32 v40, v16, v18")
    a("s_lshl_b32 s10, s11, 8"); a(f"s_add_u32 s10, s10, {L_QL}")
    a("v_lshlrev_b32 v10, 2, v1"); a("v_add_u32 v10, s10, v10")
    a("ds_write_b32 v10, v40")
    setflag(F_Q)
    stamp(3)
    a("v_and_b32 v10, 3, v2"); a("v_lshlrev_b32 v10, 8, v10"); a("v_lshlrev_b32 v44, 4, v3"); a("v_add_u32 v10, v10, v44")
    a(f"v_add_u32 v10, {L_QL}, v10")
    wait_flags4(F_Q, 40)
    for i in range(4): a(f"ds_read_b128 v[{16+4*i}:{19+4*i}], v10 offset:{i*64}")
    a("s_waitcnt lgkmcnt(0)")
    for t in range(8):
        if t >= qearly: a(f"s_waitcnt vmcnt({(7-t)*4})")
        for i in range(4):
            r = 64 + 16*t + 4*i
            c = "0" if i == 0 else f"v[{32+4*t}:{35+4*t}]"
            a(f"v_mfma_f32_16x16x32_bf16 v[{32+4*t}:{35+4*t}], v[{16+4*i}:{19+4*i}], v[{r}:{r+3}], {c}")
    a(f"s_mov_b32 s68, {SCALE}"); a(f"s_mov_b32 s69, {LOG2E}")
    a("s_nop 5")
    for aa in range(2):
        for q in range(1, 4):
            for h in range(4):
                a(f"v_mov_b32_dpp v{32+16*aa+h}, v{32+16*aa+4*q+h} quad_perm:[0,1,2,3] row_mask:{hex(1<<q)} bank_mask:0xf")
    S = [[32+16*aa+h for h in range(4)] for aa in range(2)]
    for rnd in range(2):
        for aa in range(2):
            for hp in range(2): a(f"v_cvt_pk_bf16_f32 v{36+2*aa+hp}, v{S[aa][2*hp]}, v{S[aa][2*hp+1]}")
        for aa in range(2):
            for hp in range(2):
                a(f"v_lshlrev_b32 v{S[aa][2*hp]}, 16, v{36+2*aa+hp}")
                a(f"v_and_b32 v{S[aa][2*hp+1]}, s63, v{36+2*aa+hp}")
        if rnd == 0:
            for aa in range(2):
                for h in range(4): a(f"v_mul_f32 v{S[aa][h]}, s68, v{S[aa][h]}")
    for h in range(4): a(f"v_max_f32 v{40+h}, v{S[0][h]}, v{S[1][h]}")
    allreduce("v_max_f32", [40, 41, 42, 43], [44, 45, 46, 47])
    for aa in range(2):
        for h in range(4): a(f"v_sub_f32 v{S[aa][h]}, v{S[aa][h]}, v{40+h}")
    for aa in range(2):
        for h in range(4): a(f"v_mul_f32 v{S[aa][h]}, s69, v{S[aa][h]}")
    for aa in range(2):
        for h in range(4): a(f"v_exp_f32 v{S[aa][h]}, v{S[aa][h]}")
    a("s_nop 0")
    for h in range(4): a(f"v_add_f32 v{52+h}, v{S[0][h]}, v{S[1][h]}")
    allreduce("v_add_f32", [52, 53, 54, 55], [44, 45, 46, 47])
    for h in range(4):
        a(f"v_mov_b32 v{56+2*h}, v{40+h}"); a(f"v_mov_b32 v{57+2*h}, v{52+h}")
    a("s_lshl_b32 s10, s11, 5"); a(f"s_add_u32 s10, s10, {L_MLB}")
    a("v_mov_b32 v10, s10")
    a("ds_write_b128 v10, v[56:59]")
    a("ds_write_b128 v10, v[60:63] offset:16")
    setflag(F_ML)
    a("v_lshlrev_b32 v10, 3, v2"); a(f"v_add_u32 v10, {L_MLB}, v10")
    a("v_lshrrev_b32 v9, 5, v1"); a("v_lshlrev_b32 v9, 8, v9")
    a("v_and_b32 v44, 3, v1"); a("v_lshlrev_b32 v44, 4, v44"); a("v_add_u32 v9, v9, v44")
    a("v_and_b32 v44, 31, v1"); a("v_lshrrev_b32 v44, 2, v44"); a("v_lshlrev_b32 v44, 1, v44"); a("v_add_u32 v9, v9, v44")
    a("s_lshl_b32 s10, s11, 10"); a(f"s_add_u32 s10, s10, {L_PB}"); a("v_add_u32 v9, s10, v9")
    wait_flags4(F_ML, 44)
    a("ds_read_b64 v[192:193], v10")
    a("s_waitcnt lgkmcnt(0)")
    a("v_mov_b32 v194, v192")
    a("s_nop 1")
    a("v_max_f32_dpp v194, v194, v194 row_ror:4 row_mask:0xf bank_mask:0xf")
    a("s_nop 1")
    a("v_max_f32_dpp v194, v194, v194 row_ror:8 row_mask:0xf bank_mask:0xf")
    a("v_sub_f32 v195, v192, v194"); a("v_mul_f32 v195, s69, v195"); a("v_exp_f32 v195, v195"); a("s_nop 0")
    a("v_mul_f32 v196, v193, v195")
    a("s_nop 1")
    a("v_add_f32_dpp v196, v196, v196 row_ror:4 row_mask:0xf bank_mask:0xf")
    a("s_nop 1")
    a("v_add_f32_dpp v196, v196, v196 row_ror:8 row_mask:0xf bank_mask:0xf")
    a("v_rcp_f32 v197, v196"); a("s_nop 0")
    a("v_mul_f32 v197, v197, v195")
    a("s_lshl_b32 s10, s11, 2")
    for h in range(4):
        a(f"s_add_u32 s12, s10, {h}")
        a(f"v_readlane_b32 s{72+h}, v197, s12")
    a("v_mov_b32 v56, v194"); a("v_mov_b32 v57, s8"); a("v_mov_b32 v58, v196"); a("v_mov_b32 v59, s8")
    for aa in range(2):
        for h in range(4): a(f"v_mul_f32 v{S[aa][h]}, s{72+h}, v{S[aa][h]}")
    for aa in range(2):
        for hp in range(2): a(f"v_cvt_pk_bf16_f32 v{36+2*aa+hp}, v{S[aa][2*hp]}, v{S[aa][2*hp+1]}")
    for aa in range(2):
        for hp in range(2):
            a(f"ds_write_b16 v9, v{36+2*aa+hp} offset:{aa*512 + (2*hp)*64}")
            a(f"ds_write_b16_d16_hi v9, v{36+2*aa+hp} offset:{aa*512 + (2*hp+1)*64}")
    setflag(F_P)
    a("s_lshl_b32 s10, s70, 3"); a("s_add_u32 s10, s10, s6"); a("s_lshl_b32 s10, s10, 6")
    a("s_lshl_b32 s12, s11, 4"); a("s_add_u32 s10, s10, s12"); a(f"s_add_u32 s10, s10, {WS_ML}")
    a("s_lshl_b64 s[12:13], 1, s11")
    a("s_mov_b64 exec, s[12:13]")
    a("buffer_store_dwordx4 v[56:59], v6, s[56:59], s10 offen sc1")
    a("s_mov_b64 exec, -1")
    stamp(4)
    role_branch("L_kA", "L_kB", None)

    a.label("L_kA")
    a("s_mov_b32 s72, s85")
    a("v_lshrrev_b32 v22, 1, v2"); a("v_xor_b32 v22, v22, v3"); a("v_lshlrev_b32 v22, 5, v22")
    a("v_lshlrev_b32 v23, 10, v3"); a("v_add_u32 v22, v22, v23"); a("v_and_b32 v23, 1, v1"); a("v_lshlrev_b32 v23, 4, v23"); a("v_add_u32 v22, v22, v23")
    a("v_xor_b32 v23, 0x80, v22")
    a("s_lshl_b32 s14, s84, 2"); a("s_add_u32 s14, s14, s72"); a("s_lshl_b32 s14, s14, 17")
    a("s_lshl_b32 s13, s11, 15"); a("s_add_u32 s14, s14, s13"); a("s_lshl_b32 s13, s86, 8"); a("s_add_u32 s14, s14, s13")
    a("s_lshl_b32 s15, s11, 13")
    if L_W: a(f"s_add_u32 s15, s15, {L_W}")
    a("s_cmp_lg_u32 s3, 0"); a("s_cbranch_scc1 L_kA_dma")
    a("v_lshrrev_b32 v10, 3, v1"); a("v_and_b32 v10, 3, v10"); a("v_lshlrev_b32 v10, 12, v10"); a("v_and_b32 v9, 7, v1"); a("v_lshlrev_b32 v9, 6, v9"); a("v_add_u32 v10, v10, v9")
    a("s_lshl_b32 s12, s84, 9"); a("s_lshl_b32 s10, s72, 4"); a("s_add_u32 s10, s10, s12"); a(f"s_add_u32 s66, s10, {WS_ML}")
    a("s_mov_b32 s67, 0")
    Lm = lab("mg"); a.label(Lm)
    a(f"s_sleep {mlsleep}")
    a("buffer_load_dwordx4 v[192:195], v10, s[56:59], s66 offen sc1")
    a("s_waitcnt vmcnt(0)")
    tagcheck([193, 195], 40, 44, Lm, sleep=0)
    def red8(op, r, t):
        for mod in ("quad_perm:[1,0,3,2]", "quad_perm:[2,3,0,1]", "row_half_mirror"):
            a("s_nop 1")
            a(f"{op}_dpp v{r}, v{r}, v{r} {mod} row_mask:0xf bank_mask:0xf")
    a("v_mov_b32 v40, v192")
    red8("v_max_f32", 40, 41)
    a("v_sub_f32 v41, v192, v40"); a("v_mul_f32 v41, s69, v41"); a("v_exp_f32 v41, v41"); a("s_nop 0")
    a("v_mul_f32 v41, v41, v194")
    a("v_mov_b32 v42, v41")
    red8("v_add_f32", 42, 43)
    a("v_rcp_f32 v42, v42"); a("s_nop 0")
    a("v_mul_f32 v41, v41, v42")
    a("v_and_b32 v9, 31, v1"); a("v_lshlrev_b32 v9, 2, v9"); a(f"v_add_u32 v9, {L_WR}, v9")
    a("ds_write_b32 v9, v41")
    setflag(F_WR)
    a.label("L_kA_dma")
    a("s_setprio 0")
    for i in range(8):
        a("s_mov_b32 m0, s15"); a("s_add_u32 s15, s15, 1024")
        if not no_w: a(f"buffer_load_dwordx4 v{22 + ((i>>1)&1)}, s[32:35], s14 offen{NT} lds")
        a("s_add_u32 s14, s14, 4096")
    a("s_branch L_roleA")

    a.label("L_kB")
    a("s_setprio 0")
    a("v_lshrrev_b32 v22, 2, v1"); a("v_mul_u32_u24 v22, 3584, v22")
    a("v_lshrrev_b32 v23, 1, v1"); a("v_and_b32 v23, 1, v23"); a("v_lshrrev_b32 v24, 5, v1"); a("v_xor_b32 v23, v23, v24"); a("v_lshlrev_b32 v23, 5, v23"); a("v_add_u32 v22, v22, v23")
    a("v_and_b32 v23, 1, v1"); a("v_lshlrev_b32 v23, 4, v23"); a("v_add_u32 v22, v22, v23")
    a(f"s_mul_i32 s12, s11, {128*3584}"); a("s_lshl_b32 s13, s9, 6"); a("s_add_u32 s12, s12, s13")
    a("s_lshl_b32 s13, s11, 13")
    if L_W: a(f"s_add_u32 s13, s13, {L_W}")
    a("s_and_b32 s10, s11, 1"); a("s_lshl_b32 s10, s10, 7"); a("v_xor_b32 v24, s10, v14")
    a("v_xor_b32 v25, 32, v24"); a("v_xor_b32 v26, 64, v24"); a("v_xor_b32 v27, 0x60, v24")
    a("s_lshl_b32 s14, s9, 15"); a("s_lshl_b32 s15, s11, 13"); a("s_add_u32 s14, s14, s15"); a(f"s_add_u32 s15, s15, {L_W2}")
    wait_flags4(F_O, 44, sleep=2)
    for i in range(8):
        a("s_mov_b32 m0, s13"); a("s_add_u32 s13, s13, 1024")
        if not no_w: a(f"buffer_load_dwordx4 v22, s[36:39], s12 offen{NT} lds")
        a(f"s_add_u32 s12, s12, {16*3584}")
    for i in range(8):
        a("s_mov_b32 m0, s15"); a("s_add_u32 s15, s15, 1024")
        if not no_w: a(f"buffer_load_dwordx4 v{24 + (i&3)}, s[44:47], s14 offen{NT} lds")
        a("s_add_u32 s14, s14, 1024")
    a("s_waitcnt vmcnt(0)")
    setflag(F_W)
    stamp(5)
    a("s_branch L_roleB")

    a.label("L_roleA")
    a("s_lshr_b32 s71, s3, 2")
    a("s_mov_b32 s72, s85")
    a("s_mov_b32 s73, s86")
    a("v_lshrrev_b32 v21, 3, v2"); a("v_lshlrev_b32 v21, 17, v21"); a("v_and_b32 v9, 7, v2"); a("v_lshlrev_b32 v9, 11, v9"); a("v_add_u32 v21, v21, v9")
    a("v_lshlrev_b32 v9, 5, v3"); a("v_add_u32 v21, v21, v9")
    a("s_lshl_b32 s10, s71, 18"); a("s_lshl_b32 s12, s84, 14"); a("s_add_u32 s10, s10, s12"); a("s_lshl_b32 s12, s72, 9"); a("s_add_u32 s10, s10, s12")
    a("s_lshl_b32 s12, s11, 7"); a("s_add_u32 s10, s10, s12"); a(f"s_add_u32 s75, s10, {WS_OP}")
    a("s_cmp_lt_u32 s3, 4"); a("s_cbranch_scc1 L_A_common")
    a("buffer_load_dwordx4 v[192:195], v21, s[56:59], s75 offen sc1")
    a("buffer_load_dwordx4 v[196:199], v21, s[56:59], s75 offen offset:16 sc1")
    a.label("L_A_common")
    a("v_lshrrev_b32 v9, 2, v2"); a("v_lshlrev_b32 v10, 3, v3"); a("v_add_u32 v10, v10, v9"); a("v_lshlrev_b32 v10, 8, v10")
    a("v_and_b32 v44, 3, v2"); a("v_lshlrev_b32 v44, 3, v44"); a("v_add_u32 v10, v10, v44")
    a("v_and_b32 v44, 1, v3"); a("v_lshlrev_b32 v44, 2, v44"); a("v_or_b32 v44, v44, v9"); a("v_lshlrev_b32 v44, 5, v44"); a("v_add_u32 v10, v10, v44")
    a("s_lshl_b32 s10, s11, 13")
    if L_W: a(f"s_add_u32 s10, s10, {L_W}")
    a("v_add_u32 v24, s10, v10")
    for nt in range(1, 8): a(f"v_xor_b32 v{24+nt}, {nt*32}, v24")
    a("v_lshrrev_b32 v9, 1, v3"); a("v_lshlrev_b32 v9, 9, v9"); a("v_and_b32 v44, 1, v3"); a("v_lshlrev_b32 v44, 6, v44"); a("v_add_u32 v9, v9, v44")
    a("v_lshlrev_b32 v44, 2, v2"); a("v_add_u32 v9, v9, v44")
    a("s_lshl_b32 s10, s11, 11"); a("s_lshl_b32 s12, s71, 10"); a("s_add_u32 s10, s10, s12"); a(f"s_add_u32 s10, s10, {L_R1}"); a("v_add_u32 v60, s10, v9")
    a("s_lshl_b32 s10, s3, 8"); a(f"s_add_u32 s10, s10, {L_R1}"); a("v_lshlrev_b32 v9, 2, v1"); a("v_add_u32 v61, s10, v9")
    a("s_lshr_b32 s10, s3, 1"); a("s_lshl_b32 s10, s10, 5"); a("s_lshl_b32 s12, s84, 2"); a("s_add_u32 s10, s10, s12"); a("s_add_u32 s10, s10, s72"); a("s_lshl_b32 s10, s10, 12")
    a("s_lshl_b32 s12, s73, 10"); a("s_add_u32 s10, s10, s12"); a("s_and_b32 s12, s3, 1"); a("s_lshl_b32 s12, s12, 9"); a("s_add_u32 s10, s10, s12"); a(f"s_add_u32 s74, s10, {WS_HP}")
    a("v_mov_b32 v63, s8")
    a("s_mov_b32 s67, 0")
    a("v_lshlrev_b32 v62, 4, v3"); a("s_lshl_b32 s10, s71, 6"); a(f"s_add_u32 s10, s10, {L_WR}"); a("v_add_u32 v62, s10, v62")
    def wr_read():
        L = lab("wr"); a.label(L)
        a(f"ds_read_b32 v40, v7 offset:{F_WR}")
        a("s_waitcnt lgkmcnt(0)")
        a("v_cmp_ne_u32 vcc, 1, v40")
        a(f"s_cbranch_vccnz {L}")
        a("ds_read_b128 v[48:51], v62")
    a("s_cmp_lt_u32 s3, 4"); a("s_cbranch_scc1 L_A_k")
    wait_flag1(F_W, 40)
    for nt in range(8):
        a(f"ds_read_b64_tr_b16 v[{64+4*nt}:{65+4*nt}], v{24+nt}")
        a(f"ds_read_b64_tr_b16 v[{66+4*nt}:{67+4*nt}], v{24+nt} offset:1024")
        if nt == 3: a("s_waitcnt lgkmcnt(0)")
    wr_read()
    Lo = lab("og"); Lo2 = lab("og2")
    stamp(13)
    a(f"s_branch {Lo2}")
    a.label("L_A_k")
    a("s_waitcnt vmcnt(0)")
    setflag(F_W)
    stamp(5)
    a("s_setprio 3")
    for nt in range(8):
        a(f"ds_read_b64_tr_b16 v[{64+4*nt}:{65+4*nt}], v{24+nt}")
        a(f"ds_read_b64_tr_b16 v[{66+4*nt}:{67+4*nt}], v{24+nt} offset:1024")
        if nt == 3: a("s_waitcnt lgkmcnt(0)")
    wr_read()
    wait_flags4(F_O, 40, sleep=1)
    stamp(13)
    a.label(Lo)
    a("buffer_load_dwordx4 v[192:195], v21, s[56:59], s75 offen sc1")
    a("buffer_load_dwordx4 v[196:199], v21, s[56:59], s75 offen offset:16 sc1")
    a.label(Lo2)
    a("s_waitcnt vmcnt(0) lgkmcnt(0)")
    tagcheck([193, 195, 197, 199], 40, 44, Lo, sleep=tsleep)
    stamp(8)
    a("v_mov_b32 v193, v194"); a("v_mov_b32 v194, v196"); a("v_mov_b32 v195, v198")
    a("s_nop 1")
    for nt in range(8):
        a(f"v_mfma_f32_16x16x32_bf16 v[{96+4*nt}:{99+4*nt}], v[192:195], v[{64+4*nt}:{67+4*nt}], 0")
    a("s_nop 0")
    for r in range(4):
        for nt in range(8):
            if r == 0: a(f"v_mul_f32 v{128+nt}, v48, v{96+4*nt}")
            else: a(f"v_fmac_f32 v{128+nt}, v{48+r}, v{96+4*nt+r}")
    for p in range(4): a(f"v_permlane16_swap_b32 v{128+2*p}, v{129+2*p}") if p else (a("s_nop 0"), a(f"v_permlane16_swap_b32 v128, v129"))
    for p in range(4): a(f"v_add_f32 v{128+2*p}, v{128+2*p}, v{129+2*p}")
    stamp(10)
    for p in range(4): a(f"ds_write_b32 v60, v{128+2*p} offset:{p*128}")
    a("s_waitcnt lgkmcnt(0)")
    a("s_barrier")
    stamp(11)
    for kt in range(4): a(f"ds_read_b32 v{40+kt}, v61 offset:{kt*2048}")
    a("s_waitcnt lgkmcnt(0)")
    a("v_add_f32 v40, v40, v41"); a("v_add_f32 v42, v42, v43"); a("v_add_f32 v62, v40, v42")
    a("buffer_store_dwordx2 v[62:63], v13, s[56:59], s74 offen sc1")
    stamp(9)
    a("s_branch L_endrole")

    a.label("L_roleB")
    a("s_setprio 3")
    a("s_add_u32 s96, s8, 1")
    a("v_and_b32 v10, 31, v1"); a("v_lshlrev_b32 v10, 1, v10"); a("s_lshl_b32 s10, s9, 6")
    a("buffer_load_ushort v16, v10, s[40:43], s10 offen")
    a("v_lshrrev_b32 v9, 2, v2"); a("v_lshlrev_b32 v10, 3, v3"); a("v_add_u32 v9, v10, v9")
    a("v_and_b32 v44, 3, v2"); a("v_lshlrev_b32 v44, 3, v44")
    a("v_lshlrev_b32 v10, 6, v9"); a("v_add_u32 v10, v10, v44"); a("v_and_b32 v45, 1, v3"); a("v_lshlrev_b32 v46, 5, v45"); a("v_add_u32 v10, v10, v46")
    a("s_lshl_b32 s10, s3, 12")
    if L_W: a(f"s_add_u32 s10, s10, {L_W}")
    a("v_add_u32 v52, s10, v10"); a("v_xor_b32 v53, 32, v52")
    a("v_lshlrev_b32 v10, 10, v9"); a("v_add_u32 v10, v10, v44")
    a("v_lshrrev_b32 v46, 2, v2"); a("v_lshlrev_b32 v45, 2, v45"); a("v_or_b32 v46, v46, v45"); a("v_lshlrev_b32 v46, 5, v46"); a("v_add_u32 v10, v10, v46")
    a("s_lshl_b32 s10, s3, 7"); a("v_xor_b32 v10, s10, v10"); a(f"v_add_u32 v54, {L_W2}, v10")
    for q in range(1, 4): a(f"v_xor_b32 v{54+q}, {q*32}, v54")
    a("v_and_b32 v58, 3, v2"); a("v_lshlrev_b32 v58, 10, v58"); a("v_lshlrev_b32 v9, 4, v3"); a("v_add_u32 v58, v58, v9")
    a("s_lshl_b32 s10, s3, 7"); a(f"s_add_u32 s10, s10, {L_YB}"); a("v_add_u32 v58, s10, v58")
    a("v_lshlrev_b32 v59, 4, v2"); a("s_lshl_b32 s10, s3, 9"); a(f"s_add_u32 s10, s10, {L_T1}"); a("v_add_u32 v59, s10, v59")
    a("v_and_b32 v60, 31, v1"); a("v_lshlrev_b32 v60, 4, v60"); a("v_lshrrev_b32 v9, 5, v1"); a("v_lshlrev_b32 v9, 11, v9"); a("v_add_u32 v60, v60, v9"); a(f"v_add_u32 v60, {L_T1}, v60")
    a("v_and_b32 v61, 31, v1"); a("v_lshlrev_b32 v61, 1, v61"); a("v_lshrrev_b32 v9, 5, v1"); a("v_lshlrev_b32 v9, 7, v9"); a("v_add_u32 v61, v61, v9")
    a("s_lshl_b32 s10, s3, 8"); a(f"s_add_u32 s10, s10, {L_GB}"); a("v_add_u32 v61, s10, v61")
    a("v_and_b32 v62, 3, v2"); a("v_lshlrev_b32 v62, 6, v62"); a("v_lshlrev_b32 v9, 4, v3"); a("v_add_u32 v62, v62, v9"); a("v_add_u32 v62, s10, v62")
    a("s_lshl_b32 s10, s9, 12"); a("s_lshl_b32 s12, s3, 9"); a("s_add_u32 s10, s10, s12"); a(f"s_add_u32 s72, s10, {WS_GP}")
    for bb in range(1, 4): a(f"s_add_u32 s{72+bb}, s72, {bb*56*4096}")
    for r in range(4): a(f"v_mov_b32 v{113+2*r}, s96")
    a("v_mov_b32 v46, 0x3d372713")
    a("s_lshl_b32 s10, s3, 10"); a(f"s_add_u32 s10, s10, {L_YB}"); a("v_add_u32 v63, s10, v14")
    a("v_lshlrev_b32 v10, 5, v1"); a("s_lshl_b32 s10, s3, 11"); a("s_lshl_b32 s12, s4, 13"); a("s_add_u32 s10, s10, s12"); a(f"s_add_u32 s66, s10, {WS_H}")
    wait_flags4(F_W, 40, sleep=1)
    for kt in range(2):
        for nt in range(2):
            r = 64 + (kt*2+nt)*4
            a(f"ds_read_b64_tr_b16 v[{r}:{r+1}], v{52+nt} offset:{kt*2048}")
            a(f"ds_read_b64_tr_b16 v[{r+2}:{r+3}], v{52+nt} offset:{kt*2048+256}")
    for q in range(4):
        r = 80 + 4*q
        a(f"ds_read_b64_tr_b16 v[{r}:{r+1}], v{54+q}")
        a(f"ds_read_b64_tr_b16 v[{r+2}:{r+3}], v{54+q} offset:4096")
    a("s_waitcnt vmcnt(0) lgkmcnt(0)")
    a("v_lshlrev_b32 v16, 16, v16")
    a("s_cmp_ge_u32 s3, 4"); a("s_cbranch_scc1 L_B_ln_done")
    a("s_mov_b32 s67, 0")
    Lh = lab("hg"); a.label(Lh)
    a("buffer_load_dwordx4 v[192:195], v10, s[56:59], s66 offen sc1")
    a("buffer_load_dwordx4 v[196:199], v10, s[56:59], s66 offen offset:16 sc1")
    a("s_waitcnt vmcnt(0)")
    tagcheck([193, 195, 197, 199], 40, 44, Lh, sleep=tsleep)
    stamp(10)
    for i in range(4):
        a(f"v_lshlrev_b32 v{20+2*i}, 16, v{192+2*i}"); a(f"v_and_b32 v{21+2*i}, s63, v{192+2*i}")
    layernorm8(20, 32)
    a("ds_write_b128 v63, v[40:43]")
    a("s_waitcnt lgkmcnt(0)")
    stamp(12)
    a.label("L_B_ln_done")
    a("s_barrier")
    for kt in range(2): a(f"ds_read_b128 v[{192+4*kt}:{195+4*kt}], v58 offset:{kt*64}")
    a("s_waitcnt lgkmcnt(0)")
    for kt in range(2):
        for nt in range(2):
            r = 64 + (kt*2+nt)*4
            c = "0" if kt == 0 else f"v[{96+4*nt}:{99+4*nt}]"
            a(f"v_mfma_f32_16x16x32_bf16 v[{96+4*nt}:{99+4*nt}], v[{192+4*kt}:{195+4*kt}], v[{r}:{r+3}], {c}")
    a("s_nop 6")
    a("ds_write_b128 v59, v[96:99]")
    a("s_nop 0")
    a("ds_write_b128 v59, v[100:103] offset:256")
    a("s_waitcnt lgkmcnt(0)")
    stamp(13)
    a("s_barrier")
    stamp(14)
    for i in range(4): a(f"ds_read_b128 v[{192+4*i}:{195+4*i}], v60 offset:{i*512}")
    a("s_waitcnt lgkmcnt(0)")
    for c in range(4):
        a(f"v_add_f32 v{192+c}, v{192+c}, v{196+c}"); a(f"v_add_f32 v{200+c}, v{200+c}, v{204+c}")
    for c in range(4): a(f"v_add_f32 v{192+c}, v{192+c}, v{200+c}")
    a("s_nop 0")
    a("v_permlane32_swap_b32 v192, v194"); a("v_permlane32_swap_b32 v193, v195")
    a("v_add_f32 v40, v192, v194"); a("v_add_f32 v41, v193, v195")
    a("v_cvt_pk_bf16_f32 v42, v40, v41"); a("v_lshlrev_b32 v40, 16, v42"); a("v_and_b32 v41, s63, v42")
    a("v_add_f32 v40, v40, v16"); a("v_add_f32 v41, v41, v16")
    a("v_cvt_pk_bf16_f32 v42, v40, v41"); a("v_lshlrev_b32 v40, 16, v42"); a("v_and_b32 v41, s63, v42")
    for c in range(2): a(f"v_mul_f32 v{42+c}, v{40+c}, v{40+c}")
    for c in range(2): a(f"v_fma_f32 v{42+c}, v{42+c}, v46, 1.0")
    for c in range(2): a(f"v_mul_f32 v{42+c}, v{42+c}, v{40+c}")
    for c in range(2): a(f"v_mul_f32 v{42+c}, 0xc0135761, v{42+c}")
    for c in range(2): a(f"v_exp_f32 v{42+c}, v{42+c}")
    a("s_nop 0")
    for c in range(2): a(f"v_add_f32 v{42+c}, 1.0, v{42+c}")
    for c in range(2): a(f"v_rcp_f32 v{42+c}, v{42+c}")
    a("s_nop 0")
    for c in range(2): a(f"v_mul_f32 v{40+c}, v{40+c}, v{42+c}")
    a("v_cvt_pk_bf16_f32 v40, v40, v41")
    stamp(8)
    a("ds_write_b16 v61, v40"); a("ds_write_b16_d16_hi v61, v40 offset:64")
    a("ds_read_b128 v[192:195], v62")
    a("s_waitcnt lgkmcnt(0)")
    for q in range(4):
        a(f"v_mfma_f32_16x16x32_bf16 v[{96+4*q}:{99+4*q}], v[192:195], v[{80+4*q}:{83+4*q}], 0")
    a("s_nop 4")
    for r in range(4): a(f"v_mov_b32 v{112+2*r}, v{96+r}")
    for q in range(1, 4):
        for r in range(4):
            a(f"v_mov_b32_dpp v{112+2*r}, v{96+4*q+r} quad_perm:[0,1,2,3] row_mask:{hex(1<<q)} bank_mask:0xf")
    for r in range(4): a(f"buffer_store_dwordx2 v[{112+2*r}:{113+2*r}], v13, s[56:59], s{72+r} offen sc1")
    stamp(11)
    a("s_branch L_endrole")

    a.label("L_roleC")
    a("s_cmp_lg_u32 s3, 7"); a("s_cbranch_scc1 L_fin")
    a("s_setprio 3")
    a("v_lshlrev_b32 v10, 12, v3"); a("v_lshlrev_b32 v9, 4, v2"); a("v_add_u32 v18, v10, v9")
    a("s_lshl_b32 s10, s76, 17"); a("s_lshl_b32 s12, s62, 3"); a("s_add_u32 s10, s10, s12"); a(f"s_add_u32 s80, s10, {WS_HP}")
    for t in range(1, 8): a(f"s_add_u32 s{80+t}, s80, {t*16384}")
    a("s_lshl_b32 s10, s76, 11"); a("s_lshl_b32 s12, s62, 2"); a("s_add_u32 s10, s10, s12"); a(f"s_add_u32 s72, s10, {WS_H}"); a("s_add_u32 s74, s72, 32768")
    a("v_lshlrev_b32 v17, 3, v2"); a("v_lshlrev_b32 v9, 13, v3"); a("v_add_u32 v17, v17, v9")
    a("s_mov_b32 s67, 0")
    Ls = lab("sg"); a.label(Ls)
    for t in range(8): a(f"buffer_load_dwordx4 v[{64+4*t}:{67+4*t}], v18, s[56:59], s{80+t} offen sc1")
    a("s_waitcnt vmcnt(0)")
    tagcheck([65+2*i for i in range(16)], 40, 44, Ls, sleep=tsleep)
    stamp(12)
    def tree2(n):
        ra = [64 + 4*t for t in range(n)]
        while len(ra) > 1:
            nxt = []
            for i in range(0, len(ra) - 1, 2):
                a(f"v_add_f32 v{ra[i]}, v{ra[i]}, v{ra[i+1]}"); a(f"v_add_f32 v{ra[i]+2}, v{ra[i]+2}, v{ra[i+1]+2}"); nxt.append(ra[i])
            if len(ra) % 2: nxt.append(ra[-1])
            ra = nxt
    def xrow():
        a("s_nop 1")
        a("v_permlane32_swap_b32 v64, v66")
        a("v_add_f32 v64, v64, v66")
        a("v_mov_b32 v66, v64"); a("s_nop 1")
        a("v_permlane16_swap_b32 v64, v66")
        a("v_add_f32 v64, v64, v66")
        a("v_mov_b32 v66, v64"); a("s_nop 1")
        a("v_permlane32_swap_b32 v64, v66")
    tree2(8)
    xrow()
    a("v_cvt_pk_bf16_f32 v40, v64, v66")
    a("v_lshlrev_b32 v43, 16, v12"); a("v_and_b32 v44, s63, v12")
    a("v_lshlrev_b32 v41, 16, v40"); a("v_and_b32 v42, s63, v40")
    a("v_add_f32 v41, v41, v43"); a("v_add_f32 v42, v42, v44")
    a("v_cvt_pk_bf16_f32 v40, v41, v42")
    a("v_mov_b32 v41, v15")
    a("buffer_store_dwordx2 v[40:41], v17, s[56:59], s72 offen sc1")
    a("buffer_store_dwordx2 v[40:41], v17, s[56:59], s74 offen sc1")
    stamp(13)
    a.label("L_endrole")
    a("s_cmp_lg_u32 s3, 7"); a("s_cbranch_scc1 L_fin")
    a("s_setprio 3")
    a("s_add_u32 s96, s8, 1")
    a("v_lshrrev_b32 v10, 2, v1"); a("v_lshlrev_b32 v10, 12, v10"); a("v_and_b32 v9, 3, v1"); a("v_lshlrev_b32 v17, 4, v9"); a("v_add_u32 v18, v10, v17")
    a(f"s_mul_i32 s10, s5, {56*4096}"); a("s_lshl_b32 s12, s95, 3"); a("s_add_u32 s10, s10, s12"); a(f"s_add_u32 s80, s10, {WS_GP}")
    for t in range(1, 4): a(f"s_add_u32 s{80+t}, s80, {t*65536}")
    a("s_lshl_b32 s10, s4, 13"); a("s_lshl_b32 s12, s5, 11"); a("s_add_u32 s10, s10, s12"); a("s_lshl_b32 s12, s95, 2"); a("s_add_u32 s10, s10, s12"); a(f"s_add_u32 s84, s10, {WS_H}")
    a("v_lshlrev_b32 v19, 3, v9")
    a("s_lshl_b32 s10, s5, 10"); a("s_lshl_b32 s12, s95, 1"); a("s_add_u32 s73, s10, s12")
    a("v_lshlrev_b32 v16, 2, v9")
    a("v_mov_b32 v76, 0"); a("v_mov_b32 v77, s96"); a("v_mov_b32 v78, 0"); a("v_mov_b32 v79, s96")
    a("s_mov_b32 s67, 0")
    Lh4 = lab("h4"); a.label(Lh4)
    a("buffer_load_dwordx2 v[20:21], v19, s[56:59], s84 offen sc1")
    a("s_waitcnt vmcnt(0)")
    tagcheck([21], 40, 44, Lh4, sleep=4)
    a("v_lshlrev_b32 v21, 16, v20"); a("v_and_b32 v22, s63, v20")
    a("v_lshlrev_b32 v23, 16, v8"); a("v_and_b32 v24, s63, v8")
    a("s_mov_b32 s67, 0")
    Lg = lab("gg"); a.label(Lg)
    for t in range(3): a(f"buffer_load_dwordx4 v[{64+4*t}:{67+4*t}], v18, s[56:59], s{80+t} offen sc1")
    a("s_mov_b64 s[98:99], exec")
    a("s_mov_b32 exec_hi, 0")
    Lx = lab("x"); a(f"s_cbranch_execz {Lx}")
    a("buffer_load_dwordx4 v[76:79], v18, s[56:59], s83 offen sc1")
    a.label(Lx)
    a("s_mov_b64 exec, s[98:99]")
    a("s_waitcnt vmcnt(0)")
    tagcheck([65+2*i for i in range(8)], 40, 44, Lg, sleep=tsleep, tag="s96")
    stamp(14)
    a("v_add_f32 v64, v64, v68"); a("v_add_f32 v66, v66, v70"); a("v_add_f32 v72, v72, v76"); a("v_add_f32 v74, v74, v78")
    a("v_add_f32 v64, v64, v72"); a("v_add_f32 v66, v66, v74")
    for rot in (4, 8):
        a("s_nop 0")
        a(f"v_add_f32_dpp v64, v64, v64 row_ror:{rot} row_mask:0xf bank_mask:0xf")
        a(f"v_add_f32_dpp v66, v66, v66 row_ror:{rot} row_mask:0xf bank_mask:0xf")
    a("s_nop 1")
    a("v_permlane32_swap_b32 v64, v66")
    a("v_add_f32 v64, v64, v66")
    a("v_mov_b32 v66, v64"); a("s_nop 1")
    a("v_permlane16_swap_b32 v64, v66")
    a("v_add_f32 v64, v64, v66")
    a("v_mov_b32 v66, v64"); a("s_nop 1")
    a("v_permlane32_swap_b32 v64, v66")
    a("v_cvt_pk_bf16_f32 v40, v64, v66")
    a("v_lshlrev_b32 v41, 16, v40"); a("v_and_b32 v42, s63, v40")
    a("v_add_f32 v41, v41, v23"); a("v_add_f32 v42, v42, v24")
    a("v_cvt_pk_bf16_f32 v40, v41, v42")
    a("v_lshlrev_b32 v41, 16, v40"); a("v_and_b32 v42, s63, v40")
    a("v_add_f32 v41, v41, v21"); a("v_add_f32 v42, v42, v22")
    a("v_cvt_pk_bf16_f32 v40, v41, v42")
    a("s_mov_b64 exec, 0xf")
    a("buffer_store_dword v40, v16, s[52:55], s73 offen")
    a("s_mov_b64 exec, -1")
    a("s_cmp_lg_u32 s2, 0"); a("s_cbranch_scc1 L_fin")
    a("s_mov_b64 exec, 1")
    a("buffer_store_dword v15, v6, s[56:59], 0 offen sc1")
    a("s_mov_b64 exec, -1")
    a.label("L_fin")
    if stamps == "dbg":
        stamp(15)
        a("s_cmp_lg_u32 s3, 7"); a("s_cbranch_scc1 L_end")
        a("s_load_dwordx2 s[88:89], s[0:1], 88")
        a("s_waitcnt lgkmcnt(0)")
        a("s_mov_b32 s90, 256"); a("s_mov_b32 s91, 0x20000")
        a(f"v_not_b32 v{SB}, v{SB}")
        a("v_mov_b32 v44, 0")
        a("s_mov_b64 exec, 1")
        for k, idx in enumerate((0, 6, 1, 2, 4, 5, 14, 15)):
            a(f"buffer_atomic_umax v{SB+idx}, v44, s[88:91], 0 offen offset:{4*k}")
        a("s_mov_b64 exec, -1")
    elif stamps:
        stamp(15)
        a("s_lshl_b32 s10, s2, 3"); a("s_add_u32 s10, s10, s3"); a("s_lshl_b32 s10, s10, 6"); a(f"s_add_u32 s10, s10, {WS_STAMP}")
        a("v_mov_b32 v44, 0")
        a("s_mov_b64 exec, 1")
        for i in range(4): a(f"buffer_store_dwordx4 v[{SB+4*i}:{SB+3+4*i}], v44, s[56:59], s10 offen offset:{16*i}")
        a("s_mov_b64 exec, -1")
    a.label("L_end")
    a("s_endpgm")
    return a

HDR = """; Fused pre-LN GQA decode attention + channel-MLP block, single persistent launch (256 workgroups x 8 waves).
; @launch grid=(256,1,1) block=(512,1,1) lds={lds}
.amdgcn_target "amdgcn-amd-amdhsa--gfx950"
.text
.globl {name}_kernel
.p2align 8
.type {name}_kernel,@function
{name}_kernel:
"""
FTR = """
.section .rodata,"a"
.p2align 6
.amdhsa_kernel {name}_kernel
  .amdhsa_next_free_vgpr 256
  .amdhsa_next_free_sgpr 102
  .amdhsa_accum_offset 256
  .amdhsa_group_segment_fixed_size 0
  .amdhsa_kernarg_size 104
  .amdhsa_user_sgpr_count 2
  .amdhsa_user_sgpr_kernarg_segment_ptr 1
  .amdhsa_system_sgpr_workgroup_id_x 1
.end_amdhsa_kernel
"""
def build(path, **kw):
    a = gen(**kw)
    probs = check_hazards(a.lines)
    open(path, "w").write(HDR.format(name=NAME, lds=LDS_BYTES) + a.text() + FTR.format(name=NAME))
    return probs

if __name__ == "__main__":
    out = sys.argv[1] if len(sys.argv) > 1 else "k3.s"
    kw = {}
    for arg in sys.argv[2:]:
        if arg == "stamps": kw["stamps"] = True
        elif arg == "dbg": kw["stamps"] = "dbg"
        elif "=" in arg:
            k, v = arg.split("="); kw[k] = eval(v)
    probs = build(out, **kw)
    print("hazards:", len(probs))
```

```python
import sys
from asmlib import Asm, check_hazards

NAME = "sequential_preLN__gqa_block_cached__mixer_channel_mlp__decode"

WS_EPOCH = 0
WS_ML = 0x1000
WS_H  = 0x1E8000
WS_OP = 0x8000
WS_HP = 0x88000
WS_QB = 0x108000
WS_GP = 0x108000
WS_STAMP = 0x400000
L_W = 0
L_W2 = 32768
L_WQ = 65536
L_RED = 81920
L_R1 = 90112
L_YB = 98304
L_QPB = 102400
L_PB = 106496
L_T1 = 110592
L_GB = 114688
L_QL = 116736
L_FLAGS = 117760
L_MLB = 118016
L_WR = 118784
LDS_BYTES = 122880
F_Y, F_QP, F_Q, F_ML, F_P, F_W, F_O, F_WR = 0, 16, 32, 48, 64, 80, 96, 112

LOG2E = 0x3fb8aa3b
SCALE = 0x3db504f3
EPS = 0x3727c5ac
TAGC = 0x9E3779B9
POLL_MAX = 20000

def gen(stamps=False, psleep=2, tsleep=1, qearly=6, mlsleep=8, rot=True, no_w=False, no_pwait=False, no_q=False, khold=0, lanemask=True, NAE=25, NAL=7, delay=None):
    a = Asm()
    NT = " nt"
    uid = [0]
    def lab(p):
        uid[0] += 1
        return f"L_{p}_{uid[0]}"
    SB = 240
    def stamp(idx):
        if stamps:
            a("s_memrealtime s[78:79]")
            a("s_waitcnt lgkmcnt(0)")
            a(f"v_mov_b32 v{SB+idx}, s78")
    def allreduce(op, rs, tmps):
        k = len(rs)
        for rot in (8, 4, 2, 1):
            if k == 1: a("s_nop 1")
            elif k == 2: a("s_nop 0")
            for r in rs:
                a(f"{op}_dpp v{r}, v{r}, v{r} row_ror:{rot} row_mask:0xf bank_mask:0xf")
        for sw in ("v_permlane16_swap_b32", "v_permlane32_swap_b32"):
            for r, t in zip(rs, tmps): a(f"v_mov_b32 v{t}, v{r}")
            a("s_nop 1" if k == 1 else "s_nop 0")
            if k == 2: pass
            for r, t in zip(rs, tmps): a(f"{sw} v{r}, v{t}")
            for r, t in zip(rs, tmps): a(f"{op} v{r}, v{r}, v{t}")
    def rb(dst, src):
        a(f"v_cvt_pk_bf16_f32 v{dst}, v{src}, v{src}")
        a(f"v_lshlrev_b32 v{dst}, 16, v{dst}")
    def setflag(off): a(f"ds_write_b32 v11, v0 offset:{off}")
    def wait_flags4(off, tmp, sleep=0):
        L = lab("wf")
        a.label(L)
        if sleep: a(f"s_sleep {sleep}")
        a(f"ds_read_b128 v[{tmp}:{tmp+3}], v7 offset:{off}")
        a("s_waitcnt lgkmcnt(0)")
        a(f"v_and_b32 v{tmp}, v{tmp}, v{tmp+1}"); a(f"v_and_b32 v{tmp+2}, v{tmp+2}, v{tmp+3}")
        a(f"v_and_b32 v{tmp}, v{tmp}, v{tmp+2}")
        a(f"v_cmp_ne_u32 vcc, 1, v{tmp}")
        a(f"s_cbranch_vccnz {L}")
    def wait_flag1(off, tmp, sleep=0):
        L = lab("wf")
        a.label(L)
        if sleep: a(f"s_sleep {sleep}")
        a(f"ds_read_b32 v{tmp}, v11 offset:{off}")
        a("s_waitcnt lgkmcnt(0)")
        a(f"v_cmp_ne_u32 vcc, 1, v{tmp}")
        a(f"s_cbranch_vccnz {L}")
    def tagcheck(tagregs, acc, t1, retry_label, cnt=67, sleep=0, tag="s8"):
        first = True; i = 0
        while i < len(tagregs):
            if i + 1 < len(tagregs):
                a(f"v_xor_b32 v{t1}, {tag}, v{tagregs[i]}")
                if first:
                    a(f"v_xor_b32 v{acc}, {tag}, v{tagregs[i+1]}")
                    a(f"v_or_b32 v{acc}, v{acc}, v{t1}")
                else:
                    a(f"v_xor_b32 v{t1+1}, {tag}, v{tagregs[i+1]}")
                    a(f"v_or3_b32 v{acc}, v{acc}, v{t1}, v{t1+1}")
                i += 2
            else:
                if first: a(f"v_xor_b32 v{acc}, {tag}, v{tagregs[i]}")
                else:
                    a(f"v_xor_b32 v{t1}, {tag}, v{tagregs[i]}")
                    a(f"v_or_b32 v{acc}, v{acc}, v{t1}")
                i += 1
            first = False
        a(f"v_cmp_ne_u32 vcc, 0, v{acc}")
        done = lab("pd")
        a(f"s_cbranch_vccz {done}")
        if lanemask: a("s_mov_b64 exec, vcc")
        if sleep: a(f"s_sleep {sleep}")
        a(f"s_add_u32 s{cnt}, s{cnt}, 1")
        a(f"s_cmp_lt_u32 s{cnt}, {POLL_MAX}")
        a(f"s_cbranch_scc1 {retry_label}")
        a.label(done)
        if lanemask: a("s_mov_b64 exec, -1")
    def layernorm8(e, t):
        a(f"v_readfirstlane_b32 s12, v{e}")
        a("s_nop 1")
        for i in range(8): a(f"v_subrev_f32 v{t+4+(i&3)+ (0)}, s12, v{e+i}") if False else None
        a(f"v_subrev_f32 v{t+2}, s12, v{e}"); a(f"v_subrev_f32 v{t+3}, s12, v{e+1}")
        a(f"v_add_f32 v{t}, v{t+2}, v{t+3}"); a(f"v_mul_f32 v{t+1}, v{t+2}, v{t+2}"); a(f"v_fmac_f32 v{t+1}, v{t+3}, v{t+3}")
        for i in range(2, 8, 2):
            a(f"v_subrev_f32 v{t+2}, s12, v{e+i}"); a(f"v_subrev_f32 v{t+3}, s12, v{e+i+1}")
            a(f"v_add_f32 v{t}, v{t}, v{t+2}"); a(f"v_fmac_f32 v{t+1}, v{t+2}, v{t+2}")
            a(f"v_add_f32 v{t}, v{t}, v{t+3}"); a(f"v_fmac_f32 v{t+1}, v{t+3}, v{t+3}")
        allreduce("v_add_f32", [t, t+1], [t+2, t+3])
        a(f"v_mul_f32 v{t}, 0x3b000000, v{t}")
        a(f"v_mul_f32 v{t+1}, 0x3b000000, v{t+1}")
        a(f"v_fma_f32 v{t+1}, -v{t}, v{t}, v{t+1}")
        a(f"v_add_f32 v{t}, s12, v{t}")
        a(f"v_max_f32 v{t+1}, 0, v{t+1}")
        a(f"v_cvt_pk_bf16_f32 v{t+2}, v{t}, v{t+1}")
        a(f"v_and_b32 v{t+1}, s63, v{t+2}")
        a(f"v_lshlrev_b32 v{t}, 16, v{t+2}")
        a(f"v_add_f32 v{t+1}, {EPS}, v{t+1}")
        for i in range(4): a(f"v_sub_f32 v{e+i}, v{e+i}, v{t}")
        rb(t+1, t+1)
        a(f"v_sqrt_f32 v{t+1}, v{t+1}")
        for i in range(4, 8): a(f"v_sub_f32 v{e+i}, v{e+i}, v{t}")
        rb(t+1, t+1)
        a(f"v_rcp_f32 v{t+1}, v{t+1}")
        for i in range(4): a(f"v_cvt_pk_bf16_f32 v{t+8+i}, v{e+2*i}, v{e+2*i+1}")
        for i in range(4):
            a(f"v_lshlrev_b32 v{e+2*i}, 16, v{t+8+i}"); a(f"v_and_b32 v{e+2*i+1}, s63, v{t+8+i}")
        for i in range(8): a(f"v_mul_f32 v{e+i}, v{e+i}, v{t+1}")
        for i in range(4): a(f"v_cvt_pk_bf16_f32 v{t+8+i}, v{e+2*i}, v{e+2*i+1}")
    def kvstep():
        a("s_add_u32 s83, s83, 4096"); a("s_and_b32 s83, s83, 0x7fff"); a("s_add_u32 s65, s64, s83")
    def role_setup():
        NCE = 32 - NAE - 7; NCL = (64 - 4*NCE) // 4
        assert 4*NAE + 4*NAL == 128 and NAL + 7 + NCL <= 32 and NCE >= 0
        a("s_and_b32 s87, s4, 3")
        a("s_cmp_lt_u32 s4, 4")
        a(f"s_cselect_b32 s10, {NAE}, {NAL}")
        a(f"s_cselect_b32 s12, 0, {4*NAE}")
        a(f"s_cselect_b32 s13, {NCE}, {NCL}")
        a(f"s_cselect_b32 s14, 0, {4*NCE}")
        a("s_mul_i32 s15, s87, s10"); a("s_add_u32 s15, s15, s12"); a("s_add_u32 s15, s15, s7")
        a("s_sub_u32 s12, s7, s10")
        a("s_mul_i32 s9, s4, 7"); a("s_add_u32 s9, s9, s12")
        a("s_sub_u32 s76, s12, 7")
        a("s_mov_b32 s97, 3")
        a("s_cmp_lt_u32 s76, s13"); a("s_cselect_b32 s97, 2, s97")
        a("s_cmp_lt_u32 s12, 7"); a("s_cselect_b32 s97, 1, s97")
        a("s_cmp_lt_u32 s7, s10"); a("s_cselect_b32 s97, 0, s97")
        a("s_mul_i32 s13, s87, s13"); a("s_add_u32 s13, s13, s14"); a("s_add_u32 s13, s13, s76")
        a("s_lshr_b32 s84, s15, 4"); a("s_and_b32 s84, s84, 7")
        a("s_lshr_b32 s85, s15, 2"); a("s_and_b32 s85, s85, 3")
        a("s_and_b32 s86, s15, 3")
        a("s_lshr_b32 s76, s13, 4"); a("s_and_b32 s76, s76, 3")
        a("s_and_b32 s10, s13, 15"); a("s_lshl_b32 s62, s10, 5")
        a("s_mov_b32 s87, s13")
    def role_branch(la, lb, lc):
        a("s_cmp_eq_u32 s97, 0"); a(f"s_cbranch_scc1 {la}")
        a("s_cmp_eq_u32 s97, 1"); a(f"s_cbranch_scc1 {lb}")
        if lc: a("s_cmp_eq_u32 s97, 2"); a(f"s_cbranch_scc1 {lc}")
        a("s_branch L_endrole" if lc else "s_branch L_fin")
    def srd(sr, sz):
        a(f"s_mov_b32 s{sr+2}, {sz}"); a(f"s_mov_b32 s{sr+3}, 0x20000")
    SZ = {16: 4096, 20: 33554432, 24: 33554432, 28: 4194304, 32: 4194304, 36: 1835008, 40: 3584, 44: 1835008, 48: 1024, 52: 4096, 56: 268435456}

    if stamps: a("s_memrealtime s[78:79]")
    for (sr, off) in ((56, 96), (20, 8), (16, 0), (28, 24), (24, 16), (32, 32), (36, 48), (40, 56), (44, 64), (48, 72), (52, 80)):
        a(f"s_load_dwordx2 s[{sr}:{sr+1}], s[0:1], {off}")
    a("s_cmp_ge_u32 s2, 256")
    a("s_cbranch_scc1 L_end")
    a("v_lshrrev_b32 v4, 6, v0")
    a("v_and_b32 v1, 63, v0")
    a("v_readfirstlane_b32 s3, v4")
    a("v_and_b32 v2, 15, v1")
    a("v_lshrrev_b32 v3, 4, v1")
    a("s_and_b32 s4, s2, 7")
    a("s_lshr_b32 s7, s2, 3")
    a("s_lshr_b32 s5, s7, 3")
    a("s_and_b32 s6, s7, 7")
    if delay:
        a(f"s_cmp_lg_u32 s4, {delay[0]}"); a("s_cbranch_scc1 L_nodelay")
        a("s_memrealtime s[78:79]"); a("s_waitcnt lgkmcnt(0)"); a(f"s_add_u32 s77, s78, {delay[1]}")
        a.label("L_dl"); a("s_memrealtime s[78:79]"); a("s_waitcnt lgkmcnt(0)"); a("s_cmp_lt_u32 s78, s77"); a("s_cbranch_scc1 L_dl")
        a.label("L_nodelay")
    srd(56, SZ[56]); srd(20, SZ[20]); srd(16, SZ[16]); srd(28, SZ[28])
    a("s_and_b32 s11, s3, 3")
    a("s_lshl_b32 s70, s5, 3"); a("s_add_u32 s70, s70, s4")
    a("s_lshl_b32 s64, s70, 20"); a("s_lshl_b32 s10, s6, 17"); a("s_add_u32 s64, s64, s10")
    a("s_lshl_b32 s10, s11, 15"); a("s_add_u32 s64, s64, s10")
    a("s_lshl_b32 s83, s5, 13") if rot else a("s_mov_b32 s83, 0")
    a("s_add_u32 s65, s64, s83")
    a("v_mov_b32 v6, 0")
    a("v_lshlrev_b32 v14, 4, v1")
    a("s_cmp_ge_u32 s3, 4")
    a("s_cbranch_scc1 L_v1")
    a("v_lshlrev_b32 v47, 8, v2"); a("v_lshlrev_b32 v10, 4, v3"); a("v_add_u32 v47, v47, v10")
    a("s_lshl_b32 s10, s4, 2"); a("s_add_u32 s10, s10, s5"); a("s_lshl_b32 s10, s10, 14"); a("s_lshl_b32 s12, s11, 10"); a("s_add_u32 s10, s10, s12"); a(f"s_add_u32 s66, s10, {WS_QB}")
    for k in range(1, 4): a(f"s_add_u32 s{71+k}, s66, {k*4096}")
    a("s_setprio 2")
    a("s_waitcnt lgkmcnt(0)")
    a("buffer_load_dword v5, v6, s[56:59], 0 offen sc1")
    def qloads():
        for k in range(4):
            a(f"buffer_load_dwordx4 v[{16+4*k}:{19+4*k}], v14, s[56:59], s{66 if k == 0 else 71+k} offen sc1")
    for t in range(8):
        for i in range(4):
            r = 64 + 16*t + 4*i
            a(f"buffer_load_dwordx4 v[{r}:{r+3}], v47, s[20:23], s65 offen offset:{i*64}{NT}")
        if t < 7: kvstep()
        if t == 1:
            a("v_lshlrev_b32 v9, 2, v1"); a(f"v_add_u32 v9, {L_FLAGS}, v9"); a("ds_write_b32 v9, v6"); a("v_mov_b32 v0, 1")
            a("s_waitcnt lgkmcnt(0)"); a("s_barrier")
        if t == qearly - 1: qloads()
    a("s_branch L_k2")
    a.label("L_v1")
    a("v_lshrrev_b32 v10, 3, v1"); a("v_lshlrev_b32 v10, 13, v10"); a("v_and_b32 v9, 7, v1"); a("v_lshlrev_b32 v9, 4, v9"); a("v_add_u32 v10, v10, v9")
    a("s_lshl_b32 s13, s5, 20"); a("s_lshl_b32 s12, s11, 18"); a("s_add_u32 s13, s13, s12")
    a("s_lshl_b32 s12, s4, 10"); a("s_add_u32 s13, s13, s12"); a("s_lshl_b32 s12, s6, 7"); a("s_add_u32 s13, s13, s12")
    a("s_lshl_b32 s12, s11, 12"); a(f"s_add_u32 s12, s12, {L_WQ}")
    a("s_lshl_b32 s10, s11, 10")
    a("s_setprio 3")
    a("s_waitcnt lgkmcnt(0)")
    a("buffer_load_dword v5, v6, s[56:59], 0 offen sc1")
    a("buffer_load_dwordx4 v[16:19], v14, s[16:19], s10 offen")
    for i in range(4):
        a("s_mov_b32 m0, s12"); a("s_add_u32 s12, s12, 1024")
        a(f"buffer_load_dwordx4 v10, s[28:31], s13 offen{NT} lds"); a("s_add_u32 s13, s13, 0x10000")
    a("v_lshlrev_b32 v9, 2, v1"); a(f"v_add_u32 v9, {L_FLAGS}, v9"); a("ds_write_b32 v9, v6"); a("v_mov_b32 v0, 1")
    a("s_waitcnt lgkmcnt(0)"); a("s_barrier")

    if stamps:
        a("s_waitcnt lgkmcnt(0)")
        for i in range(16): a(f"v_mov_b32 v{SB+i}, 0")
        a(f"v_mov_b32 v{SB}, s78")
    for sr in (24, 32, 36, 40, 44, 48, 52): srd(sr, SZ[sr])
    role_setup()
    a("s_mov_b32 s60, 0x05040100"); a("s_mov_b32 s61, 0x07060302"); a("s_mov_b32 s63, 0xffff0000")
    a(f"v_mov_b32 v7, {L_FLAGS}"); a("s_lshl_b32 s10, s11, 2"); a("v_add_u32 v11, s10, v7")
    a("v_lshlrev_b32 v13, 3, v1")
    a("v_lshrrev_b32 v9, 2, v2"); a("v_lshlrev_b32 v10, 3, v3"); a("v_add_u32 v9, v9, v10"); a("v_lshlrev_b32 v44, 7, v9")
    a("v_and_b32 v10, 3, v2"); a("v_lshlrev_b32 v10, 3, v10"); a("v_add_u32 v44, v44, v10")
    a("s_lshl_b32 s10, s11, 12"); a(f"s_add_u32 s10, s10, {L_WQ}"); a("v_add_u32 v44, s10, v44")
    a("v_and_b32 v45, 3, v2"); a("v_lshlrev_b32 v45, 10, v45"); a("v_lshlrev_b32 v46, 4, v3"); a("v_add_u32 v45, v45, v46")
    a("s_lshl_b32 s10, s5, 8"); a("s_lshl_b32 s12, s11, 6"); a("s_add_u32 s10, s10, s12"); a(f"s_add_u32 s10, s10, {L_YB}"); a("v_add_u32 v45, s10, v45")
    a("v_lshlrev_b32 v46, 4, v2"); a("s_lshl_b32 s10, s11, 10"); a(f"s_add_u32 s10, s10, {L_QPB}"); a("v_add_u32 v46, s10, v46")
    a("s_lshl_b32 s10, s11, 2"); a(f"s_add_u32 s10, s10, {L_QPB}"); a("v_add_u32 v47, s10, v14")
    a("s_lshl_b32 s10, s11, 10"); a(f"s_add_u32 s10, s10, {L_YB}"); a("v_add_u32 v9, s10, v14")
    a("s_lshl_b32 s10, s4, 2"); a("s_add_u32 s10, s10, s11"); a("s_lshl_b32 s10, s10, 2"); a("s_add_u32 s10, s10, s5"); a("s_lshl_b32 s10, s10, 12")
    a("s_lshl_b32 s12, s6, 9"); a("s_add_u32 s10, s10, s12"); a(f"s_add_u32 s66, s10, {WS_QB}")
    a("s_waitcnt vmcnt(4)")
    stamp(6)
    a("v_readfirstlane_b32 s8, v5")
    for i in range(4):
        a(f"v_lshlrev_b32 v{20+2*i}, 16, v{16+i}"); a(f"v_and_b32 v{21+2*i}, s63, v{16+i}")
    a(f"s_add_u32 s8, s8, {TAGC}")
    a("v_mov_b32 v15, s8")
    layernorm8(20, 32)
    a("ds_write_b128 v9, v[40:43]")
    setflag(F_Y)
    wait_flags4(F_Y, 40)
    a("ds_read_b128 v[192:195], v45")
    a("s_waitcnt vmcnt(0)")
    stamp(7)
    for nt in range(4):
        a(f"ds_read_b64_tr_b16 v[{196+4*nt}:{197+4*nt}], v44 offset:{nt*32}")
        a(f"ds_read_b64_tr_b16 v[{198+4*nt}:{199+4*nt}], v44 offset:{nt*32+512}")
    a("s_waitcnt lgkmcnt(0)")
    for nt in range(4):
        a(f"v_mfma_f32_16x16x32_bf16 v[{212+4*nt}:{215+4*nt}], v[192:195], v[{196+4*nt}:{199+4*nt}], 0")
    a("v_mov_b32 v45, s8")
    a("s_nop 3")
    for nt in range(4): a(f"ds_write_b128 v46, v[{212+4*nt}:{215+4*nt}] offset:{nt*256}")
    setflag(F_QP)
    wait_flags4(F_QP, 40)
    for w in range(4): a(f"ds_read_b32 v{40+w}, v47 offset:{w*1024}")
    a("s_waitcnt lgkmcnt(0)")
    a("v_add_f32 v40, v40, v41"); a("v_add_f32 v42, v42, v43"); a("v_add_f32 v44, v40, v42")
    a("buffer_store_dwordx2 v[44:45], v13, s[56:59], s66 offen sc1")
    a("s_setprio 1")
    stamp(1)
    for k in range(32):
        r = 64 + 4*k
        a(f"buffer_load_dwordx4 v[{r}:{r+3}], v14, s[24:27], s65 offen offset:{(k%4)*1024}{NT}")
        if k % 4 == 3 and k < 31: kvstep()
    stamp(2)
    a("v_lshlrev_b32 v10, 2, v2")
    a("s_lshl_b32 s10, s76, 10"); a("s_lshl_b32 s12, s62, 1"); a("s_add_u32 s10, s10, s12")
    a("buffer_load_dword v12, v10, s[16:19], s10 offen")
    a("s_lshl_b32 s95, s4, 3"); a("s_add_u32 s95, s95, s6"); a("s_lshl_b32 s95, s95, 3")
    a("v_and_b32 v9, 3, v1"); a("v_lshlrev_b32 v9, 2, v9"); a("s_lshl_b32 s12, s95, 1")
    a("buffer_load_dword v8, v9, s[48:51], s12 offen")
    a("buffer_load_dword v4, v9, s[52:55], s12 offen")
    NSM = 3
    a("v_lshlrev_b32 v20, 9, v3"); a("v_lshlrev_b32 v9, 5, v2"); a("v_add_u32 v20, v20, v9")
    a("s_lshl_b32 s10, s11, 11"); a(f"s_add_u32 s10, s10, {L_RED}"); a("v_add_u32 v20, s10, v20")
    a("s_lshl_b32 s10, s11, 9"); a(f"s_add_u32 s10, s10, {L_RED}"); a("v_add_u32 v21, s10, v13")
    a("s_lshl_b32 s10, s70, 3"); a("s_add_u32 s10, s10, s6"); a("s_lshl_b32 s10, s10, 11"); a("s_lshl_b32 s12, s11, 9"); a("s_add_u32 s10, s10, s12"); a(f"s_add_u32 s66, s10, {WS_OP}")
    a("v_lshrrev_b32 v10, 2, v2"); a("v_lshlrev_b32 v10, 6, v10"); a("v_lshlrev_b32 v9, 4, v3"); a("v_add_u32 v10, v10, v9")
    a("s_lshl_b32 s10, s11, 10"); a(f"s_add_u32 s10, s10, {L_PB}"); a("v_add_u32 v10, s10, v10")
    if not no_pwait: wait_flag1(F_P, 40, sleep=1)
    PF = 224
    for T in range(4): a(f"ds_read_b128 v[{PF+4*T}:{PF+3+4*T}], v10 offset:{T*256}")
    stamp(3)
    def perms(T, dst, ulist):
        raw = 64 + 32*T
        for u in ulist:
            for jj in range(4):
                s1 = raw + 4*(2*u) + jj; s0 = raw + 4*(2*u+1) + jj
                a(f"v_perm_b32 v{dst + 4*(2*jj) + u}, v{s0}, v{s1}, s60")
                a(f"v_perm_b32 v{dst + 4*(2*jj+1) + u}, v{s0}, v{s1}, s61")
    ACC = 32
    def mfmas(T, src, js):
        for j in js:
            c = "0" if T == 0 else f"v[{ACC+4*j}:{ACC+4*j+3}]"
            a(f"v_mfma_f32_16x16x32_bf16 v[{ACC+4*j}:{ACC+4*j+3}], v[{PF+4*T}:{PF+3+4*T}], v[{src+4*j}:{src+4*j+3}], {c}")
    F = [192, 64, 96, 128]
    def after(k): return min(63, (31 - k) + NSM)
    a(f"s_waitcnt vmcnt({after(7)})")
    perms(0, F[0], range(4))
    a(f"s_waitcnt vmcnt({after(15)}) lgkmcnt(0)")
    for u in range(4):
        perms(1, F[1], [u]); mfmas(0, F[0], [2*u, 2*u+1])
    a(f"s_waitcnt vmcnt({after(23)})")
    for u in range(4):
        perms(2, F[2], [u]); mfmas(1, F[1], [2*u, 2*u+1])
    mfmas(2, F[2], range(4))
    for u in range(4):
        a(f"s_waitcnt vmcnt({after(24+2*u+1)})")
        perms(3, F[3], [u])
        mfmas(2, F[2], [4+u])
    a("s_nop 0")
    mfmas(3, F[3], range(8))
    stamp(4)
    a("v_mov_b32 v17, s8")
    a("s_nop 6")
    for j in range(0, 8, 2):
        a(f"ds_write2_b32 v20, v{ACC+4*j}, v{ACC+4*(j+1)} offset0:{j} offset1:{j+1}")
    setflag(F_O)
    wait_flags4(F_O, 24)
    for w in range(4): a(f"ds_read_b64 v[{24+2*w}:{25+2*w}], v21 offset:{w*2048}")
    a("s_waitcnt lgkmcnt(0)")
    for c in range(2):
        a(f"v_add_f32 v{24+c}, v{24+c}, v{26+c}"); a(f"v_add_f32 v{28+c}, v{28+c}, v{30+c}")
    for c in range(2): a(f"v_add_f32 v{24+c}, v{24+c}, v{28+c}")
    a("v_cvt_pk_bf16_f32 v16, v24, v25")
    a("buffer_store_dwordx2 v[16:17], v13, s[56:59], s66 offen sc1")
    stamp(5)
    a("s_setprio 3")
    a(f"s_mov_b32 s69, {LOG2E}")
    role_branch("L_roleA", "L_roleB", "L_roleC")

    a.label("L_k2")
    if stamps:
        a("s_waitcnt lgkmcnt(0)")
        for i in range(16): a(f"v_mov_b32 v{SB+i}, 0")
        a(f"v_mov_b32 v{SB}, s78")
    stamp(2)
    if stamps:
        a("s_getreg_b32 s12, hwreg(HW_REG_HW_ID)"); a(f"v_mov_b32 v{SB+6}, s12")
        a("s_getreg_b32 s12, hwreg(HW_REG_XCC_ID)"); a("s_add_u32 s12, s12, 1"); a(f"v_mov_b32 v{SB+7}, s12")
    for sr in (24, 32, 36, 40, 44, 48, 52): srd(sr, SZ[sr])
    role_setup()
    a("s_mov_b32 s63, 0xffff0000")
    a(f"v_mov_b32 v7, {L_FLAGS}"); a("s_lshl_b32 s10, s11, 2"); a("v_add_u32 v11, s10, v7")
    a("v_lshlrev_b32 v13, 3, v1")
    a(f"s_waitcnt vmcnt({(8 - qearly) * 4})")
    a("v_readfirstlane_b32 s8, v5")
    a("s_mov_b32 s67, 0")
    a(f"s_add_u32 s8, s8, {TAGC}")
    a("v_mov_b32 v15, s8")
    Lq = lab("qg"); Lq2 = lab("qg2")
    a(f"s_branch {Lq2}")
    a.label(Lq)
    qloads()
    a("s_waitcnt vmcnt(0)")
    a.label(Lq2)
    tagcheck([17+2*i for i in range(8)], 40, 44, Lq, sleep=psleep)
    if stamps: a(f"v_mov_b32 v{SB+1}, s67")
    a("v_add_f32 v16, v16, v20"); a("v_add_f32 v24, v24, v28"); a("v_add_f32 v18, v18, v22"); a("v_add_f32 v26, v26, v30")
    a("v_add_f32 v16, v16, v24"); a("v_add_f32 v18, v18, v26")
    a("v_cvt_pk_bf16_f32 v40, v16, v18")
    a("s_lshl_b32 s10, s11, 8"); a(f"s_add_u32 s10, s10, {L_QL}")
    a("v_lshlrev_b32 v10, 2, v1"); a("v_add_u32 v10, s10, v10")
    a("ds_write_b32 v10, v40")
    setflag(F_Q)
    stamp(3)
    a("v_and_b32 v10, 3, v2"); a("v_lshlrev_b32 v10, 8, v10"); a("v_lshlrev_b32 v44, 4, v3"); a("v_add_u32 v10, v10, v44")
    a(f"v_add_u32 v10, {L_QL}, v10")
    wait_flags4(F_Q, 40)
    for i in range(4): a(f"ds_read_b128 v[{16+4*i}:{19+4*i}], v10 offset:{i*64}")
    a("s_waitcnt lgkmcnt(0)")
    for t in range(8):
        if t >= qearly: a(f"s_waitcnt vmcnt({(7-t)*4})")
        for i in range(4):
            r = 64 + 16*t + 4*i
            c = "0" if i == 0 else f"v[{32+4*t}:{35+4*t}]"
            a(f"v_mfma_f32_16x16x32_bf16 v[{32+4*t}:{35+4*t}], v[{16+4*i}:{19+4*i}], v[{r}:{r+3}], {c}")
    a(f"s_mov_b32 s68, {SCALE}"); a(f"s_mov_b32 s69, {LOG2E}")
    a("s_nop 5")
    for aa in range(2):
        for q in range(1, 4):
            for h in range(4):
                a(f"v_mov_b32_dpp v{32+16*aa+h}, v{32+16*aa+4*q+h} quad_perm:[0,1,2,3] row_mask:{hex(1<<q)} bank_mask:0xf")
    S = [[32+16*aa+h for h in range(4)] for aa in range(2)]
    for rnd in range(2):
        for aa in range(2):
            for hp in range(2): a(f"v_cvt_pk_bf16_f32 v{36+2*aa+hp}, v{S[aa][2*hp]}, v{S[aa][2*hp+1]}")
        for aa in range(2):
            for hp in range(2):
                a(f"v_lshlrev_b32 v{S[aa][2*hp]}, 16, v{36+2*aa+hp}")
                a(f"v_and_b32 v{S[aa][2*hp+1]}, s63, v{36+2*aa+hp}")
        if rnd == 0:
            for aa in range(2):
                for h in range(4): a(f"v_mul_f32 v{S[aa][h]}, s68, v{S[aa][h]}")
    for h in range(4): a(f"v_max_f32 v{40+h}, v{S[0][h]}, v{S[1][h]}")
    allreduce("v_max_f32", [40, 41, 42, 43], [44, 45, 46, 47])
    for aa in range(2):
        for h in range(4): a(f"v_sub_f32 v{S[aa][h]}, v{S[aa][h]}, v{40+h}")
    for aa in range(2):
        for h in range(4): a(f"v_mul_f32 v{S[aa][h]}, s69, v{S[aa][h]}")
    for aa in range(2):
        for h in range(4): a(f"v_exp_f32 v{S[aa][h]}, v{S[aa][h]}")
    a("s_nop 0")
    for h in range(4): a(f"v_add_f32 v{52+h}, v{S[0][h]}, v{S[1][h]}")
    allreduce("v_add_f32", [52, 53, 54, 55], [44, 45, 46, 47])
    for h in range(4):
        a(f"v_mov_b32 v{56+2*h}, v{40+h}"); a(f"v_mov_b32 v{57+2*h}, v{52+h}")
    a("s_lshl_b32 s10, s11, 5"); a(f"s_add_u32 s10, s10, {L_MLB}")
    a("v_mov_b32 v10, s10")
    a("ds_write_b128 v10, v[56:59]")
    a("ds_write_b128 v10, v[60:63] offset:16")
    setflag(F_ML)
    a("v_lshlrev_b32 v10, 3, v2"); a(f"v_add_u32 v10, {L_MLB}, v10")
    a("v_lshrrev_b32 v9, 5, v1"); a("v_lshlrev_b32 v9, 8, v9")
    a("v_and_b32 v44, 3, v1"); a("v_lshlrev_b32 v44, 4, v44"); a("v_add_u32 v9, v9, v44")
    a("v_and_b32 v44, 31, v1"); a("v_lshrrev_b32 v44, 2, v44"); a("v_lshlrev_b32 v44, 1, v44"); a("v_add_u32 v9, v9, v44")
    a("s_lshl_b32 s10, s11, 10"); a(f"s_add_u32 s10, s10, {L_PB}"); a("v_add_u32 v9, s10, v9")
    wait_flags4(F_ML, 44)
    a("ds_read_b64 v[192:193], v10")
    a("s_waitcnt lgkmcnt(0)")
    a("v_mov_b32 v194, v192")
    a("s_nop 1")
    a("v_max_f32_dpp v194, v194, v194 row_ror:4 row_mask:0xf bank_mask:0xf")
    a("s_nop 1")
    a("v_max_f32_dpp v194, v194, v194 row_ror:8 row_mask:0xf bank_mask:0xf")
    a("v_sub_f32 v195, v192, v194"); a("v_mul_f32 v195, s69, v195"); a("v_exp_f32 v195, v195"); a("s_nop 0")
    a("v_mul_f32 v196, v193, v195")
    a("s_nop 1")
    a("v_add_f32_dpp v196, v196, v196 row_ror:4 row_mask:0xf bank_mask:0xf")
    a("s_nop 1")
    a("v_add_f32_dpp v196, v196, v196 row_ror:8 row_mask:0xf bank_mask:0xf")
    a("v_rcp_f32 v197, v196"); a("s_nop 0")
    a("v_mul_f32 v197, v197, v195")
    a("s_lshl_b32 s10, s11, 2")
    for h in range(4):
        a(f"s_add_u32 s12, s10, {h}")
        a(f"v_readlane_b32 s{72+h}, v197, s12")
    a("v_mov_b32 v56, v194"); a("v_mov_b32 v57, s8"); a("v_mov_b32 v58, v196"); a("v_mov_b32 v59, s8")
    for aa in range(2):
        for h in range(4): a(f"v_mul_f32 v{S[aa][h]}, s{72+h}, v{S[aa][h]}")
    for aa in range(2):
        for hp in range(2): a(f"v_cvt_pk_bf16_f32 v{36+2*aa+hp}, v{S[aa][2*hp]}, v{S[aa][2*hp+1]}")
    for aa in range(2):
        for hp in range(2):
            a(f"ds_write_b16 v9, v{36+2*aa+hp} offset:{aa*512 + (2*hp)*64}")
            a(f"ds_write_b16_d16_hi v9, v{36+2*aa+hp} offset:{aa*512 + (2*hp+1)*64}")
    setflag(F_P)
    a("s_lshl_b32 s10, s70, 3"); a("s_add_u32 s10, s10, s6"); a("s_lshl_b32 s10, s10, 6")
    a("s_lshl_b32 s12, s11, 4"); a("s_add_u32 s10, s10, s12"); a(f"s_add_u32 s10, s10, {WS_ML}")
    a("s_lshl_b64 s[12:13], 1, s11")
    a("s_mov_b64 exec, s[12:13]")
    a("buffer_store_dwordx4 v[56:59], v6, s[56:59], s10 offen sc1")
    a("s_mov_b64 exec, -1")
    stamp(4)
    role_branch("L_kA", "L_kB", None)

    a.label("L_kA")
    a("s_mov_b32 s72, s85")
    a("v_lshrrev_b32 v22, 1, v2"); a("v_xor_b32 v22, v22, v3"); a("v_lshlrev_b32 v22, 5, v22")
    a("v_lshlrev_b32 v23, 10, v3"); a("v_add_u32 v22, v22, v23"); a("v_and_b32 v23, 1, v1"); a("v_lshlrev_b32 v23, 4, v23"); a("v_add_u32 v22, v22, v23")
    a("v_xor_b32 v23, 0x80, v22")
    a("s_lshl_b32 s14, s84, 2"); a("s_add_u32 s14, s14, s72"); a("s_lshl_b32 s14, s14, 17")
    a("s_lshl_b32 s13, s11, 15"); a("s_add_u32 s14, s14, s13"); a("s_lshl_b32 s13, s86, 8"); a("s_add_u32 s14, s14, s13")
    a("s_lshl_b32 s15, s11, 13")
    if L_W: a(f"s_add_u32 s15, s15, {L_W}")
    a("s_cmp_lg_u32 s3, 0"); a("s_cbranch_scc1 L_kA_dma")
    a("v_lshrrev_b32 v10, 3, v1"); a("v_and_b32 v10, 3, v10"); a("v_lshlrev_b32 v10, 12, v10"); a("v_and_b32 v9, 7, v1"); a("v_lshlrev_b32 v9, 6, v9"); a("v_add_u32 v10, v10, v9")
    a("s_lshl_b32 s12, s84, 9"); a("s_lshl_b32 s10, s72, 4"); a("s_add_u32 s10, s10, s12"); a(f"s_add_u32 s66, s10, {WS_ML}")
    a("s_mov_b32 s67, 0")
    Lm = lab("mg"); a.label(Lm)
    a(f"s_sleep {mlsleep}")
    a("buffer_load_dwordx4 v[192:195], v10, s[56:59], s66 offen sc1")
    a("s_waitcnt vmcnt(0)")
    tagcheck([193, 195], 40, 44, Lm, sleep=0)
    def red8(op, r, t):
        for mod in ("quad_perm:[1,0,3,2]", "quad_perm:[2,3,0,1]", "row_half_mirror"):
            a("s_nop 1")
            a(f"{op}_dpp v{r}, v{r}, v{r} {mod} row_mask:0xf bank_mask:0xf")
    a("v_mov_b32 v40, v192")
    red8("v_max_f32", 40, 41)
    a("v_sub_f32 v41, v192, v40"); a("v_mul_f32 v41, s69, v41"); a("v_exp_f32 v41, v41"); a("s_nop 0")
    a("v_mul_f32 v41, v41, v194")
    a("v_mov_b32 v42, v41")
    red8("v_add_f32", 42, 43)
    a("v_rcp_f32 v42, v42"); a("s_nop 0")
    a("v_mul_f32 v41, v41, v42")
    a("v_and_b32 v9, 31, v1"); a("v_lshlrev_b32 v9, 2, v9"); a(f"v_add_u32 v9, {L_WR}, v9")
    a("ds_write_b32 v9, v41")
    setflag(F_WR)
    a.label("L_kA_dma")
    a("s_setprio 0")
    for i in range(8):
        a("s_mov_b32 m0, s15"); a("s_add_u32 s15, s15, 1024")
        if not no_w: a(f"buffer_load_dwordx4 v{22 + ((i>>1)&1)}, s[32:35], s14 offen{NT} lds")
        a("s_add_u32 s14, s14, 4096")
    a("s_branch L_roleA")

    a.label("L_kB")
    a("s_setprio 0")
    a("v_lshrrev_b32 v22, 2, v1"); a("v_mul_u32_u24 v22, 3584, v22")
    a("v_lshrrev_b32 v23, 1, v1"); a("v_and_b32 v23, 1, v23"); a("v_lshrrev_b32 v24, 5, v1"); a("v_xor_b32 v23, v23, v24"); a("v_lshlrev_b32 v23, 5, v23"); a("v_add_u32 v22, v22, v23")
    a("v_and_b32 v23, 1, v1"); a("v_lshlrev_b32 v23, 4, v23"); a("v_add_u32 v22, v22, v23")
    a(f"s_mul_i32 s12, s11, {128*3584}"); a("s_lshl_b32 s13, s9, 6"); a("s_add_u32 s12, s12, s13")
    a("s_lshl_b32 s13, s11, 13")
    if L_W: a(f"s_add_u32 s13, s13, {L_W}")
    a("s_and_b32 s10, s11, 1"); a("s_lshl_b32 s10, s10, 7"); a("v_xor_b32 v24, s10, v14")
    a("v_xor_b32 v25, 32, v24"); a("v_xor_b32 v26, 64, v24"); a("v_xor_b32 v27, 0x60, v24")
    a("s_lshl_b32 s14, s9, 15"); a("s_lshl_b32 s15, s11, 13"); a("s_add_u32 s14, s14, s15"); a(f"s_add_u32 s15, s15, {L_W2}")
    wait_flags4(F_O, 44, sleep=2)
    for i in range(8):
        a("s_mov_b32 m0, s13"); a("s_add_u32 s13, s13, 1024")
        if not no_w: a(f"buffer_load_dwordx4 v22, s[36:39], s12 offen{NT} lds")
        a(f"s_add_u32 s12, s12, {16*3584}")
    for i in range(8):
        a("s_mov_b32 m0, s15"); a("s_add_u32 s15, s15, 1024")
        if not no_w: a(f"buffer_load_dwordx4 v{24 + (i&3)}, s[44:47], s14 offen{NT} lds")
        a("s_add_u32 s14, s14, 1024")
    a("s_waitcnt vmcnt(0)")
    setflag(F_W)
    stamp(5)
    a("s_branch L_roleB")

    a.label("L_roleA")
    a("s_lshr_b32 s71, s3, 2")
    a("s_mov_b32 s72, s85")
    a("s_mov_b32 s73, s86")
    a("v_lshrrev_b32 v21, 3, v2"); a("v_lshlrev_b32 v21, 17, v21"); a("v_and_b32 v9, 7, v2"); a("v_lshlrev_b32 v9, 11, v9"); a("v_add_u32 v21, v21, v9")
    a("v_lshlrev_b32 v9, 5, v3"); a("v_add_u32 v21, v21, v9")
    a("s_lshl_b32 s10, s71, 18"); a("s_lshl_b32 s12, s84, 14"); a("s_add_u32 s10, s10, s12"); a("s_lshl_b32 s12, s72, 9"); a("s_add_u32 s10, s10, s12")
    a("s_lshl_b32 s12, s11, 7"); a("s_add_u32 s10, s10, s12"); a(f"s_add_u32 s75, s10, {WS_OP}")
    a("s_cmp_lt_u32 s3, 4"); a("s_cbranch_scc1 L_A_common")
    a("buffer_load_dwordx4 v[192:195], v21, s[56:59], s75 offen sc1")
    a("buffer_load_dwordx4 v[196:199], v21, s[56:59], s75 offen offset:16 sc1")
    a.label("L_A_common")
    a("v_lshrrev_b32 v9, 2, v2"); a("v_lshlrev_b32 v10, 3, v3"); a("v_add_u32 v10, v10, v9"); a("v_lshlrev_b32 v10, 8, v10")
    a("v_and_b32 v44, 3, v2"); a("v_lshlrev_b32 v44, 3, v44"); a("v_add_u32 v10, v10, v44")
    a("v_and_b32 v44, 1, v3"); a("v_lshlrev_b32 v44, 2, v44"); a("v_or_b32 v44, v44, v9"); a("v_lshlrev_b32 v44, 5, v44"); a("v_add_u32 v10, v10, v44")
    a("s_lshl_b32 s10, s11, 13")
    if L_W: a(f"s_add_u32 s10, s10, {L_W}")
    a("v_add_u32 v24, s10, v10")
    for nt in range(1, 8): a(f"v_xor_b32 v{24+nt}, {nt*32}, v24")
    a("v_lshrrev_b32 v9, 1, v3"); a("v_lshlrev_b32 v9, 9, v9"); a("v_and_b32 v44, 1, v3"); a("v_lshlrev_b32 v44, 6, v44"); a("v_add_u32 v9, v9, v44")
    a("v_lshlrev_b32 v44, 2, v2"); a("v_add_u32 v9, v9, v44")
    a("s_lshl_b32 s10, s11, 11"); a("s_lshl_b32 s12, s71, 10"); a("s_add_u32 s10, s10, s12"); a(f"s_add_u32 s10, s10, {L_R1}"); a("v_add_u32 v60, s10, v9")
    a("s_lshl_b32 s10, s3, 8"); a(f"s_add_u32 s10, s10, {L_R1}"); a("v_lshlrev_b32 v9, 2, v1"); a("v_add_u32 v61, s10, v9")
    a("s_lshr_b32 s10, s3, 1"); a("s_lshl_b32 s10, s10, 5"); a("s_lshl_b32 s12, s84, 2"); a("s_add_u32 s10, s10, s12"); a("s_add_u32 s10, s10, s72"); a("s_lshl_b32 s10, s10, 12")
    a("s_lshl_b32 s12, s73, 10"); a("s_add_u32 s10, s10, s12"); a("s_and_b32 s12, s3, 1"); a("s_lshl_b32 s12, s12, 9"); a("s_add_u32 s10, s10, s12"); a(f"s_add_u32 s74, s10, {WS_HP}")
    a("v_mov_b32 v63, s8")
    a("s_mov_b32 s67, 0")
    a("v_lshlrev_b32 v62, 4, v3"); a("s_lshl_b32 s10, s71, 6"); a(f"s_add_u32 s10, s10, {L_WR}"); a("v_add_u32 v62, s10, v62")
    def wr_read():
        L = lab("wr"); a.label(L)
        a(f"ds_read_b32 v40, v7 offset:{F_WR}")
        a("s_waitcnt lgkmcnt(0)")
        a("v_cmp_ne_u32 vcc, 1, v40")
        a(f"s_cbranch_vccnz {L}")
        a("ds_read_b128 v[48:51], v62")
    a("s_cmp_lt_u32 s3, 4"); a("s_cbranch_scc1 L_A_k")
    wait_flag1(F_W, 40)
    for nt in range(8):
        a(f"ds_read_b64_tr_b16 v[{64+4*nt}:{65+4*nt}], v{24+nt}")
        a(f"ds_read_b64_tr_b16 v[{66+4*nt}:{67+4*nt}], v{24+nt} offset:1024")
        if nt == 3: a("s_waitcnt lgkmcnt(0)")
    wr_read()
    Lo = lab("og"); Lo2 = lab("og2")
    stamp(13)
    a(f"s_branch {Lo2}")
    a.label("L_A_k")
    a("s_waitcnt vmcnt(0)")
    setflag(F_W)
    stamp(5)
    a("s_setprio 3")
    for nt in range(8):
        a(f"ds_read_b64_tr_b16 v[{64+4*nt}:{65+4*nt}], v{24+nt}")
        a(f"ds_read_b64_tr_b16 v[{66+4*nt}:{67+4*nt}], v{24+nt} offset:1024")
        if nt == 3: a("s_waitcnt lgkmcnt(0)")
    wr_read()
    wait_flags4(F_O, 40, sleep=1)
    stamp(13)
    a.label(Lo)
    a("buffer_load_dwordx4 v[192:195], v21, s[56:59], s75 offen sc1")
    a("buffer_load_dwordx4 v[196:199], v21, s[56:59], s75 offen offset:16 sc1")
    a.label(Lo2)
    a("s_waitcnt vmcnt(0) lgkmcnt(0)")
    tagcheck([193, 195, 197, 199], 40, 44, Lo, sleep=tsleep)
    stamp(8)
    a("v_mov_b32 v193, v194"); a("v_mov_b32 v194, v196"); a("v_mov_b32 v195, v198")
    a("s_nop 1")
    for nt in range(8):
        a(f"v_mfma_f32_16x16x32_bf16 v[{96+4*nt}:{99+4*nt}], v[192:195], v[{64+4*nt}:{67+4*nt}], 0")
    a("s_nop 0")
    for r in range(4):
        for nt in range(8):
            if r == 0: a(f"v_mul_f32 v{128+nt}, v48, v{96+4*nt}")
            else: a(f"v_fmac_f32 v{128+nt}, v{48+r}, v{96+4*nt+r}")
    for p in range(4): a(f"v_permlane16_swap_b32 v{128+2*p}, v{129+2*p}") if p else (a("s_nop 0"), a(f"v_permlane16_swap_b32 v128, v129"))
    for p in range(4): a(f"v_add_f32 v{128+2*p}, v{128+2*p}, v{129+2*p}")
    stamp(10)
    for p in range(4): a(f"ds_write_b32 v60, v{128+2*p} offset:{p*128}")
    a("s_waitcnt lgkmcnt(0)")
    a("s_barrier")
    stamp(11)
    for kt in range(4): a(f"ds_read_b32 v{40+kt}, v61 offset:{kt*2048}")
    a("s_waitcnt lgkmcnt(0)")
    a("v_add_f32 v40, v40, v41"); a("v_add_f32 v42, v42, v43"); a("v_add_f32 v62, v40, v42")
    a("buffer_store_dwordx2 v[62:63], v13, s[56:59], s74 offen sc1")
    stamp(9)
    a("s_branch L_endrole")

    a.label("L_roleB")
    a("s_setprio 3")
    a("s_add_u32 s96, s8, 1")
    a("v_and_b32 v10, 31, v1"); a("v_lshlrev_b32 v10, 1, v10"); a("s_lshl_b32 s10, s9, 6")
    a("buffer_load_ushort v16, v10, s[40:43], s10 offen")
    a("v_lshrrev_b32 v9, 2, v2"); a("v_lshlrev_b32 v10, 3, v3"); a("v_add_u32 v9, v10, v9")
    a("v_and_b32 v44, 3, v2"); a("v_lshlrev_b32 v44, 3, v44")
    a("v_lshlrev_b32 v10, 6, v9"); a("v_add_u32 v10, v10, v44"); a("v_and_b32 v45, 1, v3"); a("v_lshlrev_b32 v46, 5, v45"); a("v_add_u32 v10, v10, v46")
    a("s_lshl_b32 s10, s3, 12")
    if L_W: a(f"s_add_u32 s10, s10, {L_W}")
    a("v_add_u32 v52, s10, v10"); a("v_xor_b32 v53, 32, v52")
    a("v_lshlrev_b32 v10, 10, v9"); a("v_add_u32 v10, v10, v44")
    a("v_lshrrev_b32 v46, 2, v2"); a("v_lshlrev_b32 v45, 2, v45"); a("v_or_b32 v46, v46, v45"); a("v_lshlrev_b32 v46, 5, v46"); a("v_add_u32 v10, v10, v46")
    a("s_lshl_b32 s10, s3, 7"); a("v_xor_b32 v10, s10, v10"); a(f"v_add_u32 v54, {L_W2}, v10")
    for q in range(1, 4): a(f"v_xor_b32 v{54+q}, {q*32}, v54")
    a("v_and_b32 v58, 3, v2"); a("v_lshlrev_b32 v58, 10, v58"); a("v_lshlrev_b32 v9, 4, v3"); a("v_add_u32 v58, v58, v9")
    a("s_lshl_b32 s10, s3, 7"); a(f"s_add_u32 s10, s10, {L_YB}"); a("v_add_u32 v58, s10, v58")
    a("v_lshlrev_b32 v59, 4, v2"); a("s_lshl_b32 s10, s3, 9"); a(f"s_add_u32 s10, s10, {L_T1}"); a("v_add_u32 v59, s10, v59")
    a("v_and_b32 v60, 31, v1"); a("v_lshlrev_b32 v60, 4, v60"); a("v_lshrrev_b32 v9, 5, v1"); a("v_lshlrev_b32 v9, 11, v9"); a("v_add_u32 v60, v60, v9"); a(f"v_add_u32 v60, {L_T1}, v60")
    a("v_and_b32 v61, 31, v1"); a("v_lshlrev_b32 v61, 1, v61"); a("v_lshrrev_b32 v9, 5, v1"); a("v_lshlrev_b32 v9, 7, v9"); a("v_add_u32 v61, v61, v9")
    a("s_lshl_b32 s10, s3, 8"); a(f"s_add_u32 s10, s10, {L_GB}"); a("v_add_u32 v61, s10, v61")
    a("v_and_b32 v62, 3, v2"); a("v_lshlrev_b32 v62, 6, v62"); a("v_lshlrev_b32 v9, 4, v3"); a("v_add_u32 v62, v62, v9"); a("v_add_u32 v62, s10, v62")
    a("s_lshl_b32 s10, s9, 12"); a("s_lshl_b32 s12, s3, 9"); a("s_add_u32 s10, s10, s12"); a(f"s_add_u32 s72, s10, {WS_GP}")
    for bb in range(1, 4): a(f"s_add_u32 s{72+bb}, s72, {bb*56*4096}")
    for r in range(4): a(f"v_mov_b32 v{113+2*r}, s96")
    a("v_mov_b32 v46, 0x3d372713")
    a("s_lshl_b32 s10, s3, 10"); a(f"s_add_u32 s10, s10, {L_YB}"); a("v_add_u32 v63, s10, v14")
    a("v_lshlrev_b32 v10, 5, v1"); a("s_lshl_b32 s10, s3, 11"); a("s_lshl_b32 s12, s4, 13"); a("s_add_u32 s10, s10, s12"); a(f"s_add_u32 s66, s10, {WS_H}")
    wait_flags4(F_W, 40, sleep=1)
    for kt in range(2):
        for nt in range(2):
            r = 64 + (kt*2+nt)*4
            a(f"ds_read_b64_tr_b16 v[{r}:{r+1}], v{52+nt} offset:{kt*2048}")
            a(f"ds_read_b64_tr_b16 v[{r+2}:{r+3}], v{52+nt} offset:{kt*2048+256}")
    for q in range(4):
        r = 80 + 4*q
        a(f"ds_read_b64_tr_b16 v[{r}:{r+1}], v{54+q}")
        a(f"ds_read_b64_tr_b16 v[{r+2}:{r+3}], v{54+q} offset:4096")
    a("s_waitcnt vmcnt(0) lgkmcnt(0)")
    a("v_lshlrev_b32 v16, 16, v16")
    a("s_cmp_ge_u32 s3, 4"); a("s_cbranch_scc1 L_B_ln_done")
    a("s_mov_b32 s67, 0")
    Lh = lab("hg"); a.label(Lh)
    a("buffer_load_dwordx4 v[192:195], v10, s[56:59], s66 offen sc1")
    a("buffer_load_dwordx4 v[196:199], v10, s[56:59], s66 offen offset:16 sc1")
    a("s_waitcnt vmcnt(0)")
    tagcheck([193, 195, 197, 199], 40, 44, Lh, sleep=tsleep)
    stamp(10)
    for i in range(4):
        a(f"v_lshlrev_b32 v{20+2*i}, 16, v{192+2*i}"); a(f"v_and_b32 v{21+2*i}, s63, v{192+2*i}")
    layernorm8(20, 32)
    a("ds_write_b128 v63, v[40:43]")
    a("s_waitcnt lgkmcnt(0)")
    stamp(12)
    a.label("L_B_ln_done")
    a("s_barrier")
    for kt in range(2): a(f"ds_read_b128 v[{192+4*kt}:{195+4*kt}], v58 offset:{kt*64}")
    a("s_waitcnt lgkmcnt(0)")
    for kt in range(2):
        for nt in range(2):
            r = 64 + (kt*2+nt)*4
            c = "0" if kt == 0 else f"v[{96+4*nt}:{99+4*nt}]"
            a(f"v_mfma_f32_16x16x32_bf16 v[{96+4*nt}:{99+4*nt}], v[{192+4*kt}:{195+4*kt}], v[{r}:{r+3}], {c}")
    a("s_nop 6")
    a("ds_write_b128 v59, v[96:99]")
    a("s_nop 0")
    a("ds_write_b128 v59, v[100:103] offset:256")
    a("s_waitcnt lgkmcnt(0)")
    stamp(13)
    a("s_barrier")
    stamp(14)
    for i in range(4): a(f"ds_read_b128 v[{192+4*i}:{195+4*i}], v60 offset:{i*512}")
    a("s_waitcnt lgkmcnt(0)")
    for c in range(4):
        a(f"v_add_f32 v{192+c}, v{192+c}, v{196+c}"); a(f"v_add_f32 v{200+c}, v{200+c}, v{204+c}")
    for c in range(4): a(f"v_add_f32 v{192+c}, v{192+c}, v{200+c}")
    a("s_nop 0")
    a("v_permlane32_swap_b32 v192, v194"); a("v_permlane32_swap_b32 v193, v195")
    a("v_add_f32 v40, v192, v194"); a("v_add_f32 v41, v193, v195")
    a("v_cvt_pk_bf16_f32 v42, v40, v41"); a("v_lshlrev_b32 v40, 16, v42"); a("v_and_b32 v41, s63, v42")
    a("v_add_f32 v40, v40, v16"); a("v_add_f32 v41, v41, v16")
    a("v_cvt_pk_bf16_f32 v42, v40, v41"); a("v_lshlrev_b32 v40, 16, v42"); a("v_and_b32 v41, s63, v42")
    for c in range(2): a(f"v_mul_f32 v{42+c}, v{40+c}, v{40+c}")
    for c in range(2): a(f"v_fma_f32 v{42+c}, v{42+c}, v46, 1.0")
    for c in range(2): a(f"v_mul_f32 v{42+c}, v{42+c}, v{40+c}")
    for c in range(2): a(f"v_mul_f32 v{42+c}, 0xc0135761, v{42+c}")
    for c in range(2): a(f"v_exp_f32 v{42+c}, v{42+c}")
    a("s_nop 0")
    for c in range(2): a(f"v_add_f32 v{42+c}, 1.0, v{42+c}")
    for c in range(2): a(f"v_rcp_f32 v{42+c}, v{42+c}")
    a("s_nop 0")
    for c in range(2): a(f"v_mul_f32 v{40+c}, v{40+c}, v{42+c}")
    a("v_cvt_pk_bf16_f32 v40, v40, v41")
    stamp(8)
    a("ds_write_b16 v61, v40"); a("ds_write_b16_d16_hi v61, v40 offset:64")
    a("ds_read_b128 v[192:195], v62")
    a("s_waitcnt lgkmcnt(0)")
    for q in range(4):
        a(f"v_mfma_f32_16x16x32_bf16 v[{96+4*q}:{99+4*q}], v[192:195], v[{80+4*q}:{83+4*q}], 0")
    a("s_nop 4")
    for r in range(4): a(f"v_mov_b32 v{112+2*r}, v{96+r}")
    for q in range(1, 4):
        for r in range(4):
            a(f"v_mov_b32_dpp v{112+2*r}, v{96+4*q+r} quad_perm:[0,1,2,3] row_mask:{hex(1<<q)} bank_mask:0xf")
    for r in range(4): a(f"buffer_store_dwordx2 v[{112+2*r}:{113+2*r}], v13, s[56:59], s{72+r} offen sc1")
    stamp(11)
    a("s_branch L_endrole")

    a.label("L_roleC")
    a("s_cmp_lg_u32 s3, 7"); a("s_cbranch_scc1 L_fin")
    a("s_setprio 3")
    a("v_lshlrev_b32 v10, 12, v3"); a("v_lshlrev_b32 v9, 4, v2"); a("v_add_u32 v18, v10, v9")
    a("s_lshl_b32 s10, s76, 17"); a("s_lshl_b32 s12, s62, 3"); a("s_add_u32 s10, s10, s12"); a(f"s_add_u32 s80, s10, {WS_HP}")
    for t in range(1, 8): a(f"s_add_u32 s{80+t}, s80, {t*16384}")
    a("s_lshl_b32 s10, s76, 11"); a("s_lshl_b32 s12, s62, 2"); a("s_add_u32 s10, s10, s12"); a(f"s_add_u32 s72, s10, {WS_H}"); a("s_add_u32 s74, s72, 32768")
    a("v_lshlrev_b32 v17, 3, v2"); a("v_lshlrev_b32 v9, 13, v3"); a("v_add_u32 v17, v17, v9")
    a("s_mov_b32 s67, 0")
    Ls = lab("sg"); a.label(Ls)
    for t in range(8): a(f"buffer_load_dwordx4 v[{64+4*t}:{67+4*t}], v18, s[56:59], s{80+t} offen sc1")
    a("s_waitcnt vmcnt(0)")
    tagcheck([65+2*i for i in range(16)], 40, 44, Ls, sleep=tsleep)
    stamp(12)
    def tree2(n):
        ra = [64 + 4*t for t in range(n)]
        while len(ra) > 1:
            nxt = []
            for i in range(0, len(ra) - 1, 2):
                a(f"v_add_f32 v{ra[i]}, v{ra[i]}, v{ra[i+1]}"); a(f"v_add_f32 v{ra[i]+2}, v{ra[i]+2}, v{ra[i+1]+2}"); nxt.append(ra[i])
            if len(ra) % 2: nxt.append(ra[-1])
            ra = nxt
    def xrow():
        a("s_nop 1")
        a("v_permlane32_swap_b32 v64, v66")
        a("v_add_f32 v64, v64, v66")
        a("v_mov_b32 v66, v64"); a("s_nop 1")
        a("v_permlane16_swap_b32 v64, v66")
        a("v_add_f32 v64, v64, v66")
        a("v_mov_b32 v66, v64"); a("s_nop 1")
        a("v_permlane32_swap_b32 v64, v66")
    tree2(8)
    xrow()
    a("v_cvt_pk_bf16_f32 v40, v64, v66")
    a("v_lshlrev_b32 v43, 16, v12"); a("v_and_b32 v44, s63, v12")
    a("v_lshlrev_b32 v41, 16, v40"); a("v_and_b32 v42, s63, v40")
    a("v_add_f32 v41, v41, v43"); a("v_add_f32 v42, v42, v44")
    a("v_cvt_pk_bf16_f32 v40, v41, v42")
    a("v_mov_b32 v41, v15")
    a("buffer_store_dwordx2 v[40:41], v17, s[56:59], s72 offen sc1")
    a("buffer_store_dwordx2 v[40:41], v17, s[56:59], s74 offen sc1")
    stamp(13)
    a.label("L_endrole")
    a("s_cmp_lg_u32 s3, 7"); a("s_cbranch_scc1 L_fin")
    a("s_setprio 3")
    a("s_add_u32 s96, s8, 1")
    a("v_lshrrev_b32 v10, 2, v1"); a("v_lshlrev_b32 v10, 12, v10"); a("v_and_b32 v9, 3, v1"); a("v_lshlrev_b32 v17, 4, v9"); a("v_add_u32 v18, v10, v17")
    a(f"s_mul_i32 s10, s5, {56*4096}"); a("s_lshl_b32 s12, s95, 3"); a("s_add_u32 s10, s10, s12"); a(f"s_add_u32 s80, s10, {WS_GP}")
    for t in range(1, 4): a(f"s_add_u32 s{80+t}, s80, {t*65536}")
    a("s_lshl_b32 s10, s4, 13"); a("s_lshl_b32 s12, s5, 11"); a("s_add_u32 s10, s10, s12"); a("s_lshl_b32 s12, s95, 2"); a("s_add_u32 s10, s10, s12"); a(f"s_add_u32 s84, s10, {WS_H}")
    a("v_lshlrev_b32 v19, 3, v9")
    a("s_lshl_b32 s10, s5, 10"); a("s_lshl_b32 s12, s95, 1"); a("s_add_u32 s73, s10, s12")
    a("v_lshlrev_b32 v16, 2, v9")
    a("v_mov_b32 v76, 0"); a("v_mov_b32 v77, s96"); a("v_mov_b32 v78, 0"); a("v_mov_b32 v79, s96")
    a("s_mov_b32 s67, 0")
    Lh4 = lab("h4"); a.label(Lh4)
    a("buffer_load_dwordx2 v[20:21], v19, s[56:59], s84 offen sc1")
    a("s_waitcnt vmcnt(0)")
    tagcheck([21], 40, 44, Lh4, sleep=4)
    a("v_lshlrev_b32 v21, 16, v20"); a("v_and_b32 v22, s63, v20")
    a("v_lshlrev_b32 v23, 16, v8"); a("v_and_b32 v24, s63, v8")
    a("s_mov_b32 s67, 0")
    Lg = lab("gg"); a.label(Lg)
    for t in range(3): a(f"buffer_load_dwordx4 v[{64+4*t}:{67+4*t}], v18, s[56:59], s{80+t} offen sc1")
    a("s_mov_b64 s[98:99], exec")
    a("s_mov_b32 exec_hi, 0")
    Lx = lab("x"); a(f"s_cbranch_execz {Lx}")
    a("buffer_load_dwordx4 v[76:79], v18, s[56:59], s83 offen sc1")
    a.label(Lx)
    a("s_mov_b64 exec, s[98:99]")
    a("s_waitcnt vmcnt(0)")
    tagcheck([65+2*i for i in range(8)], 40, 44, Lg, sleep=tsleep, tag="s96")
    stamp(14)
    a("v_add_f32 v64, v64, v68"); a("v_add_f32 v66, v66, v70"); a("v_add_f32 v72, v72, v76"); a("v_add_f32 v74, v74, v78")
    a("v_add_f32 v64, v64, v72"); a("v_add_f32 v66, v66, v74")
    for rot in (4, 8):
        a("s_nop 0")
        a(f"v_add_f32_dpp v64, v64, v64 row_ror:{rot} row_mask:0xf bank_mask:0xf")
        a(f"v_add_f32_dpp v66, v66, v66 row_ror:{rot} row_mask:0xf bank_mask:0xf")
    a("s_nop 1")
    a("v_permlane32_swap_b32 v64, v66")
    a("v_add_f32 v64, v64, v66")
    a("v_mov_b32 v66, v64"); a("s_nop 1")
    a("v_permlane16_swap_b32 v64, v66")
    a("v_add_f32 v64, v64, v66")
    a("v_mov_b32 v66, v64"); a("s_nop 1")
    a("v_permlane32_swap_b32 v64, v66")
    a("v_cvt_pk_bf16_f32 v40, v64, v66")
    a("v_lshlrev_b32 v41, 16, v40"); a("v_and_b32 v42, s63, v40")
    a("v_add_f32 v41, v41, v23"); a("v_add_f32 v42, v42, v24")
    a("v_cvt_pk_bf16_f32 v40, v41, v42")
    a("v_lshlrev_b32 v41, 16, v40"); a("v_and_b32 v42, s63, v40")
    a("v_add_f32 v41, v41, v21"); a("v_add_f32 v42, v42, v22")
    a("v_cvt_pk_bf16_f32 v40, v41, v42")
    a("s_mov_b64 exec, 0xf")
    a("buffer_store_dword v40, v16, s[52:55], s73 offen")
    a("s_mov_b64 exec, -1")
    a("s_cmp_lg_u32 s2, 0"); a("s_cbranch_scc1 L_fin")
    a("s_mov_b64 exec, 1")
    a("buffer_store_dword v15, v6, s[56:59], 0 offen sc1")
    a("s_mov_b64 exec, -1")
    a.label("L_fin")
    if stamps == "dbg":
        stamp(15)
        a("s_cmp_lg_u32 s3, 7"); a("s_cbranch_scc1 L_end")
        a("s_load_dwordx2 s[88:89], s[0:1], 88")
        a("s_waitcnt lgkmcnt(0)")
        a("s_mov_b32 s90, 256"); a("s_mov_b32 s91, 0x20000")
        a(f"v_not_b32 v{SB}, v{SB}")
        a("v_mov_b32 v44, 0")
        a("s_mov_b64 exec, 1")
        for k, idx in enumerate((0, 6, 1, 2, 4, 5, 14, 15)):
            a(f"buffer_atomic_umax v{SB+idx}, v44, s[88:91], 0 offen offset:{4*k}")
        a("s_mov_b64 exec, -1")
    elif stamps:
        stamp(15)
        a("s_lshl_b32 s10, s2, 3"); a("s_add_u32 s10, s10, s3"); a("s_lshl_b32 s10, s10, 6"); a(f"s_add_u32 s10, s10, {WS_STAMP}")
        a("v_mov_b32 v44, 0")
        a("s_mov_b64 exec, 1")
        for i in range(4): a(f"buffer_store_dwordx4 v[{SB+4*i}:{SB+3+4*i}], v44, s[56:59], s10 offen offset:{16*i}")
        a("s_mov_b64 exec, -1")
    a.label("L_end")
    a("s_endpgm")
    return a

HDR = """; Fused pre-LN GQA decode attention + channel-MLP block, single persistent launch (256 workgroups x 8 waves).
; @launch grid=(256,1,1) block=(512,1,1) lds={lds}
.amdgcn_target "amdgcn-amd-amdhsa--gfx950"
.text
.globl {name}_kernel
.p2align 8
.type {name}_kernel,@function
{name}_kernel:
"""
FTR = """
.section .rodata,"a"
.p2align 6
.amdhsa_kernel {name}_kernel
  .amdhsa_next_free_vgpr 256
  .amdhsa_next_free_sgpr 102
  .amdhsa_accum_offset 256
  .amdhsa_group_segment_fixed_size 0
  .amdhsa_kernarg_size 104
  .amdhsa_user_sgpr_count 2
  .amdhsa_user_sgpr_kernarg_segment_ptr 1
  .amdhsa_system_sgpr_workgroup_id_x 1
.end_amdhsa_kernel
"""
def build(path, **kw):
    a = gen(**kw)
    probs = check_hazards(a.lines)
    open(path, "w").write(HDR.format(name=NAME, lds=LDS_BYTES) + a.text() + FTR.format(name=NAME))
    return probs

if __name__ == "__main__":
    out = sys.argv[1] if len(sys.argv) > 1 else "k3.s"
    kw = {}
    for arg in sys.argv[2:]:
        if arg == "stamps": kw["stamps"] = True
        elif arg == "dbg": kw["stamps"] = "dbg"
        elif "=" in arg:
            k, v = arg.split("="); kw[k] = eval(v)
    probs = build(out, **kw)
    print("hazards:", len(probs))
```

```python
import sys
from asmlib import Asm, check_hazards

NAME = "sequential_preLN__gqa_block_cached__mixer_channel_mlp__decode"

WS_EPOCH = 0
WS_ML = 0x1000
WS_H  = 0x1E8000
WS_OP = 0x8000
WS_HP = 0x88000
WS_QB = 0x108000
WS_GP = 0x108000
WS_STAMP = 0x400000
L_W = 0
L_W2 = 32768
L_WQ = 65536
L_RED = 81920
L_R1 = 90112
L_YB = 98304
L_QPB = 102400
L_PB = 106496
L_T1 = 110592
L_GB = 114688
L_QL = 116736
L_FLAGS = 117760
L_MLB = 118016
L_WR = 118784
LDS_BYTES = 122880
F_Y, F_QP, F_Q, F_ML, F_P, F_W, F_O, F_WR = 0, 16, 32, 48, 64, 80, 96, 112

LOG2E = 0x3fb8aa3b
SCALE = 0x3db504f3
EPS = 0x3727c5ac
TAGC = 0x9E3779B9
POLL_MAX = 20000

def gen(stamps=False, psleep=2, tsleep=1, qearly=6, mlsleep=8, rot=True, no_w=False, no_pwait=False, no_q=False, khold=0, lanemask=True, NAE=25, NAL=7, delay=None):
    a = Asm()
    NT = " nt"
    uid = [0]
    def lab(p):
        uid[0] += 1
        return f"L_{p}_{uid[0]}"
    SB = 240
    def stamp(idx):
        if stamps:
            a("s_memrealtime s[78:79]")
            a("s_waitcnt lgkmcnt(0)")
            a(f"v_mov_b32 v{SB+idx}, s78")
    def allreduce(op, rs, tmps):
        k = len(rs)
        for rot in (8, 4, 2, 1):
            if k == 1: a("s_nop 1")
            elif k == 2: a("s_nop 0")
            for r in rs:
                a(f"{op}_dpp v{r}, v{r}, v{r} row_ror:{rot} row_mask:0xf bank_mask:0xf")
        for sw in ("v_permlane16_swap_b32", "v_permlane32_swap_b32"):
            for r, t in zip(rs, tmps): a(f"v_mov_b32 v{t}, v{r}")
            a("s_nop 1" if k == 1 else "s_nop 0")
            if k == 2: pass
            for r, t in zip(rs, tmps): a(f"{sw} v{r}, v{t}")
            for r, t in zip(rs, tmps): a(f"{op} v{r}, v{r}, v{t}")
    def rb(dst, src):
        a(f"v_cvt_pk_bf16_f32 v{dst}, v{src}, v{src}")
        a(f"v_lshlrev_b32 v{dst}, 16, v{dst}")
    def setflag(off): a(f"ds_write_b32 v11, v0 offset:{off}")
    def wait_flags4(off, tmp, sleep=0):
        L = lab("wf")
        a.label(L)
        if sleep: a(f"s_sleep {sleep}")
        a(f"ds_read_b128 v[{tmp}:{tmp+3}], v7 offset:{off}")
        a("s_waitcnt lgkmcnt(0)")
        a(f"v_and_b32 v{tmp}, v{tmp}, v{tmp+1}"); a(f"v_and_b32 v{tmp+2}, v{tmp+2}, v{tmp+3}")
        a(f"v_and_b32 v{tmp}, v{tmp}, v{tmp+2}")
        a(f"v_cmp_ne_u32 vcc, 1, v{tmp}")
        a(f"s_cbranch_vccnz {L}")
    def wait_flag1(off, tmp, sleep=0):
        L = lab("wf")
        a.label(L)
        if sleep: a(f"s_sleep {sleep}")
        a(f"ds_read_b32 v{tmp}, v11 offset:{off}")
        a("s_waitcnt lgkmcnt(0)")
        a(f"v_cmp_ne_u32 vcc, 1, v{tmp}")
        a(f"s_cbranch_vccnz {L}")
    def tagcheck(tagregs, acc, t1, retry_label, cnt=67, sleep=0, tag="s8"):
        first = True; i = 0
        while i < len(tagregs):
            if i + 1 < len(tagregs):
                a(f"v_xor_b32 v{t1}, {tag}, v{tagregs[i]}")
                if first:
                    a(f"v_xor_b32 v{acc}, {tag}, v{tagregs[i+1]}")
                    a(f"v_or_b32 v{acc}, v{acc}, v{t1}")
                else:
                    a(f"v_xor_b32 v{t1+1}, {tag}, v{tagregs[i+1]}")
                    a(f"v_or3_b32 v{acc}, v{acc}, v{t1}, v{t1+1}")
                i += 2
            else:
                if first: a(f"v_xor_b32 v{acc}, {tag}, v{tagregs[i]}")
                else:
                    a(f"v_xor_b32 v{t1}, {tag}, v{tagregs[i]}")
                    a(f"v_or_b32 v{acc}, v{acc}, v{t1}")
                i += 1
            first = False
        a(f"v_cmp_ne_u32 vcc, 0, v{acc}")
        done = lab("pd")
        a(f"s_cbranch_vccz {done}")
        if lanemask: a("s_mov_b64 exec, vcc")
        if sleep: a(f"s_sleep {sleep}")
        a(f"s_add_u32 s{cnt}, s{cnt}, 1")
        a(f"s_cmp_lt_u32 s{cnt}, {POLL_MAX}")
        a(f"s_cbranch_scc1 {retry_label}")
        a.label(done)
        if lanemask: a("s_mov_b64 exec, -1")
    def layernorm8(e, t):
        a(f"v_readfirstlane_b32 s12, v{e}")
        a("s_nop 1")
        for i in range(8): a(f"v_subrev_f32 v{t+4+(i&3)+ (0)}, s12, v{e+i}") if False else None
        a(f"v_subrev_f32 v{t+2}, s12, v{e}"); a(f"v_subrev_f32 v{t+3}, s12, v{e+1}")
        a(f"v_add_f32 v{t}, v{t+2}, v{t+3}"); a(f"v_mul_f32 v{t+1}, v{t+2}, v{t+2}"); a(f"v_fmac_f32 v{t+1}, v{t+3}, v{t+3}")
        for i in range(2, 8, 2):
            a(f"v_subrev_f32 v{t+2}, s12, v{e+i}"); a(f"v_subrev_f32 v{t+3}, s12, v{e+i+1}")
            a(f"v_add_f32 v{t}, v{t}, v{t+2}"); a(f"v_fmac_f32 v{t+1}, v{t+2}, v{t+2}")
            a(f"v_add_f32 v{t}, v{t}, v{t+3}"); a(f"v_fmac_f32 v{t+1}, v{t+3}, v{t+3}")
        allreduce("v_add_f32", [t, t+1], [t+2, t+3])
        a(f"v_mul_f32 v{t}, 0x3b000000, v{t}")
        a(f"v_mul_f32 v{t+1}, 0x3b000000, v{t+1}")
        a(f"v_fma_f32 v{t+1}, -v{t}, v{t}, v{t+1}")
        a(f"v_add_f32 v{t}, s12, v{t}")
        a(f"v_max_f32 v{t+1}, 0, v{t+1}")
        a(f"v_cvt_pk_bf16_f32 v{t+2}, v{t}, v{t+1}")
        a(f"v_and_b32 v{t+1}, s63, v{t+2}")
        a(f"v_lshlrev_b32 v{t}, 16, v{t+2}")
        a(f"v_add_f32 v{t+1}, {EPS}, v{t+1}")
        for i in range(4): a(f"v_sub_f32 v{e+i}, v{e+i}, v{t}")
        rb(t+1, t+1)
        a(f"v_sqrt_f32 v{t+1}, v{t+1}")
        for i in range(4, 8): a(f"v_sub_f32 v{e+i}, v{e+i}, v{t}")
        rb(t+1, t+1)
        a(f"v_rcp_f32 v{t+1}, v{t+1}")
        for i in range(4): a(f"v_cvt_pk_bf16_f32 v{t+8+i}, v{e+2*i}, v{e+2*i+1}")
        for i in range(4):
            a(f"v_lshlrev_b32 v{e+2*i}, 16, v{t+8+i}"); a(f"v_and_b32 v{e+2*i+1}, s63, v{t+8+i}")
        for i in range(8): a(f"v_mul_f32 v{e+i}, v{e+i}, v{t+1}")
        for i in range(4): a(f"v_cvt_pk_bf16_f32 v{t+8+i}, v{e+2*i}, v{e+2*i+1}")
    def kvstep():
        a("s_add_u32 s83, s83, 4096"); a("s_and_b32 s83, s83, 0x7fff"); a("s_add_u32 s65, s64, s83")
    def role_setup():
        NCE = 32 - NAE - 7; NCL = (64 - 4*NCE) // 4
        assert 4*NAE + 4*NAL == 128 and NAL + 7 + NCL <= 32 and NCE >= 0
        a("s_and_b32 s87, s4, 3")
        a("s_cmp_lt_u32 s4, 4")
        a(f"s_cselect_b32 s10, {NAE}, {NAL}")
        a(f"s_cselect_b32 s12, 0, {4*NAE}")
        a(f"s_cselect_b32 s13, {NCE}, {NCL}")
        a(f"s_cselect_b32 s14, 0, {4*NCE}")
        a("s_mul_i32 s15, s87, s10"); a("s_add_u32 s15, s15, s12"); a("s_add_u32 s15, s15, s7")
        a("s_sub_u32 s12, s7, s10")
        a("s_mul_i32 s9, s4, 7"); a("s_add_u32 s9, s9, s12")
        a("s_sub_u32 s76, s12, 7")
        a("s_mov_b32 s97, 3")
        a("s_cmp_lt_u32 s76, s13"); a("s_cselect_b32 s97, 2, s97")
        a("s_cmp_lt_u32 s12, 7"); a("s_cselect_b32 s97, 1, s97")
        a("s_cmp_lt_u32 s7, s10"); a("s_cselect_b32 s97, 0, s97")
        a("s_mul_i32 s13, s87, s13"); a("s_add_u32 s13, s13, s14"); a("s_add_u32 s13, s13, s76")
        a("s_lshr_b32 s84, s15, 4"); a("s_and_b32 s84, s84, 7")
        a("s_lshr_b32 s85, s15, 2"); a("s_and_b32 s85, s85, 3")
        a("s_and_b32 s86, s15, 3")
        a("s_lshr_b32 s76, s13, 4"); a("s_and_b32 s76, s76, 3")
        a("s_and_b32 s10, s13, 15"); a("s_lshl_b32 s62, s10, 5")
        a("s_mov_b32 s87, s13")
    def role_branch(la, lb, lc):
        a("s_cmp_eq_u32 s97, 0"); a(f"s_cbranch_scc1 {la}")
        a("s_cmp_eq_u32 s97, 1"); a(f"s_cbranch_scc1 {lb}")
        if lc: a("s_cmp_eq_u32 s97, 2"); a(f"s_cbranch_scc1 {lc}")
        a("s_branch L_endrole" if lc else "s_branch L_fin")
    def srd(sr, sz):
        a(f"s_mov_b32 s{sr+2}, {sz}"); a(f"s_mov_b32 s{sr+3}, 0x20000")
    SZ = {16: 4096, 20: 33554432, 24: 33554432, 28: 4194304, 32: 4194304, 36: 1835008, 40: 3584, 44: 1835008, 48: 1024, 52: 4096, 56: 268435456}

    if stamps: a("s_memrealtime s[78:79]")
    for (sr, off) in ((56, 96), (20, 8), (16, 0), (28, 24), (24, 16), (32, 32), (36, 48), (40, 56), (44, 64), (48, 72), (52, 80)):
        a(f"s_load_dwordx2 s[{sr}:{sr+1}], s[0:1], {off}")
    a("s_cmp_ge_u32 s2, 256")
    a("s_cbranch_scc1 L_end")
    a("v_lshrrev_b32 v4, 6, v0")
    a("v_and_b32 v1, 63, v0")
    a("v_readfirstlane_b32 s3, v4")
    a("v_and_b32 v2, 15, v1")
    a("v_lshrrev_b32 v3, 4, v1")
    a("s_and_b32 s4, s2, 7")
    a("s_lshr_b32 s7, s2, 3")
    a("s_lshr_b32 s5, s7, 3")
    a("s_and_b32 s6, s7, 7")
    if delay:
        if delay[0] >= 0:
            a(f"s_cmp_lg_u32 s4, {delay[0]}"); a("s_cbranch_scc1 L_nodelay")
        else:
            a(f"s_cmp_eq_u32 s4, {-delay[0]-1}"); a("s_cbranch_scc1 L_nodelay")
        a("s_memrealtime s[78:79]"); a("s_waitcnt lgkmcnt(0)"); a(f"s_add_u32 s77, s78, {delay[1]}")
        a.label("L_dl"); a("s_memrealtime s[78:79]"); a("s_waitcnt lgkmcnt(0)"); a("s_cmp_lt_u32 s78, s77"); a("s_cbranch_scc1 L_dl")
        a.label("L_nodelay")
    srd(56, SZ[56]); srd(20, SZ[20]); srd(16, SZ[16]); srd(28, SZ[28])
    a("s_and_b32 s11, s3, 3")
    a("s_lshl_b32 s70, s5, 3"); a("s_add_u32 s70, s70, s4")
    a("s_lshl_b32 s64, s70, 20"); a("s_lshl_b32 s10, s6, 17"); a("s_add_u32 s64, s64, s10")
    a("s_lshl_b32 s10, s11, 15"); a("s_add_u32 s64, s64, s10")
    a("s_lshl_b32 s83, s5, 13") if rot else a("s_mov_b32 s83, 0")
    a("s_add_u32 s65, s64, s83")
    a("v_mov_b32 v6, 0")
    a("v_lshlrev_b32 v14, 4, v1")
    a("s_cmp_ge_u32 s3, 4")
    a("s_cbranch_scc1 L_v1")
    a("v_lshlrev_b32 v47, 8, v2"); a("v_lshlrev_b32 v10, 4, v3"); a("v_add_u32 v47, v47, v10")
    a("s_lshl_b32 s10, s4, 2"); a("s_add_u32 s10, s10, s5"); a("s_lshl_b32 s10, s10, 14"); a("s_lshl_b32 s12, s11, 10"); a("s_add_u32 s10, s10, s12"); a(f"s_add_u32 s66, s10, {WS_QB}")
    for k in range(1, 4): a(f"s_add_u32 s{71+k}, s66, {k*4096}")
    a("s_setprio 2")
    a("s_waitcnt lgkmcnt(0)")
    a("buffer_load_dword v5, v6, s[56:59], 0 offen sc1")
    def qloads():
        for k in range(4):
            a(f"buffer_load_dwordx4 v[{16+4*k}:{19+4*k}], v14, s[56:59], s{66 if k == 0 else 71+k} offen sc1")
    for t in range(8):
        for i in range(4):
            r = 64 + 16*t + 4*i
            a(f"buffer_load_dwordx4 v[{r}:{r+3}], v47, s[20:23], s65 offen offset:{i*64}{NT}")
        if t < 7: kvstep()
        if t == 1:
            a("v_lshlrev_b32 v9, 2, v1"); a(f"v_add_u32 v9, {L_FLAGS}, v9"); a("ds_write_b32 v9, v6"); a("v_mov_b32 v0, 1")
            a("s_waitcnt lgkmcnt(0)"); a("s_barrier")
        if t == qearly - 1: qloads()
    a("s_branch L_k2")
    a.label("L_v1")
    a("v_lshrrev_b32 v10, 3, v1"); a("v_lshlrev_b32 v10, 13, v10"); a("v_and_b32 v9, 7, v1"); a("v_lshlrev_b32 v9, 4, v9"); a("v_add_u32 v10, v10, v9")
    a("s_lshl_b32 s13, s5, 20"); a("s_lshl_b32 s12, s11, 18"); a("s_add_u32 s13, s13, s12")
    a("s_lshl_b32 s12, s4, 10"); a("s_add_u32 s13, s13, s12"); a("s_lshl_b32 s12, s6, 7"); a("s_add_u32 s13, s13, s12")
    a("s_lshl_b32 s12, s11, 12"); a(f"s_add_u32 s12, s12, {L_WQ}")
    a("s_lshl_b32 s10, s11, 10")
    a("s_setprio 3")
    a("s_waitcnt lgkmcnt(0)")
    a("buffer_load_dword v5, v6, s[56:59], 0 offen sc1")
    a("buffer_load_dwordx4 v[16:19], v14, s[16:19], s10 offen")
    for i in range(4):
        a("s_mov_b32 m0, s12"); a("s_add_u32 s12, s12, 1024")
        a(f"buffer_load_dwordx4 v10, s[28:31], s13 offen{NT} lds"); a("s_add_u32 s13, s13, 0x10000")
    a("v_lshlrev_b32 v9, 2, v1"); a(f"v_add_u32 v9, {L_FLAGS}, v9"); a("ds_write_b32 v9, v6"); a("v_mov_b32 v0, 1")
    a("s_waitcnt lgkmcnt(0)"); a("s_barrier")

    if stamps:
        a("s_waitcnt lgkmcnt(0)")
        for i in range(16): a(f"v_mov_b32 v{SB+i}, 0")
        a(f"v_mov_b32 v{SB}, s78")
    for sr in (24, 32, 36, 40, 44, 48, 52): srd(sr, SZ[sr])
    role_setup()
    a("s_mov_b32 s60, 0x05040100"); a("s_mov_b32 s61, 0x07060302"); a("s_mov_b32 s63, 0xffff0000")
    a(f"v_mov_b32 v7, {L_FLAGS}"); a("s_lshl_b32 s10, s11, 2"); a("v_add_u32 v11, s10, v7")
    a("v_lshlrev_b32 v13, 3, v1")
    a("v_lshrrev_b32 v9, 2, v2"); a("v_lshlrev_b32 v10, 3, v3"); a("v_add_u32 v9, v9, v10"); a("v_lshlrev_b32 v44, 7, v9")
    a("v_and_b32 v10, 3, v2"); a("v_lshlrev_b32 v10, 3, v10"); a("v_add_u32 v44, v44, v10")
    a("s_lshl_b32 s10, s11, 12"); a(f"s_add_u32 s10, s10, {L_WQ}"); a("v_add_u32 v44, s10, v44")
    a("v_and_b32 v45, 3, v2"); a("v_lshlrev_b32 v45, 10, v45"); a("v_lshlrev_b32 v46, 4, v3"); a("v_add_u32 v45, v45, v46")
    a("s_lshl_b32 s10, s5, 8"); a("s_lshl_b32 s12, s11, 6"); a("s_add_u32 s10, s10, s12"); a(f"s_add_u32 s10, s10, {L_YB}"); a("v_add_u32 v45, s10, v45")
    a("v_lshlrev_b32 v46, 4, v2"); a("s_lshl_b32 s10, s11, 10"); a(f"s_add_u32 s10, s10, {L_QPB}"); a("v_add_u32 v46, s10, v46")
    a("s_lshl_b32 s10, s11, 2"); a(f"s_add_u32 s10, s10, {L_QPB}"); a("v_add_u32 v47, s10, v14")
    a("s_lshl_b32 s10, s11, 10"); a(f"s_add_u32 s10, s10, {L_YB}"); a("v_add_u32 v9, s10, v14")
    a("s_lshl_b32 s10, s4, 2"); a("s_add_u32 s10, s10, s11"); a("s_lshl_b32 s10, s10, 2"); a("s_add_u32 s10, s10, s5"); a("s_lshl_b32 s10, s10, 12")
    a("s_lshl_b32 s12, s6, 9"); a("s_add_u32 s10, s10, s12"); a(f"s_add_u32 s66, s10, {WS_QB}")
    a("s_waitcnt vmcnt(4)")
    stamp(6)
    a("v_readfirstlane_b32 s8, v5")
    for i in range(4):
        a(f"v_lshlrev_b32 v{20+2*i}, 16, v{16+i}"); a(f"v_and_b32 v{21+2*i}, s63, v{16+i}")
    a(f"s_add_u32 s8, s8, {TAGC}")
    a("v_mov_b32 v15, s8")
    layernorm8(20, 32)
    a("ds_write_b128 v9, v[40:43]")
    setflag(F_Y)
    wait_flags4(F_Y, 40)
    a("ds_read_b128 v[192:195], v45")
    a("s_waitcnt vmcnt(0)")
    stamp(7)
    for nt in range(4):
        a(f"ds_read_b64_tr_b16 v[{196+4*nt}:{197+4*nt}], v44 offset:{nt*32}")
        a(f"ds_read_b64_tr_b16 v[{198+4*nt}:{199+4*nt}], v44 offset:{nt*32+512}")
    a("s_waitcnt lgkmcnt(0)")
    for nt in range(4):
        a(f"v_mfma_f32_16x16x32_bf16 v[{212+4*nt}:{215+4*nt}], v[192:195], v[{196+4*nt}:{199+4*nt}], 0")
    a("v_mov_b32 v45, s8")
    a("s_nop 3")
    for nt in range(4): a(f"ds_write_b128 v46, v[{212+4*nt}:{215+4*nt}] offset:{nt*256}")
    setflag(F_QP)
    wait_flags4(F_QP, 40)
    for w in range(4): a(f"ds_read_b32 v{40+w}, v47 offset:{w*1024}")
    a("s_waitcnt lgkmcnt(0)")
    a("v_add_f32 v40, v40, v41"); a("v_add_f32 v42, v42, v43"); a("v_add_f32 v44, v40, v42")
    a("buffer_store_dwordx2 v[44:45], v13, s[56:59], s66 offen sc1")
    a("s_setprio 1")
    stamp(1)
    for k in range(32):
        r = 64 + 4*k
        a(f"buffer_load_dwordx4 v[{r}:{r+3}], v14, s[24:27], s65 offen offset:{(k%4)*1024}{NT}")
        if k % 4 == 3 and k < 31: kvstep()
    stamp(2)
    a("v_lshlrev_b32 v10, 2, v2")
    a("s_lshl_b32 s10, s76, 10"); a("s_lshl_b32 s12, s62, 1"); a("s_add_u32 s10, s10, s12")
    a("buffer_load_dword v12, v10, s[16:19], s10 offen")
    a("s_lshl_b32 s95, s4, 3"); a("s_add_u32 s95, s95, s6"); a("s_lshl_b32 s95, s95, 3")
    a("v_and_b32 v9, 3, v1"); a("v_lshlrev_b32 v9, 2, v9"); a("s_lshl_b32 s12, s95, 1")
    a("buffer_load_dword v8, v9, s[48:51], s12 offen")
    a("buffer_load_dword v4, v9, s[52:55], s12 offen")
    NSM = 3
    a("v_lshlrev_b32 v20, 9, v3"); a("v_lshlrev_b32 v9, 5, v2"); a("v_add_u32 v20, v20, v9")
    a("s_lshl_b32 s10, s11, 11"); a(f"s_add_u32 s10, s10, {L_RED}"); a("v_add_u32 v20, s10, v20")
    a("s_lshl_b32 s10, s11, 9"); a(f"s_add_u32 s10, s10, {L_RED}"); a("v_add_u32 v21, s10, v13")
    a("s_lshl_b32 s10, s70, 3"); a("s_add_u32 s10, s10, s6"); a("s_lshl_b32 s10, s10, 11"); a("s_lshl_b32 s12, s11, 9"); a("s_add_u32 s10, s10, s12"); a(f"s_add_u32 s66, s10, {WS_OP}")
    a("v_lshrrev_b32 v10, 2, v2"); a("v_lshlrev_b32 v10, 6, v10"); a("v_lshlrev_b32 v9, 4, v3"); a("v_add_u32 v10, v10, v9")
    a("s_lshl_b32 s10, s11, 10"); a(f"s_add_u32 s10, s10, {L_PB}"); a("v_add_u32 v10, s10, v10")
    if not no_pwait: wait_flag1(F_P, 40, sleep=1)
    PF = 224
    for T in range(4): a(f"ds_read_b128 v[{PF+4*T}:{PF+3+4*T}], v10 offset:{T*256}")
    stamp(3)
    def perms(T, dst, ulist):
        raw = 64 + 32*T
        for u in ulist:
            for jj in range(4):
                s1 = raw + 4*(2*u) + jj; s0 = raw + 4*(2*u+1) + jj
                a(f"v_perm_b32 v{dst + 4*(2*jj) + u}, v{s0}, v{s1}, s60")
                a(f"v_perm_b32 v{dst + 4*(2*jj+1) + u}, v{s0}, v{s1}, s61")
    ACC = 32
    def mfmas(T, src, js):
        for j in js:
            c = "0" if T == 0 else f"v[{ACC+4*j}:{ACC+4*j+3}]"
            a(f"v_mfma_f32_16x16x32_bf16 v[{ACC+4*j}:{ACC+4*j+3}], v[{PF+4*T}:{PF+3+4*T}], v[{src+4*j}:{src+4*j+3}], {c}")
    F = [192, 64, 96, 128]
    def after(k): return min(63, (31 - k) + NSM)
    a(f"s_waitcnt vmcnt({after(7)})")
    perms(0, F[0], range(4))
    a(f"s_waitcnt vmcnt({after(15)}) lgkmcnt(0)")
    for u in range(4):
        perms(1, F[1], [u]); mfmas(0, F[0], [2*u, 2*u+1])
    a(f"s_waitcnt vmcnt({after(23)})")
    for u in range(4):
        perms(2, F[2], [u]); mfmas(1, F[1], [2*u, 2*u+1])
    mfmas(2, F[2], range(4))
    for u in range(4):
        a(f"s_waitcnt vmcnt({after(24+2*u+1)})")
        perms(3, F[3], [u])
        mfmas(2, F[2], [4+u])
    a("s_nop 0")
    mfmas(3, F[3], range(8))
    stamp(4)
    a("v_mov_b32 v17, s8")
    a("s_nop 6")
    for j in range(0, 8, 2):
        a(f"ds_write2_b32 v20, v{ACC+4*j}, v{ACC+4*(j+1)} offset0:{j} offset1:{j+1}")
    setflag(F_O)
    wait_flags4(F_O, 24)
    for w in range(4): a(f"ds_read_b64 v[{24+2*w}:{25+2*w}], v21 offset:{w*2048}")
    a("s_waitcnt lgkmcnt(0)")
    for c in range(2):
        a(f"v_add_f32 v{24+c}, v{24+c}, v{26+c}"); a(f"v_add_f32 v{28+c}, v{28+c}, v{30+c}")
    for c in range(2): a(f"v_add_f32 v{24+c}, v{24+c}, v{28+c}")
    a("v_cvt_pk_bf16_f32 v16, v24, v25")
    a("buffer_store_dwordx2 v[16:17], v13, s[56:59], s66 offen sc1")
    stamp(5)
    a("s_setprio 3")
    a(f"s_mov_b32 s69, {LOG2E}")
    role_branch("L_roleA", "L_roleB", "L_roleC")

    a.label("L_k2")
    if stamps:
        a("s_waitcnt lgkmcnt(0)")
        for i in range(16): a(f"v_mov_b32 v{SB+i}, 0")
        a(f"v_mov_b32 v{SB}, s78")
    stamp(2)
    if stamps:
        a("s_getreg_b32 s12, hwreg(HW_REG_HW_ID)"); a(f"v_mov_b32 v{SB+6}, s12")
        a("s_getreg_b32 s12, hwreg(HW_REG_XCC_ID)"); a("s_add_u32 s12, s12, 1"); a(f"v_mov_b32 v{SB+7}, s12")
    for sr in (24, 32, 36, 40, 44, 48, 52): srd(sr, SZ[sr])
    role_setup()
    a("s_mov_b32 s63, 0xffff0000")
    a(f"v_mov_b32 v7, {L_FLAGS}"); a("s_lshl_b32 s10, s11, 2"); a("v_add_u32 v11, s10, v7")
    a("v_lshlrev_b32 v13, 3, v1")
    a(f"s_waitcnt vmcnt({(8 - qearly) * 4})")
    a("v_readfirstlane_b32 s8, v5")
    a("s_mov_b32 s67, 0")
    a(f"s_add_u32 s8, s8, {TAGC}")
    a("v_mov_b32 v15, s8")
    Lq = lab("qg"); Lq2 = lab("qg2")
    a(f"s_branch {Lq2}")
    a.label(Lq)
    qloads()
    a("s_waitcnt vmcnt(0)")
    a.label(Lq2)
    tagcheck([17+2*i for i in range(8)], 40, 44, Lq, sleep=psleep)
    if stamps: a(f"v_mov_b32 v{SB+1}, s67")
    a("v_add_f32 v16, v16, v20"); a("v_add_f32 v24, v24, v28"); a("v_add_f32 v18, v18, v22"); a("v_add_f32 v26, v26, v30")
    a("v_add_f32 v16, v16, v24"); a("v_add_f32 v18, v18, v26")
    a("v_cvt_pk_bf16_f32 v40, v16, v18")
    a("s_lshl_b32 s10, s11, 8"); a(f"s_add_u32 s10, s10, {L_QL}")
    a("v_lshlrev_b32 v10, 2, v1"); a("v_add_u32 v10, s10, v10")
    a("ds_write_b32 v10, v40")
    setflag(F_Q)
    stamp(3)
    a("v_and_b32 v10, 3, v2"); a("v_lshlrev_b32 v10, 8, v10"); a("v_lshlrev_b32 v44, 4, v3"); a("v_add_u32 v10, v10, v44")
    a(f"v_add_u32 v10, {L_QL}, v10")
    wait_flags4(F_Q, 40)
    for i in range(4): a(f"ds_read_b128 v[{16+4*i}:{19+4*i}], v10 offset:{i*64}")
    a("s_waitcnt lgkmcnt(0)")
    for t in range(8):
        if t >= qearly: a(f"s_waitcnt vmcnt({(7-t)*4})")
        for i in range(4):
            r = 64 + 16*t + 4*i
            c = "0" if i == 0 else f"v[{32+4*t}:{35+4*t}]"
            a(f"v_mfma_f32_16x16x32_bf16 v[{32+4*t}:{35+4*t}], v[{16+4*i}:{19+4*i}], v[{r}:{r+3}], {c}")
    a(f"s_mov_b32 s68, {SCALE}"); a(f"s_mov_b32 s69, {LOG2E}")
    a("s_nop 5")
    for aa in range(2):
        for q in range(1, 4):
            for h in range(4):
                a(f"v_mov_b32_dpp v{32+16*aa+h}, v{32+16*aa+4*q+h} quad_perm:[0,1,2,3] row_mask:{hex(1<<q)} bank_mask:0xf")
    S = [[32+16*aa+h for h in range(4)] for aa in range(2)]
    for rnd in range(2):
        for aa in range(2):
            for hp in range(2): a(f"v_cvt_pk_bf16_f32 v{36+2*aa+hp}, v{S[aa][2*hp]}, v{S[aa][2*hp+1]}")
        for aa in range(2):
            for hp in range(2):
                a(f"v_lshlrev_b32 v{S[aa][2*hp]}, 16, v{36+2*aa+hp}")
                a(f"v_and_b32 v{S[aa][2*hp+1]}, s63, v{36+2*aa+hp}")
        if rnd == 0:
            for aa in range(2):
                for h in range(4): a(f"v_mul_f32 v{S[aa][h]}, s68, v{S[aa][h]}")
    for h in range(4): a(f"v_max_f32 v{40+h}, v{S[0][h]}, v{S[1][h]}")
    allreduce("v_max_f32", [40, 41, 42, 43], [44, 45, 46, 47])
    for aa in range(2):
        for h in range(4): a(f"v_sub_f32 v{S[aa][h]}, v{S[aa][h]}, v{40+h}")
    for aa in range(2):
        for h in range(4): a(f"v_mul_f32 v{S[aa][h]}, s69, v{S[aa][h]}")
    for aa in range(2):
        for h in range(4): a(f"v_exp_f32 v{S[aa][h]}, v{S[aa][h]}")
    a("s_nop 0")
    for h in range(4): a(f"v_add_f32 v{52+h}, v{S[0][h]}, v{S[1][h]}")
    allreduce("v_add_f32", [52, 53, 54, 55], [44, 45, 46, 47])
    for h in range(4):
        a(f"v_mov_b32 v{56+2*h}, v{40+h}"); a(f"v_mov_b32 v{57+2*h}, v{52+h}")
    a("s_lshl_b32 s10, s11, 5"); a(f"s_add_u32 s10, s10, {L_MLB}")
    a("v_mov_b32 v10, s10")
    a("ds_write_b128 v10, v[56:59]")
    a("ds_write_b128 v10, v[60:63] offset:16")
    setflag(F_ML)
    a("v_lshlrev_b32 v10, 3, v2"); a(f"v_add_u32 v10, {L_MLB}, v10")
    a("v_lshrrev_b32 v9, 5, v1"); a("v_lshlrev_b32 v9, 8, v9")
    a("v_and_b32 v44, 3, v1"); a("v_lshlrev_b32 v44, 4, v44"); a("v_add_u32 v9, v9, v44")
    a("v_and_b32 v44, 31, v1"); a("v_lshrrev_b32 v44, 2, v44"); a("v_lshlrev_b32 v44, 1, v44"); a("v_add_u32 v9, v9, v44")
    a("s_lshl_b32 s10, s11, 10"); a(f"s_add_u32 s10, s10, {L_PB}"); a("v_add_u32 v9, s10, v9")
    wait_flags4(F_ML, 44)
    a("ds_read_b64 v[192:193], v10")
    a("s_waitcnt lgkmcnt(0)")
    a("v_mov_b32 v194, v192")
    a("s_nop 1")
    a("v_max_f32_dpp v194, v194, v194 row_ror:4 row_mask:0xf bank_mask:0xf")
    a("s_nop 1")
    a("v_max_f32_dpp v194, v194, v194 row_ror:8 row_mask:0xf bank_mask:0xf")
    a("v_sub_f32 v195, v192, v194"); a("v_mul_f32 v195, s69, v195"); a("v_exp_f32 v195, v195"); a("s_nop 0")
    a("v_mul_f32 v196, v193, v195")
    a("s_nop 1")
    a("v_add_f32_dpp v196, v196, v196 row_ror:4 row_mask:0xf bank_mask:0xf")
    a("s_nop 1")
    a("v_add_f32_dpp v196, v196, v196 row_ror:8 row_mask:0xf bank_mask:0xf")
    a("v_rcp_f32 v197, v196"); a("s_nop 0")
    a("v_mul_f32 v197, v197, v195")
    a("s_lshl_b32 s10, s11, 2")
    for h in range(4):
        a(f"s_add_u32 s12, s10, {h}")
        a(f"v_readlane_b32 s{72+h}, v197, s12")
    a("v_mov_b32 v56, v194"); a("v_mov_b32 v57, s8"); a("v_mov_b32 v58, v196"); a("v_mov_b32 v59, s8")
    for aa in range(2):
        for h in range(4): a(f"v_mul_f32 v{S[aa][h]}, s{72+h}, v{S[aa][h]}")
    for aa in range(2):
        for hp in range(2): a(f"v_cvt_pk_bf16_f32 v{36+2*aa+hp}, v{S[aa][2*hp]}, v{S[aa][2*hp+1]}")
    for aa in range(2):
        for hp in range(2):
            a(f"ds_write_b16 v9, v{36+2*aa+hp} offset:{aa*512 + (2*hp)*64}")
            a(f"ds_write_b16_d16_hi v9, v{36+2*aa+hp} offset:{aa*512 + (2*hp+1)*64}")
    setflag(F_P)
    a("s_lshl_b32 s10, s70, 3"); a("s_add_u32 s10, s10, s6"); a("s_lshl_b32 s10, s10, 6")
    a("s_lshl_b32 s12, s11, 4"); a("s_add_u32 s10, s10, s12"); a(f"s_add_u32 s10, s10, {WS_ML}")
    a("s_lshl_b64 s[12:13], 1, s11")
    a("s_mov_b64 exec, s[12:13]")
    a("buffer_store_dwordx4 v[56:59], v6, s[56:59], s10 offen sc1")
    a("s_mov_b64 exec, -1")
    stamp(4)
    role_branch("L_kA", "L_kB", None)

    a.label("L_kA")
    a("s_mov_b32 s72, s85")
    a("v_lshrrev_b32 v22, 1, v2"); a("v_xor_b32 v22, v22, v3"); a("v_lshlrev_b32 v22, 5, v22")
    a("v_lshlrev_b32 v23, 10, v3"); a("v_add_u32 v22, v22, v23"); a("v_and_b32 v23, 1, v1"); a("v_lshlrev_b32 v23, 4, v23"); a("v_add_u32 v22, v22, v23")
    a("v_xor_b32 v23, 0x80, v22")
    a("s_lshl_b32 s14, s84, 2"); a("s_add_u32 s14, s14, s72"); a("s_lshl_b32 s14, s14, 17")
    a("s_lshl_b32 s13, s11, 15"); a("s_add_u32 s14, s14, s13"); a("s_lshl_b32 s13, s86, 8"); a("s_add_u32 s14, s14, s13")
    a("s_lshl_b32 s15, s11, 13")
    if L_W: a(f"s_add_u32 s15, s15, {L_W}")
    a("s_cmp_lg_u32 s3, 0"); a("s_cbranch_scc1 L_kA_dma")
    a("v_lshrrev_b32 v10, 3, v1"); a("v_and_b32 v10, 3, v10"); a("v_lshlrev_b32 v10, 12, v10"); a("v_and_b32 v9, 7, v1"); a("v_lshlrev_b32 v9, 6, v9"); a("v_add_u32 v10, v10, v9")
    a("s_lshl_b32 s12, s84, 9"); a("s_lshl_b32 s10, s72, 4"); a("s_add_u32 s10, s10, s12"); a(f"s_add_u32 s66, s10, {WS_ML}")
    a("s_mov_b32 s67, 0")
    Lm = lab("mg"); a.label(Lm)
    a(f"s_sleep {mlsleep}")
    a("buffer_load_dwordx4 v[192:195], v10, s[56:59], s66 offen sc1")
    a("s_waitcnt vmcnt(0)")
    tagcheck([193, 195], 40, 44, Lm, sleep=0)
    def red8(op, r, t):
        for mod in ("quad_perm:[1,0,3,2]", "quad_perm:[2,3,0,1]", "row_half_mirror"):
            a("s_nop 1")
            a(f"{op}_dpp v{r}, v{r}, v{r} {mod} row_mask:0xf bank_mask:0xf")
    a("v_mov_b32 v40, v192")
    red8("v_max_f32", 40, 41)
    a("v_sub_f32 v41, v192, v40"); a("v_mul_f32 v41, s69, v41"); a("v_exp_f32 v41, v41"); a("s_nop 0")
    a("v_mul_f32 v41, v41, v194")
    a("v_mov_b32 v42, v41")
    red8("v_add_f32", 42, 43)
    a("v_rcp_f32 v42, v42"); a("s_nop 0")
    a("v_mul_f32 v41, v41, v42")
    a("v_and_b32 v9, 31, v1"); a("v_lshlrev_b32 v9, 2, v9"); a(f"v_add_u32 v9, {L_WR}, v9")
    a("ds_write_b32 v9, v41")
    setflag(F_WR)
    a.label("L_kA_dma")
    a("s_setprio 0")
    for i in range(8):
        a("s_mov_b32 m0, s15"); a("s_add_u32 s15, s15, 1024")
        if not no_w: a(f"buffer_load_dwordx4 v{22 + ((i>>1)&1)}, s[32:35], s14 offen{NT} lds")
        a("s_add_u32 s14, s14, 4096")
    a("s_branch L_roleA")

    a.label("L_kB")
    a("s_setprio 0")
    a("v_lshrrev_b32 v22, 2, v1"); a("v_mul_u32_u24 v22, 3584, v22")
    a("v_lshrrev_b32 v23, 1, v1"); a("v_and_b32 v23, 1, v23"); a("v_lshrrev_b32 v24, 5, v1"); a("v_xor_b32 v23, v23, v24"); a("v_lshlrev_b32 v23, 5, v23"); a("v_add_u32 v22, v22, v23")
    a("v_and_b32 v23, 1, v1"); a("v_lshlrev_b32 v23, 4, v23"); a("v_add_u32 v22, v22, v23")
    a(f"s_mul_i32 s12, s11, {128*3584}"); a("s_lshl_b32 s13, s9, 6"); a("s_add_u32 s12, s12, s13")
    a("s_lshl_b32 s13, s11, 13")
    if L_W: a(f"s_add_u32 s13, s13, {L_W}")
    a("s_and_b32 s10, s11, 1"); a("s_lshl_b32 s10, s10, 7"); a("v_xor_b32 v24, s10, v14")
    a("v_xor_b32 v25, 32, v24"); a("v_xor_b32 v26, 64, v24"); a("v_xor_b32 v27, 0x60, v24")
    a("s_lshl_b32 s14, s9, 15"); a("s_lshl_b32 s15, s11, 13"); a("s_add_u32 s14, s14, s15"); a(f"s_add_u32 s15, s15, {L_W2}")
    wait_flags4(F_O, 44, sleep=2)
    for i in range(8):
        a("s_mov_b32 m0, s13"); a("s_add_u32 s13, s13, 1024")
        if not no_w: a(f"buffer_load_dwordx4 v22, s[36:39], s12 offen{NT} lds")
        a(f"s_add_u32 s12, s12, {16*3584}")
    for i in range(8):
        a("s_mov_b32 m0, s15"); a("s_add_u32 s15, s15, 1024")
        if not no_w: a(f"buffer_load_dwordx4 v{24 + (i&3)}, s[44:47], s14 offen{NT} lds")
        a("s_add_u32 s14, s14, 1024")
    a("s_waitcnt vmcnt(0)")
    setflag(F_W)
    stamp(5)
    a("s_branch L_roleB")

    a.label("L_roleA")
    a("s_lshr_b32 s71, s3, 2")
    a("s_mov_b32 s72, s85")
    a("s_mov_b32 s73, s86")
    a("v_lshrrev_b32 v21, 3, v2"); a("v_lshlrev_b32 v21, 17, v21"); a("v_and_b32 v9, 7, v2"); a("v_lshlrev_b32 v9, 11, v9"); a("v_add_u32 v21, v21, v9")
    a("v_lshlrev_b32 v9, 5, v3"); a("v_add_u32 v21, v21, v9")
    a("s_lshl_b32 s10, s71, 18"); a("s_lshl_b32 s12, s84, 14"); a("s_add_u32 s10, s10, s12"); a("s_lshl_b32 s12, s72, 9"); a("s_add_u32 s10, s10, s12")
    a("s_lshl_b32 s12, s11, 7"); a("s_add_u32 s10, s10, s12"); a(f"s_add_u32 s75, s10, {WS_OP}")
    a("s_cmp_lt_u32 s3, 4"); a("s_cbranch_scc1 L_A_common")
    a("buffer_load_dwordx4 v[192:195], v21, s[56:59], s75 offen sc1")
    a("buffer_load_dwordx4 v[196:199], v21, s[56:59], s75 offen offset:16 sc1")
    a.label("L_A_common")
    a("v_lshrrev_b32 v9, 2, v2"); a("v_lshlrev_b32 v10, 3, v3"); a("v_add_u32 v10, v10, v9"); a("v_lshlrev_b32 v10, 8, v10")
    a("v_and_b32 v44, 3, v2"); a("v_lshlrev_b32 v44, 3, v44"); a("v_add_u32 v10, v10, v44")
    a("v_and_b32 v44, 1, v3"); a("v_lshlrev_b32 v44, 2, v44"); a("v_or_b32 v44, v44, v9"); a("v_lshlrev_b32 v44, 5, v44"); a("v_add_u32 v10, v10, v44")
    a("s_lshl_b32 s10, s11, 13")
    if L_W: a(f"s_add_u32 s10, s10, {L_W}")
    a("v_add_u32 v24, s10, v10")
    for nt in range(1, 8): a(f"v_xor_b32 v{24+nt}, {nt*32}, v24")
    a("v_lshrrev_b32 v9, 1, v3"); a("v_lshlrev_b32 v9, 9, v9"); a("v_and_b32 v44, 1, v3"); a("v_lshlrev_b32 v44, 6, v44"); a("v_add_u32 v9, v9, v44")
    a("v_lshlrev_b32 v44, 2, v2"); a("v_add_u32 v9, v9, v44")
    a("s_lshl_b32 s10, s11, 11"); a("s_lshl_b32 s12, s71, 10"); a("s_add_u32 s10, s10, s12"); a(f"s_add_u32 s10, s10, {L_R1}"); a("v_add_u32 v60, s10, v9")
    a("s_lshl_b32 s10, s3, 8"); a(f"s_add_u32 s10, s10, {L_R1}"); a("v_lshlrev_b32 v9, 2, v1"); a("v_add_u32 v61, s10, v9")
    a("s_lshr_b32 s10, s3, 1"); a("s_lshl_b32 s10, s10, 5"); a("s_lshl_b32 s12, s84, 2"); a("s_add_u32 s10, s10, s12"); a("s_add_u32 s10, s10, s72"); a("s_lshl_b32 s10, s10, 12")
    a("s_lshl_b32 s12, s73, 10"); a("s_add_u32 s10, s10, s12"); a("s_and_b32 s12, s3, 1"); a("s_lshl_b32 s12, s12, 9"); a("s_add_u32 s10, s10, s12"); a(f"s_add_u32 s74, s10, {WS_HP}")
    a("v_mov_b32 v63, s8")
    a("s_mov_b32 s67, 0")
    a("v_lshlrev_b32 v62, 4, v3"); a("s_lshl_b32 s10, s71, 6"); a(f"s_add_u32 s10, s10, {L_WR}"); a("v_add_u32 v62, s10, v62")
    def wr_read():
        L = lab("wr"); a.label(L)
        a(f"ds_read_b32 v40, v7 offset:{F_WR}")
        a("s_waitcnt lgkmcnt(0)")
        a("v_cmp_ne_u32 vcc, 1, v40")
        a(f"s_cbranch_vccnz {L}")
        a("ds_read_b128 v[48:51], v62")
    a("s_cmp_lt_u32 s3, 4"); a("s_cbranch_scc1 L_A_k")
    wait_flag1(F_W, 40)
    for nt in range(8):
        a(f"ds_read_b64_tr_b16 v[{64+4*nt}:{65+4*nt}], v{24+nt}")
        a(f"ds_read_b64_tr_b16 v[{66+4*nt}:{67+4*nt}], v{24+nt} offset:1024")
        if nt == 3: a("s_waitcnt lgkmcnt(0)")
    wr_read()
    Lo = lab("og"); Lo2 = lab("og2")
    stamp(13)
    a(f"s_branch {Lo2}")
    a.label("L_A_k")
    a("s_waitcnt vmcnt(0)")
    setflag(F_W)
    stamp(5)
    a("s_setprio 3")
    for nt in range(8):
        a(f"ds_read_b64_tr_b16 v[{64+4*nt}:{65+4*nt}], v{24+nt}")
        a(f"ds_read_b64_tr_b16 v[{66+4*nt}:{67+4*nt}], v{24+nt} offset:1024")
        if nt == 3: a("s_waitcnt lgkmcnt(0)")
    wr_read()
    wait_flags4(F_O, 40, sleep=1)
    stamp(13)
    a.label(Lo)
    a("buffer_load_dwordx4 v[192:195], v21, s[56:59], s75 offen sc1")
    a("buffer_load_dwordx4 v[196:199], v21, s[56:59], s75 offen offset:16 sc1")
    a.label(Lo2)
    a("s_waitcnt vmcnt(0) lgkmcnt(0)")
    tagcheck([193, 195, 197, 199], 40, 44, Lo, sleep=tsleep)
    stamp(8)
    a("v_mov_b32 v193, v194"); a("v_mov_b32 v194, v196"); a("v_mov_b32 v195, v198")
    a("s_nop 1")
    for nt in range(8):
        a(f"v_mfma_f32_16x16x32_bf16 v[{96+4*nt}:{99+4*nt}], v[192:195], v[{64+4*nt}:{67+4*nt}], 0")
    a("s_nop 0")
    for r in range(4):
        for nt in range(8):
            if r == 0: a(f"v_mul_f32 v{128+nt}, v48, v{96+4*nt}")
            else: a(f"v_fmac_f32 v{128+nt}, v{48+r}, v{96+4*nt+r}")
    for p in range(4): a(f"v_permlane16_swap_b32 v{128+2*p}, v{129+2*p}") if p else (a("s_nop 0"), a(f"v_permlane16_swap_b32 v128, v129"))
    for p in range(4): a(f"v_add_f32 v{128+2*p}, v{128+2*p}, v{129+2*p}")
    stamp(10)
    for p in range(4): a(f"ds_write_b32 v60, v{128+2*p} offset:{p*128}")
    a("s_waitcnt lgkmcnt(0)")
    a("s_barrier")
    stamp(11)
    for kt in range(4): a(f"ds_read_b32 v{40+kt}, v61 offset:{kt*2048}")
    a("s_waitcnt lgkmcnt(0)")
    a("v_add_f32 v40, v40, v41"); a("v_add_f32 v42, v42, v43"); a("v_add_f32 v62, v40, v42")
    a("buffer_store_dwordx2 v[62:63], v13, s[56:59], s74 offen sc1")
    stamp(9)
    a("s_branch L_endrole")

    a.label("L_roleB")
    a("s_setprio 3")
    a("s_add_u32 s96, s8, 1")
    a("v_and_b32 v10, 31, v1"); a("v_lshlrev_b32 v10, 1, v10"); a("s_lshl_b32 s10, s9, 6")
    a("buffer_load_ushort v16, v10, s[40:43], s10 offen")
    a("v_lshrrev_b32 v9, 2, v2"); a("v_lshlrev_b32 v10, 3, v3"); a("v_add_u32 v9, v10, v9")
    a("v_and_b32 v44, 3, v2"); a("v_lshlrev_b32 v44, 3, v44")
    a("v_lshlrev_b32 v10, 6, v9"); a("v_add_u32 v10, v10, v44"); a("v_and_b32 v45, 1, v3"); a("v_lshlrev_b32 v46, 5, v45"); a("v_add_u32 v10, v10, v46")
    a("s_lshl_b32 s10, s3, 12")
    if L_W: a(f"s_add_u32 s10, s10, {L_W}")
    a("v_add_u32 v52, s10, v10"); a("v_xor_b32 v53, 32, v52")
    a("v_lshlrev_b32 v10, 10, v9"); a("v_add_u32 v10, v10, v44")
    a("v_lshrrev_b32 v46, 2, v2"); a("v_lshlrev_b32 v45, 2, v45"); a("v_or_b32 v46, v46, v45"); a("v_lshlrev_b32 v46, 5, v46"); a("v_add_u32 v10, v10, v46")
    a("s_lshl_b32 s10, s3, 7"); a("v_xor_b32 v10, s10, v10"); a(f"v_add_u32 v54, {L_W2}, v10")
    for q in range(1, 4): a(f"v_xor_b32 v{54+q}, {q*32}, v54")
    a("v_and_b32 v58, 3, v2"); a("v_lshlrev_b32 v58, 10, v58"); a("v_lshlrev_b32 v9, 4, v3"); a("v_add_u32 v58, v58, v9")
    a("s_lshl_b32 s10, s3, 7"); a(f"s_add_u32 s10, s10, {L_YB}"); a("v_add_u32 v58, s10, v58")
    a("v_lshlrev_b32 v59, 4, v2"); a("s_lshl_b32 s10, s3, 9"); a(f"s_add_u32 s10, s10, {L_T1}"); a("v_add_u32 v59, s10, v59")
    a("v_and_b32 v60, 31, v1"); a("v_lshlrev_b32 v60, 4, v60"); a("v_lshrrev_b32 v9, 5, v1"); a("v_lshlrev_b32 v9, 11, v9"); a("v_add_u32 v60, v60, v9"); a(f"v_add_u32 v60, {L_T1}, v60")
    a("v_and_b32 v61, 31, v1"); a("v_lshlrev_b32 v61, 1, v61"); a("v_lshrrev_b32 v9, 5, v1"); a("v_lshlrev_b32 v9, 7, v9"); a("v_add_u32 v61, v61, v9")
    a("s_lshl_b32 s10, s3, 8"); a(f"s_add_u32 s10, s10, {L_GB}"); a("v_add_u32 v61, s10, v61")
    a("v_and_b32 v62, 3, v2"); a("v_lshlrev_b32 v62, 6, v62"); a("v_lshlrev_b32 v9, 4, v3"); a("v_add_u32 v62, v62, v9"); a("v_add_u32 v62, s10, v62")
    a("s_lshl_b32 s10, s9, 12"); a("s_lshl_b32 s12, s3, 9"); a("s_add_u32 s10, s10, s12"); a(f"s_add_u32 s72, s10, {WS_GP}")
    for bb in range(1, 4): a(f"s_add_u32 s{72+bb}, s72, {bb*56*4096}")
    for r in range(4): a(f"v_mov_b32 v{113+2*r}, s96")
    a("v_mov_b32 v46, 0x3d372713")
    a("s_lshl_b32 s10, s3, 10"); a(f"s_add_u32 s10, s10, {L_YB}"); a("v_add_u32 v63, s10, v14")
    a("v_lshlrev_b32 v10, 5, v1"); a("s_lshl_b32 s10, s3, 11"); a("s_lshl_b32 s12, s4, 13"); a("s_add_u32 s10, s10, s12"); a(f"s_add_u32 s66, s10, {WS_H}")
    wait_flags4(F_W, 40, sleep=1)
    for kt in range(2):
        for nt in range(2):
            r = 64 + (kt*2+nt)*4
            a(f"ds_read_b64_tr_b16 v[{r}:{r+1}], v{52+nt} offset:{kt*2048}")
            a(f"ds_read_b64_tr_b16 v[{r+2}:{r+3}], v{52+nt} offset:{kt*2048+256}")
    for q in range(4):
        r = 80 + 4*q
        a(f"ds_read_b64_tr_b16 v[{r}:{r+1}], v{54+q}")
        a(f"ds_read_b64_tr_b16 v[{r+2}:{r+3}], v{54+q} offset:4096")
    a("s_waitcnt vmcnt(0) lgkmcnt(0)")
    a("v_lshlrev_b32 v16, 16, v16")
    a("s_cmp_ge_u32 s3, 4"); a("s_cbranch_scc1 L_B_ln_done")
    a("s_mov_b32 s67, 0")
    Lh = lab("hg"); a.label(Lh)
    a("buffer_load_dwordx4 v[192:195], v10, s[56:59], s66 offen sc1")
    a("buffer_load_dwordx4 v[196:199], v10, s[56:59], s66 offen offset:16 sc1")
    a("s_waitcnt vmcnt(0)")
    tagcheck([193, 195, 197, 199], 40, 44, Lh, sleep=tsleep)
    stamp(10)
    for i in range(4):
        a(f"v_lshlrev_b32 v{20+2*i}, 16, v{192+2*i}"); a(f"v_and_b32 v{21+2*i}, s63, v{192+2*i}")
    layernorm8(20, 32)
    a("ds_write_b128 v63, v[40:43]")
    a("s_waitcnt lgkmcnt(0)")
    stamp(12)
    a.label("L_B_ln_done")
    a("s_barrier")
    for kt in range(2): a(f"ds_read_b128 v[{192+4*kt}:{195+4*kt}], v58 offset:{kt*64}")
    a("s_waitcnt lgkmcnt(0)")
    for kt in range(2):
        for nt in range(2):
            r = 64 + (kt*2+nt)*4
            c = "0" if kt == 0 else f"v[{96+4*nt}:{99+4*nt}]"
            a(f"v_mfma_f32_16x16x32_bf16 v[{96+4*nt}:{99+4*nt}], v[{192+4*kt}:{195+4*kt}], v[{r}:{r+3}], {c}")
    a("s_nop 6")
    a("ds_write_b128 v59, v[96:99]")
    a("s_nop 0")
    a("ds_write_b128 v59, v[100:103] offset:256")
    a("s_waitcnt lgkmcnt(0)")
    stamp(13)
    a("s_barrier")
    stamp(14)
    for i in range(4): a(f"ds_read_b128 v[{192+4*i}:{195+4*i}], v60 offset:{i*512}")
    a("s_waitcnt lgkmcnt(0)")
    for c in range(4):
        a(f"v_add_f32 v{192+c}, v{192+c}, v{196+c}"); a(f"v_add_f32 v{200+c}, v{200+c}, v{204+c}")
    for c in range(4): a(f"v_add_f32 v{192+c}, v{192+c}, v{200+c}")
    a("s_nop 0")
    a("v_permlane32_swap_b32 v192, v194"); a("v_permlane32_swap_b32 v193, v195")
    a("v_add_f32 v40, v192, v194"); a("v_add_f32 v41, v193, v195")
    a("v_cvt_pk_bf16_f32 v42, v40, v41"); a("v_lshlrev_b32 v40, 16, v42"); a("v_and_b32 v41, s63, v42")
    a("v_add_f32 v40, v40, v16"); a("v_add_f32 v41, v41, v16")
    a("v_cvt_pk_bf16_f32 v42, v40, v41"); a("v_lshlrev_b32 v40, 16, v42"); a("v_and_b32 v41, s63, v42")
    for c in range(2): a(f"v_mul_f32 v{42+c}, v{40+c}, v{40+c}")
    for c in range(2): a(f"v_fma_f32 v{42+c}, v{42+c}, v46, 1.0")
    for c in range(2): a(f"v_mul_f32 v{42+c}, v{42+c}, v{40+c}")
    for c in range(2): a(f"v_mul_f32 v{42+c}, 0xc0135761, v{42+c}")
    for c in range(2): a(f"v_exp_f32 v{42+c}, v{42+c}")
    a("s_nop 0")
    for c in range(2): a(f"v_add_f32 v{42+c}, 1.0, v{42+c}")
    for c in range(2): a(f"v_rcp_f32 v{42+c}, v{42+c}")
    a("s_nop 0")
    for c in range(2): a(f"v_mul_f32 v{40+c}, v{40+c}, v{42+c}")
    a("v_cvt_pk_bf16_f32 v40, v40, v41")
    stamp(8)
    a("ds_write_b16 v61, v40"); a("ds_write_b16_d16_hi v61, v40 offset:64")
    a("ds_read_b128 v[192:195], v62")
    a("s_waitcnt lgkmcnt(0)")
    for q in range(4):
        a(f"v_mfma_f32_16x16x32_bf16 v[{96+4*q}:{99+4*q}], v[192:195], v[{80+4*q}:{83+4*q}], 0")
    a("s_nop 4")
    for r in range(4): a(f"v_mov_b32 v{112+2*r}, v{96+r}")
    for q in range(1, 4):
        for r in range(4):
            a(f"v_mov_b32_dpp v{112+2*r}, v{96+4*q+r} quad_perm:[0,1,2,3] row_mask:{hex(1<<q)} bank_mask:0xf")
    for r in range(4): a(f"buffer_store_dwordx2 v[{112+2*r}:{113+2*r}], v13, s[56:59], s{72+r} offen sc1")
    stamp(11)
    a("s_branch L_endrole")

    a.label("L_roleC")
    a("s_cmp_lg_u32 s3, 7"); a("s_cbranch_scc1 L_fin")
    a("s_setprio 3")
    a("v_lshlrev_b32 v10, 12, v3"); a("v_lshlrev_b32 v9, 4, v2"); a("v_add_u32 v18, v10, v9")
    a("s_lshl_b32 s10, s76, 17"); a("s_lshl_b32 s12, s62, 3"); a("s_add_u32 s10, s10, s12"); a(f"s_add_u32 s80, s10, {WS_HP}")
    for t in range(1, 8): a(f"s_add_u32 s{80+t}, s80, {t*16384}")
    a("s_lshl_b32 s10, s76, 11"); a("s_lshl_b32 s12, s62, 2"); a("s_add_u32 s10, s10, s12"); a(f"s_add_u32 s72, s10, {WS_H}"); a("s_add_u32 s74, s72, 32768")
    a("v_lshlrev_b32 v17, 3, v2"); a("v_lshlrev_b32 v9, 13, v3"); a("v_add_u32 v17, v17, v9")
    a("s_mov_b32 s67, 0")
    Ls = lab("sg"); a.label(Ls)
    for t in range(8): a(f"buffer_load_dwordx4 v[{64+4*t}:{67+4*t}], v18, s[56:59], s{80+t} offen sc1")
    a("s_waitcnt vmcnt(0)")
    tagcheck([65+2*i for i in range(16)], 40, 44, Ls, sleep=tsleep)
    stamp(12)
    def tree2(n):
        ra = [64 + 4*t for t in range(n)]
        while len(ra) > 1:
            nxt = []
            for i in range(0, len(ra) - 1, 2):
                a(f"v_add_f32 v{ra[i]}, v{ra[i]}, v{ra[i+1]}"); a(f"v_add_f32 v{ra[i]+2}, v{ra[i]+2}, v{ra[i+1]+2}"); nxt.append(ra[i])
            if len(ra) % 2: nxt.append(ra[-1])
            ra = nxt
    def xrow():
        a("s_nop 1")
        a("v_permlane32_swap_b32 v64, v66")
        a("v_add_f32 v64, v64, v66")
        a("v_mov_b32 v66, v64"); a("s_nop 1")
        a("v_permlane16_swap_b32 v64, v66")
        a("v_add_f32 v64, v64, v66")
        a("v_mov_b32 v66, v64"); a("s_nop 1")
        a("v_permlane32_swap_b32 v64, v66")
    tree2(8)
    xrow()
    a("v_cvt_pk_bf16_f32 v40, v64, v66")
    a("v_lshlrev_b32 v43, 16, v12"); a("v_and_b32 v44, s63, v12")
    a("v_lshlrev_b32 v41, 16, v40"); a("v_and_b32 v42, s63, v40")
    a("v_add_f32 v41, v41, v43"); a("v_add_f32 v42, v42, v44")
    a("v_cvt_pk_bf16_f32 v40, v41, v42")
    a("v_mov_b32 v41, v15")
    a("buffer_store_dwordx2 v[40:41], v17, s[56:59], s72 offen sc1")
    a("buffer_store_dwordx2 v[40:41], v17, s[56:59], s74 offen sc1")
    stamp(13)
    a.label("L_endrole")
    a("s_cmp_lg_u32 s3, 7"); a("s_cbranch_scc1 L_fin")
    a("s_setprio 3")
    a("s_add_u32 s96, s8, 1")
    a("v_lshrrev_b32 v10, 2, v1"); a("v_lshlrev_b32 v10, 12, v10"); a("v_and_b32 v9, 3, v1"); a("v_lshlrev_b32 v17, 4, v9"); a("v_add_u32 v18, v10, v17")
    a(f"s_mul_i32 s10, s5, {56*4096}"); a("s_lshl_b32 s12, s95, 3"); a("s_add_u32 s10, s10, s12"); a(f"s_add_u32 s80, s10, {WS_GP}")
    for t in range(1, 4): a(f"s_add_u32 s{80+t}, s80, {t*65536}")
    a("s_lshl_b32 s10, s4, 13"); a("s_lshl_b32 s12, s5, 11"); a("s_add_u32 s10, s10, s12"); a("s_lshl_b32 s12, s95, 2"); a("s_add_u32 s10, s10, s12"); a(f"s_add_u32 s84, s10, {WS_H}")
    a("v_lshlrev_b32 v19, 3, v9")
    a("s_lshl_b32 s10, s5, 10"); a("s_lshl_b32 s12, s95, 1"); a("s_add_u32 s73, s10, s12")
    a("v_lshlrev_b32 v16, 2, v9")
    a("v_mov_b32 v76, 0"); a("v_mov_b32 v77, s96"); a("v_mov_b32 v78, 0"); a("v_mov_b32 v79, s96")
    a("s_mov_b32 s67, 0")
    Lh4 = lab("h4"); a.label(Lh4)
    a("buffer_load_dwordx2 v[20:21], v19, s[56:59], s84 offen sc1")
    a("s_waitcnt vmcnt(0)")
    tagcheck([21], 40, 44, Lh4, sleep=4)
    a("v_lshlrev_b32 v21, 16, v20"); a("v_and_b32 v22, s63, v20")
    a("v_lshlrev_b32 v23, 16, v8"); a("v_and_b32 v24, s63, v8")
    a("s_mov_b32 s67, 0")
    Lg = lab("gg"); a.label(Lg)
    for t in range(3): a(f"buffer_load_dwordx4 v[{64+4*t}:{67+4*t}], v18, s[56:59], s{80+t} offen sc1")
    a("s_mov_b64 s[98:99], exec")
    a("s_mov_b32 exec_hi, 0")
    Lx = lab("x"); a(f"s_cbranch_execz {Lx}")
    a("buffer_load_dwordx4 v[76:79], v18, s[56:59], s83 offen sc1")
    a.label(Lx)
    a("s_mov_b64 exec, s[98:99]")
    a("s_waitcnt vmcnt(0)")
    tagcheck([65+2*i for i in range(8)], 40, 44, Lg, sleep=tsleep, tag="s96")
    stamp(14)
    a("v_add_f32 v64, v64, v68"); a("v_add_f32 v66, v66, v70"); a("v_add_f32 v72, v72, v76"); a("v_add_f32 v74, v74, v78")
    a("v_add_f32 v64, v64, v72"); a("v_add_f32 v66, v66, v74")
    for rot in (4, 8):
        a("s_nop 0")
        a(f"v_add_f32_dpp v64, v64, v64 row_ror:{rot} row_mask:0xf bank_mask:0xf")
        a(f"v_add_f32_dpp v66, v66, v66 row_ror:{rot} row_mask:0xf bank_mask:0xf")
    a("s_nop 1")
    a("v_permlane32_swap_b32 v64, v66")
    a("v_add_f32 v64, v64, v66")
    a("v_mov_b32 v66, v64"); a("s_nop 1")
    a("v_permlane16_swap_b32 v64, v66")
    a("v_add_f32 v64, v64, v66")
    a("v_mov_b32 v66, v64"); a("s_nop 1")
    a("v_permlane32_swap_b32 v64, v66")
    a("v_cvt_pk_bf16_f32 v40, v64, v66")
    a("v_lshlrev_b32 v41, 16, v40"); a("v_and_b32 v42, s63, v40")
    a("v_add_f32 v41, v41, v23"); a("v_add_f32 v42, v42, v24")
    a("v_cvt_pk_bf16_f32 v40, v41, v42")
    a("v_lshlrev_b32 v41, 16, v40"); a("v_and_b32 v42, s63, v40")
    a("v_add_f32 v41, v41, v21"); a("v_add_f32 v42, v42, v22")
    a("v_cvt_pk_bf16_f32 v40, v41, v42")
    a("s_mov_b64 exec, 0xf")
    a("buffer_store_dword v40, v16, s[52:55], s73 offen")
    a("s_mov_b64 exec, -1")
    a("s_cmp_lg_u32 s2, 0"); a("s_cbranch_scc1 L_fin")
    a("s_mov_b64 exec, 1")
    a("buffer_store_dword v15, v6, s[56:59], 0 offen sc1")
    a("s_mov_b64 exec, -1")
    a.label("L_fin")
    if stamps == "dbg":
        stamp(15)
        a("s_cmp_lg_u32 s3, 7"); a("s_cbranch_scc1 L_end")
        a("s_load_dwordx2 s[88:89], s[0:1], 88")
        a("s_waitcnt lgkmcnt(0)")
        a("s_mov_b32 s90, 256"); a("s_mov_b32 s91, 0x20000")
        a(f"v_not_b32 v{SB}, v{SB}")
        a("v_mov_b32 v44, 0")
        a("s_mov_b64 exec, 1")
        for k, idx in enumerate((0, 6, 1, 2, 4, 5, 14, 15)):
            a(f"buffer_atomic_umax v{SB+idx}, v44, s[88:91], 0 offen offset:{4*k}")
        a("s_mov_b64 exec, -1")
    elif stamps:
        stamp(15)
        a("s_lshl_b32 s10, s2, 3"); a("s_add_u32 s10, s10, s3"); a("s_lshl_b32 s10, s10, 6"); a(f"s_add_u32 s10, s10, {WS_STAMP}")
        a("v_mov_b32 v44, 0")
        a("s_mov_b64 exec, 1")
        for i in range(4): a(f"buffer_store_dwordx4 v[{SB+4*i}:{SB+3+4*i}], v44, s[56:59], s10 offen offset:{16*i}")
        a("s_mov_b64 exec, -1")
    a.label("L_end")
    a("s_endpgm")
    return a

HDR = """; Fused pre-LN GQA decode attention + channel-MLP block, single persistent launch (256 workgroups x 8 waves).
; @launch grid=(256,1,1) block=(512,1,1) lds={lds}
.amdgcn_target "amdgcn-amd-amdhsa--gfx950"
.text
.globl {name}_kernel
.p2align 8
.type {name}_kernel,@function
{name}_kernel:
"""
FTR = """
.section .rodata,"a"
.p2align 6
.amdhsa_kernel {name}_kernel
  .amdhsa_next_free_vgpr 256
  .amdhsa_next_free_sgpr 102
  .amdhsa_accum_offset 256
  .amdhsa_group_segment_fixed_size 0
  .amdhsa_kernarg_size 104
  .amdhsa_user_sgpr_count 2
  .amdhsa_user_sgpr_kernarg_segment_ptr 1
  .amdhsa_system_sgpr_workgroup_id_x 1
.end_amdhsa_kernel
"""
def build(path, **kw):
    a = gen(**kw)
    probs = check_hazards(a.lines)
    open(path, "w").write(HDR.format(name=NAME, lds=LDS_BYTES) + a.text() + FTR.format(name=NAME))
    return probs

if __name__ == "__main__":
    out = sys.argv[1] if len(sys.argv) > 1 else "k3.s"
    kw = {}
    for arg in sys.argv[2:]:
        if arg == "stamps": kw["stamps"] = True
        elif arg == "dbg": kw["stamps"] = "dbg"
        elif "=" in arg:
            k, v = arg.split("="); kw[k] = eval(v)
    probs = build(out, **kw)
    print("hazards:", len(probs))
```

```python
import sys
from asmlib import Asm, check_hazards

NAME = "sequential_preLN__gqa_block_cached__mixer_channel_mlp__decode"

WS_EPOCH = 0
WS_ML = 0x1000
WS_H  = 0x1E8000
WS_OP = 0x8000
WS_HP = 0x88000
WS_QB = 0x108000
WS_GP = 0x108000
WS_STAMP = 0x400000
L_W = 0
L_W2 = 32768
L_WQ = 65536
L_RED = 81920
L_R1 = 90112
L_YB = 98304
L_QPB = 102400
L_PB = 106496
L_T1 = 110592
L_GB = 114688
L_QL = 116736
L_FLAGS = 117760
L_MLB = 118016
L_WR = 118784
L_WQ2 = 122880
L_QPB2 = 139264
LDS_BYTES = 143360
F_Y, F_QP, F_Q, F_ML, F_P, F_W, F_O, F_WR, F_Q2 = 0, 16, 32, 48, 64, 80, 96, 112, 128

LOG2E = 0x3fb8aa3b
SCALE = 0x3db504f3
EPS = 0x3727c5ac
TAGC = 0x9E3779B9
POLL_MAX = 20000

def gen(stamps=False, psleep=2, tsleep=1, qearly=6, mlsleep=8, rot=True, no_w=False, no_pwait=False, no_q=False, khold=0, lanemask=True, delay=None, NA=(0,12,22,22,20,22,22,8), NB=(0,8,8,8,8,8,8,8), NC=(24,12,2,2,4,2,2,16), QL=0, QH=4):
    a = Asm()
    NT = " nt"
    uid = [0]
    def lab(p):
        uid[0] += 1
        return f"L_{p}_{uid[0]}"
    SB = 240
    def stamp(idx):
        if stamps:
            a("s_memrealtime s[78:79]")
            a("s_waitcnt lgkmcnt(0)")
            a(f"v_mov_b32 v{SB+idx}, s78")
    def allreduce(op, rs, tmps):
        k = len(rs)
        for rot in (8, 4, 2, 1):
            if k == 1: a("s_nop 1")
            elif k == 2: a("s_nop 0")
            for r in rs:
                a(f"{op}_dpp v{r}, v{r}, v{r} row_ror:{rot} row_mask:0xf bank_mask:0xf")
        for sw in ("v_permlane16_swap_b32", "v_permlane32_swap_b32"):
            for r, t in zip(rs, tmps): a(f"v_mov_b32 v{t}, v{r}")
            a("s_nop 1" if k == 1 else "s_nop 0")
            if k == 2: pass
            for r, t in zip(rs, tmps): a(f"{sw} v{r}, v{t}")
            for r, t in zip(rs, tmps): a(f"{op} v{r}, v{r}, v{t}")
    def rb(dst, src):
        a(f"v_cvt_pk_bf16_f32 v{dst}, v{src}, v{src}")
        a(f"v_lshlrev_b32 v{dst}, 16, v{dst}")
    def setflag(off): a(f"ds_write_b32 v11, v0 offset:{off}")
    def wait_flags4(off, tmp, sleep=0):
        L = lab("wf")
        a.label(L)
        if sleep: a(f"s_sleep {sleep}")
        a(f"ds_read_b128 v[{tmp}:{tmp+3}], v7 offset:{off}")
        a("s_waitcnt lgkmcnt(0)")
        a(f"v_and_b32 v{tmp}, v{tmp}, v{tmp+1}"); a(f"v_and_b32 v{tmp+2}, v{tmp+2}, v{tmp+3}")
        a(f"v_and_b32 v{tmp}, v{tmp}, v{tmp+2}")
        a(f"v_cmp_ne_u32 vcc, 1, v{tmp}")
        a(f"s_cbranch_vccnz {L}")
    def wait_flag1(off, tmp, sleep=0):
        L = lab("wf")
        a.label(L)
        if sleep: a(f"s_sleep {sleep}")
        a(f"ds_read_b32 v{tmp}, v11 offset:{off}")
        a("s_waitcnt lgkmcnt(0)")
        a(f"v_cmp_ne_u32 vcc, 1, v{tmp}")
        a(f"s_cbranch_vccnz {L}")
    def tagcheck(tagregs, acc, t1, retry_label, cnt=67, sleep=0, tag="s8"):
        first = True; i = 0
        while i < len(tagregs):
            if i + 1 < len(tagregs):
                a(f"v_xor_b32 v{t1}, {tag}, v{tagregs[i]}")
                if first:
                    a(f"v_xor_b32 v{acc}, {tag}, v{tagregs[i+1]}")
                    a(f"v_or_b32 v{acc}, v{acc}, v{t1}")
                else:
                    a(f"v_xor_b32 v{t1+1}, {tag}, v{tagregs[i+1]}")
                    a(f"v_or3_b32 v{acc}, v{acc}, v{t1}, v{t1+1}")
                i += 2
            else:
                if first: a(f"v_xor_b32 v{acc}, {tag}, v{tagregs[i]}")
                else:
                    a(f"v_xor_b32 v{t1}, {tag}, v{tagregs[i]}")
                    a(f"v_or_b32 v{acc}, v{acc}, v{t1}")
                i += 1
            first = False
        a(f"v_cmp_ne_u32 vcc, 0, v{acc}")
        done = lab("pd")
        a(f"s_cbranch_vccz {done}")
        if lanemask: a("s_mov_b64 exec, vcc")
        if sleep: a(f"s_sleep {sleep}")
        a(f"s_add_u32 s{cnt}, s{cnt}, 1")
        a(f"s_cmp_lt_u32 s{cnt}, {POLL_MAX}")
        a(f"s_cbranch_scc1 {retry_label}")
        a.label(done)
        if lanemask: a("s_mov_b64 exec, -1")
    def layernorm8(e, t):
        a(f"v_readfirstlane_b32 s12, v{e}")
        a("s_nop 1")
        for i in range(8): a(f"v_subrev_f32 v{t+4+(i&3)+ (0)}, s12, v{e+i}") if False else None
        a(f"v_subrev_f32 v{t+2}, s12, v{e}"); a(f"v_subrev_f32 v{t+3}, s12, v{e+1}")
        a(f"v_add_f32 v{t}, v{t+2}, v{t+3}"); a(f"v_mul_f32 v{t+1}, v{t+2}, v{t+2}"); a(f"v_fmac_f32 v{t+1}, v{t+3}, v{t+3}")
        for i in range(2, 8, 2):
            a(f"v_subrev_f32 v{t+2}, s12, v{e+i}"); a(f"v_subrev_f32 v{t+3}, s12, v{e+i+1}")
            a(f"v_add_f32 v{t}, v{t}, v{t+2}"); a(f"v_fmac_f32 v{t+1}, v{t+2}, v{t+2}")
            a(f"v_add_f32 v{t}, v{t}, v{t+3}"); a(f"v_fmac_f32 v{t+1}, v{t+3}, v{t+3}")
        allreduce("v_add_f32", [t, t+1], [t+2, t+3])
        a(f"v_mul_f32 v{t}, 0x3b000000, v{t}")
        a(f"v_mul_f32 v{t+1}, 0x3b000000, v{t+1}")
        a(f"v_fma_f32 v{t+1}, -v{t}, v{t}, v{t+1}")
        a(f"v_add_f32 v{t}, s12, v{t}")
        a(f"v_max_f32 v{t+1}, 0, v{t+1}")
        a(f"v_cvt_pk_bf16_f32 v{t+2}, v{t}, v{t+1}")
        a(f"v_and_b32 v{t+1}, s63, v{t+2}")
        a(f"v_lshlrev_b32 v{t}, 16, v{t+2}")
        a(f"v_add_f32 v{t+1}, {EPS}, v{t+1}")
        for i in range(4): a(f"v_sub_f32 v{e+i}, v{e+i}, v{t}")
        rb(t+1, t+1)
        a(f"v_sqrt_f32 v{t+1}, v{t+1}")
        for i in range(4, 8): a(f"v_sub_f32 v{e+i}, v{e+i}, v{t}")
        rb(t+1, t+1)
        a(f"v_rcp_f32 v{t+1}, v{t+1}")
        for i in range(4): a(f"v_cvt_pk_bf16_f32 v{t+8+i}, v{e+2*i}, v{e+2*i+1}")
        for i in range(4):
            a(f"v_lshlrev_b32 v{e+2*i}, 16, v{t+8+i}"); a(f"v_and_b32 v{e+2*i+1}, s63, v{t+8+i}")
        for i in range(8): a(f"v_mul_f32 v{e+i}, v{e+i}, v{t+1}")
        for i in range(4): a(f"v_cvt_pk_bf16_f32 v{t+8+i}, v{e+2*i}, v{e+2*i+1}")
    def kvstep():
        a("s_add_u32 s83, s83, 4096"); a("s_and_b32 s83, s83, 0x7fff"); a("s_add_u32 s65, s64, s83")
    def role_setup():
        assert sum(NA) == 128 and sum(NB) == 56 and sum(NC) == 64 and all(x + y + z <= 32 for x, y, z in zip(NA, NB, NC))
        def pack(v): return sum(x << (8*i) for i, x in enumerate(v))
        def pre(v): return [sum(v[:i]) for i in range(8)]
        a("s_lshl_b32 s87, s4, 3")
        def look(dst, v):
            p = pack(v)
            a(f"s_mov_b32 s98, {p & 0xffffffff}"); a(f"s_mov_b32 s99, {p >> 32}")
            a("s_lshr_b64 s[98:99], s[98:99], s87"); a(f"s_and_b32 s{dst}, s98, 0xff")
        look(10, NA); look(12, NB); look(13, NC)
        look(14, pre(NA)); a("s_add_u32 s15, s14, s7")
        look(14, pre(NB)); a("s_sub_u32 s10, s7, s10"); a("s_add_u32 s9, s14, s10")
        a("s_mov_b32 s97, 3")
        a("s_sub_u32 s76, s10, s12")
        a("s_cmp_lt_u32 s76, s13"); a("s_cselect_b32 s97, 2, s97")
        a("s_cmp_lt_u32 s10, s12"); a("s_cselect_b32 s97, 1, s97")
        a("s_cmp_gt_u32 s10, s7"); a("s_cselect_b32 s97, 0, s97")
        look(14, pre(NC)); a("s_add_u32 s13, s14, s76")
        a("s_lshr_b32 s84, s15, 4"); a("s_and_b32 s84, s84, 7")
        a("s_lshr_b32 s85, s15, 2"); a("s_and_b32 s85, s85, 3")
        a("s_and_b32 s86, s15, 3")
        a("s_lshr_b32 s76, s13, 4"); a("s_and_b32 s76, s76, 3")
        a("s_and_b32 s10, s13, 15"); a("s_lshl_b32 s62, s10, 5")
    def role_branch(la, lb, lc):
        a("s_cmp_eq_u32 s97, 0"); a(f"s_cbranch_scc1 {la}")
        a("s_cmp_eq_u32 s97, 1"); a(f"s_cbranch_scc1 {lb}")
        if lc: a("s_cmp_eq_u32 s97, 2"); a(f"s_cbranch_scc1 {lc}")
        a("s_branch L_endrole" if lc else "s_branch L_fin")
    def srd(sr, sz):
        a(f"s_mov_b32 s{sr+2}, {sz}"); a(f"s_mov_b32 s{sr+3}, 0x20000")
    SZ = {16: 4096, 20: 33554432, 24: 33554432, 28: 4194304, 32: 4194304, 36: 1835008, 40: 3584, 44: 1835008, 48: 1024, 52: 4096, 56: 268435456}

    if stamps: a("s_memrealtime s[78:79]")
    for (sr, off) in ((56, 96), (20, 8), (16, 0), (28, 24), (24, 16), (32, 32), (36, 48), (40, 56), (44, 64), (48, 72), (52, 80)):
        a(f"s_load_dwordx2 s[{sr}:{sr+1}], s[0:1], {off}")
    a("s_cmp_ge_u32 s2, 256")
    a("s_cbranch_scc1 L_end")
    a("v_lshrrev_b32 v4, 6, v0")
    a("v_and_b32 v1, 63, v0")
    a("v_readfirstlane_b32 s3, v4")
    a("v_and_b32 v2, 15, v1")
    a("v_lshrrev_b32 v3, 4, v1")
    a("s_and_b32 s4, s2, 7")
    a("s_lshr_b32 s7, s2, 3")
    a("s_lshr_b32 s5, s7, 3")
    a("s_and_b32 s6, s7, 7")
    if delay:
        if delay[0] >= 0:
            a(f"s_cmp_lg_u32 s4, {delay[0]}"); a("s_cbranch_scc1 L_nodelay")
        else:
            a(f"s_cmp_eq_u32 s4, {-delay[0]-1}"); a("s_cbranch_scc1 L_nodelay")
        a("s_memrealtime s[78:79]"); a("s_waitcnt lgkmcnt(0)"); a(f"s_add_u32 s77, s78, {delay[1]}")
        a.label("L_dl"); a("s_memrealtime s[78:79]"); a("s_waitcnt lgkmcnt(0)"); a("s_cmp_lt_u32 s78, s77"); a("s_cbranch_scc1 L_dl")
        a.label("L_nodelay")
    srd(56, SZ[56]); srd(20, SZ[20]); srd(16, SZ[16]); srd(28, SZ[28])
    a("s_and_b32 s11, s3, 3")
    a("s_lshl_b32 s70, s5, 3"); a("s_add_u32 s70, s70, s4")
    a("s_lshl_b32 s64, s70, 20"); a("s_lshl_b32 s10, s6, 17"); a("s_add_u32 s64, s64, s10")
    a("s_lshl_b32 s10, s11, 15"); a("s_add_u32 s64, s64, s10")
    a("s_lshl_b32 s83, s5, 13") if rot else a("s_mov_b32 s83, 0")
    a("s_add_u32 s65, s64, s83")
    a("v_mov_b32 v6, 0")
    a("v_lshlrev_b32 v14, 4, v1")
    a("s_cmp_ge_u32 s3, 4")
    a("s_cbranch_scc1 L_v1")
    a("v_lshlrev_b32 v47, 8, v2"); a("v_lshlrev_b32 v10, 4, v3"); a("v_add_u32 v47, v47, v10")
    a("s_lshl_b32 s10, s4, 2"); a("s_add_u32 s10, s10, s5"); a("s_lshl_b32 s10, s10, 14"); a("s_lshl_b32 s12, s11, 10"); a("s_add_u32 s10, s10, s12"); a(f"s_add_u32 s66, s10, {WS_QB}")
    for k in range(1, 4): a(f"s_add_u32 s{71+k}, s66, {k*4096}")
    a("s_setprio 2")
    a("s_waitcnt lgkmcnt(0)")
    a("buffer_load_dword v5, v6, s[56:59], 0 offen sc1")
    def qloads():
        for k in range(4):
            a(f"buffer_load_dwordx4 v[{16+4*k}:{19+4*k}], v14, s[56:59], s{66 if k == 0 else 71+k} offen sc1")
    for t in range(8):
        for i in range(4):
            r = 64 + 16*t + 4*i
            a(f"buffer_load_dwordx4 v[{r}:{r+3}], v47, s[20:23], s65 offen offset:{i*64}{NT}")
        if t < 7: kvstep()
        if t == 1:
            a("v_lshlrev_b32 v9, 2, v1"); a(f"v_add_u32 v9, {L_FLAGS}, v9"); a("ds_write_b32 v9, v6"); a("v_mov_b32 v0, 1")
            a("s_waitcnt lgkmcnt(0)"); a("s_barrier")
        if t == qearly - 1: qloads()
    a("s_branch L_k2")
    a.label("L_v1")
    a("v_lshrrev_b32 v10, 3, v1"); a("v_lshlrev_b32 v10, 13, v10"); a("v_and_b32 v9, 7, v1"); a("v_lshlrev_b32 v9, 4, v9"); a("v_add_u32 v10, v10, v9")
    a("s_lshl_b32 s13, s5, 20"); a("s_lshl_b32 s12, s11, 18"); a("s_add_u32 s13, s13, s12")
    a("s_lshl_b32 s12, s4, 10"); a("s_add_u32 s13, s13, s12"); a("s_lshl_b32 s12, s6, 7"); a("s_add_u32 s13, s13, s12")
    a("s_lshl_b32 s12, s11, 12"); a(f"s_add_u32 s12, s12, {L_WQ}")
    a("s_lshl_b32 s10, s11, 10")
    a("s_setprio 3")
    a("s_waitcnt lgkmcnt(0)")
    a("buffer_load_dword v5, v6, s[56:59], 0 offen sc1")
    if QL is not None:
        a(f"s_cmp_eq_u32 s4, {QL}"); a("s_cbranch_scc1 L_v_noq1")
    a("buffer_load_dwordx4 v[16:19], v14, s[16:19], s10 offen")
    a("s_mov_b32 s14, s13")
    for i in range(4):
        a("s_mov_b32 m0, s12"); a("s_add_u32 s12, s12, 1024")
        a(f"buffer_load_dwordx4 v10, s[28:31], s13 offen{NT} lds"); a("s_add_u32 s13, s13, 0x10000")
    if QL is not None:
        a(f"s_cmp_lg_u32 s4, {QH}"); a("s_cbranch_scc1 L_v_noq1")
        a(f"s_sub_u32 s14, s14, {(QH - QL) * 1024}")
        a("s_lshl_b32 s12, s11, 12"); a(f"s_add_u32 s12, s12, {L_WQ2}")
        for i in range(4):
            a("s_mov_b32 m0, s12"); a("s_add_u32 s12, s12, 1024")
            a(f"buffer_load_dwordx4 v10, s[28:31], s14 offen{NT} lds"); a("s_add_u32 s14, s14, 0x10000")
        a.label("L_v_noq1")
    a("v_lshlrev_b32 v9, 2, v1"); a(f"v_add_u32 v9, {L_FLAGS}, v9"); a("ds_write_b32 v9, v6"); a("v_mov_b32 v0, 1")
    a("s_waitcnt lgkmcnt(0)"); a("s_barrier")

    if stamps:
        a("s_waitcnt lgkmcnt(0)")
        for i in range(16): a(f"v_mov_b32 v{SB+i}, 0")
        a(f"v_mov_b32 v{SB}, s78")
    for sr in (24, 32, 36, 40, 44, 48, 52): srd(sr, SZ[sr])
    role_setup()
    a("s_mov_b32 s60, 0x05040100"); a("s_mov_b32 s61, 0x07060302"); a("s_mov_b32 s63, 0xffff0000")
    a(f"v_mov_b32 v7, {L_FLAGS}"); a("s_lshl_b32 s10, s11, 2"); a("v_add_u32 v11, s10, v7")
    a("v_lshlrev_b32 v13, 3, v1")
    a("v_lshrrev_b32 v9, 2, v2"); a("v_lshlrev_b32 v10, 3, v3"); a("v_add_u32 v9, v9, v10"); a("v_lshlrev_b32 v44, 7, v9")
    a("v_and_b32 v10, 3, v2"); a("v_lshlrev_b32 v10, 3, v10"); a("v_add_u32 v44, v44, v10")
    a("s_lshl_b32 s10, s11, 12"); a(f"s_add_u32 s10, s10, {L_WQ}"); a("v_add_u32 v44, s10, v44"); a("v_mov_b32 v48, v44")
    a("v_and_b32 v45, 3, v2"); a("v_lshlrev_b32 v45, 10, v45"); a("v_lshlrev_b32 v46, 4, v3"); a("v_add_u32 v45, v45, v46")
    a("s_lshl_b32 s10, s5, 8"); a("s_lshl_b32 s12, s11, 6"); a("s_add_u32 s10, s10, s12"); a(f"s_add_u32 s10, s10, {L_YB}"); a("v_add_u32 v45, s10, v45")
    a("v_lshlrev_b32 v46, 4, v2"); a("s_lshl_b32 s10, s11, 10"); a(f"s_add_u32 s10, s10, {L_QPB}"); a("v_add_u32 v46, s10, v46")
    a("s_lshl_b32 s10, s11, 2"); a(f"s_add_u32 s10, s10, {L_QPB}"); a("v_add_u32 v47, s10, v14")
    a("s_lshl_b32 s10, s11, 10"); a(f"s_add_u32 s10, s10, {L_YB}"); a("v_add_u32 v9, s10, v14")
    a("s_lshl_b32 s10, s4, 2"); a("s_add_u32 s10, s10, s11"); a("s_lshl_b32 s10, s10, 2"); a("s_add_u32 s10, s10, s5"); a("s_lshl_b32 s10, s10, 12")
    a("s_lshl_b32 s12, s6, 9"); a("s_add_u32 s10, s10, s12"); a(f"s_add_u32 s66, s10, {WS_QB}")
    if QL is not None:
        a(f"s_cmp_eq_u32 s4, {QL}"); a("s_cbranch_scc1 L_v_noq2")
        a(f"s_cmp_eq_u32 s4, {QH}"); a("s_cbranch_scc1 L_v_w8")
        a("s_waitcnt vmcnt(4)"); a("s_branch L_v_w")
        a.label("L_v_w8"); a("s_waitcnt vmcnt(8)"); a.label("L_v_w")
    else:
        a("s_waitcnt vmcnt(4)")
    stamp(6)
    a("v_readfirstlane_b32 s8, v5")
    for i in range(4):
        a(f"v_lshlrev_b32 v{20+2*i}, 16, v{16+i}"); a(f"v_and_b32 v{21+2*i}, s63, v{16+i}")
    a(f"s_add_u32 s8, s8, {TAGC}")
    a("v_mov_b32 v15, s8")
    layernorm8(20, 32)
    a("ds_write_b128 v9, v[40:43]")
    setflag(F_Y)
    wait_flags4(F_Y, 40)
    a("ds_read_b128 v[192:195], v45")
    if QL is not None:
        a(f"s_cmp_eq_u32 s4, {QH}"); a("s_cbranch_scc1 L_v_w4")
        a("s_waitcnt vmcnt(0)"); a("s_branch L_v_w0")
        a.label("L_v_w4"); a("s_waitcnt vmcnt(4)"); a.label("L_v_w0")
    else:
        a("s_waitcnt vmcnt(0)")
    stamp(7)
    for nt in range(4):
        a(f"ds_read_b64_tr_b16 v[{196+4*nt}:{197+4*nt}], v44 offset:{nt*32}")
        a(f"ds_read_b64_tr_b16 v[{198+4*nt}:{199+4*nt}], v44 offset:{nt*32+512}")
    a("s_waitcnt lgkmcnt(0)")
    for nt in range(4):
        a(f"v_mfma_f32_16x16x32_bf16 v[{212+4*nt}:{215+4*nt}], v[192:195], v[{196+4*nt}:{199+4*nt}], 0")
    a("v_mov_b32 v45, s8")
    a("s_nop 3")
    for nt in range(4): a(f"ds_write_b128 v46, v[{212+4*nt}:{215+4*nt}] offset:{nt*256}")
    setflag(F_QP)
    wait_flags4(F_QP, 40)
    for w in range(4): a(f"ds_read_b32 v{40+w}, v47 offset:{w*1024}")
    a("s_waitcnt lgkmcnt(0)")
    a("v_add_f32 v40, v40, v41"); a("v_add_f32 v42, v42, v43"); a("v_add_f32 v44, v40, v42")
    a("buffer_store_dwordx2 v[44:45], v13, s[56:59], s66 offen sc1")
    if QL is not None:
        a(f"s_cmp_lg_u32 s4, {QH}"); a("s_cbranch_scc1 L_v_q_done")
        a(f"v_add_u32 v44, {L_WQ2 - L_WQ}, v48")
        a("s_waitcnt vmcnt(1)")
        for nt in range(4):
            a(f"ds_read_b64_tr_b16 v[{196+4*nt}:{197+4*nt}], v44 offset:{nt*32}")
            a(f"ds_read_b64_tr_b16 v[{198+4*nt}:{199+4*nt}], v44 offset:{nt*32+512}")
        a(f"v_add_u32 v46, {L_QPB2 - L_QPB}, v46"); a(f"v_add_u32 v47, {L_QPB2 - L_QPB}, v47")
        a("s_waitcnt lgkmcnt(0)")
        for nt in range(4):
            a(f"v_mfma_f32_16x16x32_bf16 v[{212+4*nt}:{215+4*nt}], v[192:195], v[{196+4*nt}:{199+4*nt}], 0")
        a(f"s_sub_u32 s66, s66, {(QH - QL) * 65536}")
        a("s_nop 6")
        for nt in range(4): a(f"ds_write_b128 v46, v[{212+4*nt}:{215+4*nt}] offset:{nt*256}")
        setflag(F_Q2)
        wait_flags4(F_Q2, 40)
        for w in range(4): a(f"ds_read_b32 v{40+w}, v47 offset:{w*1024}")
        a("s_waitcnt lgkmcnt(0)")
        a("v_add_f32 v40, v40, v41"); a("v_add_f32 v42, v42, v43"); a("v_add_f32 v44, v40, v42")
        a("buffer_store_dwordx2 v[44:45], v13, s[56:59], s66 offen sc1")
        a("s_branch L_v_q_done")
        a.label("L_v_noq2")
        a("s_waitcnt vmcnt(0)")
        a("v_readfirstlane_b32 s8, v5")
        a("s_nop 1")
        a(f"s_add_u32 s8, s8, {TAGC}")
        a("v_mov_b32 v15, s8")
        a.label("L_v_q_done")
    a("s_setprio 1")
    stamp(1)
    for k in range(32):
        r = 64 + 4*k
        a(f"buffer_load_dwordx4 v[{r}:{r+3}], v14, s[24:27], s65 offen offset:{(k%4)*1024}{NT}")
        if k % 4 == 3 and k < 31: kvstep()
    stamp(2)
    a("v_lshlrev_b32 v10, 2, v2")
    a("s_lshl_b32 s10, s76, 10"); a("s_lshl_b32 s12, s62, 1"); a("s_add_u32 s10, s10, s12")
    a("buffer_load_dword v12, v10, s[16:19], s10 offen")
    a("s_lshl_b32 s95, s4, 3"); a("s_add_u32 s95, s95, s6"); a("s_lshl_b32 s95, s95, 3")
    a("v_and_b32 v9, 3, v1"); a("v_lshlrev_b32 v9, 2, v9"); a("s_lshl_b32 s12, s95, 1")
    a("buffer_load_dword v8, v9, s[48:51], s12 offen")
    a("buffer_load_dword v4, v9, s[52:55], s12 offen")
    NSM = 3
    a("v_lshlrev_b32 v20, 9, v3"); a("v_lshlrev_b32 v9, 5, v2"); a("v_add_u32 v20, v20, v9")
    a("s_lshl_b32 s10, s11, 11"); a(f"s_add_u32 s10, s10, {L_RED}"); a("v_add_u32 v20, s10, v20")
    a("s_lshl_b32 s10, s11, 9"); a(f"s_add_u32 s10, s10, {L_RED}"); a("v_add_u32 v21, s10, v13")
    a("s_lshl_b32 s10, s70, 3"); a("s_add_u32 s10, s10, s6"); a("s_lshl_b32 s10, s10, 11"); a("s_lshl_b32 s12, s11, 9"); a("s_add_u32 s10, s10, s12"); a(f"s_add_u32 s66, s10, {WS_OP}")
    a("v_lshrrev_b32 v10, 2, v2"); a("v_lshlrev_b32 v10, 6, v10"); a("v_lshlrev_b32 v9, 4, v3"); a("v_add_u32 v10, v10, v9")
    a("s_lshl_b32 s10, s11, 10"); a(f"s_add_u32 s10, s10, {L_PB}"); a("v_add_u32 v10, s10, v10")
    if not no_pwait: wait_flag1(F_P, 40, sleep=1)
    PF = 224
    for T in range(4): a(f"ds_read_b128 v[{PF+4*T}:{PF+3+4*T}], v10 offset:{T*256}")
    stamp(3)
    def perms(T, dst, ulist):
        raw = 64 + 32*T
        for u in ulist:
            for jj in range(4):
                s1 = raw + 4*(2*u) + jj; s0 = raw + 4*(2*u+1) + jj
                a(f"v_perm_b32 v{dst + 4*(2*jj) + u}, v{s0}, v{s1}, s60")
                a(f"v_perm_b32 v{dst + 4*(2*jj+1) + u}, v{s0}, v{s1}, s61")
    ACC = 32
    def mfmas(T, src, js):
        for j in js:
            c = "0" if T == 0 else f"v[{ACC+4*j}:{ACC+4*j+3}]"
            a(f"v_mfma_f32_16x16x32_bf16 v[{ACC+4*j}:{ACC+4*j+3}], v[{PF+4*T}:{PF+3+4*T}], v[{src+4*j}:{src+4*j+3}], {c}")
    F = [192, 64, 96, 128]
    def after(k): return min(63, (31 - k) + NSM)
    a(f"s_waitcnt vmcnt({after(7)})")
    perms(0, F[0], range(4))
    a(f"s_waitcnt vmcnt({after(15)}) lgkmcnt(0)")
    for u in range(4):
        perms(1, F[1], [u]); mfmas(0, F[0], [2*u, 2*u+1])
    a(f"s_waitcnt vmcnt({after(23)})")
    for u in range(4):
        perms(2, F[2], [u]); mfmas(1, F[1], [2*u, 2*u+1])
    mfmas(2, F[2], range(4))
    for u in range(4):
        a(f"s_waitcnt vmcnt({after(24+2*u+1)})")
        perms(3, F[3], [u])
        mfmas(2, F[2], [4+u])
    a("s_nop 0")
    mfmas(3, F[3], range(8))
    stamp(4)
    a("v_mov_b32 v17, s8")
    a("s_nop 6")
    for j in range(0, 8, 2):
        a(f"ds_write2_b32 v20, v{ACC+4*j}, v{ACC+4*(j+1)} offset0:{j} offset1:{j+1}")
    setflag(F_O)
    wait_flags4(F_O, 24)
    for w in range(4): a(f"ds_read_b64 v[{24+2*w}:{25+2*w}], v21 offset:{w*2048}")
    a("s_waitcnt lgkmcnt(0)")
    for c in range(2):
        a(f"v_add_f32 v{24+c}, v{24+c}, v{26+c}"); a(f"v_add_f32 v{28+c}, v{28+c}, v{30+c}")
    for c in range(2): a(f"v_add_f32 v{24+c}, v{24+c}, v{28+c}")
    a("v_cvt_pk_bf16_f32 v16, v24, v25")
    a("buffer_store_dwordx2 v[16:17], v13, s[56:59], s66 offen sc1")
    stamp(5)
    a("s_setprio 3")
    a(f"s_mov_b32 s69, {LOG2E}")
    role_branch("L_roleA", "L_roleB", "L_roleC")

    a.label("L_k2")
    if stamps:
        a("s_waitcnt lgkmcnt(0)")
        for i in range(16): a(f"v_mov_b32 v{SB+i}, 0")
        a(f"v_mov_b32 v{SB}, s78")
    stamp(2)
    if stamps:
        a("s_getreg_b32 s12, hwreg(HW_REG_HW_ID)"); a(f"v_mov_b32 v{SB+6}, s12")
        a("s_getreg_b32 s12, hwreg(HW_REG_XCC_ID)"); a("s_add_u32 s12, s12, 1"); a(f"v_mov_b32 v{SB+7}, s12")
    for sr in (24, 32, 36, 40, 44, 48, 52): srd(sr, SZ[sr])
    role_setup()
    a("s_mov_b32 s63, 0xffff0000")
    a(f"v_mov_b32 v7, {L_FLAGS}"); a("s_lshl_b32 s10, s11, 2"); a("v_add_u32 v11, s10, v7")
    a("v_lshlrev_b32 v13, 3, v1")
    a(f"s_waitcnt vmcnt({(8 - qearly) * 4})")
    a("v_readfirstlane_b32 s8, v5")
    a("s_mov_b32 s67, 0")
    a(f"s_add_u32 s8, s8, {TAGC}")
    a("v_mov_b32 v15, s8")
    Lq = lab("qg"); Lq2 = lab("qg2")
    a(f"s_branch {Lq2}")
    a.label(Lq)
    qloads()
    a("s_waitcnt vmcnt(0)")
    a.label(Lq2)
    tagcheck([17+2*i for i in range(8)], 40, 44, Lq, sleep=psleep)
    if stamps: a(f"v_mov_b32 v{SB+1}, s67")
    a("v_add_f32 v16, v16, v20"); a("v_add_f32 v24, v24, v28"); a("v_add_f32 v18, v18, v22"); a("v_add_f32 v26, v26, v30")
    a("v_add_f32 v16, v16, v24"); a("v_add_f32 v18, v18, v26")
    a("v_cvt_pk_bf16_f32 v40, v16, v18")
    a("s_lshl_b32 s10, s11, 8"); a(f"s_add_u32 s10, s10, {L_QL}")
    a("v_lshlrev_b32 v10, 2, v1"); a("v_add_u32 v10, s10, v10")
    a("ds_write_b32 v10, v40")
    setflag(F_Q)
    stamp(3)
    a("v_and_b32 v10, 3, v2"); a("v_lshlrev_b32 v10, 8, v10"); a("v_lshlrev_b32 v44, 4, v3"); a("v_add_u32 v10, v10, v44")
    a(f"v_add_u32 v10, {L_QL}, v10")
    wait_flags4(F_Q, 40)
    for i in range(4): a(f"ds_read_b128 v[{16+4*i}:{19+4*i}], v10 offset:{i*64}")
    a("s_waitcnt lgkmcnt(0)")
    for t in range(8):
        if t >= qearly: a(f"s_waitcnt vmcnt({(7-t)*4})")
        for i in range(4):
            r = 64 + 16*t + 4*i
            c = "0" if i == 0 else f"v[{32+4*t}:{35+4*t}]"
            a(f"v_mfma_f32_16x16x32_bf16 v[{32+4*t}:{35+4*t}], v[{16+4*i}:{19+4*i}], v[{r}:{r+3}], {c}")
    a(f"s_mov_b32 s68, {SCALE}"); a(f"s_mov_b32 s69, {LOG2E}")
    a("s_nop 5")
    for aa in range(2):
        for q in range(1, 4):
            for h in range(4):
                a(f"v_mov_b32_dpp v{32+16*aa+h}, v{32+16*aa+4*q+h} quad_perm:[0,1,2,3] row_mask:{hex(1<<q)} bank_mask:0xf")
    S = [[32+16*aa+h for h in range(4)] for aa in range(2)]
    for rnd in range(2):
        for aa in range(2):
            for hp in range(2): a(f"v_cvt_pk_bf16_f32 v{36+2*aa+hp}, v{S[aa][2*hp]}, v{S[aa][2*hp+1]}")
        for aa in range(2):
            for hp in range(2):
                a(f"v_lshlrev_b32 v{S[aa][2*hp]}, 16, v{36+2*aa+hp}")
                a(f"v_and_b32 v{S[aa][2*hp+1]}, s63, v{36+2*aa+hp}")
        if rnd == 0:
            for aa in range(2):
                for h in range(4): a(f"v_mul_f32 v{S[aa][h]}, s68, v{S[aa][h]}")
    for h in range(4): a(f"v_max_f32 v{40+h}, v{S[0][h]}, v{S[1][h]}")
    allreduce("v_max_f32", [40, 41, 42, 43], [44, 45, 46, 47])
    for aa in range(2):
        for h in range(4): a(f"v_sub_f32 v{S[aa][h]}, v{S[aa][h]}, v{40+h}")
    for aa in range(2):
        for h in range(4): a(f"v_mul_f32 v{S[aa][h]}, s69, v{S[aa][h]}")
    for aa in range(2):
        for h in range(4): a(f"v_exp_f32 v{S[aa][h]}, v{S[aa][h]}")
    a("s_nop 0")
    for h in range(4): a(f"v_add_f32 v{52+h}, v{S[0][h]}, v{S[1][h]}")
    allreduce("v_add_f32", [52, 53, 54, 55], [44, 45, 46, 47])
    for h in range(4):
        a(f"v_mov_b32 v{56+2*h}, v{40+h}"); a(f"v_mov_b32 v{57+2*h}, v{52+h}")
    a("s_lshl_b32 s10, s11, 5"); a(f"s_add_u32 s10, s10, {L_MLB}")
    a("v_mov_b32 v10, s10")
    a("ds_write_b128 v10, v[56:59]")
    a("ds_write_b128 v10, v[60:63] offset:16")
    setflag(F_ML)
    a("v_lshlrev_b32 v10, 3, v2"); a(f"v_add_u32 v10, {L_MLB}, v10")
    a("v_lshrrev_b32 v9, 5, v1"); a("v_lshlrev_b32 v9, 8, v9")
    a("v_and_b32 v44, 3, v1"); a("v_lshlrev_b32 v44, 4, v44"); a("v_add_u32 v9, v9, v44")
    a("v_and_b32 v44, 31, v1"); a("v_lshrrev_b32 v44, 2, v44"); a("v_lshlrev_b32 v44, 1, v44"); a("v_add_u32 v9, v9, v44")
    a("s_lshl_b32 s10, s11, 10"); a(f"s_add_u32 s10, s10, {L_PB}"); a("v_add_u32 v9, s10, v9")
    wait_flags4(F_ML, 44)
    a("ds_read_b64 v[192:193], v10")
    a("s_waitcnt lgkmcnt(0)")
    a("v_mov_b32 v194, v192")
    a("s_nop 1")
    a("v_max_f32_dpp v194, v194, v194 row_ror:4 row_mask:0xf bank_mask:0xf")
    a("s_nop 1")
    a("v_max_f32_dpp v194, v194, v194 row_ror:8 row_mask:0xf bank_mask:0xf")
    a("v_sub_f32 v195, v192, v194"); a("v_mul_f32 v195, s69, v195"); a("v_exp_f32 v195, v195"); a("s_nop 0")
    a("v_mul_f32 v196, v193, v195")
    a("s_nop 1")
    a("v_add_f32_dpp v196, v196, v196 row_ror:4 row_mask:0xf bank_mask:0xf")
    a("s_nop 1")
    a("v_add_f32_dpp v196, v196, v196 row_ror:8 row_mask:0xf bank_mask:0xf")
    a("v_rcp_f32 v197, v196"); a("s_nop 0")
    a("v_mul_f32 v197, v197, v195")
    a("s_lshl_b32 s10, s11, 2")
    for h in range(4):
        a(f"s_add_u32 s12, s10, {h}")
        a(f"v_readlane_b32 s{72+h}, v197, s12")
    a("v_mov_b32 v56, v194"); a("v_mov_b32 v57, s8"); a("v_mov_b32 v58, v196"); a("v_mov_b32 v59, s8")
    for aa in range(2):
        for h in range(4): a(f"v_mul_f32 v{S[aa][h]}, s{72+h}, v{S[aa][h]}")
    for aa in range(2):
        for hp in range(2): a(f"v_cvt_pk_bf16_f32 v{36+2*aa+hp}, v{S[aa][2*hp]}, v{S[aa][2*hp+1]}")
    for aa in range(2):
        for hp in range(2):
            a(f"ds_write_b16 v9, v{36+2*aa+hp} offset:{aa*512 + (2*hp)*64}")
            a(f"ds_write_b16_d16_hi v9, v{36+2*aa+hp} offset:{aa*512 + (2*hp+1)*64}")
    setflag(F_P)
    a("s_lshl_b32 s10, s70, 3"); a("s_add_u32 s10, s10, s6"); a("s_lshl_b32 s10, s10, 6")
    a("s_lshl_b32 s12, s11, 4"); a("s_add_u32 s10, s10, s12"); a(f"s_add_u32 s10, s10, {WS_ML}")
    a("s_lshl_b64 s[12:13], 1, s11")
    a("s_mov_b64 exec, s[12:13]")
    a("buffer_store_dwordx4 v[56:59], v6, s[56:59], s10 offen sc1")
    a("s_mov_b64 exec, -1")
    stamp(4)
    role_branch("L_kA", "L_kB", None)

    a.label("L_kA")
    a("s_mov_b32 s72, s85")
    a("v_lshrrev_b32 v22, 1, v2"); a("v_xor_b32 v22, v22, v3"); a("v_lshlrev_b32 v22, 5, v22")
    a("v_lshlrev_b32 v23, 10, v3"); a("v_add_u32 v22, v22, v23"); a("v_and_b32 v23, 1, v1"); a("v_lshlrev_b32 v23, 4, v23"); a("v_add_u32 v22, v22, v23")
    a("v_xor_b32 v23, 0x80, v22")
    a("s_lshl_b32 s14, s84, 2"); a("s_add_u32 s14, s14, s72"); a("s_lshl_b32 s14, s14, 17")
    a("s_lshl_b32 s13, s11, 15"); a("s_add_u32 s14, s14, s13"); a("s_lshl_b32 s13, s86, 8"); a("s_add_u32 s14, s14, s13")
    a("s_lshl_b32 s15, s11, 13")
    if L_W: a(f"s_add_u32 s15, s15, {L_W}")
    a("s_cmp_lg_u32 s3, 0"); a("s_cbranch_scc1 L_kA_dma")
    a("v_lshrrev_b32 v10, 3, v1"); a("v_and_b32 v10, 3, v10"); a("v_lshlrev_b32 v10, 12, v10"); a("v_and_b32 v9, 7, v1"); a("v_lshlrev_b32 v9, 6, v9"); a("v_add_u32 v10, v10, v9")
    a("s_lshl_b32 s12, s84, 9"); a("s_lshl_b32 s10, s72, 4"); a("s_add_u32 s10, s10, s12"); a(f"s_add_u32 s66, s10, {WS_ML}")
    a("s_mov_b32 s67, 0")
    Lm = lab("mg"); a.label(Lm)
    a(f"s_sleep {mlsleep}")
    a("buffer_load_dwordx4 v[192:195], v10, s[56:59], s66 offen sc1")
    a("s_waitcnt vmcnt(0)")
    tagcheck([193, 195], 40, 44, Lm, sleep=0)
    def red8(op, r, t):
        for mod in ("quad_perm:[1,0,3,2]", "quad_perm:[2,3,0,1]", "row_half_mirror"):
            a("s_nop 1")
            a(f"{op}_dpp v{r}, v{r}, v{r} {mod} row_mask:0xf bank_mask:0xf")
    a("v_mov_b32 v40, v192")
    red8("v_max_f32", 40, 41)
    a("v_sub_f32 v41, v192, v40"); a("v_mul_f32 v41, s69, v41"); a("v_exp_f32 v41, v41"); a("s_nop 0")
    a("v_mul_f32 v41, v41, v194")
    a("v_mov_b32 v42, v41")
    red8("v_add_f32", 42, 43)
    a("v_rcp_f32 v42, v42"); a("s_nop 0")
    a("v_mul_f32 v41, v41, v42")
    a("v_and_b32 v9, 31, v1"); a("v_lshlrev_b32 v9, 2, v9"); a(f"v_add_u32 v9, {L_WR}, v9")
    a("ds_write_b32 v9, v41")
    setflag(F_WR)
    a.label("L_kA_dma")
    a("s_setprio 0")
    for i in range(8):
        a("s_mov_b32 m0, s15"); a("s_add_u32 s15, s15, 1024")
        if not no_w: a(f"buffer_load_dwordx4 v{22 + ((i>>1)&1)}, s[32:35], s14 offen{NT} lds")
        a("s_add_u32 s14, s14, 4096")
    a("s_branch L_roleA")

    a.label("L_kB")
    a("s_setprio 0")
    a("v_lshrrev_b32 v22, 2, v1"); a("v_mul_u32_u24 v22, 3584, v22")
    a("v_lshrrev_b32 v23, 1, v1"); a("v_and_b32 v23, 1, v23"); a("v_lshrrev_b32 v24, 5, v1"); a("v_xor_b32 v23, v23, v24"); a("v_lshlrev_b32 v23, 5, v23"); a("v_add_u32 v22, v22, v23")
    a("v_and_b32 v23, 1, v1"); a("v_lshlrev_b32 v23, 4, v23"); a("v_add_u32 v22, v22, v23")
    a(f"s_mul_i32 s12, s11, {128*3584}"); a("s_lshl_b32 s13, s9, 6"); a("s_add_u32 s12, s12, s13")
    a("s_lshl_b32 s13, s11, 13")
    if L_W: a(f"s_add_u32 s13, s13, {L_W}")
    a("s_and_b32 s10, s11, 1"); a("s_lshl_b32 s10, s10, 7"); a("v_xor_b32 v24, s10, v14")
    a("v_xor_b32 v25, 32, v24"); a("v_xor_b32 v26, 64, v24"); a("v_xor_b32 v27, 0x60, v24")
    a("s_lshl_b32 s14, s9, 15"); a("s_lshl_b32 s15, s11, 13"); a("s_add_u32 s14, s14, s15"); a(f"s_add_u32 s15, s15, {L_W2}")
    wait_flags4(F_O, 44, sleep=2)
    for i in range(8):
        a("s_mov_b32 m0, s13"); a("s_add_u32 s13, s13, 1024")
        if not no_w: a(f"buffer_load_dwordx4 v22, s[36:39], s12 offen{NT} lds")
        a(f"s_add_u32 s12, s12, {16*3584}")
    for i in range(8):
        a("s_mov_b32 m0, s15"); a("s_add_u32 s15, s15, 1024")
        if not no_w: a(f"buffer_load_dwordx4 v{24 + (i&3)}, s[44:47], s14 offen{NT} lds")
        a("s_add_u32 s14, s14, 1024")
    a("s_waitcnt vmcnt(0)")
    setflag(F_W)
    stamp(5)
    a("s_branch L_roleB")

    a.label("L_roleA")
    a("s_lshr_b32 s71, s3, 2")
    a("s_mov_b32 s72, s85")
    a("s_mov_b32 s73, s86")
    a("v_lshrrev_b32 v21, 3, v2"); a("v_lshlrev_b32 v21, 17, v21"); a("v_and_b32 v9, 7, v2"); a("v_lshlrev_b32 v9, 11, v9"); a("v_add_u32 v21, v21, v9")
    a("v_lshlrev_b32 v9, 5, v3"); a("v_add_u32 v21, v21, v9")
    a("s_lshl_b32 s10, s71, 18"); a("s_lshl_b32 s12, s84, 14"); a("s_add_u32 s10, s10, s12"); a("s_lshl_b32 s12, s72, 9"); a("s_add_u32 s10, s10, s12")
    a("s_lshl_b32 s12, s11, 7"); a("s_add_u32 s10, s10, s12"); a(f"s_add_u32 s75, s10, {WS_OP}")
    a("s_cmp_lt_u32 s3, 4"); a("s_cbranch_scc1 L_A_common")
    a("buffer_load_dwordx4 v[192:195], v21, s[56:59], s75 offen sc1")
    a("buffer_load_dwordx4 v[196:199], v21, s[56:59], s75 offen offset:16 sc1")
    a.label("L_A_common")
    a("v_lshrrev_b32 v9, 2, v2"); a("v_lshlrev_b32 v10, 3, v3"); a("v_add_u32 v10, v10, v9"); a("v_lshlrev_b32 v10, 8, v10")
    a("v_and_b32 v44, 3, v2"); a("v_lshlrev_b32 v44, 3, v44"); a("v_add_u32 v10, v10, v44")
    a("v_and_b32 v44, 1, v3"); a("v_lshlrev_b32 v44, 2, v44"); a("v_or_b32 v44, v44, v9"); a("v_lshlrev_b32 v44, 5, v44"); a("v_add_u32 v10, v10, v44")
    a("s_lshl_b32 s10, s11, 13")
    if L_W: a(f"s_add_u32 s10, s10, {L_W}")
    a("v_add_u32 v24, s10, v10")
    for nt in range(1, 8): a(f"v_xor_b32 v{24+nt}, {nt*32}, v24")
    a("v_lshrrev_b32 v9, 1, v3"); a("v_lshlrev_b32 v9, 9, v9"); a("v_and_b32 v44, 1, v3"); a("v_lshlrev_b32 v44, 6, v44"); a("v_add_u32 v9, v9, v44")
    a("v_lshlrev_b32 v44, 2, v2"); a("v_add_u32 v9, v9, v44")
    a("s_lshl_b32 s10, s11, 11"); a("s_lshl_b32 s12, s71, 10"); a("s_add_u32 s10, s10, s12"); a(f"s_add_u32 s10, s10, {L_R1}"); a("v_add_u32 v60, s10, v9")
    a("s_lshl_b32 s10, s3, 8"); a(f"s_add_u32 s10, s10, {L_R1}"); a("v_lshlrev_b32 v9, 2, v1"); a("v_add_u32 v61, s10, v9")
    a("s_lshr_b32 s10, s3, 1"); a("s_lshl_b32 s10, s10, 5"); a("s_lshl_b32 s12, s84, 2"); a("s_add_u32 s10, s10, s12"); a("s_add_u32 s10, s10, s72"); a("s_lshl_b32 s10, s10, 12")
    a("s_lshl_b32 s12, s73, 10"); a("s_add_u32 s10, s10, s12"); a("s_and_b32 s12, s3, 1"); a("s_lshl_b32 s12, s12, 9"); a("s_add_u32 s10, s10, s12"); a(f"s_add_u32 s74, s10, {WS_HP}")
    a("v_mov_b32 v63, s8")
    a("s_mov_b32 s67, 0")
    a("v_lshlrev_b32 v62, 4, v3"); a("s_lshl_b32 s10, s71, 6"); a(f"s_add_u32 s10, s10, {L_WR}"); a("v_add_u32 v62, s10, v62")
    def wr_read():
        L = lab("wr"); a.label(L)
        a(f"ds_read_b32 v40, v7 offset:{F_WR}")
        a("s_waitcnt lgkmcnt(0)")
        a("v_cmp_ne_u32 vcc, 1, v40")
        a(f"s_cbranch_vccnz {L}")
        a("ds_read_b128 v[48:51], v62")
    a("s_cmp_lt_u32 s3, 4"); a("s_cbranch_scc1 L_A_k")
    wait_flag1(F_W, 40)
    for nt in range(8):
        a(f"ds_read_b64_tr_b16 v[{64+4*nt}:{65+4*nt}], v{24+nt}")
        a(f"ds_read_b64_tr_b16 v[{66+4*nt}:{67+4*nt}], v{24+nt} offset:1024")
        if nt == 3: a("s_waitcnt lgkmcnt(0)")
    wr_read()
    Lo = lab("og"); Lo2 = lab("og2")
    stamp(13)
    a(f"s_branch {Lo2}")
    a.label("L_A_k")
    a("s_waitcnt vmcnt(0)")
    setflag(F_W)
    stamp(5)
    a("s_setprio 3")
    for nt in range(8):
        a(f"ds_read_b64_tr_b16 v[{64+4*nt}:{65+4*nt}], v{24+nt}")
        a(f"ds_read_b64_tr_b16 v[{66+4*nt}:{67+4*nt}], v{24+nt} offset:1024")
        if nt == 3: a("s_waitcnt lgkmcnt(0)")
    wr_read()
    wait_flags4(F_O, 40, sleep=1)
    stamp(13)
    a.label(Lo)
    a("buffer_load_dwordx4 v[192:195], v21, s[56:59], s75 offen sc1")
    a("buffer_load_dwordx4 v[196:199], v21, s[56:59], s75 offen offset:16 sc1")
    a.label(Lo2)
    a("s_waitcnt vmcnt(0) lgkmcnt(0)")
    tagcheck([193, 195, 197, 199], 40, 44, Lo, sleep=tsleep)
    stamp(8)
    a("v_mov_b32 v193, v194"); a("v_mov_b32 v194, v196"); a("v_mov_b32 v195, v198")
    a("s_nop 1")
    for nt in range(8):
        a(f"v_mfma_f32_16x16x32_bf16 v[{96+4*nt}:{99+4*nt}], v[192:195], v[{64+4*nt}:{67+4*nt}], 0")
    a("s_nop 0")
    for r in range(4):
        for nt in range(8):
            if r == 0: a(f"v_mul_f32 v{128+nt}, v48, v{96+4*nt}")
            else: a(f"v_fmac_f32 v{128+nt}, v{48+r}, v{96+4*nt+r}")
    for p in range(4): a(f"v_permlane16_swap_b32 v{128+2*p}, v{129+2*p}") if p else (a("s_nop 0"), a(f"v_permlane16_swap_b32 v128, v129"))
    for p in range(4): a(f"v_add_f32 v{128+2*p}, v{128+2*p}, v{129+2*p}")
    stamp(10)
    for p in range(4): a(f"ds_write_b32 v60, v{128+2*p} offset:{p*128}")
    a("s_waitcnt lgkmcnt(0)")
    a("s_barrier")
    stamp(11)
    for kt in range(4): a(f"ds_read_b32 v{40+kt}, v61 offset:{kt*2048}")
    a("s_waitcnt lgkmcnt(0)")
    a("v_add_f32 v40, v40, v41"); a("v_add_f32 v42, v42, v43"); a("v_add_f32 v62, v40, v42")
    a("buffer_store_dwordx2 v[62:63], v13, s[56:59], s74 offen sc1")
    stamp(9)
    a("s_branch L_endrole")

    a.label("L_roleB")
    a("s_setprio 3")
    a("s_add_u32 s96, s8, 1")
    a("v_and_b32 v10, 31, v1"); a("v_lshlrev_b32 v10, 1, v10"); a("s_lshl_b32 s10, s9, 6")
    a("buffer_load_ushort v16, v10, s[40:43], s10 offen")
    a("v_lshrrev_b32 v9, 2, v2"); a("v_lshlrev_b32 v10, 3, v3"); a("v_add_u32 v9, v10, v9")
    a("v_and_b32 v44, 3, v2"); a("v_lshlrev_b32 v44, 3, v44")
    a("v_lshlrev_b32 v10, 6, v9"); a("v_add_u32 v10, v10, v44"); a("v_and_b32 v45, 1, v3"); a("v_lshlrev_b32 v46, 5, v45"); a("v_add_u32 v10, v10, v46")
    a("s_lshl_b32 s10, s3, 12")
    if L_W: a(f"s_add_u32 s10, s10, {L_W}")
    a("v_add_u32 v52, s10, v10"); a("v_xor_b32 v53, 32, v52")
    a("v_lshlrev_b32 v10, 10, v9"); a("v_add_u32 v10, v10, v44")
    a("v_lshrrev_b32 v46, 2, v2"); a("v_lshlrev_b32 v45, 2, v45"); a("v_or_b32 v46, v46, v45"); a("v_lshlrev_b32 v46, 5, v46"); a("v_add_u32 v10, v10, v46")
    a("s_lshl_b32 s10, s3, 7"); a("v_xor_b32 v10, s10, v10"); a(f"v_add_u32 v54, {L_W2}, v10")
    for q in range(1, 4): a(f"v_xor_b32 v{54+q}, {q*32}, v54")
    a("v_and_b32 v58, 3, v2"); a("v_lshlrev_b32 v58, 10, v58"); a("v_lshlrev_b32 v9, 4, v3"); a("v_add_u32 v58, v58, v9")
    a("s_lshl_b32 s10, s3, 7"); a(f"s_add_u32 s10, s10, {L_YB}"); a("v_add_u32 v58, s10, v58")
    a("v_lshlrev_b32 v59, 4, v2"); a("s_lshl_b32 s10, s3, 9"); a(f"s_add_u32 s10, s10, {L_T1}"); a("v_add_u32 v59, s10, v59")
    a("v_and_b32 v60, 31, v1"); a("v_lshlrev_b32 v60, 4, v60"); a("v_lshrrev_b32 v9, 5, v1"); a("v_lshlrev_b32 v9, 11, v9"); a("v_add_u32 v60, v60, v9"); a(f"v_add_u32 v60, {L_T1}, v60")
    a("v_and_b32 v61, 31, v1"); a("v_lshlrev_b32 v61, 1, v61"); a("v_lshrrev_b32 v9, 5, v1"); a("v_lshlrev_b32 v9, 7, v9"); a("v_add_u32 v61, v61, v9")
    a("s_lshl_b32 s10, s3, 8"); a(f"s_add_u32 s10, s10, {L_GB}"); a("v_add_u32 v61, s10, v61")
    a("v_and_b32 v62, 3, v2"); a("v_lshlrev_b32 v62, 6, v62"); a("v_lshlrev_b32 v9, 4, v3"); a("v_add_u32 v62, v62, v9"); a("v_add_u32 v62, s10, v62")
    a("s_lshl_b32 s10, s9, 12"); a("s_lshl_b32 s12, s3, 9"); a("s_add_u32 s10, s10, s12"); a(f"s_add_u32 s72, s10, {WS_GP}")
    for bb in range(1, 4): a(f"s_add_u32 s{72+bb}, s72, {bb*56*4096}")
    for r in range(4): a(f"v_mov_b32 v{113+2*r}, s96")
    a("v_mov_b32 v46, 0x3d372713")
    a("s_lshl_b32 s10, s3, 10"); a(f"s_add_u32 s10, s10, {L_YB}"); a("v_add_u32 v63, s10, v14")
    a("v_lshlrev_b32 v10, 5, v1"); a("s_lshl_b32 s10, s3, 11"); a("s_lshl_b32 s12, s4, 13"); a("s_add_u32 s10, s10, s12"); a(f"s_add_u32 s66, s10, {WS_H}")
    wait_flags4(F_W, 40, sleep=1)
    for kt in range(2):
        for nt in range(2):
            r = 64 + (kt*2+nt)*4
            a(f"ds_read_b64_tr_b16 v[{r}:{r+1}], v{52+nt} offset:{kt*2048}")
            a(f"ds_read_b64_tr_b16 v[{r+2}:{r+3}], v{52+nt} offset:{kt*2048+256}")
    for q in range(4):
        r = 80 + 4*q
        a(f"ds_read_b64_tr_b16 v[{r}:{r+1}], v{54+q}")
        a(f"ds_read_b64_tr_b16 v[{r+2}:{r+3}], v{54+q} offset:4096")
    a("s_waitcnt vmcnt(0) lgkmcnt(0)")
    a("v_lshlrev_b32 v16, 16, v16")
    a("s_cmp_ge_u32 s3, 4"); a("s_cbranch_scc1 L_B_ln_done")
    a("s_mov_b32 s67, 0")
    Lh = lab("hg"); a.label(Lh)
    a("buffer_load_dwordx4 v[192:195], v10, s[56:59], s66 offen sc1")
    a("buffer_load_dwordx4 v[196:199], v10, s[56:59], s66 offen offset:16 sc1")
    a("s_waitcnt vmcnt(0)")
    tagcheck([193, 195, 197, 199], 40, 44, Lh, sleep=tsleep)
    stamp(10)
    for i in range(4):
        a(f"v_lshlrev_b32 v{20+2*i}, 16, v{192+2*i}"); a(f"v_and_b32 v{21+2*i}, s63, v{192+2*i}")
    layernorm8(20, 32)
    a("ds_write_b128 v63, v[40:43]")
    a("s_waitcnt lgkmcnt(0)")
    stamp(12)
    a.label("L_B_ln_done")
    a("s_barrier")
    for kt in range(2): a(f"ds_read_b128 v[{192+4*kt}:{195+4*kt}], v58 offset:{kt*64}")
    a("s_waitcnt lgkmcnt(0)")
    for kt in range(2):
        for nt in range(2):
            r = 64 + (kt*2+nt)*4
            c = "0" if kt == 0 else f"v[{96+4*nt}:{99+4*nt}]"
            a(f"v_mfma_f32_16x16x32_bf16 v[{96+4*nt}:{99+4*nt}], v[{192+4*kt}:{195+4*kt}], v[{r}:{r+3}], {c}")
    a("s_nop 6")
    a("ds_write_b128 v59, v[96:99]")
    a("s_nop 0")
    a("ds_write_b128 v59, v[100:103] offset:256")
    a("s_waitcnt lgkmcnt(0)")
    stamp(13)
    a("s_barrier")
    stamp(14)
    for i in range(4): a(f"ds_read_b128 v[{192+4*i}:{195+4*i}], v60 offset:{i*512}")
    a("s_waitcnt lgkmcnt(0)")
    for c in range(4):
        a(f"v_add_f32 v{192+c}, v{192+c}, v{196+c}"); a(f"v_add_f32 v{200+c}, v{200+c}, v{204+c}")
    for c in range(4): a(f"v_add_f32 v{192+c}, v{192+c}, v{200+c}")
    a("s_nop 0")
    a("v_permlane32_swap_b32 v192, v194"); a("v_permlane32_swap_b32 v193, v195")
    a("v_add_f32 v40, v192, v194"); a("v_add_f32 v41, v193, v195")
    a("v_cvt_pk_bf16_f32 v42, v40, v41"); a("v_lshlrev_b32 v40, 16, v42"); a("v_and_b32 v41, s63, v42")
    a("v_add_f32 v40, v40, v16"); a("v_add_f32 v41, v41, v16")
    a("v_cvt_pk_bf16_f32 v42, v40, v41"); a("v_lshlrev_b32 v40, 16, v42"); a("v_and_b32 v41, s63, v42")
    for c in range(2): a(f"v_mul_f32 v{42+c}, v{40+c}, v{40+c}")
    for c in range(2): a(f"v_fma_f32 v{42+c}, v{42+c}, v46, 1.0")
    for c in range(2): a(f"v_mul_f32 v{42+c}, v{42+c}, v{40+c}")
    for c in range(2): a(f"v_mul_f32 v{42+c}, 0xc0135761, v{42+c}")
    for c in range(2): a(f"v_exp_f32 v{42+c}, v{42+c}")
    a("s_nop 0")
    for c in range(2): a(f"v_add_f32 v{42+c}, 1.0, v{42+c}")
    for c in range(2): a(f"v_rcp_f32 v{42+c}, v{42+c}")
    a("s_nop 0")
    for c in range(2): a(f"v_mul_f32 v{40+c}, v{40+c}, v{42+c}")
    a("v_cvt_pk_bf16_f32 v40, v40, v41")
    stamp(8)
    a("ds_write_b16 v61, v40"); a("ds_write_b16_d16_hi v61, v40 offset:64")
    a("ds_read_b128 v[192:195], v62")
    a("s_waitcnt lgkmcnt(0)")
    for q in range(4):
        a(f"v_mfma_f32_16x16x32_bf16 v[{96+4*q}:{99+4*q}], v[192:195], v[{80+4*q}:{83+4*q}], 0")
    a("s_nop 4")
    for r in range(4): a(f"v_mov_b32 v{112+2*r}, v{96+r}")
    for q in range(1, 4):
        for r in range(4):
            a(f"v_mov_b32_dpp v{112+2*r}, v{96+4*q+r} quad_perm:[0,1,2,3] row_mask:{hex(1<<q)} bank_mask:0xf")
    for r in range(4): a(f"buffer_store_dwordx2 v[{112+2*r}:{113+2*r}], v13, s[56:59], s{72+r} offen sc1")
    stamp(11)
    a("s_branch L_endrole")

    a.label("L_roleC")
    a("s_cmp_lg_u32 s3, 7"); a("s_cbranch_scc1 L_fin")
    a("s_setprio 3")
    a("v_lshlrev_b32 v10, 12, v3"); a("v_lshlrev_b32 v9, 4, v2"); a("v_add_u32 v18, v10, v9")
    a("s_lshl_b32 s10, s76, 17"); a("s_lshl_b32 s12, s62, 3"); a("s_add_u32 s10, s10, s12"); a(f"s_add_u32 s80, s10, {WS_HP}")
    for t in range(1, 8): a(f"s_add_u32 s{80+t}, s80, {t*16384}")
    a("s_lshl_b32 s10, s76, 11"); a("s_lshl_b32 s12, s62, 2"); a("s_add_u32 s10, s10, s12"); a(f"s_add_u32 s72, s10, {WS_H}"); a("s_add_u32 s74, s72, 32768")
    a("v_lshlrev_b32 v17, 3, v2"); a("v_lshlrev_b32 v9, 13, v3"); a("v_add_u32 v17, v17, v9")
    a("s_mov_b32 s67, 0")
    Ls = lab("sg"); a.label(Ls)
    for t in range(8): a(f"buffer_load_dwordx4 v[{64+4*t}:{67+4*t}], v18, s[56:59], s{80+t} offen sc1")
    a("s_waitcnt vmcnt(0)")
    tagcheck([65+2*i for i in range(16)], 40, 44, Ls, sleep=tsleep)
    stamp(12)
    def tree2(n):
        ra = [64 + 4*t for t in range(n)]
        while len(ra) > 1:
            nxt = []
            for i in range(0, len(ra) - 1, 2):
                a(f"v_add_f32 v{ra[i]}, v{ra[i]}, v{ra[i+1]}"); a(f"v_add_f32 v{ra[i]+2}, v{ra[i]+2}, v{ra[i+1]+2}"); nxt.append(ra[i])
            if len(ra) % 2: nxt.append(ra[-1])
            ra = nxt
    def xrow():
        a("s_nop 1")
        a("v_permlane32_swap_b32 v64, v66")
        a("v_add_f32 v64, v64, v66")
        a("v_mov_b32 v66, v64"); a("s_nop 1")
        a("v_permlane16_swap_b32 v64, v66")
        a("v_add_f32 v64, v64, v66")
        a("v_mov_b32 v66, v64"); a("s_nop 1")
        a("v_permlane32_swap_b32 v64, v66")
    tree2(8)
    xrow()
    a("v_cvt_pk_bf16_f32 v40, v64, v66")
    a("v_lshlrev_b32 v43, 16, v12"); a("v_and_b32 v44, s63, v12")
    a("v_lshlrev_b32 v41, 16, v40"); a("v_and_b32 v42, s63, v40")
    a("v_add_f32 v41, v41, v43"); a("v_add_f32 v42, v42, v44")
    a("v_cvt_pk_bf16_f32 v40, v41, v42")
    a("v_mov_b32 v41, v15")
    a("buffer_store_dwordx2 v[40:41], v17, s[56:59], s72 offen sc1")
    a("buffer_store_dwordx2 v[40:41], v17, s[56:59], s74 offen sc1")
    stamp(13)
    a.label("L_endrole")
    a("s_cmp_lg_u32 s3, 7"); a("s_cbranch_scc1 L_fin")
    a("s_setprio 3")
    a("s_add_u32 s96, s8, 1")
    a("v_lshrrev_b32 v10, 2, v1"); a("v_lshlrev_b32 v10, 12, v10"); a("v_and_b32 v9, 3, v1"); a("v_lshlrev_b32 v17, 4, v9"); a("v_add_u32 v18, v10, v17")
    a(f"s_mul_i32 s10, s5, {56*4096}"); a("s_lshl_b32 s12, s95, 3"); a("s_add_u32 s10, s10, s12"); a(f"s_add_u32 s80, s10, {WS_GP}")
    for t in range(1, 4): a(f"s_add_u32 s{80+t}, s80, {t*65536}")
    a("s_lshl_b32 s10, s4, 13"); a("s_lshl_b32 s12, s5, 11"); a("s_add_u32 s10, s10, s12"); a("s_lshl_b32 s12, s95, 2"); a("s_add_u32 s10, s10, s12"); a(f"s_add_u32 s84, s10, {WS_H}")
    a("v_lshlrev_b32 v19, 3, v9")
    a("s_lshl_b32 s10, s5, 10"); a("s_lshl_b32 s12, s95, 1"); a("s_add_u32 s73, s10, s12")
    a("v_lshlrev_b32 v16, 2, v9")
    a("v_mov_b32 v76, 0"); a("v_mov_b32 v77, s96"); a("v_mov_b32 v78, 0"); a("v_mov_b32 v79, s96")
    a("s_mov_b32 s67, 0")
    Lh4 = lab("h4"); a.label(Lh4)
    a("buffer_load_dwordx2 v[20:21], v19, s[56:59], s84 offen sc1")
    a("s_waitcnt vmcnt(0)")
    tagcheck([21], 40, 44, Lh4, sleep=4)
    a("v_lshlrev_b32 v21, 16, v20"); a("v_and_b32 v22, s63, v20")
    a("v_lshlrev_b32 v23, 16, v8"); a("v_and_b32 v24, s63, v8")
    a("s_mov_b32 s67, 0")
    Lg = lab("gg"); a.label(Lg)
    for t in range(3): a(f"buffer_load_dwordx4 v[{64+4*t}:{67+4*t}], v18, s[56:59], s{80+t} offen sc1")
    a("s_mov_b64 s[98:99], exec")
    a("s_mov_b32 exec_hi, 0")
    Lx = lab("x"); a(f"s_cbranch_execz {Lx}")
    a("buffer_load_dwordx4 v[76:79], v18, s[56:59], s83 offen sc1")
    a.label(Lx)
    a("s_mov_b64 exec, s[98:99]")
    a("s_waitcnt vmcnt(0)")
    tagcheck([65+2*i for i in range(8)], 40, 44, Lg, sleep=tsleep, tag="s96")
    stamp(14)
    a("v_add_f32 v64, v64, v68"); a("v_add_f32 v66, v66, v70"); a("v_add_f32 v72, v72, v76"); a("v_add_f32 v74, v74, v78")
    a("v_add_f32 v64, v64, v72"); a("v_add_f32 v66, v66, v74")
    for rot in (4, 8):
        a("s_nop 0")
        a(f"v_add_f32_dpp v64, v64, v64 row_ror:{rot} row_mask:0xf bank_mask:0xf")
        a(f"v_add_f32_dpp v66, v66, v66 row_ror:{rot} row_mask:0xf bank_mask:0xf")
    a("s_nop 1")
    a("v_permlane32_swap_b32 v64, v66")
    a("v_add_f32 v64, v64, v66")
    a("v_mov_b32 v66, v64"); a("s_nop 1")
    a("v_permlane16_swap_b32 v64, v66")
    a("v_add_f32 v64, v64, v66")
    a("v_mov_b32 v66, v64"); a("s_nop 1")
    a("v_permlane32_swap_b32 v64, v66")
    a("v_cvt_pk_bf16_f32 v40, v64, v66")
    a("v_lshlrev_b32 v41, 16, v40"); a("v_and_b32 v42, s63, v40")
    a("v_add_f32 v41, v41, v23"); a("v_add_f32 v42, v42, v24")
    a("v_cvt_pk_bf16_f32 v40, v41, v42")
    a("v_lshlrev_b32 v41, 16, v40"); a("v_and_b32 v42, s63, v40")
    a("v_add_f32 v41, v41, v21"); a("v_add_f32 v42, v42, v22")
    a("v_cvt_pk_bf16_f32 v40, v41, v42")
    a("s_mov_b64 exec, 0xf")
    a("buffer_store_dword v40, v16, s[52:55], s73 offen")
    a("s_mov_b64 exec, -1")
    a("s_cmp_lg_u32 s2, 0"); a("s_cbranch_scc1 L_fin")
    a("s_mov_b64 exec, 1")
    a("buffer_store_dword v15, v6, s[56:59], 0 offen sc1")
    a("s_mov_b64 exec, -1")
    a.label("L_fin")
    if stamps == "dbg":
        stamp(15)
        a("s_cmp_lg_u32 s3, 7"); a("s_cbranch_scc1 L_end")
        a("s_load_dwordx2 s[88:89], s[0:1], 88")
        a("s_waitcnt lgkmcnt(0)")
        a("s_mov_b32 s90, 256"); a("s_mov_b32 s91, 0x20000")
        a(f"v_not_b32 v{SB}, v{SB}")
        a("v_mov_b32 v44, 0")
        a("s_mov_b64 exec, 1")
        for k, idx in enumerate((0, 6, 1, 2, 4, 5, 14, 15)):
            a(f"buffer_atomic_umax v{SB+idx}, v44, s[88:91], 0 offen offset:{4*k}")
        a("s_mov_b64 exec, -1")
    elif stamps:
        stamp(15)
        a("s_lshl_b32 s10, s2, 3"); a("s_add_u32 s10, s10, s3"); a("s_lshl_b32 s10, s10, 6"); a(f"s_add_u32 s10, s10, {WS_STAMP}")
        a("v_mov_b32 v44, 0")
        a("s_mov_b64 exec, 1")
        for i in range(4): a(f"buffer_store_dwordx4 v[{SB+4*i}:{SB+3+4*i}], v44, s[56:59], s10 offen offset:{16*i}")
        a("s_mov_b64 exec, -1")
    a.label("L_end")
    a("s_endpgm")
    return a

HDR = """; Fused pre-LN GQA decode attention + channel-MLP block, single persistent launch (256 workgroups x 8 waves).
; @launch grid=(256,1,1) block=(512,1,1) lds={lds}
.amdgcn_target "amdgcn-amd-amdhsa--gfx950"
.text
.globl {name}_kernel
.p2align 8
.type {name}_kernel,@function
{name}_kernel:
"""
FTR = """
.section .rodata,"a"
.p2align 6
.amdhsa_kernel {name}_kernel
  .amdhsa_next_free_vgpr 256
  .amdhsa_next_free_sgpr 102
  .amdhsa_accum_offset 256
  .amdhsa_group_segment_fixed_size 0
  .amdhsa_kernarg_size 104
  .amdhsa_user_sgpr_count 2
  .amdhsa_user_sgpr_kernarg_segment_ptr 1
  .amdhsa_system_sgpr_workgroup_id_x 1
.end_amdhsa_kernel
"""
def build(path, **kw):
    a = gen(**kw)
    probs = check_hazards(a.lines)
    open(path, "w").write(HDR.format(name=NAME, lds=LDS_BYTES) + a.text() + FTR.format(name=NAME))
    return probs

if __name__ == "__main__":
    out = sys.argv[1] if len(sys.argv) > 1 else "k3.s"
    kw = {}
    for arg in sys.argv[2:]:
        if arg == "stamps": kw["stamps"] = True
        elif arg == "dbg": kw["stamps"] = "dbg"
        elif "=" in arg:
            k, v = arg.split("="); kw[k] = eval(v)
    probs = build(out, **kw)
    print("hazards:", len(probs))
```

```python
import sys
from asmlib import Asm, check_hazards

NAME = "sequential_preLN__gqa_block_cached__mixer_channel_mlp__decode"

WS_EPOCH = 0
WS_ML = 0x1000
WS_H  = 0x1E8000
WS_OP = 0x8000
WS_HP = 0x88000
WS_QB = 0x108000
WS_GP = 0x108000
WS_STAMP = 0x400000
L_W = 0
L_W2 = 32768
L_WQ = 65536
L_RED = 81920
L_R1 = 90112
L_YB = 98304
L_QPB = 102400
L_PB = 106496
L_T1 = 110592
L_GB = 114688
L_QL = 116736
L_FLAGS = 117760
L_MLB = 118016
L_WR = 118784
L_WQ2 = 122880
L_QPB2 = 139264
LDS_BYTES = 143360
F_Y, F_QP, F_Q, F_ML, F_P, F_W, F_O, F_WR, F_Q2, F_VI = 0, 16, 32, 48, 64, 80, 96, 112, 128, 144

LOG2E = 0x3fb8aa3b
SCALE = 0x3db504f3
EPS = 0x3727c5ac
TAGC = 0x9E3779B9
POLL_MAX = 20000

def gen(stamps=False, psleep=2, tsleep=1, qearly=6, mlsleep=8, rot=True, no_w=False, no_pwait=False, no_q=False, khold=0, lanemask=True, delay=None, NA=(0,12,22,22,20,22,22,8), NB=(0,8,8,8,8,8,8,8), NC=(24,12,2,2,4,2,2,16), QL=0, QH=4, vigate=31, vearly=0):
    a = Asm()
    NT = " nt"
    uid = [0]
    def lab(p):
        uid[0] += 1
        return f"L_{p}_{uid[0]}"
    SB = 240
    def stamp(idx):
        if stamps:
            a("s_memrealtime s[78:79]")
            a("s_waitcnt lgkmcnt(0)")
            a(f"v_mov_b32 v{SB+idx}, s78")
    def allreduce(op, rs, tmps):
        k = len(rs)
        for rot in (8, 4, 2, 1):
            if k == 1: a("s_nop 1")
            elif k == 2: a("s_nop 0")
            for r in rs:
                a(f"{op}_dpp v{r}, v{r}, v{r} row_ror:{rot} row_mask:0xf bank_mask:0xf")
        for sw in ("v_permlane16_swap_b32", "v_permlane32_swap_b32"):
            for r, t in zip(rs, tmps): a(f"v_mov_b32 v{t}, v{r}")
            a("s_nop 1" if k == 1 else "s_nop 0")
            if k == 2: pass
            for r, t in zip(rs, tmps): a(f"{sw} v{r}, v{t}")
            for r, t in zip(rs, tmps): a(f"{op} v{r}, v{r}, v{t}")
    def rb(dst, src):
        a(f"v_cvt_pk_bf16_f32 v{dst}, v{src}, v{src}")
        a(f"v_lshlrev_b32 v{dst}, 16, v{dst}")
    def setflag(off): a(f"ds_write_b32 v11, v0 offset:{off}")
    def wait_flags4(off, tmp, sleep=0):
        L = lab("wf")
        a.label(L)
        if sleep: a(f"s_sleep {sleep}")
        a(f"ds_read_b128 v[{tmp}:{tmp+3}], v7 offset:{off}")
        a("s_waitcnt lgkmcnt(0)")
        a(f"v_and_b32 v{tmp}, v{tmp}, v{tmp+1}"); a(f"v_and_b32 v{tmp+2}, v{tmp+2}, v{tmp+3}")
        a(f"v_and_b32 v{tmp}, v{tmp}, v{tmp+2}")
        a(f"v_cmp_ne_u32 vcc, 1, v{tmp}")
        a(f"s_cbranch_vccnz {L}")
    def wait_flag1(off, tmp, sleep=0):
        L = lab("wf")
        a.label(L)
        if sleep: a(f"s_sleep {sleep}")
        a(f"ds_read_b32 v{tmp}, v11 offset:{off}")
        a("s_waitcnt lgkmcnt(0)")
        a(f"v_cmp_ne_u32 vcc, 1, v{tmp}")
        a(f"s_cbranch_vccnz {L}")
    def tagcheck(tagregs, acc, t1, retry_label, cnt=67, sleep=0, tag="s8"):
        first = True; i = 0
        while i < len(tagregs):
            if i + 1 < len(tagregs):
                a(f"v_xor_b32 v{t1}, {tag}, v{tagregs[i]}")
                if first:
                    a(f"v_xor_b32 v{acc}, {tag}, v{tagregs[i+1]}")
                    a(f"v_or_b32 v{acc}, v{acc}, v{t1}")
                else:
                    a(f"v_xor_b32 v{t1+1}, {tag}, v{tagregs[i+1]}")
                    a(f"v_or3_b32 v{acc}, v{acc}, v{t1}, v{t1+1}")
                i += 2
            else:
                if first: a(f"v_xor_b32 v{acc}, {tag}, v{tagregs[i]}")
                else:
                    a(f"v_xor_b32 v{t1}, {tag}, v{tagregs[i]}")
                    a(f"v_or_b32 v{acc}, v{acc}, v{t1}")
                i += 1
            first = False
        a(f"v_cmp_ne_u32 vcc, 0, v{acc}")
        done = lab("pd")
        a(f"s_cbranch_vccz {done}")
        if lanemask: a("s_mov_b64 exec, vcc")
        if sleep: a(f"s_sleep {sleep}")
        a(f"s_add_u32 s{cnt}, s{cnt}, 1")
        a(f"s_cmp_lt_u32 s{cnt}, {POLL_MAX}")
        a(f"s_cbranch_scc1 {retry_label}")
        a.label(done)
        if lanemask: a("s_mov_b64 exec, -1")
    def layernorm8(e, t):
        a(f"v_readfirstlane_b32 s12, v{e}")
        a("s_nop 1")
        for i in range(8): a(f"v_subrev_f32 v{t+4+(i&3)+ (0)}, s12, v{e+i}") if False else None
        a(f"v_subrev_f32 v{t+2}, s12, v{e}"); a(f"v_subrev_f32 v{t+3}, s12, v{e+1}")
        a(f"v_add_f32 v{t}, v{t+2}, v{t+3}"); a(f"v_mul_f32 v{t+1}, v{t+2}, v{t+2}"); a(f"v_fmac_f32 v{t+1}, v{t+3}, v{t+3}")
        for i in range(2, 8, 2):
            a(f"v_subrev_f32 v{t+2}, s12, v{e+i}"); a(f"v_subrev_f32 v{t+3}, s12, v{e+i+1}")
            a(f"v_add_f32 v{t}, v{t}, v{t+2}"); a(f"v_fmac_f32 v{t+1}, v{t+2}, v{t+2}")
            a(f"v_add_f32 v{t}, v{t}, v{t+3}"); a(f"v_fmac_f32 v{t+1}, v{t+3}, v{t+3}")
        allreduce("v_add_f32", [t, t+1], [t+2, t+3])
        a(f"v_mul_f32 v{t}, 0x3b000000, v{t}")
        a(f"v_mul_f32 v{t+1}, 0x3b000000, v{t+1}")
        a(f"v_fma_f32 v{t+1}, -v{t}, v{t}, v{t+1}")
        a(f"v_add_f32 v{t}, s12, v{t}")
        a(f"v_max_f32 v{t+1}, 0, v{t+1}")
        a(f"v_cvt_pk_bf16_f32 v{t+2}, v{t}, v{t+1}")
        a(f"v_and_b32 v{t+1}, s63, v{t+2}")
        a(f"v_lshlrev_b32 v{t}, 16, v{t+2}")
        a(f"v_add_f32 v{t+1}, {EPS}, v{t+1}")
        for i in range(4): a(f"v_sub_f32 v{e+i}, v{e+i}, v{t}")
        rb(t+1, t+1)
        a(f"v_sqrt_f32 v{t+1}, v{t+1}")
        for i in range(4, 8): a(f"v_sub_f32 v{e+i}, v{e+i}, v{t}")
        rb(t+1, t+1)
        a(f"v_rcp_f32 v{t+1}, v{t+1}")
        for i in range(4): a(f"v_cvt_pk_bf16_f32 v{t+8+i}, v{e+2*i}, v{e+2*i+1}")
        for i in range(4):
            a(f"v_lshlrev_b32 v{e+2*i}, 16, v{t+8+i}"); a(f"v_and_b32 v{e+2*i+1}, s63, v{t+8+i}")
        for i in range(8): a(f"v_mul_f32 v{e+i}, v{e+i}, v{t+1}")
        for i in range(4): a(f"v_cvt_pk_bf16_f32 v{t+8+i}, v{e+2*i}, v{e+2*i+1}")
    def kvstep():
        a("s_add_u32 s83, s83, 4096"); a("s_and_b32 s83, s83, 0x7fff"); a("s_add_u32 s65, s64, s83")
    def role_setup():
        assert sum(NA) == 128 and sum(NB) == 56 and sum(NC) == 64 and all(x + y + z <= 32 for x, y, z in zip(NA, NB, NC))
        def pack(v): return sum(x << (8*i) for i, x in enumerate(v))
        def pre(v): return [sum(v[:i]) for i in range(8)]
        a("s_lshl_b32 s87, s4, 3")
        def look(dst, v):
            p = pack(v)
            a(f"s_mov_b32 s98, {p & 0xffffffff}"); a(f"s_mov_b32 s99, {p >> 32}")
            a("s_lshr_b64 s[98:99], s[98:99], s87"); a(f"s_and_b32 s{dst}, s98, 0xff")
        look(10, NA); look(12, NB); look(13, NC)
        look(14, pre(NA)); a("s_add_u32 s15, s14, s7")
        look(14, pre(NB)); a("s_sub_u32 s10, s7, s10"); a("s_add_u32 s9, s14, s10")
        a("s_mov_b32 s97, 3")
        a("s_sub_u32 s76, s10, s12")
        a("s_cmp_lt_u32 s76, s13"); a("s_cselect_b32 s97, 2, s97")
        a("s_cmp_lt_u32 s10, s12"); a("s_cselect_b32 s97, 1, s97")
        a("s_cmp_gt_u32 s10, s7"); a("s_cselect_b32 s97, 0, s97")
        look(14, pre(NC)); a("s_add_u32 s13, s14, s76")
        a("s_lshr_b32 s84, s15, 4"); a("s_and_b32 s84, s84, 7")
        a("s_lshr_b32 s85, s15, 2"); a("s_and_b32 s85, s85, 3")
        a("s_and_b32 s86, s15, 3")
        a("s_lshr_b32 s76, s13, 4"); a("s_and_b32 s76, s76, 3")
        a("s_and_b32 s10, s13, 15"); a("s_lshl_b32 s62, s10, 5")
    def role_branch(la, lb, lc):
        a("s_cmp_eq_u32 s97, 0"); a(f"s_cbranch_scc1 {la}")
        a("s_cmp_eq_u32 s97, 1"); a(f"s_cbranch_scc1 {lb}")
        if lc: a("s_cmp_eq_u32 s97, 2"); a(f"s_cbranch_scc1 {lc}")
        a("s_branch L_endrole" if lc else "s_branch L_fin")
    def srd(sr, sz):
        a(f"s_mov_b32 s{sr+2}, {sz}"); a(f"s_mov_b32 s{sr+3}, 0x20000")
    SZ = {16: 4096, 20: 33554432, 24: 33554432, 28: 4194304, 32: 4194304, 36: 1835008, 40: 3584, 44: 1835008, 48: 1024, 52: 4096, 56: 268435456}

    if stamps: a("s_memrealtime s[78:79]")
    for (sr, off) in ((56, 96), (20, 8), (16, 0), (28, 24), (24, 16), (32, 32), (36, 48), (40, 56), (44, 64), (48, 72), (52, 80)):
        a(f"s_load_dwordx2 s[{sr}:{sr+1}], s[0:1], {off}")
    a("s_cmp_ge_u32 s2, 256")
    a("s_cbranch_scc1 L_end")
    a("v_lshrrev_b32 v4, 6, v0")
    a("v_and_b32 v1, 63, v0")
    a("v_readfirstlane_b32 s3, v4")
    a("v_and_b32 v2, 15, v1")
    a("v_lshrrev_b32 v3, 4, v1")
    a("s_and_b32 s4, s2, 7")
    a("s_lshr_b32 s7, s2, 3")
    a("s_lshr_b32 s5, s7, 3")
    a("s_and_b32 s6, s7, 7")
    if delay:
        if delay[0] >= 0:
            a(f"s_cmp_lg_u32 s4, {delay[0]}"); a("s_cbranch_scc1 L_nodelay")
        else:
            a(f"s_cmp_eq_u32 s4, {-delay[0]-1}"); a("s_cbranch_scc1 L_nodelay")
        a("s_memrealtime s[78:79]"); a("s_waitcnt lgkmcnt(0)"); a(f"s_add_u32 s77, s78, {delay[1]}")
        a.label("L_dl"); a("s_memrealtime s[78:79]"); a("s_waitcnt lgkmcnt(0)"); a("s_cmp_lt_u32 s78, s77"); a("s_cbranch_scc1 L_dl")
        a.label("L_nodelay")
    srd(56, SZ[56]); srd(20, SZ[20]); srd(16, SZ[16]); srd(28, SZ[28])
    a("s_and_b32 s11, s3, 3")
    a("s_lshl_b32 s70, s5, 3"); a("s_add_u32 s70, s70, s4")
    a("s_lshl_b32 s64, s70, 20"); a("s_lshl_b32 s10, s6, 17"); a("s_add_u32 s64, s64, s10")
    a("s_lshl_b32 s10, s11, 15"); a("s_add_u32 s64, s64, s10")
    a("s_lshl_b32 s83, s5, 13") if rot else a("s_mov_b32 s83, 0")
    a("s_add_u32 s65, s64, s83")
    a("v_mov_b32 v6, 0")
    a("v_lshlrev_b32 v14, 4, v1")
    a("s_cmp_ge_u32 s3, 4")
    a("s_cbranch_scc1 L_v1")
    a("v_lshlrev_b32 v47, 8, v2"); a("v_lshlrev_b32 v10, 4, v3"); a("v_add_u32 v47, v47, v10")
    a("s_lshl_b32 s10, s4, 2"); a("s_add_u32 s10, s10, s5"); a("s_lshl_b32 s10, s10, 14"); a("s_lshl_b32 s12, s11, 10"); a("s_add_u32 s10, s10, s12"); a(f"s_add_u32 s66, s10, {WS_QB}")
    for k in range(1, 4): a(f"s_add_u32 s{71+k}, s66, {k*4096}")
    a("s_setprio 2")
    a("s_waitcnt lgkmcnt(0)")
    a("buffer_load_dword v5, v6, s[56:59], 0 offen sc1")
    def qloads():
        for k in range(4):
            a(f"buffer_load_dwordx4 v[{16+4*k}:{19+4*k}], v14, s[56:59], s{66 if k == 0 else 71+k} offen sc1")
    for t in range(8):
        for i in range(4):
            r = 64 + 16*t + 4*i
            a(f"buffer_load_dwordx4 v[{r}:{r+3}], v47, s[20:23], s65 offen offset:{i*64}{NT}")
        if t < 7: kvstep()
        if t == 1:
            a("v_lshlrev_b32 v9, 2, v1"); a(f"v_add_u32 v9, {L_FLAGS}, v9"); a("ds_write_b32 v9, v6"); a("v_mov_b32 v0, 1")
            a("s_waitcnt lgkmcnt(0)"); a("s_barrier")
        if t == qearly - 1: qloads()
    a("s_branch L_k2")
    a.label("L_v1")
    a("v_lshrrev_b32 v10, 3, v1"); a("v_lshlrev_b32 v10, 13, v10"); a("v_and_b32 v9, 7, v1"); a("v_lshlrev_b32 v9, 4, v9"); a("v_add_u32 v10, v10, v9")
    a("s_lshl_b32 s13, s5, 20"); a("s_lshl_b32 s12, s11, 18"); a("s_add_u32 s13, s13, s12")
    a("s_lshl_b32 s12, s4, 10"); a("s_add_u32 s13, s13, s12"); a("s_lshl_b32 s12, s6, 7"); a("s_add_u32 s13, s13, s12")
    a("s_lshl_b32 s12, s11, 12"); a(f"s_add_u32 s12, s12, {L_WQ}")
    a("s_lshl_b32 s10, s11, 10")
    a("s_setprio 3")
    a("s_waitcnt lgkmcnt(0)")
    a("buffer_load_dword v5, v6, s[56:59], 0 offen sc1")
    if QL is not None:
        a(f"s_cmp_eq_u32 s4, {QL}"); a("s_cbranch_scc1 L_v_noq1")
    a("buffer_load_dwordx4 v[16:19], v14, s[16:19], s10 offen")
    a("s_mov_b32 s14, s13")
    for i in range(4):
        a("s_mov_b32 m0, s12"); a("s_add_u32 s12, s12, 1024")
        a(f"buffer_load_dwordx4 v10, s[28:31], s13 offen{NT} lds"); a("s_add_u32 s13, s13, 0x10000")
    if QL is not None:
        a(f"s_cmp_lg_u32 s4, {QH}"); a("s_cbranch_scc1 L_v_noq1")
        a(f"s_add_u32 s14, s14, {((QL - QH) * 1024) & 0xffffffff}")
        a("s_lshl_b32 s12, s11, 12"); a(f"s_add_u32 s12, s12, {L_WQ2}")
        for i in range(4):
            a("s_mov_b32 m0, s12"); a("s_add_u32 s12, s12, 1024")
            a(f"buffer_load_dwordx4 v10, s[28:31], s14 offen{NT} lds"); a("s_add_u32 s14, s14, 0x10000")
        a.label("L_v_noq1")
    a("v_lshlrev_b32 v9, 2, v1"); a(f"v_add_u32 v9, {L_FLAGS}, v9"); a("ds_write_b32 v9, v6"); a("v_mov_b32 v0, 1")
    a("s_waitcnt lgkmcnt(0)"); a("s_barrier")
    srd(24, SZ[24])
    for k in range(vearly):
        r = 64 + 4*k
        a(f"buffer_load_dwordx4 v[{r}:{r+3}], v14, s[24:27], s65 offen offset:{(k%4)*1024}{NT}")
        if k % 4 == 3: kvstep()

    if stamps:
        a("s_waitcnt lgkmcnt(0)")
        for i in range(16): a(f"v_mov_b32 v{SB+i}, 0")
        a(f"v_mov_b32 v{SB}, s78")
    for sr in (24, 32, 36, 40, 44, 48, 52): srd(sr, SZ[sr])
    role_setup()
    a("s_mov_b32 s60, 0x05040100"); a("s_mov_b32 s61, 0x07060302"); a("s_mov_b32 s63, 0xffff0000")
    a(f"v_mov_b32 v7, {L_FLAGS}"); a("s_lshl_b32 s10, s11, 2"); a("v_add_u32 v11, s10, v7")
    a("v_lshlrev_b32 v13, 3, v1")
    a("v_lshrrev_b32 v9, 2, v2"); a("v_lshlrev_b32 v10, 3, v3"); a("v_add_u32 v9, v9, v10"); a("v_lshlrev_b32 v44, 7, v9")
    a("v_and_b32 v10, 3, v2"); a("v_lshlrev_b32 v10, 3, v10"); a("v_add_u32 v44, v44, v10")
    a("s_lshl_b32 s10, s11, 12"); a(f"s_add_u32 s10, s10, {L_WQ}"); a("v_add_u32 v44, s10, v44"); a("v_mov_b32 v48, v44")
    a("v_and_b32 v45, 3, v2"); a("v_lshlrev_b32 v45, 10, v45"); a("v_lshlrev_b32 v46, 4, v3"); a("v_add_u32 v45, v45, v46")
    a("s_lshl_b32 s10, s5, 8"); a("s_lshl_b32 s12, s11, 6"); a("s_add_u32 s10, s10, s12"); a(f"s_add_u32 s10, s10, {L_YB}"); a("v_add_u32 v45, s10, v45")
    a("v_lshlrev_b32 v46, 4, v2"); a("s_lshl_b32 s10, s11, 10"); a(f"s_add_u32 s10, s10, {L_QPB}"); a("v_add_u32 v46, s10, v46")
    a("s_lshl_b32 s10, s11, 2"); a(f"s_add_u32 s10, s10, {L_QPB}"); a("v_add_u32 v47, s10, v14")
    a("s_lshl_b32 s10, s11, 10"); a(f"s_add_u32 s10, s10, {L_YB}"); a("v_add_u32 v9, s10, v14")
    a("s_lshl_b32 s10, s4, 2"); a("s_add_u32 s10, s10, s11"); a("s_lshl_b32 s10, s10, 2"); a("s_add_u32 s10, s10, s5"); a("s_lshl_b32 s10, s10, 12")
    a("s_lshl_b32 s12, s6, 9"); a("s_add_u32 s10, s10, s12"); a(f"s_add_u32 s66, s10, {WS_QB}")
    if QL is not None:
        a(f"s_cmp_eq_u32 s4, {QL}"); a("s_cbranch_scc1 L_v_noq2")
        a(f"s_cmp_eq_u32 s4, {QH}"); a("s_cbranch_scc1 L_v_w8")
        a(f"s_waitcnt vmcnt({4+vearly})"); a("s_branch L_v_w")
        a.label("L_v_w8"); a(f"s_waitcnt vmcnt({8+vearly})"); a.label("L_v_w")
    else:
        a(f"s_waitcnt vmcnt({4+vearly})")
    stamp(6)
    a("v_readfirstlane_b32 s8, v5")
    for i in range(4):
        a(f"v_lshlrev_b32 v{20+2*i}, 16, v{16+i}"); a(f"v_and_b32 v{21+2*i}, s63, v{16+i}")
    a(f"s_add_u32 s8, s8, {TAGC}")
    a("v_mov_b32 v15, s8")
    layernorm8(20, 32)
    a("ds_write_b128 v9, v[40:43]")
    setflag(F_Y)
    wait_flags4(F_Y, 40)
    a("ds_read_b128 v[192:195], v45")
    if QL is not None:
        a(f"s_cmp_eq_u32 s4, {QH}"); a("s_cbranch_scc1 L_v_w4")
        a(f"s_waitcnt vmcnt({vearly})"); a("s_branch L_v_w0")
        a.label("L_v_w4"); a(f"s_waitcnt vmcnt({4+vearly})"); a.label("L_v_w0")
    else:
        a(f"s_waitcnt vmcnt({vearly})")
    stamp(7)
    for nt in range(4):
        a(f"ds_read_b64_tr_b16 v[{196+4*nt}:{197+4*nt}], v44 offset:{nt*32}")
        a(f"ds_read_b64_tr_b16 v[{198+4*nt}:{199+4*nt}], v44 offset:{nt*32+512}")
    a("s_waitcnt lgkmcnt(0)")
    for nt in range(4):
        a(f"v_mfma_f32_16x16x32_bf16 v[{212+4*nt}:{215+4*nt}], v[192:195], v[{196+4*nt}:{199+4*nt}], 0")
    a("v_mov_b32 v45, s8")
    a("s_nop 3")
    for nt in range(4): a(f"ds_write_b128 v46, v[{212+4*nt}:{215+4*nt}] offset:{nt*256}")
    setflag(F_QP)
    wait_flags4(F_QP, 40)
    for w in range(4): a(f"ds_read_b32 v{40+w}, v47 offset:{w*1024}")
    a("s_waitcnt lgkmcnt(0)")
    a("v_add_f32 v40, v40, v41"); a("v_add_f32 v42, v42, v43"); a("v_add_f32 v44, v40, v42")
    a("buffer_store_dwordx2 v[44:45], v13, s[56:59], s66 offen sc1")
    if QL is not None:
        a(f"s_cmp_lg_u32 s4, {QH}"); a("s_cbranch_scc1 L_v_q_done")
        a(f"v_add_u32 v44, {L_WQ2 - L_WQ}, v48")
        a(f"s_waitcnt vmcnt({1+vearly})")
        for nt in range(4):
            a(f"ds_read_b64_tr_b16 v[{196+4*nt}:{197+4*nt}], v44 offset:{nt*32}")
            a(f"ds_read_b64_tr_b16 v[{198+4*nt}:{199+4*nt}], v44 offset:{nt*32+512}")
        a(f"v_add_u32 v46, {L_QPB2 - L_QPB}, v46"); a(f"v_add_u32 v47, {L_QPB2 - L_QPB}, v47")
        a("s_waitcnt lgkmcnt(0)")
        for nt in range(4):
            a(f"v_mfma_f32_16x16x32_bf16 v[{212+4*nt}:{215+4*nt}], v[192:195], v[{196+4*nt}:{199+4*nt}], 0")
        a(f"s_add_u32 s66, s66, {((QL - QH) * 65536) & 0xffffffff}")
        a("s_nop 6")
        for nt in range(4): a(f"ds_write_b128 v46, v[{212+4*nt}:{215+4*nt}] offset:{nt*256}")
        setflag(F_Q2)
        wait_flags4(F_Q2, 40)
        for w in range(4): a(f"ds_read_b32 v{40+w}, v47 offset:{w*1024}")
        a("s_waitcnt lgkmcnt(0)")
        a("v_add_f32 v40, v40, v41"); a("v_add_f32 v42, v42, v43"); a("v_add_f32 v44, v40, v42")
        a("buffer_store_dwordx2 v[44:45], v13, s[56:59], s66 offen sc1")
        a("s_branch L_v_q_done")
        a.label("L_v_noq2")
        a(f"s_waitcnt vmcnt({vearly})")
        a("v_readfirstlane_b32 s8, v5")
        a("s_nop 1")
        a(f"s_add_u32 s8, s8, {TAGC}")
        a("v_mov_b32 v15, s8")
        a.label("L_v_q_done")
    a("s_setprio 1")
    stamp(1)
    for k in range(vearly, 32):
        r = 64 + 4*k
        a(f"buffer_load_dwordx4 v[{r}:{r+3}], v14, s[24:27], s65 offen offset:{(k%4)*1024}{NT}")
        if k % 4 == 3 and k < 31: kvstep()
        if vigate is not None and k == vigate: setflag(F_VI)
    stamp(2)
    a("v_lshlrev_b32 v10, 2, v2")
    a("s_lshl_b32 s10, s76, 10"); a("s_lshl_b32 s12, s62, 1"); a("s_add_u32 s10, s10, s12")
    a("buffer_load_dword v12, v10, s[16:19], s10 offen")
    a("s_lshl_b32 s95, s4, 3"); a("s_add_u32 s95, s95, s6"); a("s_lshl_b32 s95, s95, 3")
    a("v_and_b32 v9, 3, v1"); a("v_lshlrev_b32 v9, 2, v9"); a("s_lshl_b32 s12, s95, 1")
    a("buffer_load_dword v8, v9, s[48:51], s12 offen")
    a("buffer_load_dword v4, v9, s[52:55], s12 offen")
    NSM = 3
    a("v_lshlrev_b32 v20, 9, v3"); a("v_lshlrev_b32 v9, 5, v2"); a("v_add_u32 v20, v20, v9")
    a("s_lshl_b32 s10, s11, 11"); a(f"s_add_u32 s10, s10, {L_RED}"); a("v_add_u32 v20, s10, v20")
    a("s_lshl_b32 s10, s11, 9"); a(f"s_add_u32 s10, s10, {L_RED}"); a("v_add_u32 v21, s10, v13")
    a("s_lshl_b32 s10, s70, 3"); a("s_add_u32 s10, s10, s6"); a("s_lshl_b32 s10, s10, 11"); a("s_lshl_b32 s12, s11, 9"); a("s_add_u32 s10, s10, s12"); a(f"s_add_u32 s66, s10, {WS_OP}")
    a("v_lshrrev_b32 v10, 2, v2"); a("v_lshlrev_b32 v10, 6, v10"); a("v_lshlrev_b32 v9, 4, v3"); a("v_add_u32 v10, v10, v9")
    a("s_lshl_b32 s10, s11, 10"); a(f"s_add_u32 s10, s10, {L_PB}"); a("v_add_u32 v10, s10, v10")
    if not no_pwait: wait_flag1(F_P, 40, sleep=1)
    PF = 224
    for T in range(4): a(f"ds_read_b128 v[{PF+4*T}:{PF+3+4*T}], v10 offset:{T*256}")
    stamp(3)
    def perms(T, dst, ulist):
        raw = 64 + 32*T
        for u in ulist:
            for jj in range(4):
                s1 = raw + 4*(2*u) + jj; s0 = raw + 4*(2*u+1) + jj
                a(f"v_perm_b32 v{dst + 4*(2*jj) + u}, v{s0}, v{s1}, s60")
                a(f"v_perm_b32 v{dst + 4*(2*jj+1) + u}, v{s0}, v{s1}, s61")
    ACC = 32
    def mfmas(T, src, js):
        for j in js:
            c = "0" if T == 0 else f"v[{ACC+4*j}:{ACC+4*j+3}]"
            a(f"v_mfma_f32_16x16x32_bf16 v[{ACC+4*j}:{ACC+4*j+3}], v[{PF+4*T}:{PF+3+4*T}], v[{src+4*j}:{src+4*j+3}], {c}")
    F = [192, 64, 96, 128]
    def after(k): return min(63, (31 - k) + NSM)
    a(f"s_waitcnt vmcnt({after(7)})")
    perms(0, F[0], range(4))
    a(f"s_waitcnt vmcnt({after(15)}) lgkmcnt(0)")
    for u in range(4):
        perms(1, F[1], [u]); mfmas(0, F[0], [2*u, 2*u+1])
    a(f"s_waitcnt vmcnt({after(23)})")
    for u in range(4):
        perms(2, F[2], [u]); mfmas(1, F[1], [2*u, 2*u+1])
    mfmas(2, F[2], range(4))
    for u in range(4):
        a(f"s_waitcnt vmcnt({after(24+2*u+1)})")
        perms(3, F[3], [u])
        mfmas(2, F[2], [4+u])
    a("s_nop 0")
    mfmas(3, F[3], range(8))
    stamp(4)
    a("v_mov_b32 v17, s8")
    a("s_nop 6")
    for j in range(0, 8, 2):
        a(f"ds_write2_b32 v20, v{ACC+4*j}, v{ACC+4*(j+1)} offset0:{j} offset1:{j+1}")
    setflag(F_O)
    wait_flags4(F_O, 24)
    for w in range(4): a(f"ds_read_b64 v[{24+2*w}:{25+2*w}], v21 offset:{w*2048}")
    a("s_waitcnt lgkmcnt(0)")
    for c in range(2):
        a(f"v_add_f32 v{24+c}, v{24+c}, v{26+c}"); a(f"v_add_f32 v{28+c}, v{28+c}, v{30+c}")
    for c in range(2): a(f"v_add_f32 v{24+c}, v{24+c}, v{28+c}")
    a("v_cvt_pk_bf16_f32 v16, v24, v25")
    a("buffer_store_dwordx2 v[16:17], v13, s[56:59], s66 offen sc1")
    stamp(5)
    a("s_setprio 3")
    a(f"s_mov_b32 s69, {LOG2E}")
    role_branch("L_roleA", "L_roleB", "L_roleC")

    a.label("L_k2")
    if stamps:
        a("s_waitcnt lgkmcnt(0)")
        for i in range(16): a(f"v_mov_b32 v{SB+i}, 0")
        a(f"v_mov_b32 v{SB}, s78")
    stamp(2)
    if stamps:
        a("s_getreg_b32 s12, hwreg(HW_REG_HW_ID)"); a(f"v_mov_b32 v{SB+6}, s12")
        a("s_getreg_b32 s12, hwreg(HW_REG_XCC_ID)"); a("s_add_u32 s12, s12, 1"); a(f"v_mov_b32 v{SB+7}, s12")
    for sr in (24, 32, 36, 40, 44, 48, 52): srd(sr, SZ[sr])
    role_setup()
    a("s_mov_b32 s63, 0xffff0000")
    a(f"v_mov_b32 v7, {L_FLAGS}"); a("s_lshl_b32 s10, s11, 2"); a("v_add_u32 v11, s10, v7")
    a("v_lshlrev_b32 v13, 3, v1")
    a(f"s_waitcnt vmcnt({(8 - qearly) * 4})")
    a("v_readfirstlane_b32 s8, v5")
    a("s_mov_b32 s67, 0")
    a(f"s_add_u32 s8, s8, {TAGC}")
    a("v_mov_b32 v15, s8")
    Lq = lab("qg"); Lq2 = lab("qg2")
    a(f"s_branch {Lq2}")
    a.label(Lq)
    qloads()
    a("s_waitcnt vmcnt(0)")
    a.label(Lq2)
    tagcheck([17+2*i for i in range(8)], 40, 44, Lq, sleep=psleep)
    if stamps: a(f"v_mov_b32 v{SB+1}, s67")
    a("v_add_f32 v16, v16, v20"); a("v_add_f32 v24, v24, v28"); a("v_add_f32 v18, v18, v22"); a("v_add_f32 v26, v26, v30")
    a("v_add_f32 v16, v16, v24"); a("v_add_f32 v18, v18, v26")
    a("v_cvt_pk_bf16_f32 v40, v16, v18")
    a("s_lshl_b32 s10, s11, 8"); a(f"s_add_u32 s10, s10, {L_QL}")
    a("v_lshlrev_b32 v10, 2, v1"); a("v_add_u32 v10, s10, v10")
    a("ds_write_b32 v10, v40")
    setflag(F_Q)
    stamp(3)
    a("v_and_b32 v10, 3, v2"); a("v_lshlrev_b32 v10, 8, v10"); a("v_lshlrev_b32 v44, 4, v3"); a("v_add_u32 v10, v10, v44")
    a(f"v_add_u32 v10, {L_QL}, v10")
    wait_flags4(F_Q, 40)
    for i in range(4): a(f"ds_read_b128 v[{16+4*i}:{19+4*i}], v10 offset:{i*64}")
    a("s_waitcnt lgkmcnt(0)")
    for t in range(8):
        if t >= qearly: a(f"s_waitcnt vmcnt({(7-t)*4})")
        for i in range(4):
            r = 64 + 16*t + 4*i
            c = "0" if i == 0 else f"v[{32+4*t}:{35+4*t}]"
            a(f"v_mfma_f32_16x16x32_bf16 v[{32+4*t}:{35+4*t}], v[{16+4*i}:{19+4*i}], v[{r}:{r+3}], {c}")
    a(f"s_mov_b32 s68, {SCALE}"); a(f"s_mov_b32 s69, {LOG2E}")
    a("s_nop 5")
    for aa in range(2):
        for q in range(1, 4):
            for h in range(4):
                a(f"v_mov_b32_dpp v{32+16*aa+h}, v{32+16*aa+4*q+h} quad_perm:[0,1,2,3] row_mask:{hex(1<<q)} bank_mask:0xf")
    S = [[32+16*aa+h for h in range(4)] for aa in range(2)]
    for rnd in range(2):
        for aa in range(2):
            for hp in range(2): a(f"v_cvt_pk_bf16_f32 v{36+2*aa+hp}, v{S[aa][2*hp]}, v{S[aa][2*hp+1]}")
        for aa in range(2):
            for hp in range(2):
                a(f"v_lshlrev_b32 v{S[aa][2*hp]}, 16, v{36+2*aa+hp}")
                a(f"v_and_b32 v{S[aa][2*hp+1]}, s63, v{36+2*aa+hp}")
        if rnd == 0:
            for aa in range(2):
                for h in range(4): a(f"v_mul_f32 v{S[aa][h]}, s68, v{S[aa][h]}")
    for h in range(4): a(f"v_max_f32 v{40+h}, v{S[0][h]}, v{S[1][h]}")
    allreduce("v_max_f32", [40, 41, 42, 43], [44, 45, 46, 47])
    for aa in range(2):
        for h in range(4): a(f"v_sub_f32 v{S[aa][h]}, v{S[aa][h]}, v{40+h}")
    for aa in range(2):
        for h in range(4): a(f"v_mul_f32 v{S[aa][h]}, s69, v{S[aa][h]}")
    for aa in range(2):
        for h in range(4): a(f"v_exp_f32 v{S[aa][h]}, v{S[aa][h]}")
    a("s_nop 0")
    for h in range(4): a(f"v_add_f32 v{52+h}, v{S[0][h]}, v{S[1][h]}")
    allreduce("v_add_f32", [52, 53, 54, 55], [44, 45, 46, 47])
    for h in range(4):
        a(f"v_mov_b32 v{56+2*h}, v{40+h}"); a(f"v_mov_b32 v{57+2*h}, v{52+h}")
    a("s_lshl_b32 s10, s11, 5"); a(f"s_add_u32 s10, s10, {L_MLB}")
    a("v_mov_b32 v10, s10")
    a("ds_write_b128 v10, v[56:59]")
    a("ds_write_b128 v10, v[60:63] offset:16")
    setflag(F_ML)
    a("v_lshlrev_b32 v10, 3, v2"); a(f"v_add_u32 v10, {L_MLB}, v10")
    a("v_lshrrev_b32 v9, 5, v1"); a("v_lshlrev_b32 v9, 8, v9")
    a("v_and_b32 v44, 3, v1"); a("v_lshlrev_b32 v44, 4, v44"); a("v_add_u32 v9, v9, v44")
    a("v_and_b32 v44, 31, v1"); a("v_lshrrev_b32 v44, 2, v44"); a("v_lshlrev_b32 v44, 1, v44"); a("v_add_u32 v9, v9, v44")
    a("s_lshl_b32 s10, s11, 10"); a(f"s_add_u32 s10, s10, {L_PB}"); a("v_add_u32 v9, s10, v9")
    wait_flags4(F_ML, 44)
    a("ds_read_b64 v[192:193], v10")
    a("s_waitcnt lgkmcnt(0)")
    a("v_mov_b32 v194, v192")
    a("s_nop 1")
    a("v_max_f32_dpp v194, v194, v194 row_ror:4 row_mask:0xf bank_mask:0xf")
    a("s_nop 1")
    a("v_max_f32_dpp v194, v194, v194 row_ror:8 row_mask:0xf bank_mask:0xf")
    a("v_sub_f32 v195, v192, v194"); a("v_mul_f32 v195, s69, v195"); a("v_exp_f32 v195, v195"); a("s_nop 0")
    a("v_mul_f32 v196, v193, v195")
    a("s_nop 1")
    a("v_add_f32_dpp v196, v196, v196 row_ror:4 row_mask:0xf bank_mask:0xf")
    a("s_nop 1")
    a("v_add_f32_dpp v196, v196, v196 row_ror:8 row_mask:0xf bank_mask:0xf")
    a("v_rcp_f32 v197, v196"); a("s_nop 0")
    a("v_mul_f32 v197, v197, v195")
    a("s_lshl_b32 s10, s11, 2")
    for h in range(4):
        a(f"s_add_u32 s12, s10, {h}")
        a(f"v_readlane_b32 s{72+h}, v197, s12")
    a("v_mov_b32 v56, v194"); a("v_mov_b32 v57, s8"); a("v_mov_b32 v58, v196"); a("v_mov_b32 v59, s8")
    for aa in range(2):
        for h in range(4): a(f"v_mul_f32 v{S[aa][h]}, s{72+h}, v{S[aa][h]}")
    for aa in range(2):
        for hp in range(2): a(f"v_cvt_pk_bf16_f32 v{36+2*aa+hp}, v{S[aa][2*hp]}, v{S[aa][2*hp+1]}")
    for aa in range(2):
        for hp in range(2):
            a(f"ds_write_b16 v9, v{36+2*aa+hp} offset:{aa*512 + (2*hp)*64}")
            a(f"ds_write_b16_d16_hi v9, v{36+2*aa+hp} offset:{aa*512 + (2*hp+1)*64}")
    setflag(F_P)
    a("s_lshl_b32 s10, s70, 3"); a("s_add_u32 s10, s10, s6"); a("s_lshl_b32 s10, s10, 6")
    a("s_lshl_b32 s12, s11, 4"); a("s_add_u32 s10, s10, s12"); a(f"s_add_u32 s10, s10, {WS_ML}")
    a("s_lshl_b64 s[12:13], 1, s11")
    a("s_mov_b64 exec, s[12:13]")
    a("buffer_store_dwordx4 v[56:59], v6, s[56:59], s10 offen sc1")
    a("s_mov_b64 exec, -1")
    stamp(4)
    role_branch("L_kA", "L_kB", None)

    a.label("L_kA")
    a("s_mov_b32 s72, s85")
    a("v_lshrrev_b32 v22, 1, v2"); a("v_xor_b32 v22, v22, v3"); a("v_lshlrev_b32 v22, 5, v22")
    a("v_lshlrev_b32 v23, 10, v3"); a("v_add_u32 v22, v22, v23"); a("v_and_b32 v23, 1, v1"); a("v_lshlrev_b32 v23, 4, v23"); a("v_add_u32 v22, v22, v23")
    a("v_xor_b32 v23, 0x80, v22")
    a("s_lshl_b32 s14, s84, 2"); a("s_add_u32 s14, s14, s72"); a("s_lshl_b32 s14, s14, 17")
    a("s_lshl_b32 s13, s11, 15"); a("s_add_u32 s14, s14, s13"); a("s_lshl_b32 s13, s86, 8"); a("s_add_u32 s14, s14, s13")
    a("s_lshl_b32 s15, s11, 13")
    if L_W: a(f"s_add_u32 s15, s15, {L_W}")
    a("s_cmp_lg_u32 s3, 0"); a("s_cbranch_scc1 L_kA_dma")
    a("v_lshrrev_b32 v10, 3, v1"); a("v_and_b32 v10, 3, v10"); a("v_lshlrev_b32 v10, 12, v10"); a("v_and_b32 v9, 7, v1"); a("v_lshlrev_b32 v9, 6, v9"); a("v_add_u32 v10, v10, v9")
    a("s_lshl_b32 s12, s84, 9"); a("s_lshl_b32 s10, s72, 4"); a("s_add_u32 s10, s10, s12"); a(f"s_add_u32 s66, s10, {WS_ML}")
    a("s_mov_b32 s67, 0")
    Lm = lab("mg"); a.label(Lm)
    a(f"s_sleep {mlsleep}")
    a("buffer_load_dwordx4 v[192:195], v10, s[56:59], s66 offen sc1")
    a("s_waitcnt vmcnt(0)")
    tagcheck([193, 195], 40, 44, Lm, sleep=0)
    def red8(op, r, t):
        for mod in ("quad_perm:[1,0,3,2]", "quad_perm:[2,3,0,1]", "row_half_mirror"):
            a("s_nop 1")
            a(f"{op}_dpp v{r}, v{r}, v{r} {mod} row_mask:0xf bank_mask:0xf")
    a("v_mov_b32 v40, v192")
    red8("v_max_f32", 40, 41)
    a("v_sub_f32 v41, v192, v40"); a("v_mul_f32 v41, s69, v41"); a("v_exp_f32 v41, v41"); a("s_nop 0")
    a("v_mul_f32 v41, v41, v194")
    a("v_mov_b32 v42, v41")
    red8("v_add_f32", 42, 43)
    a("v_rcp_f32 v42, v42"); a("s_nop 0")
    a("v_mul_f32 v41, v41, v42")
    a("v_and_b32 v9, 31, v1"); a("v_lshlrev_b32 v9, 2, v9"); a(f"v_add_u32 v9, {L_WR}, v9")
    a("ds_write_b32 v9, v41")
    setflag(F_WR)
    a.label("L_kA_dma")
    a("s_setprio 0")
    if vigate is not None: wait_flags4(F_VI, 44, sleep=2)
    for i in range(8):
        a("s_mov_b32 m0, s15"); a("s_add_u32 s15, s15, 1024")
        if not no_w: a(f"buffer_load_dwordx4 v{22 + ((i>>1)&1)}, s[32:35], s14 offen{NT} lds")
        a("s_add_u32 s14, s14, 4096")
    a("s_branch L_roleA")

    a.label("L_kB")
    a("s_setprio 0")
    a("v_lshrrev_b32 v22, 2, v1"); a("v_mul_u32_u24 v22, 3584, v22")
    a("v_lshrrev_b32 v23, 1, v1"); a("v_and_b32 v23, 1, v23"); a("v_lshrrev_b32 v24, 5, v1"); a("v_xor_b32 v23, v23, v24"); a("v_lshlrev_b32 v23, 5, v23"); a("v_add_u32 v22, v22, v23")
    a("v_and_b32 v23, 1, v1"); a("v_lshlrev_b32 v23, 4, v23"); a("v_add_u32 v22, v22, v23")
    a(f"s_mul_i32 s12, s11, {128*3584}"); a("s_lshl_b32 s13, s9, 6"); a("s_add_u32 s12, s12, s13")
    a("s_lshl_b32 s13, s11, 13")
    if L_W: a(f"s_add_u32 s13, s13, {L_W}")
    a("s_and_b32 s10, s11, 1"); a("s_lshl_b32 s10, s10, 7"); a("v_xor_b32 v24, s10, v14")
    a("v_xor_b32 v25, 32, v24"); a("v_xor_b32 v26, 64, v24"); a("v_xor_b32 v27, 0x60, v24")
    a("s_lshl_b32 s14, s9, 15"); a("s_lshl_b32 s15, s11, 13"); a("s_add_u32 s14, s14, s15"); a(f"s_add_u32 s15, s15, {L_W2}")
    wait_flags4(F_O, 44, sleep=2)
    for i in range(8):
        a("s_mov_b32 m0, s13"); a("s_add_u32 s13, s13, 1024")
        if not no_w: a(f"buffer_load_dwordx4 v22, s[36:39], s12 offen{NT} lds")
        a(f"s_add_u32 s12, s12, {16*3584}")
    for i in range(8):
        a("s_mov_b32 m0, s15"); a("s_add_u32 s15, s15, 1024")
        if not no_w: a(f"buffer_load_dwordx4 v{24 + (i&3)}, s[44:47], s14 offen{NT} lds")
        a("s_add_u32 s14, s14, 1024")
    a("s_waitcnt vmcnt(0)")
    setflag(F_W)
    stamp(5)
    a("s_branch L_roleB")

    a.label("L_roleA")
    a("s_lshr_b32 s71, s3, 2")
    a("s_mov_b32 s72, s85")
    a("s_mov_b32 s73, s86")
    a("v_lshrrev_b32 v21, 3, v2"); a("v_lshlrev_b32 v21, 17, v21"); a("v_and_b32 v9, 7, v2"); a("v_lshlrev_b32 v9, 11, v9"); a("v_add_u32 v21, v21, v9")
    a("v_lshlrev_b32 v9, 5, v3"); a("v_add_u32 v21, v21, v9")
    a("s_lshl_b32 s10, s71, 18"); a("s_lshl_b32 s12, s84, 14"); a("s_add_u32 s10, s10, s12"); a("s_lshl_b32 s12, s72, 9"); a("s_add_u32 s10, s10, s12")
    a("s_lshl_b32 s12, s11, 7"); a("s_add_u32 s10, s10, s12"); a(f"s_add_u32 s75, s10, {WS_OP}")
    a("s_cmp_lt_u32 s3, 4"); a("s_cbranch_scc1 L_A_common")
    a("buffer_load_dwordx4 v[192:195], v21, s[56:59], s75 offen sc1")
    a("buffer_load_dwordx4 v[196:199], v21, s[56:59], s75 offen offset:16 sc1")
    a.label("L_A_common")
    a("v_lshrrev_b32 v9, 2, v2"); a("v_lshlrev_b32 v10, 3, v3"); a("v_add_u32 v10, v10, v9"); a("v_lshlrev_b32 v10, 8, v10")
    a("v_and_b32 v44, 3, v2"); a("v_lshlrev_b32 v44, 3, v44"); a("v_add_u32 v10, v10, v44")
    a("v_and_b32 v44, 1, v3"); a("v_lshlrev_b32 v44, 2, v44"); a("v_or_b32 v44, v44, v9"); a("v_lshlrev_b32 v44, 5, v44"); a("v_add_u32 v10, v10, v44")
    a("s_lshl_b32 s10, s11, 13")
    if L_W: a(f"s_add_u32 s10, s10, {L_W}")
    a("v_add_u32 v24, s10, v10")
    for nt in range(1, 8): a(f"v_xor_b32 v{24+nt}, {nt*32}, v24")
    a("v_lshrrev_b32 v9, 1, v3"); a("v_lshlrev_b32 v9, 9, v9"); a("v_and_b32 v44, 1, v3"); a("v_lshlrev_b32 v44, 6, v44"); a("v_add_u32 v9, v9, v44")
    a("v_lshlrev_b32 v44, 2, v2"); a("v_add_u32 v9, v9, v44")
    a("s_lshl_b32 s10, s11, 11"); a("s_lshl_b32 s12, s71, 10"); a("s_add_u32 s10, s10, s12"); a(f"s_add_u32 s10, s10, {L_R1}"); a("v_add_u32 v60, s10, v9")
    a("s_lshl_b32 s10, s3, 8"); a(f"s_add_u32 s10, s10, {L_R1}"); a("v_lshlrev_b32 v9, 2, v1"); a("v_add_u32 v61, s10, v9")
    a("s_lshr_b32 s10, s3, 1"); a("s_lshl_b32 s10, s10, 5"); a("s_lshl_b32 s12, s84, 2"); a("s_add_u32 s10, s10, s12"); a("s_add_u32 s10, s10, s72"); a("s_lshl_b32 s10, s10, 12")
    a("s_lshl_b32 s12, s73, 10"); a("s_add_u32 s10, s10, s12"); a("s_and_b32 s12, s3, 1"); a("s_lshl_b32 s12, s12, 9"); a("s_add_u32 s10, s10, s12"); a(f"s_add_u32 s74, s10, {WS_HP}")
    a("v_mov_b32 v63, s8")
    a("s_mov_b32 s67, 0")
    a("v_lshlrev_b32 v62, 4, v3"); a("s_lshl_b32 s10, s71, 6"); a(f"s_add_u32 s10, s10, {L_WR}"); a("v_add_u32 v62, s10, v62")
    def wr_read():
        L = lab("wr"); a.label(L)
        a(f"ds_read_b32 v40, v7 offset:{F_WR}")
        a("s_waitcnt lgkmcnt(0)")
        a("v_cmp_ne_u32 vcc, 1, v40")
        a(f"s_cbranch_vccnz {L}")
        a("ds_read_b128 v[48:51], v62")
    a("s_cmp_lt_u32 s3, 4"); a("s_cbranch_scc1 L_A_k")
    wait_flag1(F_W, 40)
    for nt in range(8):
        a(f"ds_read_b64_tr_b16 v[{64+4*nt}:{65+4*nt}], v{24+nt}")
        a(f"ds_read_b64_tr_b16 v[{66+4*nt}:{67+4*nt}], v{24+nt} offset:1024")
        if nt == 3: a("s_waitcnt lgkmcnt(0)")
    wr_read()
    Lo = lab("og"); Lo2 = lab("og2")
    stamp(13)
    a(f"s_branch {Lo2}")
    a.label("L_A_k")
    a("s_waitcnt vmcnt(0)")
    setflag(F_W)
    stamp(5)
    a("s_setprio 3")
    for nt in range(8):
        a(f"ds_read_b64_tr_b16 v[{64+4*nt}:{65+4*nt}], v{24+nt}")
        a(f"ds_read_b64_tr_b16 v[{66+4*nt}:{67+4*nt}], v{24+nt} offset:1024")
        if nt == 3: a("s_waitcnt lgkmcnt(0)")
    wr_read()
    wait_flags4(F_O, 40, sleep=1)
    stamp(13)
    a.label(Lo)
    a("buffer_load_dwordx4 v[192:195], v21, s[56:59], s75 offen sc1")
    a("buffer_load_dwordx4 v[196:199], v21, s[56:59], s75 offen offset:16 sc1")
    a.label(Lo2)
    a("s_waitcnt vmcnt(0) lgkmcnt(0)")
    tagcheck([193, 195, 197, 199], 40, 44, Lo, sleep=tsleep)
    stamp(8)
    a("v_mov_b32 v193, v194"); a("v_mov_b32 v194, v196"); a("v_mov_b32 v195, v198")
    a("s_nop 1")
    for nt in range(8):
        a(f"v_mfma_f32_16x16x32_bf16 v[{96+4*nt}:{99+4*nt}], v[192:195], v[{64+4*nt}:{67+4*nt}], 0")
    a("s_nop 0")
    for r in range(4):
        for nt in range(8):
            if r == 0: a(f"v_mul_f32 v{128+nt}, v48, v{96+4*nt}")
            else: a(f"v_fmac_f32 v{128+nt}, v{48+r}, v{96+4*nt+r}")
    for p in range(4): a(f"v_permlane16_swap_b32 v{128+2*p}, v{129+2*p}") if p else (a("s_nop 0"), a(f"v_permlane16_swap_b32 v128, v129"))
    for p in range(4): a(f"v_add_f32 v{128+2*p}, v{128+2*p}, v{129+2*p}")
    stamp(10)
    for p in range(4): a(f"ds_write_b32 v60, v{128+2*p} offset:{p*128}")
    a("s_waitcnt lgkmcnt(0)")
    a("s_barrier")
    stamp(11)
    for kt in range(4): a(f"ds_read_b32 v{40+kt}, v61 offset:{kt*2048}")
    a("s_waitcnt lgkmcnt(0)")
    a("v_add_f32 v40, v40, v41"); a("v_add_f32 v42, v42, v43"); a("v_add_f32 v62, v40, v42")
    a("buffer_store_dwordx2 v[62:63], v13, s[56:59], s74 offen sc1")
    stamp(9)
    a("s_branch L_endrole")

    a.label("L_roleB")
    a("s_setprio 3")
    a("s_add_u32 s96, s8, 1")
    a("v_and_b32 v10, 31, v1"); a("v_lshlrev_b32 v10, 1, v10"); a("s_lshl_b32 s10, s9, 6")
    a("buffer_load_ushort v16, v10, s[40:43], s10 offen")
    a("v_lshrrev_b32 v9, 2, v2"); a("v_lshlrev_b32 v10, 3, v3"); a("v_add_u32 v9, v10, v9")
    a("v_and_b32 v44, 3, v2"); a("v_lshlrev_b32 v44, 3, v44")
    a("v_lshlrev_b32 v10, 6, v9"); a("v_add_u32 v10, v10, v44"); a("v_and_b32 v45, 1, v3"); a("v_lshlrev_b32 v46, 5, v45"); a("v_add_u32 v10, v10, v46")
    a("s_lshl_b32 s10, s3, 12")
    if L_W: a(f"s_add_u32 s10, s10, {L_W}")
    a("v_add_u32 v52, s10, v10"); a("v_xor_b32 v53, 32, v52")
    a("v_lshlrev_b32 v10, 10, v9"); a("v_add_u32 v10, v10, v44")
    a("v_lshrrev_b32 v46, 2, v2"); a("v_lshlrev_b32 v45, 2, v45"); a("v_or_b32 v46, v46, v45"); a("v_lshlrev_b32 v46, 5, v46"); a("v_add_u32 v10, v10, v46")
    a("s_lshl_b32 s10, s3, 7"); a("v_xor_b32 v10, s10, v10"); a(f"v_add_u32 v54, {L_W2}, v10")
    for q in range(1, 4): a(f"v_xor_b32 v{54+q}, {q*32}, v54")
    a("v_and_b32 v58, 3, v2"); a("v_lshlrev_b32 v58, 10, v58"); a("v_lshlrev_b32 v9, 4, v3"); a("v_add_u32 v58, v58, v9")
    a("s_lshl_b32 s10, s3, 7"); a(f"s_add_u32 s10, s10, {L_YB}"); a("v_add_u32 v58, s10, v58")
    a("v_lshlrev_b32 v59, 4, v2"); a("s_lshl_b32 s10, s3, 9"); a(f"s_add_u32 s10, s10, {L_T1}"); a("v_add_u32 v59, s10, v59")
    a("v_and_b32 v60, 31, v1"); a("v_lshlrev_b32 v60, 4, v60"); a("v_lshrrev_b32 v9, 5, v1"); a("v_lshlrev_b32 v9, 11, v9"); a("v_add_u32 v60, v60, v9"); a(f"v_add_u32 v60, {L_T1}, v60")
    a("v_and_b32 v61, 31, v1"); a("v_lshlrev_b32 v61, 1, v61"); a("v_lshrrev_b32 v9, 5, v1"); a("v_lshlrev_b32 v9, 7, v9"); a("v_add_u32 v61, v61, v9")
    a("s_lshl_b32 s10, s3, 8"); a(f"s_add_u32 s10, s10, {L_GB}"); a("v_add_u32 v61, s10, v61")
    a("v_and_b32 v62, 3, v2"); a("v_lshlrev_b32 v62, 6, v62"); a("v_lshlrev_b32 v9, 4, v3"); a("v_add_u32 v62, v62, v9"); a("v_add_u32 v62, s10, v62")
    a("s_lshl_b32 s10, s9, 12"); a("s_lshl_b32 s12, s3, 9"); a("s_add_u32 s10, s10, s12"); a(f"s_add_u32 s72, s10, {WS_GP}")
    for bb in range(1, 4): a(f"s_add_u32 s{72+bb}, s72, {bb*56*4096}")
    for r in range(4): a(f"v_mov_b32 v{113+2*r}, s96")
    a("v_mov_b32 v46, 0x3d372713")
    a("s_lshl_b32 s10, s3, 10"); a(f"s_add_u32 s10, s10, {L_YB}"); a("v_add_u32 v63, s10, v14")
    a("v_lshlrev_b32 v10, 5, v1"); a("s_lshl_b32 s10, s3, 11"); a("s_lshl_b32 s12, s4, 13"); a("s_add_u32 s10, s10, s12"); a(f"s_add_u32 s66, s10, {WS_H}")
    wait_flags4(F_W, 40, sleep=1)
    for kt in range(2):
        for nt in range(2):
            r = 64 + (kt*2+nt)*4
            a(f"ds_read_b64_tr_b16 v[{r}:{r+1}], v{52+nt} offset:{kt*2048}")
            a(f"ds_read_b64_tr_b16 v[{r+2}:{r+3}], v{52+nt} offset:{kt*2048+256}")
    for q in range(4):
        r = 80 + 4*q
        a(f"ds_read_b64_tr_b16 v[{r}:{r+1}], v{54+q}")
        a(f"ds_read_b64_tr_b16 v[{r+2}:{r+3}], v{54+q} offset:4096")
    a("s_waitcnt vmcnt(0) lgkmcnt(0)")
    a("v_lshlrev_b32 v16, 16, v16")
    a("s_cmp_ge_u32 s3, 4"); a("s_cbranch_scc1 L_B_ln_done")
    a("s_mov_b32 s67, 0")
    Lh = lab("hg"); a.label(Lh)
    a("buffer_load_dwordx4 v[192:195], v10, s[56:59], s66 offen sc1")
    a("buffer_load_dwordx4 v[196:199], v10, s[56:59], s66 offen offset:16 sc1")
    a("s_waitcnt vmcnt(0)")
    tagcheck([193, 195, 197, 199], 40, 44, Lh, sleep=tsleep)
    stamp(10)
    for i in range(4):
        a(f"v_lshlrev_b32 v{20+2*i}, 16, v{192+2*i}"); a(f"v_and_b32 v{21+2*i}, s63, v{192+2*i}")
    layernorm8(20, 32)
    a("ds_write_b128 v63, v[40:43]")
    a("s_waitcnt lgkmcnt(0)")
    stamp(12)
    a.label("L_B_ln_done")
    a("s_barrier")
    for kt in range(2): a(f"ds_read_b128 v[{192+4*kt}:{195+4*kt}], v58 offset:{kt*64}")
    a("s_waitcnt lgkmcnt(0)")
    for kt in range(2):
        for nt in range(2):
            r = 64 + (kt*2+nt)*4
            c = "0" if kt == 0 else f"v[{96+4*nt}:{99+4*nt}]"
            a(f"v_mfma_f32_16x16x32_bf16 v[{96+4*nt}:{99+4*nt}], v[{192+4*kt}:{195+4*kt}], v[{r}:{r+3}], {c}")
    a("s_nop 6")
    a("ds_write_b128 v59, v[96:99]")
    a("s_nop 0")
    a("ds_write_b128 v59, v[100:103] offset:256")
    a("s_waitcnt lgkmcnt(0)")
    stamp(13)
    a("s_barrier")
    stamp(14)
    for i in range(4): a(f"ds_read_b128 v[{192+4*i}:{195+4*i}], v60 offset:{i*512}")
    a("s_waitcnt lgkmcnt(0)")
    for c in range(4):
        a(f"v_add_f32 v{192+c}, v{192+c}, v{196+c}"); a(f"v_add_f32 v{200+c}, v{200+c}, v{204+c}")
    for c in range(4): a(f"v_add_f32 v{192+c}, v{192+c}, v{200+c}")
    a("s_nop 0")
    a("v_permlane32_swap_b32 v192, v194"); a("v_permlane32_swap_b32 v193, v195")
    a("v_add_f32 v40, v192, v194"); a("v_add_f32 v41, v193, v195")
    a("v_cvt_pk_bf16_f32 v42, v40, v41"); a("v_lshlrev_b32 v40, 16, v42"); a("v_and_b32 v41, s63, v42")
    a("v_add_f32 v40, v40, v16"); a("v_add_f32 v41, v41, v16")
    a("v_cvt_pk_bf16_f32 v42, v40, v41"); a("v_lshlrev_b32 v40, 16, v42"); a("v_and_b32 v41, s63, v42")
    for c in range(2): a(f"v_mul_f32 v{42+c}, v{40+c}, v{40+c}")
    for c in range(2): a(f"v_fma_f32 v{42+c}, v{42+c}, v46, 1.0")
    for c in range(2): a(f"v_mul_f32 v{42+c}, v{42+c}, v{40+c}")
    for c in range(2): a(f"v_mul_f32 v{42+c}, 0xc0135761, v{42+c}")
    for c in range(2): a(f"v_exp_f32 v{42+c}, v{42+c}")
    a("s_nop 0")
    for c in range(2): a(f"v_add_f32 v{42+c}, 1.0, v{42+c}")
    for c in range(2): a(f"v_rcp_f32 v{42+c}, v{42+c}")
    a("s_nop 0")
    for c in range(2): a(f"v_mul_f32 v{40+c}, v{40+c}, v{42+c}")
    a("v_cvt_pk_bf16_f32 v40, v40, v41")
    stamp(8)
    a("ds_write_b16 v61, v40"); a("ds_write_b16_d16_hi v61, v40 offset:64")
    a("ds_read_b128 v[192:195], v62")
    a("s_waitcnt lgkmcnt(0)")
    for q in range(4):
        a(f"v_mfma_f32_16x16x32_bf16 v[{96+4*q}:{99+4*q}], v[192:195], v[{80+4*q}:{83+4*q}], 0")
    a("s_nop 4")
    for r in range(4): a(f"v_mov_b32 v{112+2*r}, v{96+r}")
    for q in range(1, 4):
        for r in range(4):
            a(f"v_mov_b32_dpp v{112+2*r}, v{96+4*q+r} quad_perm:[0,1,2,3] row_mask:{hex(1<<q)} bank_mask:0xf")
    for r in range(4): a(f"buffer_store_dwordx2 v[{112+2*r}:{113+2*r}], v13, s[56:59], s{72+r} offen sc1")
    stamp(11)
    a("s_branch L_endrole")

    a.label("L_roleC")
    a("s_cmp_lg_u32 s3, 7"); a("s_cbranch_scc1 L_fin")
    a("s_setprio 3")
    a("v_lshlrev_b32 v10, 12, v3"); a("v_lshlrev_b32 v9, 4, v2"); a("v_add_u32 v18, v10, v9")
    a("s_lshl_b32 s10, s76, 17"); a("s_lshl_b32 s12, s62, 3"); a("s_add_u32 s10, s10, s12"); a(f"s_add_u32 s80, s10, {WS_HP}")
    for t in range(1, 8): a(f"s_add_u32 s{80+t}, s80, {t*16384}")
    a("s_lshl_b32 s10, s76, 11"); a("s_lshl_b32 s12, s62, 2"); a("s_add_u32 s10, s10, s12"); a(f"s_add_u32 s72, s10, {WS_H}"); a("s_add_u32 s74, s72, 32768")
    a("v_lshlrev_b32 v17, 3, v2"); a("v_lshlrev_b32 v9, 13, v3"); a("v_add_u32 v17, v17, v9")
    a("s_mov_b32 s67, 0")
    Ls = lab("sg"); a.label(Ls)
    for t in range(8): a(f"buffer_load_dwordx4 v[{64+4*t}:{67+4*t}], v18, s[56:59], s{80+t} offen sc1")
    a("s_waitcnt vmcnt(0)")
    tagcheck([65+2*i for i in range(16)], 40, 44, Ls, sleep=tsleep)
    stamp(12)
    def tree2(n):
        ra = [64 + 4*t for t in range(n)]
        while len(ra) > 1:
            nxt = []
            for i in range(0, len(ra) - 1, 2):
                a(f"v_add_f32 v{ra[i]}, v{ra[i]}, v{ra[i+1]}"); a(f"v_add_f32 v{ra[i]+2}, v{ra[i]+2}, v{ra[i+1]+2}"); nxt.append(ra[i])
            if len(ra) % 2: nxt.append(ra[-1])
            ra = nxt
    def xrow():
        a("s_nop 1")
        a("v_permlane32_swap_b32 v64, v66")
        a("v_add_f32 v64, v64, v66")
        a("v_mov_b32 v66, v64"); a("s_nop 1")
        a("v_permlane16_swap_b32 v64, v66")
        a("v_add_f32 v64, v64, v66")
        a("v_mov_b32 v66, v64"); a("s_nop 1")
        a("v_permlane32_swap_b32 v64, v66")
    tree2(8)
    xrow()
    a("v_cvt_pk_bf16_f32 v40, v64, v66")
    a("v_lshlrev_b32 v43, 16, v12"); a("v_and_b32 v44, s63, v12")
    a("v_lshlrev_b32 v41, 16, v40"); a("v_and_b32 v42, s63, v40")
    a("v_add_f32 v41, v41, v43"); a("v_add_f32 v42, v42, v44")
    a("v_cvt_pk_bf16_f32 v40, v41, v42")
    a("v_mov_b32 v41, v15")
    a("buffer_store_dwordx2 v[40:41], v17, s[56:59], s72 offen sc1")
    a("buffer_store_dwordx2 v[40:41], v17, s[56:59], s74 offen sc1")
    stamp(13)
    a.label("L_endrole")
    a("s_cmp_lg_u32 s3, 7"); a("s_cbranch_scc1 L_fin")
    a("s_setprio 3")
    a("s_add_u32 s96, s8, 1")
    a("v_lshrrev_b32 v10, 2, v1"); a("v_lshlrev_b32 v10, 12, v10"); a("v_and_b32 v9, 3, v1"); a("v_lshlrev_b32 v17, 4, v9"); a("v_add_u32 v18, v10, v17")
    a(f"s_mul_i32 s10, s5, {56*4096}"); a("s_lshl_b32 s12, s95, 3"); a("s_add_u32 s10, s10, s12"); a(f"s_add_u32 s80, s10, {WS_GP}")
    for t in range(1, 4): a(f"s_add_u32 s{80+t}, s80, {t*65536}")
    a("s_lshl_b32 s10, s4, 13"); a("s_lshl_b32 s12, s5, 11"); a("s_add_u32 s10, s10, s12"); a("s_lshl_b32 s12, s95, 2"); a("s_add_u32 s10, s10, s12"); a(f"s_add_u32 s84, s10, {WS_H}")
    a("v_lshlrev_b32 v19, 3, v9")
    a("s_lshl_b32 s10, s5, 10"); a("s_lshl_b32 s12, s95, 1"); a("s_add_u32 s73, s10, s12")
    a("v_lshlrev_b32 v16, 2, v9")
    a("v_mov_b32 v76, 0"); a("v_mov_b32 v77, s96"); a("v_mov_b32 v78, 0"); a("v_mov_b32 v79, s96")
    a("s_mov_b32 s67, 0")
    Lh4 = lab("h4"); a.label(Lh4)
    a("buffer_load_dwordx2 v[20:21], v19, s[56:59], s84 offen sc1")
    a("s_waitcnt vmcnt(0)")
    tagcheck([21], 40, 44, Lh4, sleep=4)
    a("v_lshlrev_b32 v21, 16, v20"); a("v_and_b32 v22, s63, v20")
    a("v_lshlrev_b32 v23, 16, v8"); a("v_and_b32 v24, s63, v8")
    a("s_mov_b32 s67, 0")
    Lg = lab("gg"); a.label(Lg)
    for t in range(3): a(f"buffer_load_dwordx4 v[{64+4*t}:{67+4*t}], v18, s[56:59], s{80+t} offen sc1")
    a("s_mov_b64 s[98:99], exec")
    a("s_mov_b32 exec_hi, 0")
    Lx = lab("x"); a(f"s_cbranch_execz {Lx}")
    a("buffer_load_dwordx4 v[76:79], v18, s[56:59], s83 offen sc1")
    a.label(Lx)
    a("s_mov_b64 exec, s[98:99]")
    a("s_waitcnt vmcnt(0)")
    tagcheck([65+2*i for i in range(8)], 40, 44, Lg, sleep=tsleep, tag="s96")
    stamp(14)
    a("v_add_f32 v64, v64, v68"); a("v_add_f32 v66, v66, v70"); a("v_add_f32 v72, v72, v76"); a("v_add_f32 v74, v74, v78")
    a("v_add_f32 v64, v64, v72"); a("v_add_f32 v66, v66, v74")
    for rot in (4, 8):
        a("s_nop 0")
        a(f"v_add_f32_dpp v64, v64, v64 row_ror:{rot} row_mask:0xf bank_mask:0xf")
        a(f"v_add_f32_dpp v66, v66, v66 row_ror:{rot} row_mask:0xf bank_mask:0xf")
    a("s_nop 1")
    a("v_permlane32_swap_b32 v64, v66")
    a("v_add_f32 v64, v64, v66")
    a("v_mov_b32 v66, v64"); a("s_nop 1")
    a("v_permlane16_swap_b32 v64, v66")
    a("v_add_f32 v64, v64, v66")
    a("v_mov_b32 v66, v64"); a("s_nop 1")
    a("v_permlane32_swap_b32 v64, v66")
    a("v_cvt_pk_bf16_f32 v40, v64, v66")
    a("v_lshlrev_b32 v41, 16, v40"); a("v_and_b32 v42, s63, v40")
    a("v_add_f32 v41, v41, v23"); a("v_add_f32 v42, v42, v24")
    a("v_cvt_pk_bf16_f32 v40, v41, v42")
    a("v_lshlrev_b32 v41, 16, v40"); a("v_and_b32 v42, s63, v40")
    a("v_add_f32 v41, v41, v21"); a("v_add_f32 v42, v42, v22")
    a("v_cvt_pk_bf16_f32 v40, v41, v42")
    a("s_mov_b64 exec, 0xf")
    a("buffer_store_dword v40, v16, s[52:55], s73 offen")
    a("s_mov_b64 exec, -1")
    a("s_cmp_lg_u32 s2, 0"); a("s_cbranch_scc1 L_fin")
    a("s_mov_b64 exec, 1")
    a("buffer_store_dword v15, v6, s[56:59], 0 offen sc1")
    a("s_mov_b64 exec, -1")
    a.label("L_fin")
    if stamps == "dbg":
        stamp(15)
        a("s_cmp_lg_u32 s3, 7"); a("s_cbranch_scc1 L_end")
        a("s_load_dwordx2 s[88:89], s[0:1], 88")
        a("s_waitcnt lgkmcnt(0)")
        a("s_mov_b32 s90, 256"); a("s_mov_b32 s91, 0x20000")
        a(f"v_not_b32 v{SB}, v{SB}")
        a("v_mov_b32 v44, 0")
        a("s_mov_b64 exec, 1")
        for k, idx in enumerate((0, 6, 1, 2, 4, 5, 14, 15)):
            a(f"buffer_atomic_umax v{SB+idx}, v44, s[88:91], 0 offen offset:{4*k}")
        a("s_mov_b64 exec, -1")
    elif stamps:
        stamp(15)
        a("s_lshl_b32 s10, s2, 3"); a("s_add_u32 s10, s10, s3"); a("s_lshl_b32 s10, s10, 6"); a(f"s_add_u32 s10, s10, {WS_STAMP}")
        a("v_mov_b32 v44, 0")
        a("s_mov_b64 exec, 1")
        for i in range(4): a(f"buffer_store_dwordx4 v[{SB+4*i}:{SB+3+4*i}], v44, s[56:59], s10 offen offset:{16*i}")
        a("s_mov_b64 exec, -1")
    a.label("L_end")
    a("s_endpgm")
    return a

HDR = """; Fused pre-LN GQA decode attention + channel-MLP block, single persistent launch (256 workgroups x 8 waves).
; @launch grid=(256,1,1) block=(512,1,1) lds={lds}
.amdgcn_target "amdgcn-amd-amdhsa--gfx950"
.text
.globl {name}_kernel
.p2align 8
.type {name}_kernel,@function
{name}_kernel:
"""
FTR = """
.section .rodata,"a"
.p2align 6
.amdhsa_kernel {name}_kernel
  .amdhsa_next_free_vgpr 256
  .amdhsa_next_free_sgpr 102
  .amdhsa_accum_offset 256
  .amdhsa_group_segment_fixed_size 0
  .amdhsa_kernarg_size 104
  .amdhsa_user_sgpr_count 2
  .amdhsa_user_sgpr_kernarg_segment_ptr 1
  .amdhsa_system_sgpr_workgroup_id_x 1
.end_amdhsa_kernel
"""
def build(path, **kw):
    a = gen(**kw)
    probs = check_hazards(a.lines)
    open(path, "w").write(HDR.format(name=NAME, lds=LDS_BYTES) + a.text() + FTR.format(name=NAME))
    return probs

if __name__ == "__main__":
    out = sys.argv[1] if len(sys.argv) > 1 else "k3.s"
    kw = {}
    for arg in sys.argv[2:]:
        if arg == "stamps": kw["stamps"] = True
        elif arg == "dbg": kw["stamps"] = "dbg"
        elif "=" in arg:
            k, v = arg.split("="); kw[k] = eval(v)
    probs = build(out, **kw)
    print("hazards:", len(probs))
```

```python
import sys
from asmlib import Asm, check_hazards

NAME = "sequential_preLN__gqa_block_cached__mixer_channel_mlp__decode"

WS_EPOCH = 0
WS_ML = 0x1000
WS_H  = 0x1E8000
WS_OP = 0x8000
WS_HP = 0x88000
WS_QB = 0x108000
WS_GP = 0x108000
WS_STAMP = 0x400000
L_W = 0
L_W2 = 32768
L_WQ = 65536
L_RED = 81920
L_R1 = 90112
L_YB = 98304
L_QPB = 102400
L_PB = 106496
L_T1 = 110592
L_GB = 114688
L_QL = 116736
L_FLAGS = 117760
L_MLB = 118016
L_WR = 118784
L_WQ2 = 122880
L_QPB2 = 139264
LDS_BYTES = 122880
F_Y, F_QP, F_Q, F_ML, F_P, F_W, F_O, F_WR, F_Q2, F_VI = 0, 16, 32, 48, 64, 80, 96, 112, 128, 144

LOG2E = 0x3fb8aa3b
SCALE = 0x3db504f3
EPS = 0x3727c5ac
TAGC = 0x9E3779B9
POLL_MAX = 20000

def gen(stamps=False, psleep=2, tsleep=1, qearly=6, mlsleep=8, rot=True, no_w=False, no_pwait=False, no_q=False, khold=0, lanemask=True, delay=None, NA=(20,20,20,20,14,12,12,10), NB=(7,7,7,7,7,7,7,7), NC=(5,5,5,5,11,11,11,11), QL=0, QH=4, vigate=31, vearly=0, qprio=1):
    a = Asm()
    NT = " nt"
    uid = [0]
    def lab(p):
        uid[0] += 1
        return f"L_{p}_{uid[0]}"
    SB = 240
    def stamp(idx):
        if stamps:
            a("s_memrealtime s[78:79]")
            a("s_waitcnt lgkmcnt(0)")
            a(f"v_mov_b32 v{SB+idx}, s78")
    def allreduce(op, rs, tmps):
        k = len(rs)
        for rot in (8, 4, 2, 1):
            if k == 1: a("s_nop 1")
            elif k == 2: a("s_nop 0")
            for r in rs:
                a(f"{op}_dpp v{r}, v{r}, v{r} row_ror:{rot} row_mask:0xf bank_mask:0xf")
        for sw in ("v_permlane16_swap_b32", "v_permlane32_swap_b32"):
            for r, t in zip(rs, tmps): a(f"v_mov_b32 v{t}, v{r}")
            a("s_nop 1" if k == 1 else "s_nop 0")
            if k == 2: pass
            for r, t in zip(rs, tmps): a(f"{sw} v{r}, v{t}")
            for r, t in zip(rs, tmps): a(f"{op} v{r}, v{r}, v{t}")
    def rb(dst, src):
        a(f"v_cvt_pk_bf16_f32 v{dst}, v{src}, v{src}")
        a(f"v_lshlrev_b32 v{dst}, 16, v{dst}")
    def setflag(off): a(f"ds_write_b32 v11, v0 offset:{off}")
    def wait_flags4(off, tmp, sleep=0):
        L = lab("wf")
        a.label(L)
        if sleep: a(f"s_sleep {sleep}")
        a(f"ds_read_b128 v[{tmp}:{tmp+3}], v7 offset:{off}")
        a("s_waitcnt lgkmcnt(0)")
        a(f"v_and_b32 v{tmp}, v{tmp}, v{tmp+1}"); a(f"v_and_b32 v{tmp+2}, v{tmp+2}, v{tmp+3}")
        a(f"v_and_b32 v{tmp}, v{tmp}, v{tmp+2}")
        a(f"v_cmp_ne_u32 vcc, 1, v{tmp}")
        a(f"s_cbranch_vccnz {L}")
    def wait_flag1(off, tmp, sleep=0):
        L = lab("wf")
        a.label(L)
        if sleep: a(f"s_sleep {sleep}")
        a(f"ds_read_b32 v{tmp}, v11 offset:{off}")
        a("s_waitcnt lgkmcnt(0)")
        a(f"v_cmp_ne_u32 vcc, 1, v{tmp}")
        a(f"s_cbranch_vccnz {L}")
    def tagcheck(tagregs, acc, t1, retry_label, cnt=67, sleep=0, tag="s8"):
        first = True; i = 0
        while i < len(tagregs):
            if i + 1 < len(tagregs):
                a(f"v_xor_b32 v{t1}, {tag}, v{tagregs[i]}")
                if first:
                    a(f"v_xor_b32 v{acc}, {tag}, v{tagregs[i+1]}")
                    a(f"v_or_b32 v{acc}, v{acc}, v{t1}")
                else:
                    a(f"v_xor_b32 v{t1+1}, {tag}, v{tagregs[i+1]}")
                    a(f"v_or3_b32 v{acc}, v{acc}, v{t1}, v{t1+1}")
                i += 2
            else:
                if first: a(f"v_xor_b32 v{acc}, {tag}, v{tagregs[i]}")
                else:
                    a(f"v_xor_b32 v{t1}, {tag}, v{tagregs[i]}")
                    a(f"v_or_b32 v{acc}, v{acc}, v{t1}")
                i += 1
            first = False
        a(f"v_cmp_ne_u32 vcc, 0, v{acc}")
        done = lab("pd")
        a(f"s_cbranch_vccz {done}")
        if lanemask: a("s_mov_b64 exec, vcc")
        if sleep: a(f"s_sleep {sleep}")
        a(f"s_add_u32 s{cnt}, s{cnt}, 1")
        a(f"s_cmp_lt_u32 s{cnt}, {POLL_MAX}")
        a(f"s_cbranch_scc1 {retry_label}")
        a.label(done)
        if lanemask: a("s_mov_b64 exec, -1")
    def layernorm8(e, t, sc=12):
        a(f"v_readfirstlane_b32 s{sc}, v{e}")
        a("s_nop 1")
        for i in range(8): a(f"v_subrev_f32 v{t+4+(i&3)+ (0)}, s{sc}, v{e+i}") if False else None
        a(f"v_subrev_f32 v{t+2}, s{sc}, v{e}"); a(f"v_subrev_f32 v{t+3}, s{sc}, v{e+1}")
        a(f"v_add_f32 v{t}, v{t+2}, v{t+3}"); a(f"v_mul_f32 v{t+1}, v{t+2}, v{t+2}"); a(f"v_fmac_f32 v{t+1}, v{t+3}, v{t+3}")
        for i in range(2, 8, 2):
            a(f"v_subrev_f32 v{t+2}, s{sc}, v{e+i}"); a(f"v_subrev_f32 v{t+3}, s{sc}, v{e+i+1}")
            a(f"v_add_f32 v{t}, v{t}, v{t+2}"); a(f"v_fmac_f32 v{t+1}, v{t+2}, v{t+2}")
            a(f"v_add_f32 v{t}, v{t}, v{t+3}"); a(f"v_fmac_f32 v{t+1}, v{t+3}, v{t+3}")
        allreduce("v_add_f32", [t, t+1], [t+2, t+3])
        a(f"v_mul_f32 v{t}, 0x3b000000, v{t}")
        a(f"v_mul_f32 v{t+1}, 0x3b000000, v{t+1}")
        a(f"v_fma_f32 v{t+1}, -v{t}, v{t}, v{t+1}")
        a(f"v_add_f32 v{t}, s{sc}, v{t}")
        a(f"v_max_f32 v{t+1}, 0, v{t+1}")
        a(f"v_cvt_pk_bf16_f32 v{t+2}, v{t}, v{t+1}")
        a(f"v_and_b32 v{t+1}, s63, v{t+2}")
        a(f"v_lshlrev_b32 v{t}, 16, v{t+2}")
        a(f"v_add_f32 v{t+1}, {EPS}, v{t+1}")
        for i in range(4): a(f"v_sub_f32 v{e+i}, v{e+i}, v{t}")
        rb(t+1, t+1)
        a(f"v_sqrt_f32 v{t+1}, v{t+1}")
        for i in range(4, 8): a(f"v_sub_f32 v{e+i}, v{e+i}, v{t}")
        rb(t+1, t+1)
        a(f"v_rcp_f32 v{t+1}, v{t+1}")
        for i in range(4): a(f"v_cvt_pk_bf16_f32 v{t+8+i}, v{e+2*i}, v{e+2*i+1}")
        for i in range(4):
            a(f"v_lshlrev_b32 v{e+2*i}, 16, v{t+8+i}"); a(f"v_and_b32 v{e+2*i+1}, s63, v{t+8+i}")
        for i in range(8): a(f"v_mul_f32 v{e+i}, v{e+i}, v{t+1}")
        for i in range(4): a(f"v_cvt_pk_bf16_f32 v{t+8+i}, v{e+2*i}, v{e+2*i+1}")
    def kvstep():
        a("s_add_u32 s83, s83, 4096"); a("s_and_b32 s83, s83, 0x7fff"); a("s_add_u32 s65, s64, s83")
    def role_setup():
        assert sum(NA) == 128 and sum(NB) == 56 and sum(NC) == 64 and all(x + y + z <= 32 for x, y, z in zip(NA, NB, NC))
        def pack(v): return sum(x << (8*i) for i, x in enumerate(v))
        def pre(v): return [sum(v[:i]) for i in range(8)]
        a("s_lshl_b32 s87, s4, 3")
        def look(dst, v):
            p = pack(v)
            a(f"s_mov_b32 s98, {p & 0xffffffff}"); a(f"s_mov_b32 s99, {p >> 32}")
            a("s_lshr_b64 s[98:99], s[98:99], s87"); a(f"s_and_b32 s{dst}, s98, 0xff")
        look(10, NA); look(12, NB); look(13, NC)
        look(14, pre(NA)); a("s_add_u32 s15, s14, s7")
        look(14, pre(NB)); a("s_sub_u32 s10, s7, s10"); a("s_add_u32 s9, s14, s10")
        a("s_mov_b32 s97, 3")
        a("s_sub_u32 s76, s10, s12")
        a("s_cmp_lt_u32 s76, s13"); a("s_cselect_b32 s97, 2, s97")
        a("s_cmp_lt_u32 s10, s12"); a("s_cselect_b32 s97, 1, s97")
        a("s_cmp_gt_u32 s10, s7"); a("s_cselect_b32 s97, 0, s97")
        look(14, pre(NC)); a("s_add_u32 s13, s14, s76")
        a("s_lshr_b32 s84, s15, 4"); a("s_and_b32 s84, s84, 7")
        a("s_lshr_b32 s85, s15, 2"); a("s_and_b32 s85, s85, 3")
        a("s_and_b32 s86, s15, 3")
        a("s_lshr_b32 s76, s13, 4"); a("s_and_b32 s76, s76, 3")
        a("s_and_b32 s10, s13, 15"); a("s_lshl_b32 s62, s10, 5")
    def role_branch(la, lb, lc):
        a("s_cmp_eq_u32 s97, 0"); a(f"s_cbranch_scc1 {la}")
        a("s_cmp_eq_u32 s97, 1"); a(f"s_cbranch_scc1 {lb}")
        if lc: a("s_cmp_eq_u32 s97, 2"); a(f"s_cbranch_scc1 {lc}")
        a("s_branch L_endrole" if lc else "s_branch L_fin")
    def srd(sr, sz):
        a(f"s_mov_b32 s{sr+2}, {sz}"); a(f"s_mov_b32 s{sr+3}, 0x20000")
    SZ = {16: 4096, 20: 33554432, 24: 33554432, 28: 4194304, 32: 4194304, 36: 1835008, 40: 3584, 44: 1835008, 48: 1024, 52: 4096, 56: 268435456}

    if stamps: a("s_memrealtime s[78:79]")
    for (sr, off) in ((56, 96), (20, 8), (16, 0), (28, 24), (24, 16), (32, 32), (36, 48), (40, 56), (44, 64), (48, 72), (52, 80)):
        a(f"s_load_dwordx2 s[{sr}:{sr+1}], s[0:1], {off}")
    a("s_cmp_ge_u32 s2, 256")
    a("s_cbranch_scc1 L_end")
    a("v_lshrrev_b32 v4, 6, v0")
    a("v_and_b32 v1, 63, v0")
    a("v_readfirstlane_b32 s3, v4")
    a("v_and_b32 v2, 15, v1")
    a("v_lshrrev_b32 v3, 4, v1")
    a("s_and_b32 s4, s2, 7")
    a("s_lshr_b32 s7, s2, 3")
    a("s_lshr_b32 s5, s7, 3")
    a("s_and_b32 s6, s7, 7")
    if delay:
        if delay[0] >= 0:
            a(f"s_cmp_lg_u32 s4, {delay[0]}"); a("s_cbranch_scc1 L_nodelay")
        else:
            a(f"s_cmp_eq_u32 s4, {-delay[0]-1}"); a("s_cbranch_scc1 L_nodelay")
        a("s_memrealtime s[78:79]"); a("s_waitcnt lgkmcnt(0)"); a(f"s_add_u32 s77, s78, {delay[1]}")
        a.label("L_dl"); a("s_memrealtime s[78:79]"); a("s_waitcnt lgkmcnt(0)"); a("s_cmp_lt_u32 s78, s77"); a("s_cbranch_scc1 L_dl")
        a.label("L_nodelay")
    srd(56, SZ[56]); srd(20, SZ[20]); srd(16, SZ[16]); srd(28, SZ[28])
    a("s_and_b32 s11, s3, 3")
    a("s_lshl_b32 s70, s5, 3"); a("s_add_u32 s70, s70, s4")
    a("s_lshl_b32 s64, s70, 20"); a("s_lshl_b32 s10, s6, 17"); a("s_add_u32 s64, s64, s10")
    a("s_lshl_b32 s10, s11, 15"); a("s_add_u32 s64, s64, s10")
    a("s_lshl_b32 s83, s5, 13") if rot else a("s_mov_b32 s83, 0")
    a("s_add_u32 s65, s64, s83")
    a("v_mov_b32 v6, 0")
    a("v_lshlrev_b32 v14, 4, v1")
    a("s_cmp_ge_u32 s3, 4")
    a("s_cbranch_scc1 L_v1")
    a("v_lshlrev_b32 v47, 8, v2"); a("v_lshlrev_b32 v10, 4, v3"); a("v_add_u32 v47, v47, v10")
    a("s_lshl_b32 s10, s4, 2"); a("s_add_u32 s10, s10, s5"); a("s_lshl_b32 s10, s10, 14"); a("s_lshl_b32 s12, s11, 10"); a("s_add_u32 s10, s10, s12"); a(f"s_add_u32 s66, s10, {WS_QB}")
    for k in range(1, 4): a(f"s_add_u32 s{71+k}, s66, {k*4096}")
    a("s_setprio 2")
    a("s_waitcnt lgkmcnt(0)")
    a("buffer_load_dword v5, v6, s[56:59], 0 offen sc1")
    def qloads():
        for k in range(4):
            a(f"buffer_load_dwordx4 v[{16+4*k}:{19+4*k}], v14, s[56:59], s{66 if k == 0 else 71+k} offen sc1")
    for t in range(8):
        for i in range(4):
            r = 64 + 16*t + 4*i
            a(f"buffer_load_dwordx4 v[{r}:{r+3}], v47, s[20:23], s65 offen offset:{i*64}{NT}")
        if t < 7: kvstep()
        if t == 1:
            a("v_lshlrev_b32 v9, 2, v1"); a(f"v_add_u32 v9, {L_FLAGS}, v9"); a("ds_write_b32 v9, v6"); a("v_mov_b32 v0, 1")
            a("s_waitcnt lgkmcnt(0)"); a("s_barrier")
        if t == qearly - 1: qloads()
    a("s_branch L_k2")
    a.label("L_v1")
    a("s_cmp_ge_u32 s11, 2"); a("s_cbranch_scc1 L_v_stream0")
    a("v_lshrrev_b32 v10, 3, v1"); a("v_lshlrev_b32 v10, 13, v10"); a("v_and_b32 v9, 7, v1"); a("v_lshlrev_b32 v9, 4, v9"); a("v_add_u32 v10, v10, v9")
    a("s_lshl_b32 s13, s5, 20"); a("s_lshl_b32 s12, s11, 19"); a("s_add_u32 s13, s13, s12")
    a("s_lshl_b32 s12, s4, 10"); a("s_add_u32 s13, s13, s12"); a("s_lshl_b32 s12, s6, 7"); a("s_add_u32 s13, s13, s12")
    a("s_lshl_b32 s12, s11, 13"); a(f"s_add_u32 s12, s12, {L_WQ}")
    a("s_lshl_b32 s10, s11, 11")
    a("s_setprio 3")
    a("s_waitcnt lgkmcnt(0)")
    a("buffer_load_dword v5, v6, s[56:59], 0 offen sc1")
    a("buffer_load_dwordx4 v[16:19], v14, s[16:19], s10 offen")
    a("buffer_load_dwordx4 v[208:211], v14, s[16:19], s10 offen offset:1024")
    for i in range(8):
        a("s_mov_b32 m0, s12"); a("s_add_u32 s12, s12, 1024")
        a(f"buffer_load_dwordx4 v10, s[28:31], s13 offen{NT} lds"); a("s_add_u32 s13, s13, 0x10000")
    a(f"s_setprio {qprio}")
    a("s_branch L_v_bar")
    a.label("L_v_stream0")
    a("s_setprio 1")
    a("s_waitcnt lgkmcnt(0)")
    a("buffer_load_dword v5, v6, s[56:59], 0 offen sc1")
    a.label("L_v_bar")
    a("v_lshlrev_b32 v9, 2, v1"); a(f"v_add_u32 v9, {L_FLAGS}, v9"); a("ds_write_b32 v9, v6"); a("v_mov_b32 v0, 1")
    a("s_waitcnt lgkmcnt(0)"); a("s_barrier")
    srd(24, SZ[24])
    if stamps:
        for i in range(16): a(f"v_mov_b32 v{SB+i}, 0")
        a(f"v_mov_b32 v{SB}, s78")
    a("s_cmp_ge_u32 s11, 2"); a("s_cbranch_scc1 L_v_q_done")
    a("s_mov_b32 s63, 0xffff0000")
    a(f"v_mov_b32 v7, {L_FLAGS}"); a("s_lshl_b32 s10, s11, 2"); a("v_add_u32 v11, s10, v7")
    a("v_lshlrev_b32 v13, 3, v1")
    a("v_lshrrev_b32 v9, 2, v2"); a("v_lshlrev_b32 v10, 3, v3"); a("v_add_u32 v9, v9, v10"); a("v_lshlrev_b32 v44, 7, v9")
    a("v_and_b32 v10, 3, v2"); a("v_lshlrev_b32 v10, 3, v10"); a("v_add_u32 v44, v44, v10")
    a("s_lshl_b32 s10, s11, 13"); a(f"s_add_u32 s10, s10, {L_WQ}"); a("v_add_u32 v44, s10, v44")
    a("v_and_b32 v45, 3, v2"); a("v_lshlrev_b32 v45, 10, v45"); a("v_lshlrev_b32 v46, 4, v3"); a("v_add_u32 v45, v45, v46")
    a("s_lshl_b32 s10, s5, 8"); a("s_lshl_b32 s12, s11, 7"); a("s_add_u32 s10, s10, s12"); a(f"s_add_u32 s10, s10, {L_YB}"); a("v_add_u32 v45, s10, v45")
    a("v_lshlrev_b32 v46, 4, v2"); a("s_lshl_b32 s10, s11, 10"); a(f"s_add_u32 s10, s10, {L_QPB}"); a("v_add_u32 v46, s10, v46")
    a("s_lshl_b32 s10, s11, 3"); a(f"s_add_u32 s10, s10, {L_QPB}"); a("v_add_u32 v47, s10, v14")
    a("s_lshl_b32 s10, s11, 11"); a(f"s_add_u32 s10, s10, {L_YB}"); a("v_add_u32 v9, s10, v14")
    a("s_lshl_b32 s10, s4, 2"); a("s_lshl_b32 s12, s11, 1"); a("s_add_u32 s10, s10, s12"); a("s_lshl_b32 s10, s10, 2"); a("s_add_u32 s10, s10, s5"); a("s_lshl_b32 s10, s10, 12")
    a("s_lshl_b32 s12, s6, 9"); a("s_add_u32 s10, s10, s12"); a(f"s_add_u32 s66, s10, {WS_QB}"); a("s_add_u32 s68, s66, 16384")
    a("s_waitcnt vmcnt(8)")
    stamp(6)
    a("v_readfirstlane_b32 s8, v5")
    for i in range(4):
        a(f"v_lshlrev_b32 v{20+2*i}, 16, v{16+i}"); a(f"v_and_b32 v{21+2*i}, s63, v{16+i}")
        a(f"v_lshlrev_b32 v{212+2*i}, 16, v{208+i}"); a(f"v_and_b32 v{213+2*i}, s63, v{208+i}")
    a(f"s_add_u32 s8, s8, {TAGC}")
    a("v_mov_b32 v15, s8")
    n0 = len(a.lines); layernorm8(20, 32, 12); A_ = a.lines[n0:]; del a.lines[n0:]
    layernorm8(212, 220, 14); B_ = a.lines[n0:]; del a.lines[n0:]
    for x_, y_ in zip(A_, B_):
        a(x_)
        if not y_.startswith("s_nop"): a(y_)
    a("ds_write_b128 v9, v[40:43]")
    a("ds_write_b128 v9, v[228:231] offset:1024")
    setflag(F_Y)
    def wait_flags2(off, tmp):
        L = lab("wf"); a.label(L)
        a(f"ds_read_b64 v[{tmp}:{tmp+1}], v7 offset:{off}")
        a("s_waitcnt lgkmcnt(0)")
        a(f"v_and_b32 v{tmp}, v{tmp}, v{tmp+1}")
        a(f"v_cmp_ne_u32 vcc, 1, v{tmp}")
        a(f"s_cbranch_vccnz {L}")
    wait_flags2(F_Y, 40)
    a("ds_read_b128 v[192:195], v45"); a("ds_read_b128 v[196:199], v45 offset:64")
    a("s_waitcnt vmcnt(0)")
    stamp(7)
    for ktl in range(2):
        for nt in range(4):
            r = 64 + 16*ktl + 4*nt
            a(f"ds_read_b64_tr_b16 v[{r}:{r+1}], v44 offset:{ktl*4096 + nt*32}")
            a(f"ds_read_b64_tr_b16 v[{r+2}:{r+3}], v44 offset:{ktl*4096 + nt*32 + 512}")
        a("s_waitcnt lgkmcnt(0)")
    for ktl in range(2):
        for nt in range(4):
            r = 64 + 16*ktl + 4*nt
            c = "0" if ktl == 0 else f"v[{212+4*nt}:{215+4*nt}]"
            a(f"v_mfma_f32_16x16x32_bf16 v[{212+4*nt}:{215+4*nt}], v[{192+4*ktl}:{195+4*ktl}], v[{r}:{r+3}], {c}")
    a("v_mov_b32 v41, s8"); a("v_mov_b32 v43, s8")
    a("s_nop 3")
    for nt in range(4): a(f"ds_write_b128 v46, v[{212+4*nt}:{215+4*nt}] offset:{nt*256}")
    setflag(F_QP)
    wait_flags2(F_QP, 24)
    a("ds_read_b64 v[24:25], v47"); a("ds_read_b64 v[26:27], v47 offset:1024")
    a("s_waitcnt lgkmcnt(0)")
    a("v_add_f32 v40, v24, v26"); a("v_add_f32 v42, v25, v27")
    a("s_setprio 3")
    a("buffer_store_dwordx2 v[40:41], v13, s[56:59], s66 offen sc1")
    a("buffer_store_dwordx2 v[42:43], v13, s[56:59], s68 offen sc1")
    a.label("L_v_q_done")
    a("s_setprio 1")
    stamp(1)
    for k in range(vearly, 32):
        r = 64 + 4*k
        a(f"buffer_load_dwordx4 v[{r}:{r+3}], v14, s[24:27], s65 offen offset:{(k%4)*1024}{NT}")
        if k % 4 == 3 and k < 31: kvstep()
        if k == 7:
            for sr in (32, 36, 40, 44, 48, 52): srd(sr, SZ[sr])
            role_setup()
            a("s_mov_b32 s60, 0x05040100"); a("s_mov_b32 s61, 0x07060302"); a("s_mov_b32 s63, 0xffff0000")
            a(f"v_mov_b32 v7, {L_FLAGS}"); a("s_lshl_b32 s10, s11, 2"); a("v_add_u32 v11, s10, v7")
            a("v_lshlrev_b32 v13, 3, v1")
        if vigate is not None and k == vigate: setflag(F_VI)
    a("s_setprio 3")
    stamp(2)
    a("s_waitcnt vmcnt(32)")
    a("v_readfirstlane_b32 s8, v5")
    a("s_nop 1")
    a(f"s_add_u32 s8, s8, {TAGC}")
    a("v_mov_b32 v15, s8")
    a("v_lshlrev_b32 v10, 2, v2")
    a("s_lshl_b32 s10, s76, 10"); a("s_lshl_b32 s12, s62, 1"); a("s_add_u32 s10, s10, s12")
    a("buffer_load_dword v12, v10, s[16:19], s10 offen")
    a("s_lshl_b32 s95, s4, 3"); a("s_add_u32 s95, s95, s6"); a("s_lshl_b32 s95, s95, 3")
    a("v_and_b32 v9, 3, v1"); a("v_lshlrev_b32 v9, 2, v9"); a("s_lshl_b32 s12, s95, 1")
    a("buffer_load_dword v8, v9, s[48:51], s12 offen")
    a("buffer_load_dword v4, v9, s[52:55], s12 offen")
    NSM = 3
    a("v_lshlrev_b32 v20, 9, v3"); a("v_lshlrev_b32 v9, 5, v2"); a("v_add_u32 v20, v20, v9")
    a("s_lshl_b32 s10, s11, 11"); a(f"s_add_u32 s10, s10, {L_RED}"); a("v_add_u32 v20, s10, v20")
    a("s_lshl_b32 s10, s11, 9"); a(f"s_add_u32 s10, s10, {L_RED}"); a("v_add_u32 v21, s10, v13")
    a("s_lshl_b32 s10, s70, 3"); a("s_add_u32 s10, s10, s6"); a("s_lshl_b32 s10, s10, 11"); a("s_lshl_b32 s12, s11, 9"); a("s_add_u32 s10, s10, s12"); a(f"s_add_u32 s66, s10, {WS_OP}")
    a("v_lshrrev_b32 v10, 2, v2"); a("v_lshlrev_b32 v10, 6, v10"); a("v_lshlrev_b32 v9, 4, v3"); a("v_add_u32 v10, v10, v9")
    a("s_lshl_b32 s10, s11, 10"); a(f"s_add_u32 s10, s10, {L_PB}"); a("v_add_u32 v10, s10, v10")
    if not no_pwait: wait_flag1(F_P, 40, sleep=1)
    PF = 224
    for T in range(4): a(f"ds_read_b128 v[{PF+4*T}:{PF+3+4*T}], v10 offset:{T*256}")
    stamp(3)
    def perms(T, dst, ulist):
        raw = 64 + 32*T
        for u in ulist:
            for jj in range(4):
                s1 = raw + 4*(2*u) + jj; s0 = raw + 4*(2*u+1) + jj
                a(f"v_perm_b32 v{dst + 4*(2*jj) + u}, v{s0}, v{s1}, s60")
                a(f"v_perm_b32 v{dst + 4*(2*jj+1) + u}, v{s0}, v{s1}, s61")
    ACC = 32
    def mfmas(T, src, js):
        for j in js:
            c = "0" if T == 0 else f"v[{ACC+4*j}:{ACC+4*j+3}]"
            a(f"v_mfma_f32_16x16x32_bf16 v[{ACC+4*j}:{ACC+4*j+3}], v[{PF+4*T}:{PF+3+4*T}], v[{src+4*j}:{src+4*j+3}], {c}")
    F = [192, 64, 96, 128]
    def after(k): return min(63, (31 - k) + NSM)
    a(f"s_waitcnt vmcnt({after(7)})")
    perms(0, F[0], range(4))
    a(f"s_waitcnt vmcnt({after(15)}) lgkmcnt(0)")
    for u in range(4):
        perms(1, F[1], [u]); mfmas(0, F[0], [2*u, 2*u+1])
    a(f"s_waitcnt vmcnt({after(23)})")
    for u in range(4):
        perms(2, F[2], [u]); mfmas(1, F[1], [2*u, 2*u+1])
    mfmas(2, F[2], range(4))
    for u in range(4):
        a(f"s_waitcnt vmcnt({after(24+2*u+1)})")
        perms(3, F[3], [u])
        mfmas(2, F[2], [4+u])
    a("s_nop 0")
    mfmas(3, F[3], range(8))
    stamp(4)
    a("v_mov_b32 v17, s8")
    a("s_nop 6")
    for j in range(0, 8, 2):
        a(f"ds_write2_b32 v20, v{ACC+4*j}, v{ACC+4*(j+1)} offset0:{j} offset1:{j+1}")
    setflag(F_O)
    wait_flags4(F_O, 24)
    for w in range(4): a(f"ds_read_b64 v[{24+2*w}:{25+2*w}], v21 offset:{w*2048}")
    a("s_waitcnt lgkmcnt(0)")
    for c in range(2):
        a(f"v_add_f32 v{24+c}, v{24+c}, v{26+c}"); a(f"v_add_f32 v{28+c}, v{28+c}, v{30+c}")
    for c in range(2): a(f"v_add_f32 v{24+c}, v{24+c}, v{28+c}")
    a("v_cvt_pk_bf16_f32 v16, v24, v25")
    a("buffer_store_dwordx2 v[16:17], v13, s[56:59], s66 offen sc1")
    stamp(5)
    a("s_setprio 3")
    a(f"s_mov_b32 s69, {LOG2E}")
    role_branch("L_roleA", "L_roleB", "L_roleC")

    a.label("L_k2")
    if stamps:
        a("s_waitcnt lgkmcnt(0)")
        for i in range(16): a(f"v_mov_b32 v{SB+i}, 0")
        a(f"v_mov_b32 v{SB}, s78")
    stamp(2)
    if stamps:
        a("s_getreg_b32 s12, hwreg(HW_REG_HW_ID)"); a(f"v_mov_b32 v{SB+6}, s12")
        a("s_getreg_b32 s12, hwreg(HW_REG_XCC_ID)"); a("s_add_u32 s12, s12, 1"); a(f"v_mov_b32 v{SB+7}, s12")
    for sr in (24, 32, 36, 40, 44, 48, 52): srd(sr, SZ[sr])
    role_setup()
    a("s_mov_b32 s63, 0xffff0000")
    a(f"v_mov_b32 v7, {L_FLAGS}"); a("s_lshl_b32 s10, s11, 2"); a("v_add_u32 v11, s10, v7")
    a("v_lshlrev_b32 v13, 3, v1")
    a(f"s_waitcnt vmcnt({(8 - qearly) * 4})")
    a("v_readfirstlane_b32 s8, v5")
    a("s_mov_b32 s67, 0")
    a(f"s_add_u32 s8, s8, {TAGC}")
    a("v_mov_b32 v15, s8")
    Lq = lab("qg"); Lq2 = lab("qg2")
    a(f"s_branch {Lq2}")
    a.label(Lq)
    qloads()
    a("s_waitcnt vmcnt(0)")
    a.label(Lq2)
    tagcheck([17+2*i for i in range(8)], 40, 44, Lq, sleep=psleep)
    if stamps: a(f"v_mov_b32 v{SB+1}, s67")
    a("v_add_f32 v16, v16, v20"); a("v_add_f32 v24, v24, v28"); a("v_add_f32 v18, v18, v22"); a("v_add_f32 v26, v26, v30")
    a("v_add_f32 v16, v16, v24"); a("v_add_f32 v18, v18, v26")
    a("v_cvt_pk_bf16_f32 v40, v16, v18")
    a("s_lshl_b32 s10, s11, 8"); a(f"s_add_u32 s10, s10, {L_QL}")
    a("v_lshlrev_b32 v10, 2, v1"); a("v_add_u32 v10, s10, v10")
    a("ds_write_b32 v10, v40")
    setflag(F_Q)
    stamp(3)
    a("v_and_b32 v10, 3, v2"); a("v_lshlrev_b32 v10, 8, v10"); a("v_lshlrev_b32 v44, 4, v3"); a("v_add_u32 v10, v10, v44")
    a(f"v_add_u32 v10, {L_QL}, v10")
    wait_flags4(F_Q, 40)
    for i in range(4): a(f"ds_read_b128 v[{16+4*i}:{19+4*i}], v10 offset:{i*64}")
    a("s_waitcnt lgkmcnt(0)")
    for t in range(8):
        if t >= qearly: a(f"s_waitcnt vmcnt({(7-t)*4})")
        for i in range(4):
            r = 64 + 16*t + 4*i
            c = "0" if i == 0 else f"v[{32+4*t}:{35+4*t}]"
            a(f"v_mfma_f32_16x16x32_bf16 v[{32+4*t}:{35+4*t}], v[{16+4*i}:{19+4*i}], v[{r}:{r+3}], {c}")
    a(f"s_mov_b32 s68, {SCALE}"); a(f"s_mov_b32 s69, {LOG2E}")
    a("s_nop 5")
    for aa in range(2):
        for q in range(1, 4):
            for h in range(4):
                a(f"v_mov_b32_dpp v{32+16*aa+h}, v{32+16*aa+4*q+h} quad_perm:[0,1,2,3] row_mask:{hex(1<<q)} bank_mask:0xf")
    S = [[32+16*aa+h for h in range(4)] for aa in range(2)]
    for rnd in range(2):
        for aa in range(2):
            for hp in range(2): a(f"v_cvt_pk_bf16_f32 v{36+2*aa+hp}, v{S[aa][2*hp]}, v{S[aa][2*hp+1]}")
        for aa in range(2):
            for hp in range(2):
                a(f"v_lshlrev_b32 v{S[aa][2*hp]}, 16, v{36+2*aa+hp}")
                a(f"v_and_b32 v{S[aa][2*hp+1]}, s63, v{36+2*aa+hp}")
        if rnd == 0:
            for aa in range(2):
                for h in range(4): a(f"v_mul_f32 v{S[aa][h]}, s68, v{S[aa][h]}")
    for h in range(4): a(f"v_max_f32 v{40+h}, v{S[0][h]}, v{S[1][h]}")
    allreduce("v_max_f32", [40, 41, 42, 43], [44, 45, 46, 47])
    for aa in range(2):
        for h in range(4): a(f"v_sub_f32 v{S[aa][h]}, v{S[aa][h]}, v{40+h}")
    for aa in range(2):
        for h in range(4): a(f"v_mul_f32 v{S[aa][h]}, s69, v{S[aa][h]}")
    for aa in range(2):
        for h in range(4): a(f"v_exp_f32 v{S[aa][h]}, v{S[aa][h]}")
    a("s_nop 0")
    for h in range(4): a(f"v_add_f32 v{52+h}, v{S[0][h]}, v{S[1][h]}")
    allreduce("v_add_f32", [52, 53, 54, 55], [44, 45, 46, 47])
    for h in range(4):
        a(f"v_mov_b32 v{56+2*h}, v{40+h}"); a(f"v_mov_b32 v{57+2*h}, v{52+h}")
    a("s_lshl_b32 s10, s11, 5"); a(f"s_add_u32 s10, s10, {L_MLB}")
    a("v_mov_b32 v10, s10")
    a("ds_write_b128 v10, v[56:59]")
    a("ds_write_b128 v10, v[60:63] offset:16")
    setflag(F_ML)
    a("v_lshlrev_b32 v10, 3, v2"); a(f"v_add_u32 v10, {L_MLB}, v10")
    a("v_lshrrev_b32 v9, 5, v1"); a("v_lshlrev_b32 v9, 8, v9")
    a("v_and_b32 v44, 3, v1"); a("v_lshlrev_b32 v44, 4, v44"); a("v_add_u32 v9, v9, v44")
    a("v_and_b32 v44, 31, v1"); a("v_lshrrev_b32 v44, 2, v44"); a("v_lshlrev_b32 v44, 1, v44"); a("v_add_u32 v9, v9, v44")
    a("s_lshl_b32 s10, s11, 10"); a(f"s_add_u32 s10, s10, {L_PB}"); a("v_add_u32 v9, s10, v9")
    wait_flags4(F_ML, 44)
    a("ds_read_b64 v[192:193], v10")
    a("s_waitcnt lgkmcnt(0)")
    a("v_mov_b32 v194, v192")
    a("s_nop 1")
    a("v_max_f32_dpp v194, v194, v194 row_ror:4 row_mask:0xf bank_mask:0xf")
    a("s_nop 1")
    a("v_max_f32_dpp v194, v194, v194 row_ror:8 row_mask:0xf bank_mask:0xf")
    a("v_sub_f32 v195, v192, v194"); a("v_mul_f32 v195, s69, v195"); a("v_exp_f32 v195, v195"); a("s_nop 0")
    a("v_mul_f32 v196, v193, v195")
    a("s_nop 1")
    a("v_add_f32_dpp v196, v196, v196 row_ror:4 row_mask:0xf bank_mask:0xf")
    a("s_nop 1")
    a("v_add_f32_dpp v196, v196, v196 row_ror:8 row_mask:0xf bank_mask:0xf")
    a("v_rcp_f32 v197, v196"); a("s_nop 0")
    a("v_mul_f32 v197, v197, v195")
    a("s_lshl_b32 s10, s11, 2")
    for h in range(4):
        a(f"s_add_u32 s12, s10, {h}")
        a(f"v_readlane_b32 s{72+h}, v197, s12")
    a("v_mov_b32 v56, v194"); a("v_mov_b32 v57, s8"); a("v_mov_b32 v58, v196"); a("v_mov_b32 v59, s8")
    for aa in range(2):
        for h in range(4): a(f"v_mul_f32 v{S[aa][h]}, s{72+h}, v{S[aa][h]}")
    for aa in range(2):
        for hp in range(2): a(f"v_cvt_pk_bf16_f32 v{36+2*aa+hp}, v{S[aa][2*hp]}, v{S[aa][2*hp+1]}")
    for aa in range(2):
        for hp in range(2):
            a(f"ds_write_b16 v9, v{36+2*aa+hp} offset:{aa*512 + (2*hp)*64}")
            a(f"ds_write_b16_d16_hi v9, v{36+2*aa+hp} offset:{aa*512 + (2*hp+1)*64}")
    setflag(F_P)
    a("s_lshl_b32 s10, s70, 3"); a("s_add_u32 s10, s10, s6"); a("s_lshl_b32 s10, s10, 6")
    a("s_lshl_b32 s12, s11, 4"); a("s_add_u32 s10, s10, s12"); a(f"s_add_u32 s10, s10, {WS_ML}")
    a("s_lshl_b64 s[12:13], 1, s11")
    a("s_mov_b64 exec, s[12:13]")
    a("buffer_store_dwordx4 v[56:59], v6, s[56:59], s10 offen sc1")
    a("s_mov_b64 exec, -1")
    stamp(4)
    role_branch("L_kA", "L_kB", None)

    a.label("L_kA")
    a("s_mov_b32 s72, s85")
    a("v_lshrrev_b32 v22, 1, v2"); a("v_xor_b32 v22, v22, v3"); a("v_lshlrev_b32 v22, 5, v22")
    a("v_lshlrev_b32 v23, 10, v3"); a("v_add_u32 v22, v22, v23"); a("v_and_b32 v23, 1, v1"); a("v_lshlrev_b32 v23, 4, v23"); a("v_add_u32 v22, v22, v23")
    a("v_xor_b32 v23, 0x80, v22")
    a("s_lshl_b32 s14, s84, 2"); a("s_add_u32 s14, s14, s72"); a("s_lshl_b32 s14, s14, 17")
    a("s_lshl_b32 s13, s11, 15"); a("s_add_u32 s14, s14, s13"); a("s_lshl_b32 s13, s86, 8"); a("s_add_u32 s14, s14, s13")
    a("s_lshl_b32 s15, s11, 13")
    if L_W: a(f"s_add_u32 s15, s15, {L_W}")
    a("s_cmp_lg_u32 s3, 0"); a("s_cbranch_scc1 L_kA_dma")
    a("v_lshrrev_b32 v10, 3, v1"); a("v_and_b32 v10, 3, v10"); a("v_lshlrev_b32 v10, 12, v10"); a("v_and_b32 v9, 7, v1"); a("v_lshlrev_b32 v9, 6, v9"); a("v_add_u32 v10, v10, v9")
    a("s_lshl_b32 s12, s84, 9"); a("s_lshl_b32 s10, s72, 4"); a("s_add_u32 s10, s10, s12"); a(f"s_add_u32 s66, s10, {WS_ML}")
    a("s_mov_b32 s67, 0")
    Lm = lab("mg"); a.label(Lm)
    a(f"s_sleep {mlsleep}")
    a("buffer_load_dwordx4 v[192:195], v10, s[56:59], s66 offen sc1")
    a("s_waitcnt vmcnt(0)")
    tagcheck([193, 195], 40, 44, Lm, sleep=0)
    def red8(op, r, t):
        for mod in ("quad_perm:[1,0,3,2]", "quad_perm:[2,3,0,1]", "row_half_mirror"):
            a("s_nop 1")
            a(f"{op}_dpp v{r}, v{r}, v{r} {mod} row_mask:0xf bank_mask:0xf")
    a("v_mov_b32 v40, v192")
    red8("v_max_f32", 40, 41)
    a("v_sub_f32 v41, v192, v40"); a("v_mul_f32 v41, s69, v41"); a("v_exp_f32 v41, v41"); a("s_nop 0")
    a("v_mul_f32 v41, v41, v194")
    a("v_mov_b32 v42, v41")
    red8("v_add_f32", 42, 43)
    a("v_rcp_f32 v42, v42"); a("s_nop 0")
    a("v_mul_f32 v41, v41, v42")
    a("v_and_b32 v9, 31, v1"); a("v_lshlrev_b32 v9, 2, v9"); a(f"v_add_u32 v9, {L_WR}, v9")
    a("ds_write_b32 v9, v41")
    setflag(F_WR)
    a.label("L_kA_dma")
    a("s_setprio 0")
    if vigate is not None: wait_flags4(F_VI, 44, sleep=2)
    for i in range(8):
        a("s_mov_b32 m0, s15"); a("s_add_u32 s15, s15, 1024")
        if not no_w: a(f"buffer_load_dwordx4 v{22 + ((i>>1)&1)}, s[32:35], s14 offen{NT} lds")
        a("s_add_u32 s14, s14, 4096")
    a("s_branch L_roleA")

    a.label("L_kB")
    a("s_setprio 0")
    a("v_lshrrev_b32 v22, 2, v1"); a("v_mul_u32_u24 v22, 3584, v22")
    a("v_lshrrev_b32 v23, 1, v1"); a("v_and_b32 v23, 1, v23"); a("v_lshrrev_b32 v24, 5, v1"); a("v_xor_b32 v23, v23, v24"); a("v_lshlrev_b32 v23, 5, v23"); a("v_add_u32 v22, v22, v23")
    a("v_and_b32 v23, 1, v1"); a("v_lshlrev_b32 v23, 4, v23"); a("v_add_u32 v22, v22, v23")
    a(f"s_mul_i32 s12, s11, {128*3584}"); a("s_lshl_b32 s13, s9, 6"); a("s_add_u32 s12, s12, s13")
    a("s_lshl_b32 s13, s11, 13")
    if L_W: a(f"s_add_u32 s13, s13, {L_W}")
    a("s_and_b32 s10, s11, 1"); a("s_lshl_b32 s10, s10, 7"); a("v_xor_b32 v24, s10, v14")
    a("v_xor_b32 v25, 32, v24"); a("v_xor_b32 v26, 64, v24"); a("v_xor_b32 v27, 0x60, v24")
    a("s_lshl_b32 s14, s9, 15"); a("s_lshl_b32 s15, s11, 13"); a("s_add_u32 s14, s14, s15"); a(f"s_add_u32 s15, s15, {L_W2}")
    wait_flags4(F_O, 44, sleep=2)
    for i in range(8):
        a("s_mov_b32 m0, s13"); a("s_add_u32 s13, s13, 1024")
        if not no_w: a(f"buffer_load_dwordx4 v22, s[36:39], s12 offen{NT} lds")
        a(f"s_add_u32 s12, s12, {16*3584}")
    for i in range(8):
        a("s_mov_b32 m0, s15"); a("s_add_u32 s15, s15, 1024")
        if not no_w: a(f"buffer_load_dwordx4 v{24 + (i&3)}, s[44:47], s14 offen{NT} lds")
        a("s_add_u32 s14, s14, 1024")
    a("s_waitcnt vmcnt(0)")
    setflag(F_W)
    stamp(5)
    a("s_branch L_roleB")

    a.label("L_roleA")
    a("s_lshr_b32 s71, s3, 2")
    a("s_mov_b32 s72, s85")
    a("s_mov_b32 s73, s86")
    a("v_lshrrev_b32 v21, 3, v2"); a("v_lshlrev_b32 v21, 17, v21"); a("v_and_b32 v9, 7, v2"); a("v_lshlrev_b32 v9, 11, v9"); a("v_add_u32 v21, v21, v9")
    a("v_lshlrev_b32 v9, 5, v3"); a("v_add_u32 v21, v21, v9")
    a("s_lshl_b32 s10, s71, 18"); a("s_lshl_b32 s12, s84, 14"); a("s_add_u32 s10, s10, s12"); a("s_lshl_b32 s12, s72, 9"); a("s_add_u32 s10, s10, s12")
    a("s_lshl_b32 s12, s11, 7"); a("s_add_u32 s10, s10, s12"); a(f"s_add_u32 s75, s10, {WS_OP}")
    a("s_cmp_lt_u32 s3, 4"); a("s_cbranch_scc1 L_A_common")
    a("buffer_load_dwordx4 v[192:195], v21, s[56:59], s75 offen sc1")
    a("buffer_load_dwordx4 v[196:199], v21, s[56:59], s75 offen offset:16 sc1")
    a.label("L_A_common")
    a("v_lshrrev_b32 v9, 2, v2"); a("v_lshlrev_b32 v10, 3, v3"); a("v_add_u32 v10, v10, v9"); a("v_lshlrev_b32 v10, 8, v10")
    a("v_and_b32 v44, 3, v2"); a("v_lshlrev_b32 v44, 3, v44"); a("v_add_u32 v10, v10, v44")
    a("v_and_b32 v44, 1, v3"); a("v_lshlrev_b32 v44, 2, v44"); a("v_or_b32 v44, v44, v9"); a("v_lshlrev_b32 v44, 5, v44"); a("v_add_u32 v10, v10, v44")
    a("s_lshl_b32 s10, s11, 13")
    if L_W: a(f"s_add_u32 s10, s10, {L_W}")
    a("v_add_u32 v24, s10, v10")
    for nt in range(1, 8): a(f"v_xor_b32 v{24+nt}, {nt*32}, v24")
    a("v_lshrrev_b32 v9, 1, v3"); a("v_lshlrev_b32 v9, 9, v9"); a("v_and_b32 v44, 1, v3"); a("v_lshlrev_b32 v44, 6, v44"); a("v_add_u32 v9, v9, v44")
    a("v_lshlrev_b32 v44, 2, v2"); a("v_add_u32 v9, v9, v44")
    a("s_lshl_b32 s10, s11, 11"); a("s_lshl_b32 s12, s71, 10"); a("s_add_u32 s10, s10, s12"); a(f"s_add_u32 s10, s10, {L_R1}"); a("v_add_u32 v60, s10, v9")
    a("s_lshl_b32 s10, s3, 8"); a(f"s_add_u32 s10, s10, {L_R1}"); a("v_lshlrev_b32 v9, 2, v1"); a("v_add_u32 v61, s10, v9")
    a("s_lshr_b32 s10, s3, 1"); a("s_lshl_b32 s10, s10, 5"); a("s_lshl_b32 s12, s84, 2"); a("s_add_u32 s10, s10, s12"); a("s_add_u32 s10, s10, s72"); a("s_lshl_b32 s10, s10, 12")
    a("s_lshl_b32 s12, s73, 10"); a("s_add_u32 s10, s10, s12"); a("s_and_b32 s12, s3, 1"); a("s_lshl_b32 s12, s12, 9"); a("s_add_u32 s10, s10, s12"); a(f"s_add_u32 s74, s10, {WS_HP}")
    a("v_mov_b32 v63, s8")
    a("s_mov_b32 s67, 0")
    a("v_lshlrev_b32 v62, 4, v3"); a("s_lshl_b32 s10, s71, 6"); a(f"s_add_u32 s10, s10, {L_WR}"); a("v_add_u32 v62, s10, v62")
    def wr_read(sleep=0):
        L = lab("wr"); a.label(L)
        if sleep: a(f"s_sleep {sleep}")
        a(f"ds_read_b32 v40, v7 offset:{F_WR}")
        a("s_waitcnt lgkmcnt(0)")
        a("v_cmp_ne_u32 vcc, 1, v40")
        a(f"s_cbranch_vccnz {L}")
        a("ds_read_b128 v[48:51], v62")
    a("s_cmp_lt_u32 s3, 4"); a("s_cbranch_scc1 L_A_k")
    wait_flag1(F_W, 40)
    for nt in range(8):
        a(f"ds_read_b64_tr_b16 v[{64+4*nt}:{65+4*nt}], v{24+nt}")
        a(f"ds_read_b64_tr_b16 v[{66+4*nt}:{67+4*nt}], v{24+nt} offset:1024")
        if nt == 3: a("s_waitcnt lgkmcnt(0)")
    wr_read()
    Lo = lab("og"); Lo2 = lab("og2")
    stamp(13)
    a(f"s_branch {Lo2}")
    a.label("L_A_k")
    a("s_waitcnt vmcnt(0)")
    setflag(F_W)
    stamp(5)
    for nt in range(8):
        a(f"ds_read_b64_tr_b16 v[{64+4*nt}:{65+4*nt}], v{24+nt}")
        a(f"ds_read_b64_tr_b16 v[{66+4*nt}:{67+4*nt}], v{24+nt} offset:1024")
        if nt == 3: a("s_waitcnt lgkmcnt(0)")
    wr_read(sleep=2)
    wait_flags4(F_O, 40, sleep=2)
    a("s_setprio 3")
    stamp(13)
    a.label(Lo)
    a("buffer_load_dwordx4 v[192:195], v21, s[56:59], s75 offen sc1")
    a("buffer_load_dwordx4 v[196:199], v21, s[56:59], s75 offen offset:16 sc1")
    a.label(Lo2)
    a("s_waitcnt vmcnt(0) lgkmcnt(0)")
    tagcheck([193, 195, 197, 199], 40, 44, Lo, sleep=tsleep)
    stamp(8)
    a("v_mov_b32 v193, v194"); a("v_mov_b32 v194, v196"); a("v_mov_b32 v195, v198")
    a("s_nop 1")
    for nt in range(8):
        a(f"v_mfma_f32_16x16x32_bf16 v[{96+4*nt}:{99+4*nt}], v[192:195], v[{64+4*nt}:{67+4*nt}], 0")
    a("s_nop 0")
    for r in range(4):
        for nt in range(8):
            if r == 0: a(f"v_mul_f32 v{128+nt}, v48, v{96+4*nt}")
            else: a(f"v_fmac_f32 v{128+nt}, v{48+r}, v{96+4*nt+r}")
    for p in range(4): a(f"v_permlane16_swap_b32 v{128+2*p}, v{129+2*p}") if p else (a("s_nop 0"), a(f"v_permlane16_swap_b32 v128, v129"))
    for p in range(4): a(f"v_add_f32 v{128+2*p}, v{128+2*p}, v{129+2*p}")
    stamp(10)
    for p in range(4): a(f"ds_write_b32 v60, v{128+2*p} offset:{p*128}")
    a("s_waitcnt lgkmcnt(0)")
    a("s_barrier")
    stamp(11)
    for kt in range(4): a(f"ds_read_b32 v{40+kt}, v61 offset:{kt*2048}")
    a("s_waitcnt lgkmcnt(0)")
    a("v_add_f32 v40, v40, v41"); a("v_add_f32 v42, v42, v43"); a("v_add_f32 v62, v40, v42")
    a("buffer_store_dwordx2 v[62:63], v13, s[56:59], s74 offen sc1")
    stamp(9)
    a("s_branch L_endrole")

    a.label("L_roleB")
    a("s_setprio 3")
    a("s_add_u32 s96, s8, 1")
    a("v_and_b32 v10, 31, v1"); a("v_lshlrev_b32 v10, 1, v10"); a("s_lshl_b32 s10, s9, 6")
    a("buffer_load_ushort v16, v10, s[40:43], s10 offen")
    a("v_lshrrev_b32 v9, 2, v2"); a("v_lshlrev_b32 v10, 3, v3"); a("v_add_u32 v9, v10, v9")
    a("v_and_b32 v44, 3, v2"); a("v_lshlrev_b32 v44, 3, v44")
    a("v_lshlrev_b32 v10, 6, v9"); a("v_add_u32 v10, v10, v44"); a("v_and_b32 v45, 1, v3"); a("v_lshlrev_b32 v46, 5, v45"); a("v_add_u32 v10, v10, v46")
    a("s_lshl_b32 s10, s3, 12")
    if L_W: a(f"s_add_u32 s10, s10, {L_W}")
    a("v_add_u32 v52, s10, v10"); a("v_xor_b32 v53, 32, v52")
    a("v_lshlrev_b32 v10, 10, v9"); a("v_add_u32 v10, v10, v44")
    a("v_lshrrev_b32 v46, 2, v2"); a("v_lshlrev_b32 v45, 2, v45"); a("v_or_b32 v46, v46, v45"); a("v_lshlrev_b32 v46, 5, v46"); a("v_add_u32 v10, v10, v46")
    a("s_lshl_b32 s10, s3, 7"); a("v_xor_b32 v10, s10, v10"); a(f"v_add_u32 v54, {L_W2}, v10")
    for q in range(1, 4): a(f"v_xor_b32 v{54+q}, {q*32}, v54")
    a("v_and_b32 v58, 3, v2"); a("v_lshlrev_b32 v58, 10, v58"); a("v_lshlrev_b32 v9, 4, v3"); a("v_add_u32 v58, v58, v9")
    a("s_lshl_b32 s10, s3, 7"); a(f"s_add_u32 s10, s10, {L_YB}"); a("v_add_u32 v58, s10, v58")
    a("v_lshlrev_b32 v59, 4, v2"); a("s_lshl_b32 s10, s3, 9"); a(f"s_add_u32 s10, s10, {L_T1}"); a("v_add_u32 v59, s10, v59")
    a("v_and_b32 v60, 31, v1"); a("v_lshlrev_b32 v60, 4, v60"); a("v_lshrrev_b32 v9, 5, v1"); a("v_lshlrev_b32 v9, 11, v9"); a("v_add_u32 v60, v60, v9"); a(f"v_add_u32 v60, {L_T1}, v60")
    a("v_and_b32 v61, 31, v1"); a("v_lshlrev_b32 v61, 1, v61"); a("v_lshrrev_b32 v9, 5, v1"); a("v_lshlrev_b32 v9, 7, v9"); a("v_add_u32 v61, v61, v9")
    a("s_lshl_b32 s10, s3, 8"); a(f"s_add_u32 s10, s10, {L_GB}"); a("v_add_u32 v61, s10, v61")
    a("v_and_b32 v62, 3, v2"); a("v_lshlrev_b32 v62, 6, v62"); a("v_lshlrev_b32 v9, 4, v3"); a("v_add_u32 v62, v62, v9"); a("v_add_u32 v62, s10, v62")
    a("s_lshl_b32 s10, s9, 12"); a("s_lshl_b32 s12, s3, 9"); a("s_add_u32 s10, s10, s12"); a(f"s_add_u32 s72, s10, {WS_GP}")
    for bb in range(1, 4): a(f"s_add_u32 s{72+bb}, s72, {bb*56*4096}")
    for r in range(4): a(f"v_mov_b32 v{113+2*r}, s96")
    a("v_mov_b32 v46, 0x3d372713")
    a("s_lshl_b32 s10, s3, 10"); a(f"s_add_u32 s10, s10, {L_YB}"); a("v_add_u32 v63, s10, v14")
    a("v_lshlrev_b32 v10, 5, v1"); a("s_lshl_b32 s10, s3, 11"); a("s_lshl_b32 s12, s4, 13"); a("s_add_u32 s10, s10, s12"); a(f"s_add_u32 s66, s10, {WS_H}")
    wait_flags4(F_W, 40, sleep=1)
    for kt in range(2):
        for nt in range(2):
            r = 64 + (kt*2+nt)*4
            a(f"ds_read_b64_tr_b16 v[{r}:{r+1}], v{52+nt} offset:{kt*2048}")
            a(f"ds_read_b64_tr_b16 v[{r+2}:{r+3}], v{52+nt} offset:{kt*2048+256}")
    for q in range(4):
        r = 80 + 4*q
        a(f"ds_read_b64_tr_b16 v[{r}:{r+1}], v{54+q}")
        a(f"ds_read_b64_tr_b16 v[{r+2}:{r+3}], v{54+q} offset:4096")
    a("s_waitcnt vmcnt(0) lgkmcnt(0)")
    a("v_lshlrev_b32 v16, 16, v16")
    a("s_cmp_ge_u32 s3, 4"); a("s_cbranch_scc1 L_B_ln_done")
    a("s_mov_b32 s67, 0")
    Lh = lab("hg"); a.label(Lh)
    a("buffer_load_dwordx4 v[192:195], v10, s[56:59], s66 offen sc1")
    a("buffer_load_dwordx4 v[196:199], v10, s[56:59], s66 offen offset:16 sc1")
    a("s_waitcnt vmcnt(0)")
    tagcheck([193, 195, 197, 199], 40, 44, Lh, sleep=tsleep)
    stamp(10)
    for i in range(4):
        a(f"v_lshlrev_b32 v{20+2*i}, 16, v{192+2*i}"); a(f"v_and_b32 v{21+2*i}, s63, v{192+2*i}")
    layernorm8(20, 32)
    a("ds_write_b128 v63, v[40:43]")
    a("s_waitcnt lgkmcnt(0)")
    stamp(12)
    a.label("L_B_ln_done")
    a("s_barrier")
    for kt in range(2): a(f"ds_read_b128 v[{192+4*kt}:{195+4*kt}], v58 offset:{kt*64}")
    a("s_waitcnt lgkmcnt(0)")
    for kt in range(2):
        for nt in range(2):
            r = 64 + (kt*2+nt)*4
            c = "0" if kt == 0 else f"v[{96+4*nt}:{99+4*nt}]"
            a(f"v_mfma_f32_16x16x32_bf16 v[{96+4*nt}:{99+4*nt}], v[{192+4*kt}:{195+4*kt}], v[{r}:{r+3}], {c}")
    a("s_nop 6")
    a("ds_write_b128 v59, v[96:99]")
    a("s_nop 0")
    a("ds_write_b128 v59, v[100:103] offset:256")
    a("s_waitcnt lgkmcnt(0)")
    stamp(13)
    a("s_barrier")
    stamp(14)
    for i in range(4): a(f"ds_read_b128 v[{192+4*i}:{195+4*i}], v60 offset:{i*512}")
    a("s_waitcnt lgkmcnt(0)")
    for c in range(4):
        a(f"v_add_f32 v{192+c}, v{192+c}, v{196+c}"); a(f"v_add_f32 v{200+c}, v{200+c}, v{204+c}")
    for c in range(4): a(f"v_add_f32 v{192+c}, v{192+c}, v{200+c}")
    a("s_nop 0")
    a("v_permlane32_swap_b32 v192, v194"); a("v_permlane32_swap_b32 v193, v195")
    a("v_add_f32 v40, v192, v194"); a("v_add_f32 v41, v193, v195")
    a("v_cvt_pk_bf16_f32 v42, v40, v41"); a("v_lshlrev_b32 v40, 16, v42"); a("v_and_b32 v41, s63, v42")
    a("v_add_f32 v40, v40, v16"); a("v_add_f32 v41, v41, v16")
    a("v_cvt_pk_bf16_f32 v42, v40, v41"); a("v_lshlrev_b32 v40, 16, v42"); a("v_and_b32 v41, s63, v42")
    for c in range(2): a(f"v_mul_f32 v{42+c}, v{40+c}, v{40+c}")
    for c in range(2): a(f"v_fma_f32 v{42+c}, v{42+c}, v46, 1.0")
    for c in range(2): a(f"v_mul_f32 v{42+c}, v{42+c}, v{40+c}")
    for c in range(2): a(f"v_mul_f32 v{42+c}, 0xc0135761, v{42+c}")
    for c in range(2): a(f"v_exp_f32 v{42+c}, v{42+c}")
    a("s_nop 0")
    for c in range(2): a(f"v_add_f32 v{42+c}, 1.0, v{42+c}")
    for c in range(2): a(f"v_rcp_f32 v{42+c}, v{42+c}")
    a("s_nop 0")
    for c in range(2): a(f"v_mul_f32 v{40+c}, v{40+c}, v{42+c}")
    a("v_cvt_pk_bf16_f32 v40, v40, v41")
    stamp(8)
    a("ds_write_b16 v61, v40"); a("ds_write_b16_d16_hi v61, v40 offset:64")
    a("ds_read_b128 v[192:195], v62")
    a("s_waitcnt lgkmcnt(0)")
    for q in range(4):
        a(f"v_mfma_f32_16x16x32_bf16 v[{96+4*q}:{99+4*q}], v[192:195], v[{80+4*q}:{83+4*q}], 0")
    a("s_nop 4")
    for r in range(4): a(f"v_mov_b32 v{112+2*r}, v{96+r}")
    for q in range(1, 4):
        for r in range(4):
            a(f"v_mov_b32_dpp v{112+2*r}, v{96+4*q+r} quad_perm:[0,1,2,3] row_mask:{hex(1<<q)} bank_mask:0xf")
    for r in range(4): a(f"buffer_store_dwordx2 v[{112+2*r}:{113+2*r}], v13, s[56:59], s{72+r} offen sc1")
    stamp(11)
    a("s_branch L_endrole")

    a.label("L_roleC")
    a("s_cmp_lg_u32 s3, 7"); a("s_cbranch_scc1 L_fin")
    a("s_setprio 3")
    a("v_lshlrev_b32 v10, 12, v3"); a("v_lshlrev_b32 v9, 4, v2"); a("v_add_u32 v18, v10, v9")
    a("s_lshl_b32 s10, s76, 17"); a("s_lshl_b32 s12, s62, 3"); a("s_add_u32 s10, s10, s12"); a(f"s_add_u32 s80, s10, {WS_HP}")
    for t in range(1, 8): a(f"s_add_u32 s{80+t}, s80, {t*16384}")
    a("s_lshl_b32 s10, s76, 11"); a("s_lshl_b32 s12, s62, 2"); a("s_add_u32 s10, s10, s12"); a(f"s_add_u32 s72, s10, {WS_H}"); a("s_add_u32 s74, s72, 32768")
    a("v_lshlrev_b32 v17, 3, v2"); a("v_lshlrev_b32 v9, 13, v3"); a("v_add_u32 v17, v17, v9")
    a("s_mov_b32 s67, 0")
    Ls = lab("sg"); a.label(Ls)
    for t in range(8): a(f"buffer_load_dwordx4 v[{64+4*t}:{67+4*t}], v18, s[56:59], s{80+t} offen sc1")
    a("s_waitcnt vmcnt(0)")
    tagcheck([65+2*i for i in range(16)], 40, 44, Ls, sleep=tsleep)
    stamp(12)
    def tree2(n):
        ra = [64 + 4*t for t in range(n)]
        while len(ra) > 1:
            nxt = []
            for i in range(0, len(ra) - 1, 2):
                a(f"v_add_f32 v{ra[i]}, v{ra[i]}, v{ra[i+1]}"); a(f"v_add_f32 v{ra[i]+2}, v{ra[i]+2}, v{ra[i+1]+2}"); nxt.append(ra[i])
            if len(ra) % 2: nxt.append(ra[-1])
            ra = nxt
    def xrow():
        a("s_nop 1")
        a("v_permlane32_swap_b32 v64, v66")
        a("v_add_f32 v64, v64, v66")
        a("v_mov_b32 v66, v64"); a("s_nop 1")
        a("v_permlane16_swap_b32 v64, v66")
        a("v_add_f32 v64, v64, v66")
        a("v_mov_b32 v66, v64"); a("s_nop 1")
        a("v_permlane32_swap_b32 v64, v66")
    tree2(8)
    xrow()
    a("v_cvt_pk_bf16_f32 v40, v64, v66")
    a("v_lshlrev_b32 v43, 16, v12"); a("v_and_b32 v44, s63, v12")
    a("v_lshlrev_b32 v41, 16, v40"); a("v_and_b32 v42, s63, v40")
    a("v_add_f32 v41, v41, v43"); a("v_add_f32 v42, v42, v44")
    a("v_cvt_pk_bf16_f32 v40, v41, v42")
    a("v_mov_b32 v41, v15")
    a("buffer_store_dwordx2 v[40:41], v17, s[56:59], s72 offen sc1")
    a("buffer_store_dwordx2 v[40:41], v17, s[56:59], s74 offen sc1")
    stamp(13)
    a.label("L_endrole")
    a("s_cmp_lg_u32 s3, 7"); a("s_cbranch_scc1 L_fin")
    a("s_setprio 3")
    a("s_add_u32 s96, s8, 1")
    a("v_lshrrev_b32 v10, 2, v1"); a("v_lshlrev_b32 v10, 12, v10"); a("v_and_b32 v9, 3, v1"); a("v_lshlrev_b32 v17, 4, v9"); a("v_add_u32 v18, v10, v17")
    a(f"s_mul_i32 s10, s5, {56*4096}"); a("s_lshl_b32 s12, s95, 3"); a("s_add_u32 s10, s10, s12"); a(f"s_add_u32 s80, s10, {WS_GP}")
    for t in range(1, 4): a(f"s_add_u32 s{80+t}, s80, {t*65536}")
    a("s_lshl_b32 s10, s4, 13"); a("s_lshl_b32 s12, s5, 11"); a("s_add_u32 s10, s10, s12"); a("s_lshl_b32 s12, s95, 2"); a("s_add_u32 s10, s10, s12"); a(f"s_add_u32 s84, s10, {WS_H}")
    a("v_lshlrev_b32 v19, 3, v9")
    a("s_lshl_b32 s10, s5, 10"); a("s_lshl_b32 s12, s95, 1"); a("s_add_u32 s73, s10, s12")
    a("v_lshlrev_b32 v16, 2, v9")
    a("v_mov_b32 v76, 0"); a("v_mov_b32 v77, s96"); a("v_mov_b32 v78, 0"); a("v_mov_b32 v79, s96")
    a("s_mov_b32 s67, 0")
    Lh4 = lab("h4"); a.label(Lh4)
    a("buffer_load_dwordx2 v[20:21], v19, s[56:59], s84 offen sc1")
    a("s_waitcnt vmcnt(0)")
    tagcheck([21], 40, 44, Lh4, sleep=4)
    a("v_lshlrev_b32 v21, 16, v20"); a("v_and_b32 v22, s63, v20")
    a("v_lshlrev_b32 v23, 16, v8"); a("v_and_b32 v24, s63, v8")
    a("s_mov_b32 s67, 0")
    Lg = lab("gg"); a.label(Lg)
    for t in range(3): a(f"buffer_load_dwordx4 v[{64+4*t}:{67+4*t}], v18, s[56:59], s{80+t} offen sc1")
    a("s_mov_b64 s[98:99], exec")
    a("s_mov_b32 exec_hi, 0")
    Lx = lab("x"); a(f"s_cbranch_execz {Lx}")
    a("buffer_load_dwordx4 v[76:79], v18, s[56:59], s83 offen sc1")
    a.label(Lx)
    a("s_mov_b64 exec, s[98:99]")
    a("s_waitcnt vmcnt(0)")
    tagcheck([65+2*i for i in range(8)], 40, 44, Lg, sleep=tsleep, tag="s96")
    stamp(14)
    a("v_add_f32 v64, v64, v68"); a("v_add_f32 v66, v66, v70"); a("v_add_f32 v72, v72, v76"); a("v_add_f32 v74, v74, v78")
    a("v_add_f32 v64, v64, v72"); a("v_add_f32 v66, v66, v74")
    for rot in (4, 8):
        a("s_nop 0")
        a(f"v_add_f32_dpp v64, v64, v64 row_ror:{rot} row_mask:0xf bank_mask:0xf")
        a(f"v_add_f32_dpp v66, v66, v66 row_ror:{rot} row_mask:0xf bank_mask:0xf")
    a("s_nop 1")
    a("v_permlane32_swap_b32 v64, v66")
    a("v_add_f32 v64, v64, v66")
    a("v_mov_b32 v66, v64"); a("s_nop 1")
    a("v_permlane16_swap_b32 v64, v66")
    a("v_add_f32 v64, v64, v66")
    a("v_mov_b32 v66, v64"); a("s_nop 1")
    a("v_permlane32_swap_b32 v64, v66")
    a("v_cvt_pk_bf16_f32 v40, v64, v66")
    a("v_lshlrev_b32 v41, 16, v40"); a("v_and_b32 v42, s63, v40")
    a("v_add_f32 v41, v41, v23"); a("v_add_f32 v42, v42, v24")
    a("v_cvt_pk_bf16_f32 v40, v41, v42")
    a("v_lshlrev_b32 v41, 16, v40"); a("v_and_b32 v42, s63, v40")
    a("v_add_f32 v41, v41, v21"); a("v_add_f32 v42, v42, v22")
    a("v_cvt_pk_bf16_f32 v40, v41, v42")
    a("s_mov_b64 exec, 0xf")
    a("buffer_store_dword v40, v16, s[52:55], s73 offen")
    a("s_mov_b64 exec, -1")
    a("s_cmp_lg_u32 s2, 0"); a("s_cbranch_scc1 L_fin")
    a("s_mov_b64 exec, 1")
    a("buffer_store_dword v15, v6, s[56:59], 0 offen sc1")
    a("s_mov_b64 exec, -1")
    a.label("L_fin")
    if stamps == "dbg":
        stamp(15)
        a("s_cmp_lg_u32 s3, 7"); a("s_cbranch_scc1 L_end")
        a("s_load_dwordx2 s[88:89], s[0:1], 88")
        a("s_waitcnt lgkmcnt(0)")
        a("s_mov_b32 s90, 256"); a("s_mov_b32 s91, 0x20000")
        a(f"v_not_b32 v{SB}, v{SB}")
        a("v_mov_b32 v44, 0")
        a("s_mov_b64 exec, 1")
        for k, idx in enumerate((0, 6, 1, 2, 4, 5, 14, 15)):
            a(f"buffer_atomic_umax v{SB+idx}, v44, s[88:91], 0 offen offset:{4*k}")
        a("s_mov_b64 exec, -1")
    elif stamps:
        stamp(15)
        a("s_lshl_b32 s10, s2, 3"); a("s_add_u32 s10, s10, s3"); a("s_lshl_b32 s10, s10, 6"); a(f"s_add_u32 s10, s10, {WS_STAMP}")
        a("v_mov_b32 v44, 0")
        a("s_mov_b64 exec, 1")
        for i in range(4): a(f"buffer_store_dwordx4 v[{SB+4*i}:{SB+3+4*i}], v44, s[56:59], s10 offen offset:{16*i}")
        a("s_mov_b64 exec, -1")
    a.label("L_end")
    a("s_endpgm")
    return a

HDR = """; Fused pre-LN GQA decode attention + channel-MLP block, single persistent launch (256 workgroups x 8 waves).
; @launch grid=(256,1,1) block=(512,1,1) lds={lds}
.amdgcn_target "amdgcn-amd-amdhsa--gfx950"
.text
.globl {name}_kernel
.p2align 8
.type {name}_kernel,@function
{name}_kernel:
"""
FTR = """
.section .rodata,"a"
.p2align 6
.amdhsa_kernel {name}_kernel
  .amdhsa_next_free_vgpr 256
  .amdhsa_next_free_sgpr 102
  .amdhsa_accum_offset 256
  .amdhsa_group_segment_fixed_size 0
  .amdhsa_kernarg_size 104
  .amdhsa_user_sgpr_count 2
  .amdhsa_user_sgpr_kernarg_segment_ptr 1
  .amdhsa_system_sgpr_workgroup_id_x 1
.end_amdhsa_kernel
"""
def build(path, **kw):
    a = gen(**kw)
    probs = check_hazards(a.lines)
    open(path, "w").write(HDR.format(name=NAME, lds=LDS_BYTES) + a.text() + FTR.format(name=NAME))
    return probs

if __name__ == "__main__":
    out = sys.argv[1] if len(sys.argv) > 1 else "k3.s"
    kw = {}
    for arg in sys.argv[2:]:
        if arg == "stamps": kw["stamps"] = True
        elif arg == "dbg": kw["stamps"] = "dbg"
        elif "=" in arg:
            k, v = arg.split("="); kw[k] = eval(v)
    probs = build(out, **kw)
    print("hazards:", len(probs))
```

```python
import sys
from asmlib import Asm, check_hazards

NAME = "sequential_preLN__gqa_block_cached__mixer_channel_mlp__decode"

WS_EPOCH = 0
WS_ML = 0x1000
WS_H  = 0x1E8000
WS_OP = 0x8000
WS_HP = 0x88000
WS_QB = 0x108000
WS_GP = 0x108000
WS_STAMP = 0x400000
L_W = 0
L_W2 = 32768
L_WQ = 65536
L_RED = 81920
L_R1 = 90112
L_YB = 98304
L_QPB = 102400
L_PB = 106496
L_T1 = 110592
L_GB = 114688
L_QL = 116736
L_FLAGS = 117760
L_MLB = 118016
L_WR = 118784
L_WQ2 = 122880
L_QPB2 = 139264
LDS_BYTES = 143360
F_Y, F_QP, F_Q, F_ML, F_P, F_W, F_O, F_WR, F_Q2, F_VI = 0, 16, 32, 48, 64, 80, 96, 112, 128, 144

LOG2E = 0x3fb8aa3b
SCALE = 0x3db504f3
EPS = 0x3727c5ac
TAGC = 0x9E3779B9
POLL_MAX = 20000

def gen(stamps=False, outf='', psleep=2, tsleep=1, qearly=6, mlsleep=8, rot=True, no_w=False, no_pwait=False, no_q=False, khold=0, lanemask=True, delay=None, NA=(0,12,22,22,20,22,22,8), NB=(0,8,8,8,8,8,8,8), NC=(24,12,2,2,4,2,2,16), QL=0, QH=4, vigate=31, vearly=0):
    a = Asm()
    NT = " nt"
    OUTF = outf
    uid = [0]
    def lab(p):
        uid[0] += 1
        return f"L_{p}_{uid[0]}"
    SB = 240
    def stamp(idx):
        if stamps:
            a("s_memrealtime s[78:79]")
            a("s_waitcnt lgkmcnt(0)")
            a(f"v_mov_b32 v{SB+idx}, s78")
    def allreduce(op, rs, tmps):
        k = len(rs)
        for rot in (8, 4, 2, 1):
            if k == 1: a("s_nop 1")
            elif k == 2: a("s_nop 0")
            for r in rs:
                a(f"{op}_dpp v{r}, v{r}, v{r} row_ror:{rot} row_mask:0xf bank_mask:0xf")
        for sw in ("v_permlane16_swap_b32", "v_permlane32_swap_b32"):
            for r, t in zip(rs, tmps): a(f"v_mov_b32 v{t}, v{r}")
            a("s_nop 1" if k == 1 else "s_nop 0")
            if k == 2: pass
            for r, t in zip(rs, tmps): a(f"{sw} v{r}, v{t}")
            for r, t in zip(rs, tmps): a(f"{op} v{r}, v{r}, v{t}")
    def rb(dst, src):
        a(f"v_cvt_pk_bf16_f32 v{dst}, v{src}, v{src}")
        a(f"v_lshlrev_b32 v{dst}, 16, v{dst}")
    def setflag(off): a(f"ds_write_b32 v11, v0 offset:{off}")
    def wait_flags4(off, tmp, sleep=0):
        L = lab("wf")
        a.label(L)
        if sleep: a(f"s_sleep {sleep}")
        a(f"ds_read_b128 v[{tmp}:{tmp+3}], v7 offset:{off}")
        a("s_waitcnt lgkmcnt(0)")
        a(f"v_and_b32 v{tmp}, v{tmp}, v{tmp+1}"); a(f"v_and_b32 v{tmp+2}, v{tmp+2}, v{tmp+3}")
        a(f"v_and_b32 v{tmp}, v{tmp}, v{tmp+2}")
        a(f"v_cmp_ne_u32 vcc, 1, v{tmp}")
        a(f"s_cbranch_vccnz {L}")
    def wait_flag1(off, tmp, sleep=0):
        L = lab("wf")
        a.label(L)
        if sleep: a(f"s_sleep {sleep}")
        a(f"ds_read_b32 v{tmp}, v11 offset:{off}")
        a("s_waitcnt lgkmcnt(0)")
        a(f"v_cmp_ne_u32 vcc, 1, v{tmp}")
        a(f"s_cbranch_vccnz {L}")
    def tagcheck(tagregs, acc, t1, retry_label, cnt=67, sleep=0, tag="s8"):
        first = True; i = 0
        while i < len(tagregs):
            if i + 1 < len(tagregs):
                a(f"v_xor_b32 v{t1}, {tag}, v{tagregs[i]}")
                if first:
                    a(f"v_xor_b32 v{acc}, {tag}, v{tagregs[i+1]}")
                    a(f"v_or_b32 v{acc}, v{acc}, v{t1}")
                else:
                    a(f"v_xor_b32 v{t1+1}, {tag}, v{tagregs[i+1]}")
                    a(f"v_or3_b32 v{acc}, v{acc}, v{t1}, v{t1+1}")
                i += 2
            else:
                if first: a(f"v_xor_b32 v{acc}, {tag}, v{tagregs[i]}")
                else:
                    a(f"v_xor_b32 v{t1}, {tag}, v{tagregs[i]}")
                    a(f"v_or_b32 v{acc}, v{acc}, v{t1}")
                i += 1
            first = False
        a(f"v_cmp_ne_u32 vcc, 0, v{acc}")
        done = lab("pd")
        a(f"s_cbranch_vccz {done}")
        if lanemask: a("s_mov_b64 exec, vcc")
        if sleep: a(f"s_sleep {sleep}")
        a(f"s_add_u32 s{cnt}, s{cnt}, 1")
        a(f"s_cmp_lt_u32 s{cnt}, {POLL_MAX}")
        a(f"s_cbranch_scc1 {retry_label}")
        a.label(done)
        if lanemask: a("s_mov_b64 exec, -1")
    def layernorm8(e, t):
        a(f"v_readfirstlane_b32 s12, v{e}")
        a("s_nop 1")
        for i in range(8): a(f"v_subrev_f32 v{t+4+(i&3)+ (0)}, s12, v{e+i}") if False else None
        a(f"v_subrev_f32 v{t+2}, s12, v{e}"); a(f"v_subrev_f32 v{t+3}, s12, v{e+1}")
        a(f"v_add_f32 v{t}, v{t+2}, v{t+3}"); a(f"v_mul_f32 v{t+1}, v{t+2}, v{t+2}"); a(f"v_fmac_f32 v{t+1}, v{t+3}, v{t+3}")
        for i in range(2, 8, 2):
            a(f"v_subrev_f32 v{t+2}, s12, v{e+i}"); a(f"v_subrev_f32 v{t+3}, s12, v{e+i+1}")
            a(f"v_add_f32 v{t}, v{t}, v{t+2}"); a(f"v_fmac_f32 v{t+1}, v{t+2}, v{t+2}")
            a(f"v_add_f32 v{t}, v{t}, v{t+3}"); a(f"v_fmac_f32 v{t+1}, v{t+3}, v{t+3}")
        allreduce("v_add_f32", [t, t+1], [t+2, t+3])
        a(f"v_mul_f32 v{t}, 0x3b000000, v{t}")
        a(f"v_mul_f32 v{t+1}, 0x3b000000, v{t+1}")
        a(f"v_fma_f32 v{t+1}, -v{t}, v{t}, v{t+1}")
        a(f"v_add_f32 v{t}, s12, v{t}")
        a(f"v_max_f32 v{t+1}, 0, v{t+1}")
        a(f"v_cvt_pk_bf16_f32 v{t+2}, v{t}, v{t+1}")
        a(f"v_and_b32 v{t+1}, s63, v{t+2}")
        a(f"v_lshlrev_b32 v{t}, 16, v{t+2}")
        a(f"v_add_f32 v{t+1}, {EPS}, v{t+1}")
        for i in range(4): a(f"v_sub_f32 v{e+i}, v{e+i}, v{t}")
        rb(t+1, t+1)
        a(f"v_sqrt_f32 v{t+1}, v{t+1}")
        for i in range(4, 8): a(f"v_sub_f32 v{e+i}, v{e+i}, v{t}")
        rb(t+1, t+1)
        a(f"v_rcp_f32 v{t+1}, v{t+1}")
        for i in range(4): a(f"v_cvt_pk_bf16_f32 v{t+8+i}, v{e+2*i}, v{e+2*i+1}")
        for i in range(4):
            a(f"v_lshlrev_b32 v{e+2*i}, 16, v{t+8+i}"); a(f"v_and_b32 v{e+2*i+1}, s63, v{t+8+i}")
        for i in range(8): a(f"v_mul_f32 v{e+i}, v{e+i}, v{t+1}")
        for i in range(4): a(f"v_cvt_pk_bf16_f32 v{t+8+i}, v{e+2*i}, v{e+2*i+1}")
    def kvstep():
        a("s_add_u32 s83, s83, 4096"); a("s_and_b32 s83, s83, 0x7fff"); a("s_add_u32 s65, s64, s83")
    def role_setup():
        assert sum(NA) == 128 and sum(NB) == 56 and sum(NC) == 64 and all(x + y + z <= 32 for x, y, z in zip(NA, NB, NC))
        def pack(v): return sum(x << (8*i) for i, x in enumerate(v))
        def pre(v): return [sum(v[:i]) for i in range(8)]
        a("s_lshl_b32 s87, s4, 3")
        def look(dst, v):
            p = pack(v)
            a(f"s_mov_b32 s98, {p & 0xffffffff}"); a(f"s_mov_b32 s99, {p >> 32}")
            a("s_lshr_b64 s[98:99], s[98:99], s87"); a(f"s_and_b32 s{dst}, s98, 0xff")
        look(10, NA); look(12, NB); look(13, NC)
        look(14, pre(NA)); a("s_add_u32 s15, s14, s7")
        look(14, pre(NB)); a("s_sub_u32 s10, s7, s10"); a("s_add_u32 s9, s14, s10")
        a("s_mov_b32 s97, 3")
        a("s_sub_u32 s76, s10, s12")
        a("s_cmp_lt_u32 s76, s13"); a("s_cselect_b32 s97, 2, s97")
        a("s_cmp_lt_u32 s10, s12"); a("s_cselect_b32 s97, 1, s97")
        a("s_cmp_gt_u32 s10, s7"); a("s_cselect_b32 s97, 0, s97")
        look(14, pre(NC)); a("s_add_u32 s13, s14, s76")
        a("s_lshr_b32 s84, s15, 4"); a("s_and_b32 s84, s84, 7")
        a("s_lshr_b32 s85, s15, 2"); a("s_and_b32 s85, s85, 3")
        a("s_and_b32 s86, s15, 3")
        a("s_lshr_b32 s76, s13, 4"); a("s_and_b32 s76, s76, 3")
        a("s_and_b32 s10, s13, 15"); a("s_lshl_b32 s62, s10, 5")
    def role_branch(la, lb, lc):
        a("s_cmp_eq_u32 s97, 0"); a(f"s_cbranch_scc1 {la}")
        a("s_cmp_eq_u32 s97, 1"); a(f"s_cbranch_scc1 {lb}")
        if lc: a("s_cmp_eq_u32 s97, 2"); a(f"s_cbranch_scc1 {lc}")
        a("s_branch L_endrole" if lc else "s_branch L_fin")
    def srd(sr, sz):
        a(f"s_mov_b32 s{sr+2}, {sz}"); a(f"s_mov_b32 s{sr+3}, 0x20000")
    SZ = {16: 4096, 20: 33554432, 24: 33554432, 28: 4194304, 32: 4194304, 36: 1835008, 40: 3584, 44: 1835008, 48: 1024, 52: 4096, 56: 268435456}

    if stamps: a("s_memrealtime s[78:79]")
    for (sr, off) in ((56, 96), (20, 8), (16, 0), (28, 24), (24, 16), (32, 32), (36, 48), (40, 56), (44, 64), (48, 72), (52, 80)):
        a(f"s_load_dwordx2 s[{sr}:{sr+1}], s[0:1], {off}")
    a("s_cmp_ge_u32 s2, 256")
    a("s_cbranch_scc1 L_end")
    a("v_lshrrev_b32 v4, 6, v0")
    a("v_and_b32 v1, 63, v0")
    a("v_readfirstlane_b32 s3, v4")
    a("v_and_b32 v2, 15, v1")
    a("v_lshrrev_b32 v3, 4, v1")
    a("s_and_b32 s4, s2, 7")
    a("s_lshr_b32 s7, s2, 3")
    a("s_lshr_b32 s5, s7, 3")
    a("s_and_b32 s6, s7, 7")
    if delay:
        if delay[0] >= 0:
            a(f"s_cmp_lg_u32 s4, {delay[0]}"); a("s_cbranch_scc1 L_nodelay")
        else:
            a(f"s_cmp_eq_u32 s4, {-delay[0]-1}"); a("s_cbranch_scc1 L_nodelay")
        a("s_memrealtime s[78:79]"); a("s_waitcnt lgkmcnt(0)"); a(f"s_add_u32 s77, s78, {delay[1]}")
        a.label("L_dl"); a("s_memrealtime s[78:79]"); a("s_waitcnt lgkmcnt(0)"); a("s_cmp_lt_u32 s78, s77"); a("s_cbranch_scc1 L_dl")
        a.label("L_nodelay")
    srd(56, SZ[56]); srd(20, SZ[20]); srd(16, SZ[16]); srd(28, SZ[28])
    a("s_and_b32 s11, s3, 3")
    a("s_lshl_b32 s70, s5, 3"); a("s_add_u32 s70, s70, s4")
    a("s_lshl_b32 s64, s70, 20"); a("s_lshl_b32 s10, s6, 17"); a("s_add_u32 s64, s64, s10")
    a("s_lshl_b32 s10, s11, 15"); a("s_add_u32 s64, s64, s10")
    a("s_lshl_b32 s83, s5, 13") if rot else a("s_mov_b32 s83, 0")
    a("s_add_u32 s65, s64, s83")
    a("v_mov_b32 v6, 0")
    a("v_lshlrev_b32 v14, 4, v1")
    a("s_cmp_ge_u32 s3, 4")
    a("s_cbranch_scc1 L_v1")
    a("v_lshlrev_b32 v47, 8, v2"); a("v_lshlrev_b32 v10, 4, v3"); a("v_add_u32 v47, v47, v10")
    a("s_lshl_b32 s10, s4, 2"); a("s_add_u32 s10, s10, s5"); a("s_lshl_b32 s10, s10, 14"); a("s_lshl_b32 s12, s11, 10"); a("s_add_u32 s10, s10, s12"); a(f"s_add_u32 s66, s10, {WS_QB}")
    for k in range(1, 4): a(f"s_add_u32 s{71+k}, s66, {k*4096}")
    a("s_setprio 2")
    a("s_waitcnt lgkmcnt(0)")
    a("buffer_load_dword v5, v6, s[56:59], 0 offen sc1")
    def qloads():
        for k in range(4):
            a(f"buffer_load_dwordx4 v[{16+4*k}:{19+4*k}], v14, s[56:59], s{66 if k == 0 else 71+k} offen sc1")
    for t in range(8):
        for i in range(4):
            r = 64 + 16*t + 4*i
            a(f"buffer_load_dwordx4 v[{r}:{r+3}], v47, s[20:23], s65 offen offset:{i*64}{NT}")
        if t < 7: kvstep()
        if t == 1:
            a("v_lshlrev_b32 v9, 2, v1"); a(f"v_add_u32 v9, {L_FLAGS}, v9"); a("ds_write_b32 v9, v6"); a("v_mov_b32 v0, 1")
            a("s_waitcnt lgkmcnt(0)"); a("s_barrier")
        if t == qearly - 1: qloads()
    a("s_branch L_k2")
    a.label("L_v1")
    a("v_lshrrev_b32 v10, 3, v1"); a("v_lshlrev_b32 v10, 13, v10"); a("v_and_b32 v9, 7, v1"); a("v_lshlrev_b32 v9, 4, v9"); a("v_add_u32 v10, v10, v9")
    a("s_lshl_b32 s13, s5, 20"); a("s_lshl_b32 s12, s11, 18"); a("s_add_u32 s13, s13, s12")
    a("s_lshl_b32 s12, s4, 10"); a("s_add_u32 s13, s13, s12"); a("s_lshl_b32 s12, s6, 7"); a("s_add_u32 s13, s13, s12")
    a("s_lshl_b32 s12, s11, 12"); a(f"s_add_u32 s12, s12, {L_WQ}")
    a("s_lshl_b32 s10, s11, 10")
    a("s_setprio 3")
    a("s_waitcnt lgkmcnt(0)")
    a("buffer_load_dword v5, v6, s[56:59], 0 offen sc1")
    if QL is not None:
        a(f"s_cmp_eq_u32 s4, {QL}"); a("s_cbranch_scc1 L_v_noq1")
    a("buffer_load_dwordx4 v[16:19], v14, s[16:19], s10 offen")
    a("s_mov_b32 s14, s13")
    for i in range(4):
        a("s_mov_b32 m0, s12"); a("s_add_u32 s12, s12, 1024")
        a(f"buffer_load_dwordx4 v10, s[28:31], s13 offen{NT} lds"); a("s_add_u32 s13, s13, 0x10000")
    if QL is not None:
        a(f"s_cmp_lg_u32 s4, {QH}"); a("s_cbranch_scc1 L_v_noq1")
        a(f"s_add_u32 s14, s14, {((QL - QH) * 1024) & 0xffffffff}")
        a("s_lshl_b32 s12, s11, 12"); a(f"s_add_u32 s12, s12, {L_WQ2}")
        for i in range(4):
            a("s_mov_b32 m0, s12"); a("s_add_u32 s12, s12, 1024")
            a(f"buffer_load_dwordx4 v10, s[28:31], s14 offen{NT} lds"); a("s_add_u32 s14, s14, 0x10000")
        a.label("L_v_noq1")
    a("v_lshlrev_b32 v9, 2, v1"); a(f"v_add_u32 v9, {L_FLAGS}, v9"); a("ds_write_b32 v9, v6"); a("v_mov_b32 v0, 1")
    a("s_waitcnt lgkmcnt(0)"); a("s_barrier")
    srd(24, SZ[24])
    for k in range(vearly):
        r = 64 + 4*k
        a(f"buffer_load_dwordx4 v[{r}:{r+3}], v14, s[24:27], s65 offen offset:{(k%4)*1024}{NT}")
        if k % 4 == 3: kvstep()

    if stamps:
        a("s_waitcnt lgkmcnt(0)")
        for i in range(16): a(f"v_mov_b32 v{SB+i}, 0")
        a(f"v_mov_b32 v{SB}, s78")
    for sr in (24, 32, 36, 40, 44, 48, 52): srd(sr, SZ[sr])
    role_setup()
    a("s_mov_b32 s60, 0x05040100"); a("s_mov_b32 s61, 0x07060302"); a("s_mov_b32 s63, 0xffff0000")
    a(f"v_mov_b32 v7, {L_FLAGS}"); a("s_lshl_b32 s10, s11, 2"); a("v_add_u32 v11, s10, v7")
    a("v_lshlrev_b32 v13, 3, v1")
    a("v_lshrrev_b32 v9, 2, v2"); a("v_lshlrev_b32 v10, 3, v3"); a("v_add_u32 v9, v9, v10"); a("v_lshlrev_b32 v44, 7, v9")
    a("v_and_b32 v10, 3, v2"); a("v_lshlrev_b32 v10, 3, v10"); a("v_add_u32 v44, v44, v10")
    a("s_lshl_b32 s10, s11, 12"); a(f"s_add_u32 s10, s10, {L_WQ}"); a("v_add_u32 v44, s10, v44"); a("v_mov_b32 v48, v44")
    a("v_and_b32 v45, 3, v2"); a("v_lshlrev_b32 v45, 10, v45"); a("v_lshlrev_b32 v46, 4, v3"); a("v_add_u32 v45, v45, v46")
    a("s_lshl_b32 s10, s5, 8"); a("s_lshl_b32 s12, s11, 6"); a("s_add_u32 s10, s10, s12"); a(f"s_add_u32 s10, s10, {L_YB}"); a("v_add_u32 v45, s10, v45")
    a("v_lshlrev_b32 v46, 4, v2"); a("s_lshl_b32 s10, s11, 10"); a(f"s_add_u32 s10, s10, {L_QPB}"); a("v_add_u32 v46, s10, v46")
    a("s_lshl_b32 s10, s11, 2"); a(f"s_add_u32 s10, s10, {L_QPB}"); a("v_add_u32 v47, s10, v14")
    a("s_lshl_b32 s10, s11, 10"); a(f"s_add_u32 s10, s10, {L_YB}"); a("v_add_u32 v9, s10, v14")
    a("s_lshl_b32 s10, s4, 2"); a("s_add_u32 s10, s10, s11"); a("s_lshl_b32 s10, s10, 2"); a("s_add_u32 s10, s10, s5"); a("s_lshl_b32 s10, s10, 12")
    a("s_lshl_b32 s12, s6, 9"); a("s_add_u32 s10, s10, s12"); a(f"s_add_u32 s66, s10, {WS_QB}")
    if QL is not None:
        a(f"s_cmp_eq_u32 s4, {QL}"); a("s_cbranch_scc1 L_v_noq2")
        a(f"s_cmp_eq_u32 s4, {QH}"); a("s_cbranch_scc1 L_v_w8")
        a(f"s_waitcnt vmcnt({4+vearly})"); a("s_branch L_v_w")
        a.label("L_v_w8"); a(f"s_waitcnt vmcnt({8+vearly})"); a.label("L_v_w")
    else:
        a(f"s_waitcnt vmcnt({4+vearly})")
    stamp(6)
    a("v_readfirstlane_b32 s8, v5")
    for i in range(4):
        a(f"v_lshlrev_b32 v{20+2*i}, 16, v{16+i}"); a(f"v_and_b32 v{21+2*i}, s63, v{16+i}")
    a(f"s_add_u32 s8, s8, {TAGC}")
    a("v_mov_b32 v15, s8")
    layernorm8(20, 32)
    a("ds_write_b128 v9, v[40:43]")
    setflag(F_Y)
    wait_flags4(F_Y, 40)
    a("ds_read_b128 v[192:195], v45")
    if QL is not None:
        a(f"s_cmp_eq_u32 s4, {QH}"); a("s_cbranch_scc1 L_v_w4")
        a(f"s_waitcnt vmcnt({vearly})"); a("s_branch L_v_w0")
        a.label("L_v_w4"); a(f"s_waitcnt vmcnt({4+vearly})"); a.label("L_v_w0")
    else:
        a(f"s_waitcnt vmcnt({vearly})")
    stamp(7)
    for nt in range(4):
        a(f"ds_read_b64_tr_b16 v[{196+4*nt}:{197+4*nt}], v44 offset:{nt*32}")
        a(f"ds_read_b64_tr_b16 v[{198+4*nt}:{199+4*nt}], v44 offset:{nt*32+512}")
    a("s_waitcnt lgkmcnt(0)")
    for nt in range(4):
        a(f"v_mfma_f32_16x16x32_bf16 v[{212+4*nt}:{215+4*nt}], v[192:195], v[{196+4*nt}:{199+4*nt}], 0")
    a("v_mov_b32 v45, s8")
    a("s_nop 3")
    for nt in range(4): a(f"ds_write_b128 v46, v[{212+4*nt}:{215+4*nt}] offset:{nt*256}")
    setflag(F_QP)
    wait_flags4(F_QP, 40)
    for w in range(4): a(f"ds_read_b32 v{40+w}, v47 offset:{w*1024}")
    a("s_waitcnt lgkmcnt(0)")
    a("v_add_f32 v40, v40, v41"); a("v_add_f32 v42, v42, v43"); a("v_add_f32 v44, v40, v42")
    a("buffer_store_dwordx2 v[44:45], v13, s[56:59], s66 offen sc1")
    if QL is not None:
        a(f"s_cmp_lg_u32 s4, {QH}"); a("s_cbranch_scc1 L_v_q_done")
        a(f"v_add_u32 v44, {L_WQ2 - L_WQ}, v48")
        a(f"s_waitcnt vmcnt({1+vearly})")
        for nt in range(4):
            a(f"ds_read_b64_tr_b16 v[{196+4*nt}:{197+4*nt}], v44 offset:{nt*32}")
            a(f"ds_read_b64_tr_b16 v[{198+4*nt}:{199+4*nt}], v44 offset:{nt*32+512}")
        a(f"v_add_u32 v46, {L_QPB2 - L_QPB}, v46"); a(f"v_add_u32 v47, {L_QPB2 - L_QPB}, v47")
        a("s_waitcnt lgkmcnt(0)")
        for nt in range(4):
            a(f"v_mfma_f32_16x16x32_bf16 v[{212+4*nt}:{215+4*nt}], v[192:195], v[{196+4*nt}:{199+4*nt}], 0")
        a(f"s_add_u32 s66, s66, {((QL - QH) * 65536) & 0xffffffff}")
        a("s_nop 6")
        for nt in range(4): a(f"ds_write_b128 v46, v[{212+4*nt}:{215+4*nt}] offset:{nt*256}")
        setflag(F_Q2)
        wait_flags4(F_Q2, 40)
        for w in range(4): a(f"ds_read_b32 v{40+w}, v47 offset:{w*1024}")
        a("s_waitcnt lgkmcnt(0)")
        a("v_add_f32 v40, v40, v41"); a("v_add_f32 v42, v42, v43"); a("v_add_f32 v44, v40, v42")
        a("buffer_store_dwordx2 v[44:45], v13, s[56:59], s66 offen sc1")
        a("s_branch L_v_q_done")
        a.label("L_v_noq2")
        a(f"s_waitcnt vmcnt({vearly})")
        a("v_readfirstlane_b32 s8, v5")
        a("s_nop 1")
        a(f"s_add_u32 s8, s8, {TAGC}")
        a("v_mov_b32 v15, s8")
        a.label("L_v_q_done")
    a("s_setprio 1")
    stamp(1)
    for k in range(vearly, 32):
        r = 64 + 4*k
        a(f"buffer_load_dwordx4 v[{r}:{r+3}], v14, s[24:27], s65 offen offset:{(k%4)*1024}{NT}")
        if k % 4 == 3 and k < 31: kvstep()
        if vigate is not None and k == vigate: setflag(F_VI)
    stamp(2)
    a("v_lshlrev_b32 v10, 2, v2")
    a("s_lshl_b32 s10, s76, 10"); a("s_lshl_b32 s12, s62, 1"); a("s_add_u32 s10, s10, s12")
    a("buffer_load_dword v12, v10, s[16:19], s10 offen")
    a("s_lshl_b32 s95, s4, 3"); a("s_add_u32 s95, s95, s6"); a("s_lshl_b32 s95, s95, 3")
    a("v_and_b32 v9, 3, v1"); a("v_lshlrev_b32 v9, 2, v9"); a("s_lshl_b32 s12, s95, 1")
    a("buffer_load_dword v8, v9, s[48:51], s12 offen")
    a("buffer_load_dword v4, v9, s[52:55], s12 offen")
    NSM = 3
    a("v_lshlrev_b32 v20, 9, v3"); a("v_lshlrev_b32 v9, 5, v2"); a("v_add_u32 v20, v20, v9")
    a("s_lshl_b32 s10, s11, 11"); a(f"s_add_u32 s10, s10, {L_RED}"); a("v_add_u32 v20, s10, v20")
    a("s_lshl_b32 s10, s11, 9"); a(f"s_add_u32 s10, s10, {L_RED}"); a("v_add_u32 v21, s10, v13")
    a("s_lshl_b32 s10, s70, 3"); a("s_add_u32 s10, s10, s6"); a("s_lshl_b32 s10, s10, 11"); a("s_lshl_b32 s12, s11, 9"); a("s_add_u32 s10, s10, s12"); a(f"s_add_u32 s66, s10, {WS_OP}")
    a("v_lshrrev_b32 v10, 2, v2"); a("v_lshlrev_b32 v10, 6, v10"); a("v_lshlrev_b32 v9, 4, v3"); a("v_add_u32 v10, v10, v9")
    a("s_lshl_b32 s10, s11, 10"); a(f"s_add_u32 s10, s10, {L_PB}"); a("v_add_u32 v10, s10, v10")
    if not no_pwait: wait_flag1(F_P, 40, sleep=1)
    PF = 224
    for T in range(4): a(f"ds_read_b128 v[{PF+4*T}:{PF+3+4*T}], v10 offset:{T*256}")
    stamp(3)
    def perms(T, dst, ulist):
        raw = 64 + 32*T
        for u in ulist:
            for jj in range(4):
                s1 = raw + 4*(2*u) + jj; s0 = raw + 4*(2*u+1) + jj
                a(f"v_perm_b32 v{dst + 4*(2*jj) + u}, v{s0}, v{s1}, s60")
                a(f"v_perm_b32 v{dst + 4*(2*jj+1) + u}, v{s0}, v{s1}, s61")
    ACC = 32
    def mfmas(T, src, js):
        for j in js:
            c = "0" if T == 0 else f"v[{ACC+4*j}:{ACC+4*j+3}]"
            a(f"v_mfma_f32_16x16x32_bf16 v[{ACC+4*j}:{ACC+4*j+3}], v[{PF+4*T}:{PF+3+4*T}], v[{src+4*j}:{src+4*j+3}], {c}")
    F = [192, 64, 96, 128]
    def after(k): return min(63, (31 - k) + NSM)
    a(f"s_waitcnt vmcnt({after(7)})")
    perms(0, F[0], range(4))
    a(f"s_waitcnt vmcnt({after(15)}) lgkmcnt(0)")
    for u in range(4):
        perms(1, F[1], [u]); mfmas(0, F[0], [2*u, 2*u+1])
    a(f"s_waitcnt vmcnt({after(23)})")
    for u in range(4):
        perms(2, F[2], [u]); mfmas(1, F[1], [2*u, 2*u+1])
    mfmas(2, F[2], range(4))
    for u in range(4):
        a(f"s_waitcnt vmcnt({after(24+2*u+1)})")
        perms(3, F[3], [u])
        mfmas(2, F[2], [4+u])
    a("s_nop 0")
    mfmas(3, F[3], range(8))
    stamp(4)
    a("v_mov_b32 v17, s8")
    a("s_nop 6")
    for j in range(0, 8, 2):
        a(f"ds_write2_b32 v20, v{ACC+4*j}, v{ACC+4*(j+1)} offset0:{j} offset1:{j+1}")
    setflag(F_O)
    wait_flags4(F_O, 24)
    for w in range(4): a(f"ds_read_b64 v[{24+2*w}:{25+2*w}], v21 offset:{w*2048}")
    a("s_waitcnt lgkmcnt(0)")
    for c in range(2):
        a(f"v_add_f32 v{24+c}, v{24+c}, v{26+c}"); a(f"v_add_f32 v{28+c}, v{28+c}, v{30+c}")
    for c in range(2): a(f"v_add_f32 v{24+c}, v{24+c}, v{28+c}")
    a("v_cvt_pk_bf16_f32 v16, v24, v25")
    a("buffer_store_dwordx2 v[16:17], v13, s[56:59], s66 offen sc1")
    stamp(5)
    a("s_setprio 3")
    a(f"s_mov_b32 s69, {LOG2E}")
    role_branch("L_roleA", "L_roleB", "L_roleC")

    a.label("L_k2")
    if stamps:
        a("s_waitcnt lgkmcnt(0)")
        for i in range(16): a(f"v_mov_b32 v{SB+i}, 0")
        a(f"v_mov_b32 v{SB}, s78")
    stamp(2)
    if stamps:
        a("s_getreg_b32 s12, hwreg(HW_REG_HW_ID)"); a(f"v_mov_b32 v{SB+6}, s12")
        a("s_getreg_b32 s12, hwreg(HW_REG_XCC_ID)"); a("s_add_u32 s12, s12, 1"); a(f"v_mov_b32 v{SB+7}, s12")
    for sr in (24, 32, 36, 40, 44, 48, 52): srd(sr, SZ[sr])
    role_setup()
    a("s_mov_b32 s63, 0xffff0000")
    a(f"v_mov_b32 v7, {L_FLAGS}"); a("s_lshl_b32 s10, s11, 2"); a("v_add_u32 v11, s10, v7")
    a("v_lshlrev_b32 v13, 3, v1")
    a(f"s_waitcnt vmcnt({(8 - qearly) * 4})")
    a("v_readfirstlane_b32 s8, v5")
    a("s_mov_b32 s67, 0")
    a(f"s_add_u32 s8, s8, {TAGC}")
    a("v_mov_b32 v15, s8")
    Lq = lab("qg"); Lq2 = lab("qg2")
    a(f"s_branch {Lq2}")
    a.label(Lq)
    qloads()
    a("s_waitcnt vmcnt(0)")
    a.label(Lq2)
    tagcheck([17+2*i for i in range(8)], 40, 44, Lq, sleep=psleep)
    if stamps: a(f"v_mov_b32 v{SB+1}, s67")
    a("v_add_f32 v16, v16, v20"); a("v_add_f32 v24, v24, v28"); a("v_add_f32 v18, v18, v22"); a("v_add_f32 v26, v26, v30")
    a("v_add_f32 v16, v16, v24"); a("v_add_f32 v18, v18, v26")
    a("v_cvt_pk_bf16_f32 v40, v16, v18")
    a("s_lshl_b32 s10, s11, 8"); a(f"s_add_u32 s10, s10, {L_QL}")
    a("v_lshlrev_b32 v10, 2, v1"); a("v_add_u32 v10, s10, v10")
    a("ds_write_b32 v10, v40")
    setflag(F_Q)
    stamp(3)
    a("v_and_b32 v10, 3, v2"); a("v_lshlrev_b32 v10, 8, v10"); a("v_lshlrev_b32 v44, 4, v3"); a("v_add_u32 v10, v10, v44")
    a(f"v_add_u32 v10, {L_QL}, v10")
    wait_flags4(F_Q, 40)
    for i in range(4): a(f"ds_read_b128 v[{16+4*i}:{19+4*i}], v10 offset:{i*64}")
    a("s_waitcnt lgkmcnt(0)")
    for t in range(8):
        if t >= qearly: a(f"s_waitcnt vmcnt({(7-t)*4})")
        for i in range(4):
            r = 64 + 16*t + 4*i
            c = "0" if i == 0 else f"v[{32+4*t}:{35+4*t}]"
            a(f"v_mfma_f32_16x16x32_bf16 v[{32+4*t}:{35+4*t}], v[{16+4*i}:{19+4*i}], v[{r}:{r+3}], {c}")
    a(f"s_mov_b32 s68, {SCALE}"); a(f"s_mov_b32 s69, {LOG2E}")
    a("s_nop 5")
    for aa in range(2):
        for q in range(1, 4):
            for h in range(4):
                a(f"v_mov_b32_dpp v{32+16*aa+h}, v{32+16*aa+4*q+h} quad_perm:[0,1,2,3] row_mask:{hex(1<<q)} bank_mask:0xf")
    S = [[32+16*aa+h for h in range(4)] for aa in range(2)]
    for rnd in range(2):
        for aa in range(2):
            for hp in range(2): a(f"v_cvt_pk_bf16_f32 v{36+2*aa+hp}, v{S[aa][2*hp]}, v{S[aa][2*hp+1]}")
        for aa in range(2):
            for hp in range(2):
                a(f"v_lshlrev_b32 v{S[aa][2*hp]}, 16, v{36+2*aa+hp}")
                a(f"v_and_b32 v{S[aa][2*hp+1]}, s63, v{36+2*aa+hp}")
        if rnd == 0:
            for aa in range(2):
                for h in range(4): a(f"v_mul_f32 v{S[aa][h]}, s68, v{S[aa][h]}")
    for h in range(4): a(f"v_max_f32 v{40+h}, v{S[0][h]}, v{S[1][h]}")
    allreduce("v_max_f32", [40, 41, 42, 43], [44, 45, 46, 47])
    for aa in range(2):
        for h in range(4): a(f"v_sub_f32 v{S[aa][h]}, v{S[aa][h]}, v{40+h}")
    for aa in range(2):
        for h in range(4): a(f"v_mul_f32 v{S[aa][h]}, s69, v{S[aa][h]}")
    for aa in range(2):
        for h in range(4): a(f"v_exp_f32 v{S[aa][h]}, v{S[aa][h]}")
    a("s_nop 0")
    for h in range(4): a(f"v_add_f32 v{52+h}, v{S[0][h]}, v{S[1][h]}")
    allreduce("v_add_f32", [52, 53, 54, 55], [44, 45, 46, 47])
    for h in range(4):
        a(f"v_mov_b32 v{56+2*h}, v{40+h}"); a(f"v_mov_b32 v{57+2*h}, v{52+h}")
    a("s_lshl_b32 s10, s11, 5"); a(f"s_add_u32 s10, s10, {L_MLB}")
    a("v_mov_b32 v10, s10")
    a("ds_write_b128 v10, v[56:59]")
    a("ds_write_b128 v10, v[60:63] offset:16")
    setflag(F_ML)
    a("v_lshlrev_b32 v10, 3, v2"); a(f"v_add_u32 v10, {L_MLB}, v10")
    a("v_lshrrev_b32 v9, 5, v1"); a("v_lshlrev_b32 v9, 8, v9")
    a("v_and_b32 v44, 3, v1"); a("v_lshlrev_b32 v44, 4, v44"); a("v_add_u32 v9, v9, v44")
    a("v_and_b32 v44, 31, v1"); a("v_lshrrev_b32 v44, 2, v44"); a("v_lshlrev_b32 v44, 1, v44"); a("v_add_u32 v9, v9, v44")
    a("s_lshl_b32 s10, s11, 10"); a(f"s_add_u32 s10, s10, {L_PB}"); a("v_add_u32 v9, s10, v9")
    wait_flags4(F_ML, 44)
    a("ds_read_b64 v[192:193], v10")
    a("s_waitcnt lgkmcnt(0)")
    a("v_mov_b32 v194, v192")
    a("s_nop 1")
    a("v_max_f32_dpp v194, v194, v194 row_ror:4 row_mask:0xf bank_mask:0xf")
    a("s_nop 1")
    a("v_max_f32_dpp v194, v194, v194 row_ror:8 row_mask:0xf bank_mask:0xf")
    a("v_sub_f32 v195, v192, v194"); a("v_mul_f32 v195, s69, v195"); a("v_exp_f32 v195, v195"); a("s_nop 0")
    a("v_mul_f32 v196, v193, v195")
    a("s_nop 1")
    a("v_add_f32_dpp v196, v196, v196 row_ror:4 row_mask:0xf bank_mask:0xf")
    a("s_nop 1")
    a("v_add_f32_dpp v196, v196, v196 row_ror:8 row_mask:0xf bank_mask:0xf")
    a("v_rcp_f32 v197, v196"); a("s_nop 0")
    a("v_mul_f32 v197, v197, v195")
    a("s_lshl_b32 s10, s11, 2")
    for h in range(4):
        a(f"s_add_u32 s12, s10, {h}")
        a(f"v_readlane_b32 s{72+h}, v197, s12")
    a("v_mov_b32 v56, v194"); a("v_mov_b32 v57, s8"); a("v_mov_b32 v58, v196"); a("v_mov_b32 v59, s8")
    for aa in range(2):
        for h in range(4): a(f"v_mul_f32 v{S[aa][h]}, s{72+h}, v{S[aa][h]}")
    for aa in range(2):
        for hp in range(2): a(f"v_cvt_pk_bf16_f32 v{36+2*aa+hp}, v{S[aa][2*hp]}, v{S[aa][2*hp+1]}")
    for aa in range(2):
        for hp in range(2):
            a(f"ds_write_b16 v9, v{36+2*aa+hp} offset:{aa*512 + (2*hp)*64}")
            a(f"ds_write_b16_d16_hi v9, v{36+2*aa+hp} offset:{aa*512 + (2*hp+1)*64}")
    setflag(F_P)
    a("s_lshl_b32 s10, s70, 3"); a("s_add_u32 s10, s10, s6"); a("s_lshl_b32 s10, s10, 6")
    a("s_lshl_b32 s12, s11, 4"); a("s_add_u32 s10, s10, s12"); a(f"s_add_u32 s10, s10, {WS_ML}")
    a("s_lshl_b64 s[12:13], 1, s11")
    a("s_mov_b64 exec, s[12:13]")
    a("buffer_store_dwordx4 v[56:59], v6, s[56:59], s10 offen sc1")
    a("s_mov_b64 exec, -1")
    stamp(4)
    role_branch("L_kA", "L_kB", None)

    a.label("L_kA")
    a("s_mov_b32 s72, s85")
    a("v_lshrrev_b32 v22, 1, v2"); a("v_xor_b32 v22, v22, v3"); a("v_lshlrev_b32 v22, 5, v22")
    a("v_lshlrev_b32 v23, 10, v3"); a("v_add_u32 v22, v22, v23"); a("v_and_b32 v23, 1, v1"); a("v_lshlrev_b32 v23, 4, v23"); a("v_add_u32 v22, v22, v23")
    a("v_xor_b32 v23, 0x80, v22")
    a("s_lshl_b32 s14, s84, 2"); a("s_add_u32 s14, s14, s72"); a("s_lshl_b32 s14, s14, 17")
    a("s_lshl_b32 s13, s11, 15"); a("s_add_u32 s14, s14, s13"); a("s_lshl_b32 s13, s86, 8"); a("s_add_u32 s14, s14, s13")
    a("s_lshl_b32 s15, s11, 13")
    if L_W: a(f"s_add_u32 s15, s15, {L_W}")
    a("s_cmp_lg_u32 s3, 0"); a("s_cbranch_scc1 L_kA_dma")
    a("v_lshrrev_b32 v10, 3, v1"); a("v_and_b32 v10, 3, v10"); a("v_lshlrev_b32 v10, 12, v10"); a("v_and_b32 v9, 7, v1"); a("v_lshlrev_b32 v9, 6, v9"); a("v_add_u32 v10, v10, v9")
    a("s_lshl_b32 s12, s84, 9"); a("s_lshl_b32 s10, s72, 4"); a("s_add_u32 s10, s10, s12"); a(f"s_add_u32 s66, s10, {WS_ML}")
    a("s_mov_b32 s67, 0")
    Lm = lab("mg"); a.label(Lm)
    a(f"s_sleep {mlsleep}")
    a("buffer_load_dwordx4 v[192:195], v10, s[56:59], s66 offen sc1")
    a("s_waitcnt vmcnt(0)")
    tagcheck([193, 195], 40, 44, Lm, sleep=0)
    def red8(op, r, t):
        for mod in ("quad_perm:[1,0,3,2]", "quad_perm:[2,3,0,1]", "row_half_mirror"):
            a("s_nop 1")
            a(f"{op}_dpp v{r}, v{r}, v{r} {mod} row_mask:0xf bank_mask:0xf")
    a("v_mov_b32 v40, v192")
    red8("v_max_f32", 40, 41)
    a("v_sub_f32 v41, v192, v40"); a("v_mul_f32 v41, s69, v41"); a("v_exp_f32 v41, v41"); a("s_nop 0")
    a("v_mul_f32 v41, v41, v194")
    a("v_mov_b32 v42, v41")
    red8("v_add_f32", 42, 43)
    a("v_rcp_f32 v42, v42"); a("s_nop 0")
    a("v_mul_f32 v41, v41, v42")
    a("v_and_b32 v9, 31, v1"); a("v_lshlrev_b32 v9, 2, v9"); a(f"v_add_u32 v9, {L_WR}, v9")
    a("ds_write_b32 v9, v41")
    setflag(F_WR)
    a.label("L_kA_dma")
    a("s_setprio 0")
    if vigate is not None: wait_flags4(F_VI, 44, sleep=2)
    for i in range(8):
        a("s_mov_b32 m0, s15"); a("s_add_u32 s15, s15, 1024")
        if not no_w: a(f"buffer_load_dwordx4 v{22 + ((i>>1)&1)}, s[32:35], s14 offen{NT} lds")
        a("s_add_u32 s14, s14, 4096")
    a("s_branch L_roleA")

    a.label("L_kB")
    a("s_setprio 0")
    a("v_lshrrev_b32 v22, 2, v1"); a("v_mul_u32_u24 v22, 3584, v22")
    a("v_lshrrev_b32 v23, 1, v1"); a("v_and_b32 v23, 1, v23"); a("v_lshrrev_b32 v24, 5, v1"); a("v_xor_b32 v23, v23, v24"); a("v_lshlrev_b32 v23, 5, v23"); a("v_add_u32 v22, v22, v23")
    a("v_and_b32 v23, 1, v1"); a("v_lshlrev_b32 v23, 4, v23"); a("v_add_u32 v22, v22, v23")
    a(f"s_mul_i32 s12, s11, {128*3584}"); a("s_lshl_b32 s13, s9, 6"); a("s_add_u32 s12, s12, s13")
    a("s_lshl_b32 s13, s11, 13")
    if L_W: a(f"s_add_u32 s13, s13, {L_W}")
    a("s_and_b32 s10, s11, 1"); a("s_lshl_b32 s10, s10, 7"); a("v_xor_b32 v24, s10, v14")
    a("v_xor_b32 v25, 32, v24"); a("v_xor_b32 v26, 64, v24"); a("v_xor_b32 v27, 0x60, v24")
    a("s_lshl_b32 s14, s9, 15"); a("s_lshl_b32 s15, s11, 13"); a("s_add_u32 s14, s14, s15"); a(f"s_add_u32 s15, s15, {L_W2}")
    wait_flags4(F_O, 44, sleep=2)
    for i in range(8):
        a("s_mov_b32 m0, s13"); a("s_add_u32 s13, s13, 1024")
        if not no_w: a(f"buffer_load_dwordx4 v22, s[36:39], s12 offen{NT} lds")
        a(f"s_add_u32 s12, s12, {16*3584}")
    for i in range(8):
        a("s_mov_b32 m0, s15"); a("s_add_u32 s15, s15, 1024")
        if not no_w: a(f"buffer_load_dwordx4 v{24 + (i&3)}, s[44:47], s14 offen{NT} lds")
        a("s_add_u32 s14, s14, 1024")
    a("s_waitcnt vmcnt(0)")
    setflag(F_W)
    stamp(5)
    a("s_branch L_roleB")

    a.label("L_roleA")
    a("s_lshr_b32 s71, s3, 2")
    a("s_mov_b32 s72, s85")
    a("s_mov_b32 s73, s86")
    a("v_lshrrev_b32 v21, 3, v2"); a("v_lshlrev_b32 v21, 17, v21"); a("v_and_b32 v9, 7, v2"); a("v_lshlrev_b32 v9, 11, v9"); a("v_add_u32 v21, v21, v9")
    a("v_lshlrev_b32 v9, 5, v3"); a("v_add_u32 v21, v21, v9")
    a("s_lshl_b32 s10, s71, 18"); a("s_lshl_b32 s12, s84, 14"); a("s_add_u32 s10, s10, s12"); a("s_lshl_b32 s12, s72, 9"); a("s_add_u32 s10, s10, s12")
    a("s_lshl_b32 s12, s11, 7"); a("s_add_u32 s10, s10, s12"); a(f"s_add_u32 s75, s10, {WS_OP}")
    a("s_cmp_lt_u32 s3, 4"); a("s_cbranch_scc1 L_A_common")
    a("buffer_load_dwordx4 v[192:195], v21, s[56:59], s75 offen sc1")
    a("buffer_load_dwordx4 v[196:199], v21, s[56:59], s75 offen offset:16 sc1")
    a.label("L_A_common")
    a("v_lshrrev_b32 v9, 2, v2"); a("v_lshlrev_b32 v10, 3, v3"); a("v_add_u32 v10, v10, v9"); a("v_lshlrev_b32 v10, 8, v10")
    a("v_and_b32 v44, 3, v2"); a("v_lshlrev_b32 v44, 3, v44"); a("v_add_u32 v10, v10, v44")
    a("v_and_b32 v44, 1, v3"); a("v_lshlrev_b32 v44, 2, v44"); a("v_or_b32 v44, v44, v9"); a("v_lshlrev_b32 v44, 5, v44"); a("v_add_u32 v10, v10, v44")
    a("s_lshl_b32 s10, s11, 13")
    if L_W: a(f"s_add_u32 s10, s10, {L_W}")
    a("v_add_u32 v24, s10, v10")
    for nt in range(1, 8): a(f"v_xor_b32 v{24+nt}, {nt*32}, v24")
    a("v_lshrrev_b32 v9, 1, v3"); a("v_lshlrev_b32 v9, 9, v9"); a("v_and_b32 v44, 1, v3"); a("v_lshlrev_b32 v44, 6, v44"); a("v_add_u32 v9, v9, v44")
    a("v_lshlrev_b32 v44, 2, v2"); a("v_add_u32 v9, v9, v44")
    a("s_lshl_b32 s10, s11, 11"); a("s_lshl_b32 s12, s71, 10"); a("s_add_u32 s10, s10, s12"); a(f"s_add_u32 s10, s10, {L_R1}"); a("v_add_u32 v60, s10, v9")
    a("s_lshl_b32 s10, s3, 8"); a(f"s_add_u32 s10, s10, {L_R1}"); a("v_lshlrev_b32 v9, 2, v1"); a("v_add_u32 v61, s10, v9")
    a("s_lshr_b32 s10, s3, 1"); a("s_lshl_b32 s10, s10, 5"); a("s_lshl_b32 s12, s84, 2"); a("s_add_u32 s10, s10, s12"); a("s_add_u32 s10, s10, s72"); a("s_lshl_b32 s10, s10, 12")
    a("s_lshl_b32 s12, s73, 10"); a("s_add_u32 s10, s10, s12"); a("s_and_b32 s12, s3, 1"); a("s_lshl_b32 s12, s12, 9"); a("s_add_u32 s10, s10, s12"); a(f"s_add_u32 s74, s10, {WS_HP}")
    a("v_mov_b32 v63, s8")
    a("s_mov_b32 s67, 0")
    a("v_lshlrev_b32 v62, 4, v3"); a("s_lshl_b32 s10, s71, 6"); a(f"s_add_u32 s10, s10, {L_WR}"); a("v_add_u32 v62, s10, v62")
    def wr_read():
        L = lab("wr"); a.label(L)
        a(f"ds_read_b32 v40, v7 offset:{F_WR}")
        a("s_waitcnt lgkmcnt(0)")
        a("v_cmp_ne_u32 vcc, 1, v40")
        a(f"s_cbranch_vccnz {L}")
        a("ds_read_b128 v[48:51], v62")
    a("s_cmp_lt_u32 s3, 4"); a("s_cbranch_scc1 L_A_k")
    wait_flag1(F_W, 40)
    for nt in range(8):
        a(f"ds_read_b64_tr_b16 v[{64+4*nt}:{65+4*nt}], v{24+nt}")
        a(f"ds_read_b64_tr_b16 v[{66+4*nt}:{67+4*nt}], v{24+nt} offset:1024")
        if nt == 3: a("s_waitcnt lgkmcnt(0)")
    wr_read()
    Lo = lab("og"); Lo2 = lab("og2")
    stamp(13)
    a(f"s_branch {Lo2}")
    a.label("L_A_k")
    a("s_waitcnt vmcnt(0)")
    setflag(F_W)
    stamp(5)
    a("s_setprio 3")
    for nt in range(8):
        a(f"ds_read_b64_tr_b16 v[{64+4*nt}:{65+4*nt}], v{24+nt}")
        a(f"ds_read_b64_tr_b16 v[{66+4*nt}:{67+4*nt}], v{24+nt} offset:1024")
        if nt == 3: a("s_waitcnt lgkmcnt(0)")
    wr_read()
    wait_flags4(F_O, 40, sleep=1)
    stamp(13)
    a.label(Lo)
    a("buffer_load_dwordx4 v[192:195], v21, s[56:59], s75 offen sc1")
    a("buffer_load_dwordx4 v[196:199], v21, s[56:59], s75 offen offset:16 sc1")
    a.label(Lo2)
    a("s_waitcnt vmcnt(0) lgkmcnt(0)")
    tagcheck([193, 195, 197, 199], 40, 44, Lo, sleep=tsleep)
    stamp(8)
    a("v_mov_b32 v193, v194"); a("v_mov_b32 v194, v196"); a("v_mov_b32 v195, v198")
    a("s_nop 1")
    for nt in range(8):
        a(f"v_mfma_f32_16x16x32_bf16 v[{96+4*nt}:{99+4*nt}], v[192:195], v[{64+4*nt}:{67+4*nt}], 0")
    a("s_nop 0")
    for r in range(4):
        for nt in range(8):
            if r == 0: a(f"v_mul_f32 v{128+nt}, v48, v{96+4*nt}")
            else: a(f"v_fmac_f32 v{128+nt}, v{48+r}, v{96+4*nt+r}")
    for p in range(4): a(f"v_permlane16_swap_b32 v{128+2*p}, v{129+2*p}") if p else (a("s_nop 0"), a(f"v_permlane16_swap_b32 v128, v129"))
    for p in range(4): a(f"v_add_f32 v{128+2*p}, v{128+2*p}, v{129+2*p}")
    stamp(10)
    for p in range(4): a(f"ds_write_b32 v60, v{128+2*p} offset:{p*128}")
    a("s_waitcnt lgkmcnt(0)")
    a("s_barrier")
    stamp(11)
    for kt in range(4): a(f"ds_read_b32 v{40+kt}, v61 offset:{kt*2048}")
    a("s_waitcnt lgkmcnt(0)")
    a("v_add_f32 v40, v40, v41"); a("v_add_f32 v42, v42, v43"); a("v_add_f32 v62, v40, v42")
    a("buffer_store_dwordx2 v[62:63], v13, s[56:59], s74 offen sc1")
    stamp(9)
    a("s_branch L_endrole")

    a.label("L_roleB")
    a("s_setprio 3")
    a("s_add_u32 s96, s8, 1")
    a("v_and_b32 v10, 31, v1"); a("v_lshlrev_b32 v10, 1, v10"); a("s_lshl_b32 s10, s9, 6")
    a("buffer_load_ushort v16, v10, s[40:43], s10 offen")
    a("v_lshrrev_b32 v9, 2, v2"); a("v_lshlrev_b32 v10, 3, v3"); a("v_add_u32 v9, v10, v9")
    a("v_and_b32 v44, 3, v2"); a("v_lshlrev_b32 v44, 3, v44")
    a("v_lshlrev_b32 v10, 6, v9"); a("v_add_u32 v10, v10, v44"); a("v_and_b32 v45, 1, v3"); a("v_lshlrev_b32 v46, 5, v45"); a("v_add_u32 v10, v10, v46")
    a("s_lshl_b32 s10, s3, 12")
    if L_W: a(f"s_add_u32 s10, s10, {L_W}")
    a("v_add_u32 v52, s10, v10"); a("v_xor_b32 v53, 32, v52")
    a("v_lshlrev_b32 v10, 10, v9"); a("v_add_u32 v10, v10, v44")
    a("v_lshrrev_b32 v46, 2, v2"); a("v_lshlrev_b32 v45, 2, v45"); a("v_or_b32 v46, v46, v45"); a("v_lshlrev_b32 v46, 5, v46"); a("v_add_u32 v10, v10, v46")
    a("s_lshl_b32 s10, s3, 7"); a("v_xor_b32 v10, s10, v10"); a(f"v_add_u32 v54, {L_W2}, v10")
    for q in range(1, 4): a(f"v_xor_b32 v{54+q}, {q*32}, v54")
    a("v_and_b32 v58, 3, v2"); a("v_lshlrev_b32 v58, 10, v58"); a("v_lshlrev_b32 v9, 4, v3"); a("v_add_u32 v58, v58, v9")
    a("s_lshl_b32 s10, s3, 7"); a(f"s_add_u32 s10, s10, {L_YB}"); a("v_add_u32 v58, s10, v58")
    a("v_lshlrev_b32 v59, 4, v2"); a("s_lshl_b32 s10, s3, 9"); a(f"s_add_u32 s10, s10, {L_T1}"); a("v_add_u32 v59, s10, v59")
    a("v_and_b32 v60, 31, v1"); a("v_lshlrev_b32 v60, 4, v60"); a("v_lshrrev_b32 v9, 5, v1"); a("v_lshlrev_b32 v9, 11, v9"); a("v_add_u32 v60, v60, v9"); a(f"v_add_u32 v60, {L_T1}, v60")
    a("v_and_b32 v61, 31, v1"); a("v_lshlrev_b32 v61, 1, v61"); a("v_lshrrev_b32 v9, 5, v1"); a("v_lshlrev_b32 v9, 7, v9"); a("v_add_u32 v61, v61, v9")
    a("s_lshl_b32 s10, s3, 8"); a(f"s_add_u32 s10, s10, {L_GB}"); a("v_add_u32 v61, s10, v61")
    a("v_and_b32 v62, 3, v2"); a("v_lshlrev_b32 v62, 6, v62"); a("v_lshlrev_b32 v9, 4, v3"); a("v_add_u32 v62, v62, v9"); a("v_add_u32 v62, s10, v62")
    a("s_lshl_b32 s10, s9, 12"); a("s_lshl_b32 s12, s3, 9"); a("s_add_u32 s10, s10, s12"); a(f"s_add_u32 s72, s10, {WS_GP}")
    for bb in range(1, 4): a(f"s_add_u32 s{72+bb}, s72, {bb*56*4096}")
    for r in range(4): a(f"v_mov_b32 v{113+2*r}, s96")
    a("v_mov_b32 v46, 0x3d372713")
    a("s_lshl_b32 s10, s3, 10"); a(f"s_add_u32 s10, s10, {L_YB}"); a("v_add_u32 v63, s10, v14")
    a("v_lshlrev_b32 v10, 5, v1"); a("s_lshl_b32 s10, s3, 11"); a("s_lshl_b32 s12, s4, 13"); a("s_add_u32 s10, s10, s12"); a(f"s_add_u32 s66, s10, {WS_H}")
    wait_flags4(F_W, 40, sleep=1)
    for kt in range(2):
        for nt in range(2):
            r = 64 + (kt*2+nt)*4
            a(f"ds_read_b64_tr_b16 v[{r}:{r+1}], v{52+nt} offset:{kt*2048}")
            a(f"ds_read_b64_tr_b16 v[{r+2}:{r+3}], v{52+nt} offset:{kt*2048+256}")
    for q in range(4):
        r = 80 + 4*q
        a(f"ds_read_b64_tr_b16 v[{r}:{r+1}], v{54+q}")
        a(f"ds_read_b64_tr_b16 v[{r+2}:{r+3}], v{54+q} offset:4096")
    a("s_waitcnt vmcnt(0) lgkmcnt(0)")
    a("v_lshlrev_b32 v16, 16, v16")
    a("s_cmp_ge_u32 s3, 4"); a("s_cbranch_scc1 L_B_ln_done")
    a("s_mov_b32 s67, 0")
    Lh = lab("hg"); a.label(Lh)
    a("buffer_load_dwordx4 v[192:195], v10, s[56:59], s66 offen sc1")
    a("buffer_load_dwordx4 v[196:199], v10, s[56:59], s66 offen offset:16 sc1")
    a("s_waitcnt vmcnt(0)")
    tagcheck([193, 195, 197, 199], 40, 44, Lh, sleep=tsleep)
    stamp(10)
    for i in range(4):
        a(f"v_lshlrev_b32 v{20+2*i}, 16, v{192+2*i}"); a(f"v_and_b32 v{21+2*i}, s63, v{192+2*i}")
    layernorm8(20, 32)
    a("ds_write_b128 v63, v[40:43]")
    a("s_waitcnt lgkmcnt(0)")
    stamp(12)
    a.label("L_B_ln_done")
    a("s_barrier")
    for kt in range(2): a(f"ds_read_b128 v[{192+4*kt}:{195+4*kt}], v58 offset:{kt*64}")
    a("s_waitcnt lgkmcnt(0)")
    for kt in range(2):
        for nt in range(2):
            r = 64 + (kt*2+nt)*4
            c = "0" if kt == 0 else f"v[{96+4*nt}:{99+4*nt}]"
            a(f"v_mfma_f32_16x16x32_bf16 v[{96+4*nt}:{99+4*nt}], v[{192+4*kt}:{195+4*kt}], v[{r}:{r+3}], {c}")
    a("s_nop 6")
    a("ds_write_b128 v59, v[96:99]")
    a("s_nop 0")
    a("ds_write_b128 v59, v[100:103] offset:256")
    a("s_waitcnt lgkmcnt(0)")
    stamp(13)
    a("s_barrier")
    stamp(14)
    for i in range(4): a(f"ds_read_b128 v[{192+4*i}:{195+4*i}], v60 offset:{i*512}")
    a("s_waitcnt lgkmcnt(0)")
    for c in range(4):
        a(f"v_add_f32 v{192+c}, v{192+c}, v{196+c}"); a(f"v_add_f32 v{200+c}, v{200+c}, v{204+c}")
    for c in range(4): a(f"v_add_f32 v{192+c}, v{192+c}, v{200+c}")
    a("s_nop 0")
    a("v_permlane32_swap_b32 v192, v194"); a("v_permlane32_swap_b32 v193, v195")
    a("v_add_f32 v40, v192, v194"); a("v_add_f32 v41, v193, v195")
    a("v_cvt_pk_bf16_f32 v42, v40, v41"); a("v_lshlrev_b32 v40, 16, v42"); a("v_and_b32 v41, s63, v42")
    a("v_add_f32 v40, v40, v16"); a("v_add_f32 v41, v41, v16")
    a("v_cvt_pk_bf16_f32 v42, v40, v41"); a("v_lshlrev_b32 v40, 16, v42"); a("v_and_b32 v41, s63, v42")
    for c in range(2): a(f"v_mul_f32 v{42+c}, v{40+c}, v{40+c}")
    for c in range(2): a(f"v_fma_f32 v{42+c}, v{42+c}, v46, 1.0")
    for c in range(2): a(f"v_mul_f32 v{42+c}, v{42+c}, v{40+c}")
    for c in range(2): a(f"v_mul_f32 v{42+c}, 0xc0135761, v{42+c}")
    for c in range(2): a(f"v_exp_f32 v{42+c}, v{42+c}")
    a("s_nop 0")
    for c in range(2): a(f"v_add_f32 v{42+c}, 1.0, v{42+c}")
    for c in range(2): a(f"v_rcp_f32 v{42+c}, v{42+c}")
    a("s_nop 0")
    for c in range(2): a(f"v_mul_f32 v{40+c}, v{40+c}, v{42+c}")
    a("v_cvt_pk_bf16_f32 v40, v40, v41")
    stamp(8)
    a("ds_write_b16 v61, v40"); a("ds_write_b16_d16_hi v61, v40 offset:64")
    a("ds_read_b128 v[192:195], v62")
    a("s_waitcnt lgkmcnt(0)")
    for q in range(4):
        a(f"v_mfma_f32_16x16x32_bf16 v[{96+4*q}:{99+4*q}], v[192:195], v[{80+4*q}:{83+4*q}], 0")
    a("s_nop 4")
    for r in range(4): a(f"v_mov_b32 v{112+2*r}, v{96+r}")
    for q in range(1, 4):
        for r in range(4):
            a(f"v_mov_b32_dpp v{112+2*r}, v{96+4*q+r} quad_perm:[0,1,2,3] row_mask:{hex(1<<q)} bank_mask:0xf")
    for r in range(4): a(f"buffer_store_dwordx2 v[{112+2*r}:{113+2*r}], v13, s[56:59], s{72+r} offen sc1")
    stamp(11)
    a("s_branch L_endrole")

    a.label("L_roleC")
    a("s_cmp_lg_u32 s3, 7"); a("s_cbranch_scc1 L_fin")
    a("s_setprio 3")
    a("v_lshlrev_b32 v10, 12, v3"); a("v_lshlrev_b32 v9, 4, v2"); a("v_add_u32 v18, v10, v9")
    a("s_lshl_b32 s10, s76, 17"); a("s_lshl_b32 s12, s62, 3"); a("s_add_u32 s10, s10, s12"); a(f"s_add_u32 s80, s10, {WS_HP}")
    for t in range(1, 8): a(f"s_add_u32 s{80+t}, s80, {t*16384}")
    a("s_lshl_b32 s10, s76, 11"); a("s_lshl_b32 s12, s62, 2"); a("s_add_u32 s10, s10, s12"); a(f"s_add_u32 s72, s10, {WS_H}"); a("s_add_u32 s74, s72, 32768")
    a("v_lshlrev_b32 v17, 3, v2"); a("v_lshlrev_b32 v9, 13, v3"); a("v_add_u32 v17, v17, v9")
    a("s_mov_b32 s67, 0")
    Ls = lab("sg"); a.label(Ls)
    for t in range(8): a(f"buffer_load_dwordx4 v[{64+4*t}:{67+4*t}], v18, s[56:59], s{80+t} offen sc1")
    a("s_waitcnt vmcnt(0)")
    tagcheck([65+2*i for i in range(16)], 40, 44, Ls, sleep=tsleep)
    stamp(12)
    def tree2(n):
        ra = [64 + 4*t for t in range(n)]
        while len(ra) > 1:
            nxt = []
            for i in range(0, len(ra) - 1, 2):
                a(f"v_add_f32 v{ra[i]}, v{ra[i]}, v{ra[i+1]}"); a(f"v_add_f32 v{ra[i]+2}, v{ra[i]+2}, v{ra[i+1]+2}"); nxt.append(ra[i])
            if len(ra) % 2: nxt.append(ra[-1])
            ra = nxt
    def xrow():
        a("s_nop 1")
        a("v_permlane32_swap_b32 v64, v66")
        a("v_add_f32 v64, v64, v66")
        a("v_mov_b32 v66, v64"); a("s_nop 1")
        a("v_permlane16_swap_b32 v64, v66")
        a("v_add_f32 v64, v64, v66")
        a("v_mov_b32 v66, v64"); a("s_nop 1")
        a("v_permlane32_swap_b32 v64, v66")
    tree2(8)
    xrow()
    a("v_cvt_pk_bf16_f32 v40, v64, v66")
    a("v_lshlrev_b32 v43, 16, v12"); a("v_and_b32 v44, s63, v12")
    a("v_lshlrev_b32 v41, 16, v40"); a("v_and_b32 v42, s63, v40")
    a("v_add_f32 v41, v41, v43"); a("v_add_f32 v42, v42, v44")
    a("v_cvt_pk_bf16_f32 v40, v41, v42")
    a("v_mov_b32 v41, v15")
    a("buffer_store_dwordx2 v[40:41], v17, s[56:59], s72 offen sc1")
    a("buffer_store_dwordx2 v[40:41], v17, s[56:59], s74 offen sc1")
    stamp(13)
    a.label("L_endrole")
    a("s_cmp_lg_u32 s3, 7"); a("s_cbranch_scc1 L_fin")
    a("s_setprio 3")
    a("s_add_u32 s96, s8, 1")
    a("v_lshrrev_b32 v10, 2, v1"); a("v_lshlrev_b32 v10, 12, v10"); a("v_and_b32 v9, 3, v1"); a("v_lshlrev_b32 v17, 4, v9"); a("v_add_u32 v18, v10, v17")
    a(f"s_mul_i32 s10, s5, {56*4096}"); a("s_lshl_b32 s12, s95, 3"); a("s_add_u32 s10, s10, s12"); a(f"s_add_u32 s80, s10, {WS_GP}")
    for t in range(1, 4): a(f"s_add_u32 s{80+t}, s80, {t*65536}")
    a("s_lshl_b32 s10, s4, 13"); a("s_lshl_b32 s12, s5, 11"); a("s_add_u32 s10, s10, s12"); a("s_lshl_b32 s12, s95, 2"); a("s_add_u32 s10, s10, s12"); a(f"s_add_u32 s84, s10, {WS_H}")
    a("v_lshlrev_b32 v19, 3, v9")
    a("s_lshl_b32 s10, s5, 10"); a("s_lshl_b32 s12, s95, 1"); a("s_add_u32 s73, s10, s12")
    a("v_lshlrev_b32 v16, 2, v9")
    a("v_mov_b32 v76, 0"); a("v_mov_b32 v77, s96"); a("v_mov_b32 v78, 0"); a("v_mov_b32 v79, s96")
    a("s_mov_b32 s67, 0")
    Lh4 = lab("h4"); a.label(Lh4)
    a("buffer_load_dwordx2 v[20:21], v19, s[56:59], s84 offen sc1")
    a("s_waitcnt vmcnt(0)")
    tagcheck([21], 40, 44, Lh4, sleep=4)
    a("v_lshlrev_b32 v21, 16, v20"); a("v_and_b32 v22, s63, v20")
    a("v_lshlrev_b32 v23, 16, v8"); a("v_and_b32 v24, s63, v8")
    a("s_mov_b32 s67, 0")
    Lg = lab("gg"); a.label(Lg)
    for t in range(3): a(f"buffer_load_dwordx4 v[{64+4*t}:{67+4*t}], v18, s[56:59], s{80+t} offen sc1")
    a("s_mov_b64 s[98:99], exec")
    a("s_mov_b32 exec_hi, 0")
    Lx = lab("x"); a(f"s_cbranch_execz {Lx}")
    a("buffer_load_dwordx4 v[76:79], v18, s[56:59], s83 offen sc1")
    a.label(Lx)
    a("s_mov_b64 exec, s[98:99]")
    a("s_waitcnt vmcnt(0)")
    tagcheck([65+2*i for i in range(8)], 40, 44, Lg, sleep=tsleep, tag="s96")
    stamp(14)
    a("v_add_f32 v64, v64, v68"); a("v_add_f32 v66, v66, v70"); a("v_add_f32 v72, v72, v76"); a("v_add_f32 v74, v74, v78")
    a("v_add_f32 v64, v64, v72"); a("v_add_f32 v66, v66, v74")
    for rot in (4, 8):
        a("s_nop 0")
        a(f"v_add_f32_dpp v64, v64, v64 row_ror:{rot} row_mask:0xf bank_mask:0xf")
        a(f"v_add_f32_dpp v66, v66, v66 row_ror:{rot} row_mask:0xf bank_mask:0xf")
    a("s_nop 1")
    a("v_permlane32_swap_b32 v64, v66")
    a("v_add_f32 v64, v64, v66")
    a("v_mov_b32 v66, v64"); a("s_nop 1")
    a("v_permlane16_swap_b32 v64, v66")
    a("v_add_f32 v64, v64, v66")
    a("v_mov_b32 v66, v64"); a("s_nop 1")
    a("v_permlane32_swap_b32 v64, v66")
    a("v_cvt_pk_bf16_f32 v40, v64, v66")
    a("v_lshlrev_b32 v41, 16, v40"); a("v_and_b32 v42, s63, v40")
    a("v_add_f32 v41, v41, v23"); a("v_add_f32 v42, v42, v24")
    a("v_cvt_pk_bf16_f32 v40, v41, v42")
    a("v_lshlrev_b32 v41, 16, v40"); a("v_and_b32 v42, s63, v40")
    a("v_add_f32 v41, v41, v21"); a("v_add_f32 v42, v42, v22")
    a("v_cvt_pk_bf16_f32 v40, v41, v42")
    a("s_mov_b64 exec, 0xf")
    a(f"buffer_store_dword v40, v16, s[52:55], s73 offen{OUTF}")
    a("s_mov_b64 exec, -1")
    a("s_cmp_lg_u32 s2, 0"); a("s_cbranch_scc1 L_fin")
    a("s_mov_b64 exec, 1")
    a("buffer_store_dword v15, v6, s[56:59], 0 offen sc1")
    a("s_mov_b64 exec, -1")
    a.label("L_fin")
    if stamps == "dbg":
        stamp(15)
        a("s_cmp_lg_u32 s3, 7"); a("s_cbranch_scc1 L_end")
        a("s_load_dwordx2 s[88:89], s[0:1], 88")
        a("s_waitcnt lgkmcnt(0)")
        a("s_mov_b32 s90, 256"); a("s_mov_b32 s91, 0x20000")
        a(f"v_not_b32 v{SB}, v{SB}")
        a("v_mov_b32 v44, 0")
        a("s_mov_b64 exec, 1")
        for k, idx in enumerate((0, 6, 1, 2, 4, 5, 14, 15)):
            a(f"buffer_atomic_umax v{SB+idx}, v44, s[88:91], 0 offen offset:{4*k}")
        a("s_mov_b64 exec, -1")
    elif stamps:
        stamp(15)
        a("s_lshl_b32 s10, s2, 3"); a("s_add_u32 s10, s10, s3"); a("s_lshl_b32 s10, s10, 6"); a(f"s_add_u32 s10, s10, {WS_STAMP}")
        a("v_mov_b32 v44, 0")
        a("s_mov_b64 exec, 1")
        for i in range(4): a(f"buffer_store_dwordx4 v[{SB+4*i}:{SB+3+4*i}], v44, s[56:59], s10 offen offset:{16*i}")
        a("s_mov_b64 exec, -1")
    a.label("L_end")
    a("s_endpgm")
    return a

HDR = """; Fused pre-LN GQA decode attention + channel-MLP block, single persistent launch (256 workgroups x 8 waves).
; @launch grid=(256,1,1) block=(512,1,1) lds={lds}
.amdgcn_target "amdgcn-amd-amdhsa--gfx950"
.text
.globl {name}_kernel
.p2align 8
.type {name}_kernel,@function
{name}_kernel:
"""
FTR = """
.section .rodata,"a"
.p2align 6
.amdhsa_kernel {name}_kernel
  .amdhsa_next_free_vgpr 256
  .amdhsa_next_free_sgpr 102
  .amdhsa_accum_offset 256
  .amdhsa_group_segment_fixed_size 0
  .amdhsa_kernarg_size 104
  .amdhsa_user_sgpr_count 2
  .amdhsa_user_sgpr_kernarg_segment_ptr 1
  .amdhsa_system_sgpr_workgroup_id_x 1
.end_amdhsa_kernel
"""
def build(path, **kw):
    a = gen(**kw)
    probs = check_hazards(a.lines)
    open(path, "w").write(HDR.format(name=NAME, lds=LDS_BYTES) + a.text() + FTR.format(name=NAME))
    return probs

if __name__ == "__main__":
    out = sys.argv[1] if len(sys.argv) > 1 else "k3.s"
    kw = {}
    for arg in sys.argv[2:]:
        if arg == "stamps": kw["stamps"] = True
        elif arg == "dbg": kw["stamps"] = "dbg"
        elif "=" in arg:
            k, v = arg.split("="); kw[k] = eval(v)
    probs = build(out, **kw)
    print("hazards:", len(probs))
```

```python
import sys
from asmlib import Asm, check_hazards

NAME = "sequential_preLN__gqa_block_cached__mixer_channel_mlp__decode"

WS_EPOCH = 0
WS_ML = 0x1000
WS_H  = 0x1E8000
WS_OP = 0x8000
WS_HP = 0x88000
WS_QB = 0x108000
WS_GP = 0x108000
WS_STAMP = 0x400000
L_W = 0
L_W2 = 32768
L_WQ = 65536
L_RED = 81920
L_R1 = 90112
L_YB = 98304
L_QPB = 102400
L_PB = 106496
L_T1 = 110592
L_GB = 114688
L_QL = 116736
L_FLAGS = 117760
L_MLB = 118016
L_WR = 118784
L_WQ2 = 122880
L_QPB2 = 139264
LDS_BYTES = 122880
F_Y, F_QP, F_Q, F_ML, F_P, F_W, F_O, F_WR, F_Q2, F_VI = 0, 16, 32, 48, 64, 80, 96, 112, 128, 144

LOG2E = 0x3fb8aa3b
SCALE = 0x3db504f3
EPS = 0x3727c5ac
TAGC = 0x9E3779B9
POLL_MAX = 20000

def gen(stamps=False, outf='', psleep=2, tsleep=1, qearly=6, mlsleep=8, rot=True, no_w=False, no_pwait=False, no_q=False, khold=0, lanemask=True, delay=None, NA=(20,20,20,20,14,12,12,10), NB=(7,7,7,7,7,7,7,7), NC=(5,5,5,5,11,11,11,11), QL=None, QH=4, vigate=31, vearly=0):
    a = Asm()
    NT = " nt"
    OUTF = outf
    uid = [0]
    def lab(p):
        uid[0] += 1
        return f"L_{p}_{uid[0]}"
    SB = 240
    def stamp(idx):
        if stamps:
            a("s_memrealtime s[78:79]")
            a("s_waitcnt lgkmcnt(0)")
            a(f"v_mov_b32 v{SB+idx}, s78")
    def allreduce(op, rs, tmps):
        k = len(rs)
        for rot in (8, 4, 2, 1):
            if k == 1: a("s_nop 1")
            elif k == 2: a("s_nop 0")
            for r in rs:
                a(f"{op}_dpp v{r}, v{r}, v{r} row_ror:{rot} row_mask:0xf bank_mask:0xf")
        for sw in ("v_permlane16_swap_b32", "v_permlane32_swap_b32"):
            for r, t in zip(rs, tmps): a(f"v_mov_b32 v{t}, v{r}")
            a("s_nop 1" if k == 1 else "s_nop 0")
            if k == 2: pass
            for r, t in zip(rs, tmps): a(f"{sw} v{r}, v{t}")
            for r, t in zip(rs, tmps): a(f"{op} v{r}, v{r}, v{t}")
    def rb(dst, src):
        a(f"v_cvt_pk_bf16_f32 v{dst}, v{src}, v{src}")
        a(f"v_lshlrev_b32 v{dst}, 16, v{dst}")
    def setflag(off): a(f"ds_write_b32 v11, v0 offset:{off}")
    def wait_flags4(off, tmp, sleep=0):
        L = lab("wf")
        a.label(L)
        if sleep: a(f"s_sleep {sleep}")
        a(f"ds_read_b128 v[{tmp}:{tmp+3}], v7 offset:{off}")
        a("s_waitcnt lgkmcnt(0)")
        a(f"v_and_b32 v{tmp}, v{tmp}, v{tmp+1}"); a(f"v_and_b32 v{tmp+2}, v{tmp+2}, v{tmp+3}")
        a(f"v_and_b32 v{tmp}, v{tmp}, v{tmp+2}")
        a(f"v_cmp_ne_u32 vcc, 1, v{tmp}")
        a(f"s_cbranch_vccnz {L}")
    def wait_flag1(off, tmp, sleep=0):
        L = lab("wf")
        a.label(L)
        if sleep: a(f"s_sleep {sleep}")
        a(f"ds_read_b32 v{tmp}, v11 offset:{off}")
        a("s_waitcnt lgkmcnt(0)")
        a(f"v_cmp_ne_u32 vcc, 1, v{tmp}")
        a(f"s_cbranch_vccnz {L}")
    def tagcheck(tagregs, acc, t1, retry_label, cnt=67, sleep=0, tag="s8"):
        first = True; i = 0
        while i < len(tagregs):
            if i + 1 < len(tagregs):
                a(f"v_xor_b32 v{t1}, {tag}, v{tagregs[i]}")
                if first:
                    a(f"v_xor_b32 v{acc}, {tag}, v{tagregs[i+1]}")
                    a(f"v_or_b32 v{acc}, v{acc}, v{t1}")
                else:
                    a(f"v_xor_b32 v{t1+1}, {tag}, v{tagregs[i+1]}")
                    a(f"v_or3_b32 v{acc}, v{acc}, v{t1}, v{t1+1}")
                i += 2
            else:
                if first: a(f"v_xor_b32 v{acc}, {tag}, v{tagregs[i]}")
                else:
                    a(f"v_xor_b32 v{t1}, {tag}, v{tagregs[i]}")
                    a(f"v_or_b32 v{acc}, v{acc}, v{t1}")
                i += 1
            first = False
        a(f"v_cmp_ne_u32 vcc, 0, v{acc}")
        done = lab("pd")
        a(f"s_cbranch_vccz {done}")
        if lanemask: a("s_mov_b64 exec, vcc")
        if sleep: a(f"s_sleep {sleep}")
        a(f"s_add_u32 s{cnt}, s{cnt}, 1")
        a(f"s_cmp_lt_u32 s{cnt}, {POLL_MAX}")
        a(f"s_cbranch_scc1 {retry_label}")
        a.label(done)
        if lanemask: a("s_mov_b64 exec, -1")
    def layernorm8(e, t):
        a(f"v_readfirstlane_b32 s12, v{e}")
        a("s_nop 1")
        for i in range(8): a(f"v_subrev_f32 v{t+4+(i&3)+ (0)}, s12, v{e+i}") if False else None
        a(f"v_subrev_f32 v{t+2}, s12, v{e}"); a(f"v_subrev_f32 v{t+3}, s12, v{e+1}")
        a(f"v_add_f32 v{t}, v{t+2}, v{t+3}"); a(f"v_mul_f32 v{t+1}, v{t+2}, v{t+2}"); a(f"v_fmac_f32 v{t+1}, v{t+3}, v{t+3}")
        for i in range(2, 8, 2):
            a(f"v_subrev_f32 v{t+2}, s12, v{e+i}"); a(f"v_subrev_f32 v{t+3}, s12, v{e+i+1}")
            a(f"v_add_f32 v{t}, v{t}, v{t+2}"); a(f"v_fmac_f32 v{t+1}, v{t+2}, v{t+2}")
            a(f"v_add_f32 v{t}, v{t}, v{t+3}"); a(f"v_fmac_f32 v{t+1}, v{t+3}, v{t+3}")
        allreduce("v_add_f32", [t, t+1], [t+2, t+3])
        a(f"v_mul_f32 v{t}, 0x3b000000, v{t}")
        a(f"v_mul_f32 v{t+1}, 0x3b000000, v{t+1}")
        a(f"v_fma_f32 v{t+1}, -v{t}, v{t}, v{t+1}")
        a(f"v_add_f32 v{t}, s12, v{t}")
        a(f"v_max_f32 v{t+1}, 0, v{t+1}")
        a(f"v_cvt_pk_bf16_f32 v{t+2}, v{t}, v{t+1}")
        a(f"v_and_b32 v{t+1}, s63, v{t+2}")
        a(f"v_lshlrev_b32 v{t}, 16, v{t+2}")
        a(f"v_add_f32 v{t+1}, {EPS}, v{t+1}")
        for i in range(4): a(f"v_sub_f32 v{e+i}, v{e+i}, v{t}")
        rb(t+1, t+1)
        a(f"v_sqrt_f32 v{t+1}, v{t+1}")
        for i in range(4, 8): a(f"v_sub_f32 v{e+i}, v{e+i}, v{t}")
        rb(t+1, t+1)
        a(f"v_rcp_f32 v{t+1}, v{t+1}")
        for i in range(4): a(f"v_cvt_pk_bf16_f32 v{t+8+i}, v{e+2*i}, v{e+2*i+1}")
        for i in range(4):
            a(f"v_lshlrev_b32 v{e+2*i}, 16, v{t+8+i}"); a(f"v_and_b32 v{e+2*i+1}, s63, v{t+8+i}")
        for i in range(8): a(f"v_mul_f32 v{e+i}, v{e+i}, v{t+1}")
        for i in range(4): a(f"v_cvt_pk_bf16_f32 v{t+8+i}, v{e+2*i}, v{e+2*i+1}")
    def kvstep():
        a("s_add_u32 s83, s83, 4096"); a("s_and_b32 s83, s83, 0x7fff"); a("s_add_u32 s65, s64, s83")
    def role_setup():
        assert sum(NA) == 128 and sum(NB) == 56 and sum(NC) == 64 and all(x + y + z <= 32 for x, y, z in zip(NA, NB, NC))
        def pack(v): return sum(x << (8*i) for i, x in enumerate(v))
        def pre(v): return [sum(v[:i]) for i in range(8)]
        a("s_lshl_b32 s87, s4, 3")
        def look(dst, v):
            p = pack(v)
            a(f"s_mov_b32 s98, {p & 0xffffffff}"); a(f"s_mov_b32 s99, {p >> 32}")
            a("s_lshr_b64 s[98:99], s[98:99], s87"); a(f"s_and_b32 s{dst}, s98, 0xff")
        look(10, NA); look(12, NB); look(13, NC)
        look(14, pre(NA)); a("s_add_u32 s15, s14, s7")
        look(14, pre(NB)); a("s_sub_u32 s10, s7, s10"); a("s_add_u32 s9, s14, s10")
        a("s_mov_b32 s97, 3")
        a("s_sub_u32 s76, s10, s12")
        a("s_cmp_lt_u32 s76, s13"); a("s_cselect_b32 s97, 2, s97")
        a("s_cmp_lt_u32 s10, s12"); a("s_cselect_b32 s97, 1, s97")
        a("s_cmp_gt_u32 s10, s7"); a("s_cselect_b32 s97, 0, s97")
        look(14, pre(NC)); a("s_add_u32 s13, s14, s76")
        a("s_lshr_b32 s84, s15, 4"); a("s_and_b32 s84, s84, 7")
        a("s_lshr_b32 s85, s15, 2"); a("s_and_b32 s85, s85, 3")
        a("s_and_b32 s86, s15, 3")
        a("s_lshr_b32 s76, s13, 4"); a("s_and_b32 s76, s76, 3")
        a("s_and_b32 s10, s13, 15"); a("s_lshl_b32 s62, s10, 5")
    def role_branch(la, lb, lc):
        a("s_cmp_eq_u32 s97, 0"); a(f"s_cbranch_scc1 {la}")
        a("s_cmp_eq_u32 s97, 1"); a(f"s_cbranch_scc1 {lb}")
        if lc: a("s_cmp_eq_u32 s97, 2"); a(f"s_cbranch_scc1 {lc}")
        a("s_branch L_endrole" if lc else "s_branch L_fin")
    def srd(sr, sz):
        a(f"s_mov_b32 s{sr+2}, {sz}"); a(f"s_mov_b32 s{sr+3}, 0x20000")
    SZ = {16: 4096, 20: 33554432, 24: 33554432, 28: 4194304, 32: 4194304, 36: 1835008, 40: 3584, 44: 1835008, 48: 1024, 52: 4096, 56: 268435456}

    if stamps: a("s_memrealtime s[78:79]")
    for (sr, off) in ((56, 96), (20, 8), (16, 0), (28, 24), (24, 16), (32, 32), (36, 48), (40, 56), (44, 64), (48, 72), (52, 80)):
        a(f"s_load_dwordx2 s[{sr}:{sr+1}], s[0:1], {off}")
    a("s_cmp_ge_u32 s2, 256")
    a("s_cbranch_scc1 L_end")
    a("v_lshrrev_b32 v4, 6, v0")
    a("v_and_b32 v1, 63, v0")
    a("v_readfirstlane_b32 s3, v4")
    a("v_and_b32 v2, 15, v1")
    a("v_lshrrev_b32 v3, 4, v1")
    a("s_and_b32 s4, s2, 7")
    a("s_lshr_b32 s7, s2, 3")
    a("s_lshr_b32 s5, s7, 3")
    a("s_and_b32 s6, s7, 7")
    if delay:
        if delay[0] >= 0:
            a(f"s_cmp_lg_u32 s4, {delay[0]}"); a("s_cbranch_scc1 L_nodelay")
        else:
            a(f"s_cmp_eq_u32 s4, {-delay[0]-1}"); a("s_cbranch_scc1 L_nodelay")
        a("s_memrealtime s[78:79]"); a("s_waitcnt lgkmcnt(0)"); a(f"s_add_u32 s77, s78, {delay[1]}")
        a.label("L_dl"); a("s_memrealtime s[78:79]"); a("s_waitcnt lgkmcnt(0)"); a("s_cmp_lt_u32 s78, s77"); a("s_cbranch_scc1 L_dl")
        a.label("L_nodelay")
    srd(56, SZ[56]); srd(20, SZ[20]); srd(16, SZ[16]); srd(28, SZ[28])
    a("s_and_b32 s11, s3, 3")
    a("s_lshl_b32 s70, s5, 3"); a("s_add_u32 s70, s70, s4")
    a("s_lshl_b32 s64, s70, 20"); a("s_lshl_b32 s10, s6, 17"); a("s_add_u32 s64, s64, s10")
    a("s_lshl_b32 s10, s11, 15"); a("s_add_u32 s64, s64, s10")
    a("s_lshl_b32 s83, s5, 13") if rot else a("s_mov_b32 s83, 0")
    a("s_add_u32 s65, s64, s83")
    a("v_mov_b32 v6, 0")
    a("v_lshlrev_b32 v14, 4, v1")
    a("s_cmp_ge_u32 s3, 4")
    a("s_cbranch_scc1 L_v1")
    a("v_lshlrev_b32 v47, 8, v2"); a("v_lshlrev_b32 v10, 4, v3"); a("v_add_u32 v47, v47, v10")
    a("s_lshl_b32 s10, s4, 2"); a("s_add_u32 s10, s10, s5"); a("s_lshl_b32 s10, s10, 14"); a("s_lshl_b32 s12, s11, 10"); a("s_add_u32 s10, s10, s12"); a(f"s_add_u32 s66, s10, {WS_QB}")
    for k in range(1, 4): a(f"s_add_u32 s{71+k}, s66, {k*4096}")
    a("s_setprio 2")
    a("s_waitcnt lgkmcnt(0)")
    a("buffer_load_dword v5, v6, s[56:59], 0 offen sc1")
    def qloads():
        for k in range(4):
            a(f"buffer_load_dwordx4 v[{16+4*k}:{19+4*k}], v14, s[56:59], s{66 if k == 0 else 71+k} offen sc1")
    for t in range(8):
        for i in range(4):
            r = 64 + 16*t + 4*i
            a(f"buffer_load_dwordx4 v[{r}:{r+3}], v47, s[20:23], s65 offen offset:{i*64}{NT}")
        if t < 7: kvstep()
        if t == 1:
            a("v_lshlrev_b32 v9, 2, v1"); a(f"v_add_u32 v9, {L_FLAGS}, v9"); a("ds_write_b32 v9, v6"); a("v_mov_b32 v0, 1")
            a("s_waitcnt lgkmcnt(0)"); a("s_barrier")
        if t == qearly - 1: qloads()
    a("s_branch L_k2")
    a.label("L_v1")
    a("v_lshrrev_b32 v10, 3, v1"); a("v_lshlrev_b32 v10, 13, v10"); a("v_and_b32 v9, 7, v1"); a("v_lshlrev_b32 v9, 4, v9"); a("v_add_u32 v10, v10, v9")
    a("s_lshl_b32 s13, s5, 20"); a("s_lshl_b32 s12, s11, 18"); a("s_add_u32 s13, s13, s12")
    a("s_lshl_b32 s12, s4, 10"); a("s_add_u32 s13, s13, s12"); a("s_lshl_b32 s12, s6, 7"); a("s_add_u32 s13, s13, s12")
    a("s_lshl_b32 s12, s11, 12"); a(f"s_add_u32 s12, s12, {L_WQ}")
    a("s_lshl_b32 s10, s11, 10")
    a("s_setprio 3")
    a("s_waitcnt lgkmcnt(0)")
    a("buffer_load_dword v5, v6, s[56:59], 0 offen sc1")
    if QL is not None:
        a(f"s_cmp_eq_u32 s4, {QL}"); a("s_cbranch_scc1 L_v_noq1")
    a("buffer_load_dwordx4 v[16:19], v14, s[16:19], s10 offen")
    a("s_mov_b32 s14, s13")
    for i in range(4):
        a("s_mov_b32 m0, s12"); a("s_add_u32 s12, s12, 1024")
        a(f"buffer_load_dwordx4 v10, s[28:31], s13 offen{NT} lds"); a("s_add_u32 s13, s13, 0x10000")
    if QL is not None:
        a(f"s_cmp_lg_u32 s4, {QH}"); a("s_cbranch_scc1 L_v_noq1")
        a(f"s_add_u32 s14, s14, {((QL - QH) * 1024) & 0xffffffff}")
        a("s_lshl_b32 s12, s11, 12"); a(f"s_add_u32 s12, s12, {L_WQ2}")
        for i in range(4):
            a("s_mov_b32 m0, s12"); a("s_add_u32 s12, s12, 1024")
            a(f"buffer_load_dwordx4 v10, s[28:31], s14 offen{NT} lds"); a("s_add_u32 s14, s14, 0x10000")
        a.label("L_v_noq1")
    a("v_lshlrev_b32 v9, 2, v1"); a(f"v_add_u32 v9, {L_FLAGS}, v9"); a("ds_write_b32 v9, v6"); a("v_mov_b32 v0, 1")
    a("s_waitcnt lgkmcnt(0)"); a("s_barrier")
    srd(24, SZ[24])
    for k in range(vearly):
        r = 64 + 4*k
        a(f"buffer_load_dwordx4 v[{r}:{r+3}], v14, s[24:27], s65 offen offset:{(k%4)*1024}{NT}")
        if k % 4 == 3: kvstep()

    if stamps:
        a("s_waitcnt lgkmcnt(0)")
        for i in range(16): a(f"v_mov_b32 v{SB+i}, 0")
        a(f"v_mov_b32 v{SB}, s78")
    for sr in (24, 32, 36, 40, 44, 48, 52): srd(sr, SZ[sr])
    role_setup()
    a("s_mov_b32 s60, 0x05040100"); a("s_mov_b32 s61, 0x07060302"); a("s_mov_b32 s63, 0xffff0000")
    a(f"v_mov_b32 v7, {L_FLAGS}"); a("s_lshl_b32 s10, s11, 2"); a("v_add_u32 v11, s10, v7")
    a("v_lshlrev_b32 v13, 3, v1")
    a("v_lshrrev_b32 v9, 2, v2"); a("v_lshlrev_b32 v10, 3, v3"); a("v_add_u32 v9, v9, v10"); a("v_lshlrev_b32 v44, 7, v9")
    a("v_and_b32 v10, 3, v2"); a("v_lshlrev_b32 v10, 3, v10"); a("v_add_u32 v44, v44, v10")
    a("s_lshl_b32 s10, s11, 12"); a(f"s_add_u32 s10, s10, {L_WQ}"); a("v_add_u32 v44, s10, v44"); a("v_mov_b32 v48, v44")
    a("v_and_b32 v45, 3, v2"); a("v_lshlrev_b32 v45, 10, v45"); a("v_lshlrev_b32 v46, 4, v3"); a("v_add_u32 v45, v45, v46")
    a("s_lshl_b32 s10, s5, 8"); a("s_lshl_b32 s12, s11, 6"); a("s_add_u32 s10, s10, s12"); a(f"s_add_u32 s10, s10, {L_YB}"); a("v_add_u32 v45, s10, v45")
    a("v_lshlrev_b32 v46, 4, v2"); a("s_lshl_b32 s10, s11, 10"); a(f"s_add_u32 s10, s10, {L_QPB}"); a("v_add_u32 v46, s10, v46")
    a("s_lshl_b32 s10, s11, 2"); a(f"s_add_u32 s10, s10, {L_QPB}"); a("v_add_u32 v47, s10, v14")
    a("s_lshl_b32 s10, s11, 10"); a(f"s_add_u32 s10, s10, {L_YB}"); a("v_add_u32 v9, s10, v14")
    a("s_lshl_b32 s10, s4, 2"); a("s_add_u32 s10, s10, s11"); a("s_lshl_b32 s10, s10, 2"); a("s_add_u32 s10, s10, s5"); a("s_lshl_b32 s10, s10, 12")
    a("s_lshl_b32 s12, s6, 9"); a("s_add_u32 s10, s10, s12"); a(f"s_add_u32 s66, s10, {WS_QB}")
    if QL is not None:
        a(f"s_cmp_eq_u32 s4, {QL}"); a("s_cbranch_scc1 L_v_noq2")
        a(f"s_cmp_eq_u32 s4, {QH}"); a("s_cbranch_scc1 L_v_w8")
        a(f"s_waitcnt vmcnt({4+vearly})"); a("s_branch L_v_w")
        a.label("L_v_w8"); a(f"s_waitcnt vmcnt({8+vearly})"); a.label("L_v_w")
    else:
        a(f"s_waitcnt vmcnt({4+vearly})")
    stamp(6)
    a("v_readfirstlane_b32 s8, v5")
    for i in range(4):
        a(f"v_lshlrev_b32 v{20+2*i}, 16, v{16+i}"); a(f"v_and_b32 v{21+2*i}, s63, v{16+i}")
    a(f"s_add_u32 s8, s8, {TAGC}")
    a("v_mov_b32 v15, s8")
    layernorm8(20, 32)
    a("ds_write_b128 v9, v[40:43]")
    setflag(F_Y)
    wait_flags4(F_Y, 40)
    a("ds_read_b128 v[192:195], v45")
    if QL is not None:
        a(f"s_cmp_eq_u32 s4, {QH}"); a("s_cbranch_scc1 L_v_w4")
        a(f"s_waitcnt vmcnt({vearly})"); a("s_branch L_v_w0")
        a.label("L_v_w4"); a(f"s_waitcnt vmcnt({4+vearly})"); a.label("L_v_w0")
    else:
        a(f"s_waitcnt vmcnt({vearly})")
    stamp(7)
    for nt in range(4):
        a(f"ds_read_b64_tr_b16 v[{196+4*nt}:{197+4*nt}], v44 offset:{nt*32}")
        a(f"ds_read_b64_tr_b16 v[{198+4*nt}:{199+4*nt}], v44 offset:{nt*32+512}")
    a("s_waitcnt lgkmcnt(0)")
    for nt in range(4):
        a(f"v_mfma_f32_16x16x32_bf16 v[{212+4*nt}:{215+4*nt}], v[192:195], v[{196+4*nt}:{199+4*nt}], 0")
    a("v_mov_b32 v45, s8")
    a("s_nop 3")
    for nt in range(4): a(f"ds_write_b128 v46, v[{212+4*nt}:{215+4*nt}] offset:{nt*256}")
    setflag(F_QP)
    wait_flags4(F_QP, 40)
    for w in range(4): a(f"ds_read_b32 v{40+w}, v47 offset:{w*1024}")
    a("s_waitcnt lgkmcnt(0)")
    a("v_add_f32 v40, v40, v41"); a("v_add_f32 v42, v42, v43"); a("v_add_f32 v44, v40, v42")
    a("buffer_store_dwordx2 v[44:45], v13, s[56:59], s66 offen sc1")
    if QL is not None:
        a(f"s_cmp_lg_u32 s4, {QH}"); a("s_cbranch_scc1 L_v_q_done")
        a(f"v_add_u32 v44, {L_WQ2 - L_WQ}, v48")
        a(f"s_waitcnt vmcnt({1+vearly})")
        for nt in range(4):
            a(f"ds_read_b64_tr_b16 v[{196+4*nt}:{197+4*nt}], v44 offset:{nt*32}")
            a(f"ds_read_b64_tr_b16 v[{198+4*nt}:{199+4*nt}], v44 offset:{nt*32+512}")
        a(f"v_add_u32 v46, {L_QPB2 - L_QPB}, v46"); a(f"v_add_u32 v47, {L_QPB2 - L_QPB}, v47")
        a("s_waitcnt lgkmcnt(0)")
        for nt in range(4):
            a(f"v_mfma_f32_16x16x32_bf16 v[{212+4*nt}:{215+4*nt}], v[192:195], v[{196+4*nt}:{199+4*nt}], 0")
        a(f"s_add_u32 s66, s66, {((QL - QH) * 65536) & 0xffffffff}")
        a("s_nop 6")
        for nt in range(4): a(f"ds_write_b128 v46, v[{212+4*nt}:{215+4*nt}] offset:{nt*256}")
        setflag(F_Q2)
        wait_flags4(F_Q2, 40)
        for w in range(4): a(f"ds_read_b32 v{40+w}, v47 offset:{w*1024}")
        a("s_waitcnt lgkmcnt(0)")
        a("v_add_f32 v40, v40, v41"); a("v_add_f32 v42, v42, v43"); a("v_add_f32 v44, v40, v42")
        a("buffer_store_dwordx2 v[44:45], v13, s[56:59], s66 offen sc1")
        a("s_branch L_v_q_done")
        a.label("L_v_noq2")
        a(f"s_waitcnt vmcnt({vearly})")
        a("v_readfirstlane_b32 s8, v5")
        a("s_nop 1")
        a(f"s_add_u32 s8, s8, {TAGC}")
        a("v_mov_b32 v15, s8")
        a.label("L_v_q_done")
    a("s_setprio 1")
    stamp(1)
    for k in range(vearly, 32):
        r = 64 + 4*k
        a(f"buffer_load_dwordx4 v[{r}:{r+3}], v14, s[24:27], s65 offen offset:{(k%4)*1024}{NT}")
        if k % 4 == 3 and k < 31: kvstep()
        if vigate is not None and k == vigate: setflag(F_VI)
    stamp(2)
    a("v_lshlrev_b32 v10, 2, v2")
    a("s_lshl_b32 s10, s76, 10"); a("s_lshl_b32 s12, s62, 1"); a("s_add_u32 s10, s10, s12")
    a("buffer_load_dword v12, v10, s[16:19], s10 offen")
    a("s_lshl_b32 s95, s4, 3"); a("s_add_u32 s95, s95, s6"); a("s_lshl_b32 s95, s95, 3")
    a("v_and_b32 v9, 3, v1"); a("v_lshlrev_b32 v9, 2, v9"); a("s_lshl_b32 s12, s95, 1")
    a("buffer_load_dword v8, v9, s[48:51], s12 offen")
    a("buffer_load_dword v4, v9, s[52:55], s12 offen")
    NSM = 3
    a("v_lshlrev_b32 v20, 9, v3"); a("v_lshlrev_b32 v9, 5, v2"); a("v_add_u32 v20, v20, v9")
    a("s_lshl_b32 s10, s11, 11"); a(f"s_add_u32 s10, s10, {L_RED}"); a("v_add_u32 v20, s10, v20")
    a("s_lshl_b32 s10, s11, 9"); a(f"s_add_u32 s10, s10, {L_RED}"); a("v_add_u32 v21, s10, v13")
    a("s_lshl_b32 s10, s70, 3"); a("s_add_u32 s10, s10, s6"); a("s_lshl_b32 s10, s10, 11"); a("s_lshl_b32 s12, s11, 9"); a("s_add_u32 s10, s10, s12"); a(f"s_add_u32 s66, s10, {WS_OP}")
    a("v_lshrrev_b32 v10, 2, v2"); a("v_lshlrev_b32 v10, 6, v10"); a("v_lshlrev_b32 v9, 4, v3"); a("v_add_u32 v10, v10, v9")
    a("s_lshl_b32 s10, s11, 10"); a(f"s_add_u32 s10, s10, {L_PB}"); a("v_add_u32 v10, s10, v10")
    if not no_pwait: wait_flag1(F_P, 40, sleep=1)
    PF = 224
    for T in range(4): a(f"ds_read_b128 v[{PF+4*T}:{PF+3+4*T}], v10 offset:{T*256}")
    stamp(3)
    def perms(T, dst, ulist):
        raw = 64 + 32*T
        for u in ulist:
            for jj in range(4):
                s1 = raw + 4*(2*u) + jj; s0 = raw + 4*(2*u+1) + jj
                a(f"v_perm_b32 v{dst + 4*(2*jj) + u}, v{s0}, v{s1}, s60")
                a(f"v_perm_b32 v{dst + 4*(2*jj+1) + u}, v{s0}, v{s1}, s61")
    ACC = 32
    def mfmas(T, src, js):
        for j in js:
            c = "0" if T == 0 else f"v[{ACC+4*j}:{ACC+4*j+3}]"
            a(f"v_mfma_f32_16x16x32_bf16 v[{ACC+4*j}:{ACC+4*j+3}], v[{PF+4*T}:{PF+3+4*T}], v[{src+4*j}:{src+4*j+3}], {c}")
    F = [192, 64, 96, 128]
    def after(k): return min(63, (31 - k) + NSM)
    a(f"s_waitcnt vmcnt({after(7)})")
    perms(0, F[0], range(4))
    a(f"s_waitcnt vmcnt({after(15)}) lgkmcnt(0)")
    for u in range(4):
        perms(1, F[1], [u]); mfmas(0, F[0], [2*u, 2*u+1])
    a(f"s_waitcnt vmcnt({after(23)})")
    for u in range(4):
        perms(2, F[2], [u]); mfmas(1, F[1], [2*u, 2*u+1])
    mfmas(2, F[2], range(4))
    for u in range(4):
        a(f"s_waitcnt vmcnt({after(24+2*u+1)})")
        perms(3, F[3], [u])
        mfmas(2, F[2], [4+u])
    a("s_nop 0")
    mfmas(3, F[3], range(8))
    stamp(4)
    a("v_mov_b32 v17, s8")
    a("s_nop 6")
    for j in range(0, 8, 2):
        a(f"ds_write2_b32 v20, v{ACC+4*j}, v{ACC+4*(j+1)} offset0:{j} offset1:{j+1}")
    setflag(F_O)
    wait_flags4(F_O, 24)
    for w in range(4): a(f"ds_read_b64 v[{24+2*w}:{25+2*w}], v21 offset:{w*2048}")
    a("s_waitcnt lgkmcnt(0)")
    for c in range(2):
        a(f"v_add_f32 v{24+c}, v{24+c}, v{26+c}"); a(f"v_add_f32 v{28+c}, v{28+c}, v{30+c}")
    for c in range(2): a(f"v_add_f32 v{24+c}, v{24+c}, v{28+c}")
    a("v_cvt_pk_bf16_f32 v16, v24, v25")
    a("buffer_store_dwordx2 v[16:17], v13, s[56:59], s66 offen sc1")
    stamp(5)
    a("s_setprio 3")
    a(f"s_mov_b32 s69, {LOG2E}")
    role_branch("L_roleA", "L_roleB", "L_roleC")

    a.label("L_k2")
    if stamps:
        a("s_waitcnt lgkmcnt(0)")
        for i in range(16): a(f"v_mov_b32 v{SB+i}, 0")
        a(f"v_mov_b32 v{SB}, s78")
    stamp(2)
    if stamps:
        a("s_getreg_b32 s12, hwreg(HW_REG_HW_ID)"); a(f"v_mov_b32 v{SB+6}, s12")
        a("s_getreg_b32 s12, hwreg(HW_REG_XCC_ID)"); a("s_add_u32 s12, s12, 1"); a(f"v_mov_b32 v{SB+7}, s12")
    for sr in (24, 32, 36, 40, 44, 48, 52): srd(sr, SZ[sr])
    role_setup()
    a("s_mov_b32 s63, 0xffff0000")
    a(f"v_mov_b32 v7, {L_FLAGS}"); a("s_lshl_b32 s10, s11, 2"); a("v_add_u32 v11, s10, v7")
    a("v_lshlrev_b32 v13, 3, v1")
    a(f"s_waitcnt vmcnt({(8 - qearly) * 4})")
    a("v_readfirstlane_b32 s8, v5")
    a("s_mov_b32 s67, 0")
    a(f"s_add_u32 s8, s8, {TAGC}")
    a("v_mov_b32 v15, s8")
    Lq = lab("qg"); Lq2 = lab("qg2")
    a(f"s_branch {Lq2}")
    a.label(Lq)
    qloads()
    a("s_waitcnt vmcnt(0)")
    a.label(Lq2)
    tagcheck([17+2*i for i in range(8)], 40, 44, Lq, sleep=psleep)
    if stamps: a(f"v_mov_b32 v{SB+1}, s67")
    a("v_add_f32 v16, v16, v20"); a("v_add_f32 v24, v24, v28"); a("v_add_f32 v18, v18, v22"); a("v_add_f32 v26, v26, v30")
    a("v_add_f32 v16, v16, v24"); a("v_add_f32 v18, v18, v26")
    a("v_cvt_pk_bf16_f32 v40, v16, v18")
    a("s_lshl_b32 s10, s11, 8"); a(f"s_add_u32 s10, s10, {L_QL}")
    a("v_lshlrev_b32 v10, 2, v1"); a("v_add_u32 v10, s10, v10")
    a("ds_write_b32 v10, v40")
    setflag(F_Q)
    stamp(3)
    a("v_and_b32 v10, 3, v2"); a("v_lshlrev_b32 v10, 8, v10"); a("v_lshlrev_b32 v44, 4, v3"); a("v_add_u32 v10, v10, v44")
    a(f"v_add_u32 v10, {L_QL}, v10")
    wait_flags4(F_Q, 40)
    for i in range(4): a(f"ds_read_b128 v[{16+4*i}:{19+4*i}], v10 offset:{i*64}")
    a("s_waitcnt lgkmcnt(0)")
    for t in range(8):
        if t >= qearly: a(f"s_waitcnt vmcnt({(7-t)*4})")
        for i in range(4):
            r = 64 + 16*t + 4*i
            c = "0" if i == 0 else f"v[{32+4*t}:{35+4*t}]"
            a(f"v_mfma_f32_16x16x32_bf16 v[{32+4*t}:{35+4*t}], v[{16+4*i}:{19+4*i}], v[{r}:{r+3}], {c}")
    a(f"s_mov_b32 s68, {SCALE}"); a(f"s_mov_b32 s69, {LOG2E}")
    a("s_nop 5")
    for aa in range(2):
        for q in range(1, 4):
            for h in range(4):
                a(f"v_mov_b32_dpp v{32+16*aa+h}, v{32+16*aa+4*q+h} quad_perm:[0,1,2,3] row_mask:{hex(1<<q)} bank_mask:0xf")
    S = [[32+16*aa+h for h in range(4)] for aa in range(2)]
    for rnd in range(2):
        for aa in range(2):
            for hp in range(2): a(f"v_cvt_pk_bf16_f32 v{36+2*aa+hp}, v{S[aa][2*hp]}, v{S[aa][2*hp+1]}")
        for aa in range(2):
            for hp in range(2):
                a(f"v_lshlrev_b32 v{S[aa][2*hp]}, 16, v{36+2*aa+hp}")
                a(f"v_and_b32 v{S[aa][2*hp+1]}, s63, v{36+2*aa+hp}")
        if rnd == 0:
            for aa in range(2):
                for h in range(4): a(f"v_mul_f32 v{S[aa][h]}, s68, v{S[aa][h]}")
    for h in range(4): a(f"v_max_f32 v{40+h}, v{S[0][h]}, v{S[1][h]}")
    allreduce("v_max_f32", [40, 41, 42, 43], [44, 45, 46, 47])
    for aa in range(2):
        for h in range(4): a(f"v_sub_f32 v{S[aa][h]}, v{S[aa][h]}, v{40+h}")
    for aa in range(2):
        for h in range(4): a(f"v_mul_f32 v{S[aa][h]}, s69, v{S[aa][h]}")
    for aa in range(2):
        for h in range(4): a(f"v_exp_f32 v{S[aa][h]}, v{S[aa][h]}")
    a("s_nop 0")
    for h in range(4): a(f"v_add_f32 v{52+h}, v{S[0][h]}, v{S[1][h]}")
    allreduce("v_add_f32", [52, 53, 54, 55], [44, 45, 46, 47])
    for h in range(4):
        a(f"v_mov_b32 v{56+2*h}, v{40+h}"); a(f"v_mov_b32 v{57+2*h}, v{52+h}")
    a("s_lshl_b32 s10, s11, 5"); a(f"s_add_u32 s10, s10, {L_MLB}")
    a("v_mov_b32 v10, s10")
    a("ds_write_b128 v10, v[56:59]")
    a("ds_write_b128 v10, v[60:63] offset:16")
    setflag(F_ML)
    a("v_lshlrev_b32 v10, 3, v2"); a(f"v_add_u32 v10, {L_MLB}, v10")
    a("v_lshrrev_b32 v9, 5, v1"); a("v_lshlrev_b32 v9, 8, v9")
    a("v_and_b32 v44, 3, v1"); a("v_lshlrev_b32 v44, 4, v44"); a("v_add_u32 v9, v9, v44")
    a("v_and_b32 v44, 31, v1"); a("v_lshrrev_b32 v44, 2, v44"); a("v_lshlrev_b32 v44, 1, v44"); a("v_add_u32 v9, v9, v44")
    a("s_lshl_b32 s10, s11, 10"); a(f"s_add_u32 s10, s10, {L_PB}"); a("v_add_u32 v9, s10, v9")
    wait_flags4(F_ML, 44)
    a("ds_read_b64 v[192:193], v10")
    a("s_waitcnt lgkmcnt(0)")
    a("v_mov_b32 v194, v192")
    a("s_nop 1")
    a("v_max_f32_dpp v194, v194, v194 row_ror:4 row_mask:0xf bank_mask:0xf")
    a("s_nop 1")
    a("v_max_f32_dpp v194, v194, v194 row_ror:8 row_mask:0xf bank_mask:0xf")
    a("v_sub_f32 v195, v192, v194"); a("v_mul_f32 v195, s69, v195"); a("v_exp_f32 v195, v195"); a("s_nop 0")
    a("v_mul_f32 v196, v193, v195")
    a("s_nop 1")
    a("v_add_f32_dpp v196, v196, v196 row_ror:4 row_mask:0xf bank_mask:0xf")
    a("s_nop 1")
    a("v_add_f32_dpp v196, v196, v196 row_ror:8 row_mask:0xf bank_mask:0xf")
    a("v_rcp_f32 v197, v196"); a("s_nop 0")
    a("v_mul_f32 v197, v197, v195")
    a("s_lshl_b32 s10, s11, 2")
    for h in range(4):
        a(f"s_add_u32 s12, s10, {h}")
        a(f"v_readlane_b32 s{72+h}, v197, s12")
    a("v_mov_b32 v56, v194"); a("v_mov_b32 v57, s8"); a("v_mov_b32 v58, v196"); a("v_mov_b32 v59, s8")
    for aa in range(2):
        for h in range(4): a(f"v_mul_f32 v{S[aa][h]}, s{72+h}, v{S[aa][h]}")
    for aa in range(2):
        for hp in range(2): a(f"v_cvt_pk_bf16_f32 v{36+2*aa+hp}, v{S[aa][2*hp]}, v{S[aa][2*hp+1]}")
    for aa in range(2):
        for hp in range(2):
            a(f"ds_write_b16 v9, v{36+2*aa+hp} offset:{aa*512 + (2*hp)*64}")
            a(f"ds_write_b16_d16_hi v9, v{36+2*aa+hp} offset:{aa*512 + (2*hp+1)*64}")
    setflag(F_P)
    a("s_lshl_b32 s10, s70, 3"); a("s_add_u32 s10, s10, s6"); a("s_lshl_b32 s10, s10, 6")
    a("s_lshl_b32 s12, s11, 4"); a("s_add_u32 s10, s10, s12"); a(f"s_add_u32 s10, s10, {WS_ML}")
    a("s_lshl_b64 s[12:13], 1, s11")
    a("s_mov_b64 exec, s[12:13]")
    a("buffer_store_dwordx4 v[56:59], v6, s[56:59], s10 offen sc1")
    a("s_mov_b64 exec, -1")
    stamp(4)
    role_branch("L_kA", "L_kB", None)

    a.label("L_kA")
    a("s_mov_b32 s72, s85")
    a("v_lshrrev_b32 v22, 1, v2"); a("v_xor_b32 v22, v22, v3"); a("v_lshlrev_b32 v22, 5, v22")
    a("v_lshlrev_b32 v23, 10, v3"); a("v_add_u32 v22, v22, v23"); a("v_and_b32 v23, 1, v1"); a("v_lshlrev_b32 v23, 4, v23"); a("v_add_u32 v22, v22, v23")
    a("v_xor_b32 v23, 0x80, v22")
    a("s_lshl_b32 s14, s84, 2"); a("s_add_u32 s14, s14, s72"); a("s_lshl_b32 s14, s14, 17")
    a("s_lshl_b32 s13, s11, 15"); a("s_add_u32 s14, s14, s13"); a("s_lshl_b32 s13, s86, 8"); a("s_add_u32 s14, s14, s13")
    a("s_lshl_b32 s15, s11, 13")
    if L_W: a(f"s_add_u32 s15, s15, {L_W}")
    a("s_cmp_lg_u32 s3, 0"); a("s_cbranch_scc1 L_kA_dma")
    a("v_lshrrev_b32 v10, 3, v1"); a("v_and_b32 v10, 3, v10"); a("v_lshlrev_b32 v10, 12, v10"); a("v_and_b32 v9, 7, v1"); a("v_lshlrev_b32 v9, 6, v9"); a("v_add_u32 v10, v10, v9")
    a("s_lshl_b32 s12, s84, 9"); a("s_lshl_b32 s10, s72, 4"); a("s_add_u32 s10, s10, s12"); a(f"s_add_u32 s66, s10, {WS_ML}")
    a("s_mov_b32 s67, 0")
    Lm = lab("mg"); a.label(Lm)
    a(f"s_sleep {mlsleep}")
    a("buffer_load_dwordx4 v[192:195], v10, s[56:59], s66 offen sc1")
    a("s_waitcnt vmcnt(0)")
    tagcheck([193, 195], 40, 44, Lm, sleep=0)
    def red8(op, r, t):
        for mod in ("quad_perm:[1,0,3,2]", "quad_perm:[2,3,0,1]", "row_half_mirror"):
            a("s_nop 1")
            a(f"{op}_dpp v{r}, v{r}, v{r} {mod} row_mask:0xf bank_mask:0xf")
    a("v_mov_b32 v40, v192")
    red8("v_max_f32", 40, 41)
    a("v_sub_f32 v41, v192, v40"); a("v_mul_f32 v41, s69, v41"); a("v_exp_f32 v41, v41"); a("s_nop 0")
    a("v_mul_f32 v41, v41, v194")
    a("v_mov_b32 v42, v41")
    red8("v_add_f32", 42, 43)
    a("v_rcp_f32 v42, v42"); a("s_nop 0")
    a("v_mul_f32 v41, v41, v42")
    a("v_and_b32 v9, 31, v1"); a("v_lshlrev_b32 v9, 2, v9"); a(f"v_add_u32 v9, {L_WR}, v9")
    a("ds_write_b32 v9, v41")
    setflag(F_WR)
    a.label("L_kA_dma")
    a("s_setprio 0")
    if vigate is not None: wait_flags4(F_VI, 44, sleep=2)
    for i in range(8):
        a("s_mov_b32 m0, s15"); a("s_add_u32 s15, s15, 1024")
        if not no_w: a(f"buffer_load_dwordx4 v{22 + ((i>>1)&1)}, s[32:35], s14 offen{NT} lds")
        a("s_add_u32 s14, s14, 4096")
    a("s_branch L_roleA")

    a.label("L_kB")
    a("s_setprio 0")
    a("v_lshrrev_b32 v22, 2, v1"); a("v_mul_u32_u24 v22, 3584, v22")
    a("v_lshrrev_b32 v23, 1, v1"); a("v_and_b32 v23, 1, v23"); a("v_lshrrev_b32 v24, 5, v1"); a("v_xor_b32 v23, v23, v24"); a("v_lshlrev_b32 v23, 5, v23"); a("v_add_u32 v22, v22, v23")
    a("v_and_b32 v23, 1, v1"); a("v_lshlrev_b32 v23, 4, v23"); a("v_add_u32 v22, v22, v23")
    a(f"s_mul_i32 s12, s11, {128*3584}"); a("s_lshl_b32 s13, s9, 6"); a("s_add_u32 s12, s12, s13")
    a("s_lshl_b32 s13, s11, 13")
    if L_W: a(f"s_add_u32 s13, s13, {L_W}")
    a("s_and_b32 s10, s11, 1"); a("s_lshl_b32 s10, s10, 7"); a("v_xor_b32 v24, s10, v14")
    a("v_xor_b32 v25, 32, v24"); a("v_xor_b32 v26, 64, v24"); a("v_xor_b32 v27, 0x60, v24")
    a("s_lshl_b32 s14, s9, 15"); a("s_lshl_b32 s15, s11, 13"); a("s_add_u32 s14, s14, s15"); a(f"s_add_u32 s15, s15, {L_W2}")
    wait_flags4(F_O, 44, sleep=2)
    for i in range(8):
        a("s_mov_b32 m0, s13"); a("s_add_u32 s13, s13, 1024")
        if not no_w: a(f"buffer_load_dwordx4 v22, s[36:39], s12 offen{NT} lds")
        a(f"s_add_u32 s12, s12, {16*3584}")
    for i in range(8):
        a("s_mov_b32 m0, s15"); a("s_add_u32 s15, s15, 1024")
        if not no_w: a(f"buffer_load_dwordx4 v{24 + (i&3)}, s[44:47], s14 offen{NT} lds")
        a("s_add_u32 s14, s14, 1024")
    a("s_waitcnt vmcnt(0)")
    setflag(F_W)
    stamp(5)
    a("s_branch L_roleB")

    a.label("L_roleA")
    a("s_lshr_b32 s71, s3, 2")
    a("s_mov_b32 s72, s85")
    a("s_mov_b32 s73, s86")
    a("v_lshrrev_b32 v21, 3, v2"); a("v_lshlrev_b32 v21, 17, v21"); a("v_and_b32 v9, 7, v2"); a("v_lshlrev_b32 v9, 11, v9"); a("v_add_u32 v21, v21, v9")
    a("v_lshlrev_b32 v9, 5, v3"); a("v_add_u32 v21, v21, v9")
    a("s_lshl_b32 s10, s71, 18"); a("s_lshl_b32 s12, s84, 14"); a("s_add_u32 s10, s10, s12"); a("s_lshl_b32 s12, s72, 9"); a("s_add_u32 s10, s10, s12")
    a("s_lshl_b32 s12, s11, 7"); a("s_add_u32 s10, s10, s12"); a(f"s_add_u32 s75, s10, {WS_OP}")
    a("s_cmp_lt_u32 s3, 4"); a("s_cbranch_scc1 L_A_common")
    a("buffer_load_dwordx4 v[192:195], v21, s[56:59], s75 offen sc1")
    a("buffer_load_dwordx4 v[196:199], v21, s[56:59], s75 offen offset:16 sc1")
    a.label("L_A_common")
    a("v_lshrrev_b32 v9, 2, v2"); a("v_lshlrev_b32 v10, 3, v3"); a("v_add_u32 v10, v10, v9"); a("v_lshlrev_b32 v10, 8, v10")
    a("v_and_b32 v44, 3, v2"); a("v_lshlrev_b32 v44, 3, v44"); a("v_add_u32 v10, v10, v44")
    a("v_and_b32 v44, 1, v3"); a("v_lshlrev_b32 v44, 2, v44"); a("v_or_b32 v44, v44, v9"); a("v_lshlrev_b32 v44, 5, v44"); a("v_add_u32 v10, v10, v44")
    a("s_lshl_b32 s10, s11, 13")
    if L_W: a(f"s_add_u32 s10, s10, {L_W}")
    a("v_add_u32 v24, s10, v10")
    for nt in range(1, 8): a(f"v_xor_b32 v{24+nt}, {nt*32}, v24")
    a("v_lshrrev_b32 v9, 1, v3"); a("v_lshlrev_b32 v9, 9, v9"); a("v_and_b32 v44, 1, v3"); a("v_lshlrev_b32 v44, 6, v44"); a("v_add_u32 v9, v9, v44")
    a("v_lshlrev_b32 v44, 2, v2"); a("v_add_u32 v9, v9, v44")
    a("s_lshl_b32 s10, s11, 11"); a("s_lshl_b32 s12, s71, 10"); a("s_add_u32 s10, s10, s12"); a(f"s_add_u32 s10, s10, {L_R1}"); a("v_add_u32 v60, s10, v9")
    a("s_lshl_b32 s10, s3, 8"); a(f"s_add_u32 s10, s10, {L_R1}"); a("v_lshlrev_b32 v9, 2, v1"); a("v_add_u32 v61, s10, v9")
    a("s_lshr_b32 s10, s3, 1"); a("s_lshl_b32 s10, s10, 5"); a("s_lshl_b32 s12, s84, 2"); a("s_add_u32 s10, s10, s12"); a("s_add_u32 s10, s10, s72"); a("s_lshl_b32 s10, s10, 12")
    a("s_lshl_b32 s12, s73, 10"); a("s_add_u32 s10, s10, s12"); a("s_and_b32 s12, s3, 1"); a("s_lshl_b32 s12, s12, 9"); a("s_add_u32 s10, s10, s12"); a(f"s_add_u32 s74, s10, {WS_HP}")
    a("v_mov_b32 v63, s8")
    a("s_mov_b32 s67, 0")
    a("v_lshlrev_b32 v62, 4, v3"); a("s_lshl_b32 s10, s71, 6"); a(f"s_add_u32 s10, s10, {L_WR}"); a("v_add_u32 v62, s10, v62")
    def wr_read():
        L = lab("wr"); a.label(L)
        a(f"ds_read_b32 v40, v7 offset:{F_WR}")
        a("s_waitcnt lgkmcnt(0)")
        a("v_cmp_ne_u32 vcc, 1, v40")
        a(f"s_cbranch_vccnz {L}")
        a("ds_read_b128 v[48:51], v62")
    a("s_cmp_lt_u32 s3, 4"); a("s_cbranch_scc1 L_A_k")
    wait_flag1(F_W, 40)
    for nt in range(8):
        a(f"ds_read_b64_tr_b16 v[{64+4*nt}:{65+4*nt}], v{24+nt}")
        a(f"ds_read_b64_tr_b16 v[{66+4*nt}:{67+4*nt}], v{24+nt} offset:1024")
        if nt == 3: a("s_waitcnt lgkmcnt(0)")
    wr_read()
    Lo = lab("og"); Lo2 = lab("og2")
    stamp(13)
    a(f"s_branch {Lo2}")
    a.label("L_A_k")
    a("s_waitcnt vmcnt(0)")
    setflag(F_W)
    stamp(5)
    a("s_setprio 3")
    for nt in range(8):
        a(f"ds_read_b64_tr_b16 v[{64+4*nt}:{65+4*nt}], v{24+nt}")
        a(f"ds_read_b64_tr_b16 v[{66+4*nt}:{67+4*nt}], v{24+nt} offset:1024")
        if nt == 3: a("s_waitcnt lgkmcnt(0)")
    wr_read()
    wait_flags4(F_O, 40, sleep=1)
    stamp(13)
    a.label(Lo)
    a("buffer_load_dwordx4 v[192:195], v21, s[56:59], s75 offen sc1")
    a("buffer_load_dwordx4 v[196:199], v21, s[56:59], s75 offen offset:16 sc1")
    a.label(Lo2)
    a("s_waitcnt vmcnt(0) lgkmcnt(0)")
    tagcheck([193, 195, 197, 199], 40, 44, Lo, sleep=tsleep)
    stamp(8)
    a("v_mov_b32 v193, v194"); a("v_mov_b32 v194, v196"); a("v_mov_b32 v195, v198")
    a("s_nop 1")
    for nt in range(8):
        a(f"v_mfma_f32_16x16x32_bf16 v[{96+4*nt}:{99+4*nt}], v[192:195], v[{64+4*nt}:{67+4*nt}], 0")
    a("s_nop 0")
    for r in range(4):
        for nt in range(8):
            if r == 0: a(f"v_mul_f32 v{128+nt}, v48, v{96+4*nt}")
            else: a(f"v_fmac_f32 v{128+nt}, v{48+r}, v{96+4*nt+r}")
    for p in range(4): a(f"v_permlane16_swap_b32 v{128+2*p}, v{129+2*p}") if p else (a("s_nop 0"), a(f"v_permlane16_swap_b32 v128, v129"))
    for p in range(4): a(f"v_add_f32 v{128+2*p}, v{128+2*p}, v{129+2*p}")
    stamp(10)
    for p in range(4): a(f"ds_write_b32 v60, v{128+2*p} offset:{p*128}")
    a("s_waitcnt lgkmcnt(0)")
    a("s_barrier")
    stamp(11)
    for kt in range(4): a(f"ds_read_b32 v{40+kt}, v61 offset:{kt*2048}")
    a("s_waitcnt lgkmcnt(0)")
    a("v_add_f32 v40, v40, v41"); a("v_add_f32 v42, v42, v43"); a("v_add_f32 v62, v40, v42")
    a("buffer_store_dwordx2 v[62:63], v13, s[56:59], s74 offen sc1")
    stamp(9)
    a("s_branch L_endrole")

    a.label("L_roleB")
    a("s_setprio 3")
    a("s_add_u32 s96, s8, 1")
    a("v_and_b32 v10, 31, v1"); a("v_lshlrev_b32 v10, 1, v10"); a("s_lshl_b32 s10, s9, 6")
    a("buffer_load_ushort v16, v10, s[40:43], s10 offen")
    a("v_lshrrev_b32 v9, 2, v2"); a("v_lshlrev_b32 v10, 3, v3"); a("v_add_u32 v9, v10, v9")
    a("v_and_b32 v44, 3, v2"); a("v_lshlrev_b32 v44, 3, v44")
    a("v_lshlrev_b32 v10, 6, v9"); a("v_add_u32 v10, v10, v44"); a("v_and_b32 v45, 1, v3"); a("v_lshlrev_b32 v46, 5, v45"); a("v_add_u32 v10, v10, v46")
    a("s_lshl_b32 s10, s3, 12")
    if L_W: a(f"s_add_u32 s10, s10, {L_W}")
    a("v_add_u32 v52, s10, v10"); a("v_xor_b32 v53, 32, v52")
    a("v_lshlrev_b32 v10, 10, v9"); a("v_add_u32 v10, v10, v44")
    a("v_lshrrev_b32 v46, 2, v2"); a("v_lshlrev_b32 v45, 2, v45"); a("v_or_b32 v46, v46, v45"); a("v_lshlrev_b32 v46, 5, v46"); a("v_add_u32 v10, v10, v46")
    a("s_lshl_b32 s10, s3, 7"); a("v_xor_b32 v10, s10, v10"); a(f"v_add_u32 v54, {L_W2}, v10")
    for q in range(1, 4): a(f"v_xor_b32 v{54+q}, {q*32}, v54")
    a("v_and_b32 v58, 3, v2"); a("v_lshlrev_b32 v58, 10, v58"); a("v_lshlrev_b32 v9, 4, v3"); a("v_add_u32 v58, v58, v9")
    a("s_lshl_b32 s10, s3, 7"); a(f"s_add_u32 s10, s10, {L_YB}"); a("v_add_u32 v58, s10, v58")
    a("v_lshlrev_b32 v59, 4, v2"); a("s_lshl_b32 s10, s3, 9"); a(f"s_add_u32 s10, s10, {L_T1}"); a("v_add_u32 v59, s10, v59")
    a("v_and_b32 v60, 31, v1"); a("v_lshlrev_b32 v60, 4, v60"); a("v_lshrrev_b32 v9, 5, v1"); a("v_lshlrev_b32 v9, 11, v9"); a("v_add_u32 v60, v60, v9"); a(f"v_add_u32 v60, {L_T1}, v60")
    a("v_and_b32 v61, 31, v1"); a("v_lshlrev_b32 v61, 1, v61"); a("v_lshrrev_b32 v9, 5, v1"); a("v_lshlrev_b32 v9, 7, v9"); a("v_add_u32 v61, v61, v9")
    a("s_lshl_b32 s10, s3, 8"); a(f"s_add_u32 s10, s10, {L_GB}"); a("v_add_u32 v61, s10, v61")
    a("v_and_b32 v62, 3, v2"); a("v_lshlrev_b32 v62, 6, v62"); a("v_lshlrev_b32 v9, 4, v3"); a("v_add_u32 v62, v62, v9"); a("v_add_u32 v62, s10, v62")
    a("s_lshl_b32 s10, s9, 12"); a("s_lshl_b32 s12, s3, 9"); a("s_add_u32 s10, s10, s12"); a(f"s_add_u32 s72, s10, {WS_GP}")
    for bb in range(1, 4): a(f"s_add_u32 s{72+bb}, s72, {bb*56*4096}")
    for r in range(4): a(f"v_mov_b32 v{113+2*r}, s96")
    a("v_mov_b32 v46, 0x3d372713")
    a("s_lshl_b32 s10, s3, 10"); a(f"s_add_u32 s10, s10, {L_YB}"); a("v_add_u32 v63, s10, v14")
    a("v_lshlrev_b32 v10, 5, v1"); a("s_lshl_b32 s10, s3, 11"); a("s_lshl_b32 s12, s4, 13"); a("s_add_u32 s10, s10, s12"); a(f"s_add_u32 s66, s10, {WS_H}")
    wait_flags4(F_W, 40, sleep=1)
    for kt in range(2):
        for nt in range(2):
            r = 64 + (kt*2+nt)*4
            a(f"ds_read_b64_tr_b16 v[{r}:{r+1}], v{52+nt} offset:{kt*2048}")
            a(f"ds_read_b64_tr_b16 v[{r+2}:{r+3}], v{52+nt} offset:{kt*2048+256}")
    for q in range(4):
        r = 80 + 4*q
        a(f"ds_read_b64_tr_b16 v[{r}:{r+1}], v{54+q}")
        a(f"ds_read_b64_tr_b16 v[{r+2}:{r+3}], v{54+q} offset:4096")
    a("s_waitcnt vmcnt(0) lgkmcnt(0)")
    a("v_lshlrev_b32 v16, 16, v16")
    a("s_cmp_ge_u32 s3, 4"); a("s_cbranch_scc1 L_B_ln_done")
    a("s_mov_b32 s67, 0")
    Lh = lab("hg"); a.label(Lh)
    a("buffer_load_dwordx4 v[192:195], v10, s[56:59], s66 offen sc1")
    a("buffer_load_dwordx4 v[196:199], v10, s[56:59], s66 offen offset:16 sc1")
    a("s_waitcnt vmcnt(0)")
    tagcheck([193, 195, 197, 199], 40, 44, Lh, sleep=tsleep)
    stamp(10)
    for i in range(4):
        a(f"v_lshlrev_b32 v{20+2*i}, 16, v{192+2*i}"); a(f"v_and_b32 v{21+2*i}, s63, v{192+2*i}")
    layernorm8(20, 32)
    a("ds_write_b128 v63, v[40:43]")
    a("s_waitcnt lgkmcnt(0)")
    stamp(12)
    a.label("L_B_ln_done")
    a("s_barrier")
    for kt in range(2): a(f"ds_read_b128 v[{192+4*kt}:{195+4*kt}], v58 offset:{kt*64}")
    a("s_waitcnt lgkmcnt(0)")
    for kt in range(2):
        for nt in range(2):
            r = 64 + (kt*2+nt)*4
            c = "0" if kt == 0 else f"v[{96+4*nt}:{99+4*nt}]"
            a(f"v_mfma_f32_16x16x32_bf16 v[{96+4*nt}:{99+4*nt}], v[{192+4*kt}:{195+4*kt}], v[{r}:{r+3}], {c}")
    a("s_nop 6")
    a("ds_write_b128 v59, v[96:99]")
    a("s_nop 0")
    a("ds_write_b128 v59, v[100:103] offset:256")
    a("s_waitcnt lgkmcnt(0)")
    stamp(13)
    a("s_barrier")
    stamp(14)
    for i in range(4): a(f"ds_read_b128 v[{192+4*i}:{195+4*i}], v60 offset:{i*512}")
    a("s_waitcnt lgkmcnt(0)")
    for c in range(4):
        a(f"v_add_f32 v{192+c}, v{192+c}, v{196+c}"); a(f"v_add_f32 v{200+c}, v{200+c}, v{204+c}")
    for c in range(4): a(f"v_add_f32 v{192+c}, v{192+c}, v{200+c}")
    a("s_nop 0")
    a("v_permlane32_swap_b32 v192, v194"); a("v_permlane32_swap_b32 v193, v195")
    a("v_add_f32 v40, v192, v194"); a("v_add_f32 v41, v193, v195")
    a("v_cvt_pk_bf16_f32 v42, v40, v41"); a("v_lshlrev_b32 v40, 16, v42"); a("v_and_b32 v41, s63, v42")
    a("v_add_f32 v40, v40, v16"); a("v_add_f32 v41, v41, v16")
    a("v_cvt_pk_bf16_f32 v42, v40, v41"); a("v_lshlrev_b32 v40, 16, v42"); a("v_and_b32 v41, s63, v42")
    for c in range(2): a(f"v_mul_f32 v{42+c}, v{40+c}, v{40+c}")
    for c in range(2): a(f"v_fma_f32 v{42+c}, v{42+c}, v46, 1.0")
    for c in range(2): a(f"v_mul_f32 v{42+c}, v{42+c}, v{40+c}")
    for c in range(2): a(f"v_mul_f32 v{42+c}, 0xc0135761, v{42+c}")
    for c in range(2): a(f"v_exp_f32 v{42+c}, v{42+c}")
    a("s_nop 0")
    for c in range(2): a(f"v_add_f32 v{42+c}, 1.0, v{42+c}")
    for c in range(2): a(f"v_rcp_f32 v{42+c}, v{42+c}")
    a("s_nop 0")
    for c in range(2): a(f"v_mul_f32 v{40+c}, v{40+c}, v{42+c}")
    a("v_cvt_pk_bf16_f32 v40, v40, v41")
    stamp(8)
    a("ds_write_b16 v61, v40"); a("ds_write_b16_d16_hi v61, v40 offset:64")
    a("ds_read_b128 v[192:195], v62")
    a("s_waitcnt lgkmcnt(0)")
    for q in range(4):
        a(f"v_mfma_f32_16x16x32_bf16 v[{96+4*q}:{99+4*q}], v[192:195], v[{80+4*q}:{83+4*q}], 0")
    a("s_nop 4")
    for r in range(4): a(f"v_mov_b32 v{112+2*r}, v{96+r}")
    for q in range(1, 4):
        for r in range(4):
            a(f"v_mov_b32_dpp v{112+2*r}, v{96+4*q+r} quad_perm:[0,1,2,3] row_mask:{hex(1<<q)} bank_mask:0xf")
    for r in range(4): a(f"buffer_store_dwordx2 v[{112+2*r}:{113+2*r}], v13, s[56:59], s{72+r} offen sc1")
    stamp(11)
    a("s_branch L_endrole")

    a.label("L_roleC")
    a("s_cmp_lg_u32 s3, 7"); a("s_cbranch_scc1 L_fin")
    a("s_setprio 3")
    a("v_lshlrev_b32 v10, 12, v3"); a("v_lshlrev_b32 v9, 4, v2"); a("v_add_u32 v18, v10, v9")
    a("s_lshl_b32 s10, s76, 17"); a("s_lshl_b32 s12, s62, 3"); a("s_add_u32 s10, s10, s12"); a(f"s_add_u32 s80, s10, {WS_HP}")
    for t in range(1, 8): a(f"s_add_u32 s{80+t}, s80, {t*16384}")
    a("s_lshl_b32 s10, s76, 11"); a("s_lshl_b32 s12, s62, 2"); a("s_add_u32 s10, s10, s12"); a(f"s_add_u32 s72, s10, {WS_H}"); a("s_add_u32 s74, s72, 32768")
    a("v_lshlrev_b32 v17, 3, v2"); a("v_lshlrev_b32 v9, 13, v3"); a("v_add_u32 v17, v17, v9")
    a("s_mov_b32 s67, 0")
    Ls = lab("sg"); a.label(Ls)
    for t in range(8): a(f"buffer_load_dwordx4 v[{64+4*t}:{67+4*t}], v18, s[56:59], s{80+t} offen sc1")
    a("s_waitcnt vmcnt(0)")
    tagcheck([65+2*i for i in range(16)], 40, 44, Ls, sleep=tsleep)
    stamp(12)
    def tree2(n):
        ra = [64 + 4*t for t in range(n)]
        while len(ra) > 1:
            nxt = []
            for i in range(0, len(ra) - 1, 2):
                a(f"v_add_f32 v{ra[i]}, v{ra[i]}, v{ra[i+1]}"); a(f"v_add_f32 v{ra[i]+2}, v{ra[i]+2}, v{ra[i+1]+2}"); nxt.append(ra[i])
            if len(ra) % 2: nxt.append(ra[-1])
            ra = nxt
    def xrow():
        a("s_nop 1")
        a("v_permlane32_swap_b32 v64, v66")
        a("v_add_f32 v64, v64, v66")
        a("v_mov_b32 v66, v64"); a("s_nop 1")
        a("v_permlane16_swap_b32 v64, v66")
        a("v_add_f32 v64, v64, v66")
        a("v_mov_b32 v66, v64"); a("s_nop 1")
        a("v_permlane32_swap_b32 v64, v66")
    tree2(8)
    xrow()
    a("v_cvt_pk_bf16_f32 v40, v64, v66")
    a("v_lshlrev_b32 v43, 16, v12"); a("v_and_b32 v44, s63, v12")
    a("v_lshlrev_b32 v41, 16, v40"); a("v_and_b32 v42, s63, v40")
    a("v_add_f32 v41, v41, v43"); a("v_add_f32 v42, v42, v44")
    a("v_cvt_pk_bf16_f32 v40, v41, v42")
    a("v_mov_b32 v41, v15")
    a("buffer_store_dwordx2 v[40:41], v17, s[56:59], s72 offen sc1")
    a("buffer_store_dwordx2 v[40:41], v17, s[56:59], s74 offen sc1")
    stamp(13)
    a.label("L_endrole")
    a("s_cmp_lg_u32 s3, 7"); a("s_cbranch_scc1 L_fin")
    a("s_setprio 3")
    a("s_add_u32 s96, s8, 1")
    a("v_lshrrev_b32 v10, 2, v1"); a("v_lshlrev_b32 v10, 12, v10"); a("v_and_b32 v9, 3, v1"); a("v_lshlrev_b32 v17, 4, v9"); a("v_add_u32 v18, v10, v17")
    a(f"s_mul_i32 s10, s5, {56*4096}"); a("s_lshl_b32 s12, s95, 3"); a("s_add_u32 s10, s10, s12"); a(f"s_add_u32 s80, s10, {WS_GP}")
    for t in range(1, 4): a(f"s_add_u32 s{80+t}, s80, {t*65536}")
    a("s_lshl_b32 s10, s4, 13"); a("s_lshl_b32 s12, s5, 11"); a("s_add_u32 s10, s10, s12"); a("s_lshl_b32 s12, s95, 2"); a("s_add_u32 s10, s10, s12"); a(f"s_add_u32 s84, s10, {WS_H}")
    a("v_lshlrev_b32 v19, 3, v9")
    a("s_lshl_b32 s10, s5, 10"); a("s_lshl_b32 s12, s95, 1"); a("s_add_u32 s73, s10, s12")
    a("v_lshlrev_b32 v16, 2, v9")
    a("v_mov_b32 v76, 0"); a("v_mov_b32 v77, s96"); a("v_mov_b32 v78, 0"); a("v_mov_b32 v79, s96")
    a("s_mov_b32 s67, 0")
    Lh4 = lab("h4"); a.label(Lh4)
    a("buffer_load_dwordx2 v[20:21], v19, s[56:59], s84 offen sc1")
    a("s_waitcnt vmcnt(0)")
    tagcheck([21], 40, 44, Lh4, sleep=4)
    a("v_lshlrev_b32 v21, 16, v20"); a("v_and_b32 v22, s63, v20")
    a("v_lshlrev_b32 v23, 16, v8"); a("v_and_b32 v24, s63, v8")
    a("s_mov_b32 s67, 0")
    Lg = lab("gg"); a.label(Lg)
    for t in range(3): a(f"buffer_load_dwordx4 v[{64+4*t}:{67+4*t}], v18, s[56:59], s{80+t} offen sc1")
    a("s_mov_b64 s[98:99], exec")
    a("s_mov_b32 exec_hi, 0")
    Lx = lab("x"); a(f"s_cbranch_execz {Lx}")
    a("buffer_load_dwordx4 v[76:79], v18, s[56:59], s83 offen sc1")
    a.label(Lx)
    a("s_mov_b64 exec, s[98:99]")
    a("s_waitcnt vmcnt(0)")
    tagcheck([65+2*i for i in range(8)], 40, 44, Lg, sleep=tsleep, tag="s96")
    stamp(14)
    a("v_add_f32 v64, v64, v68"); a("v_add_f32 v66, v66, v70"); a("v_add_f32 v72, v72, v76"); a("v_add_f32 v74, v74, v78")
    a("v_add_f32 v64, v64, v72"); a("v_add_f32 v66, v66, v74")
    for rot in (4, 8):
        a("s_nop 0")
        a(f"v_add_f32_dpp v64, v64, v64 row_ror:{rot} row_mask:0xf bank_mask:0xf")
        a(f"v_add_f32_dpp v66, v66, v66 row_ror:{rot} row_mask:0xf bank_mask:0xf")
    a("s_nop 1")
    a("v_permlane32_swap_b32 v64, v66")
    a("v_add_f32 v64, v64, v66")
    a("v_mov_b32 v66, v64"); a("s_nop 1")
    a("v_permlane16_swap_b32 v64, v66")
    a("v_add_f32 v64, v64, v66")
    a("v_mov_b32 v66, v64"); a("s_nop 1")
    a("v_permlane32_swap_b32 v64, v66")
    a("v_cvt_pk_bf16_f32 v40, v64, v66")
    a("v_lshlrev_b32 v41, 16, v40"); a("v_and_b32 v42, s63, v40")
    a("v_add_f32 v41, v41, v23"); a("v_add_f32 v42, v42, v24")
    a("v_cvt_pk_bf16_f32 v40, v41, v42")
    a("v_lshlrev_b32 v41, 16, v40"); a("v_and_b32 v42, s63, v40")
    a("v_add_f32 v41, v41, v21"); a("v_add_f32 v42, v42, v22")
    a("v_cvt_pk_bf16_f32 v40, v41, v42")
    a("s_mov_b64 exec, 0xf")
    a(f"buffer_store_dword v40, v16, s[52:55], s73 offen{OUTF}")
    a("s_mov_b64 exec, -1")
    a("s_cmp_lg_u32 s2, 0"); a("s_cbranch_scc1 L_fin")
    a("s_mov_b64 exec, 1")
    a("buffer_store_dword v15, v6, s[56:59], 0 offen sc1")
    a("s_mov_b64 exec, -1")
    a.label("L_fin")
    if stamps == "dbg":
        stamp(15)
        a("s_cmp_lg_u32 s3, 7"); a("s_cbranch_scc1 L_end")
        a("s_load_dwordx2 s[88:89], s[0:1], 88")
        a("s_waitcnt lgkmcnt(0)")
        a("s_mov_b32 s90, 256"); a("s_mov_b32 s91, 0x20000")
        a(f"v_not_b32 v{SB}, v{SB}")
        a("v_mov_b32 v44, 0")
        a("s_mov_b64 exec, 1")
        for k, idx in enumerate((0, 6, 1, 2, 4, 5, 14, 15)):
            a(f"buffer_atomic_umax v{SB+idx}, v44, s[88:91], 0 offen offset:{4*k}")
        a("s_mov_b64 exec, -1")
    elif stamps:
        stamp(15)
        a("s_lshl_b32 s10, s2, 3"); a("s_add_u32 s10, s10, s3"); a("s_lshl_b32 s10, s10, 6"); a(f"s_add_u32 s10, s10, {WS_STAMP}")
        a("v_mov_b32 v44, 0")
        a("s_mov_b64 exec, 1")
        for i in range(4): a(f"buffer_store_dwordx4 v[{SB+4*i}:{SB+3+4*i}], v44, s[56:59], s10 offen offset:{16*i}")
        a("s_mov_b64 exec, -1")
    a.label("L_end")
    a("s_endpgm")
    return a

HDR = """; Fused decode block: h = x + Attn(LN(x)) ; out = h + MLP(LN(h))      (B=4, D=512, Hq=32, Hkv=8, Sk=4096, Dh=128, F=1792)
; @launch grid=(256,1,1) block=(512,1,1) lds={lds}
.amdgcn_target "amdgcn-amd-amdhsa--gfx950"
.text
.globl {name}_kernel
.p2align 8
.type {name}_kernel,@function
{name}_kernel:
"""
FTR = """
.section .rodata,"a"
.p2align 6
.amdhsa_kernel {name}_kernel
  .amdhsa_next_free_vgpr 256
  .amdhsa_next_free_sgpr 102
  .amdhsa_accum_offset 256
  .amdhsa_group_segment_fixed_size 0
  .amdhsa_kernarg_size 104
  .amdhsa_user_sgpr_count 2
  .amdhsa_user_sgpr_kernarg_segment_ptr 1
  .amdhsa_system_sgpr_workgroup_id_x 1
.end_amdhsa_kernel
"""
def build(path, **kw):
    a = gen(**kw)
    probs = check_hazards(a.lines)
    open(path, "w").write(HDR.format(name=NAME, lds=LDS_BYTES) + a.text() + FTR.format(name=NAME))
    return probs

if __name__ == "__main__":
    out = sys.argv[1] if len(sys.argv) > 1 else "k3.s"
    kw = {}
    for arg in sys.argv[2:]:
        if arg == "stamps": kw["stamps"] = True
        elif arg == "dbg": kw["stamps"] = "dbg"
        elif "=" in arg:
            k, v = arg.split("="); kw[k] = eval(v)
    probs = build(out, **kw)
    print("hazards:", len(probs))
```

```python
import sys
from asmlib import Asm, check_hazards

NAME = "sequential_preLN__gqa_block_cached__mixer_channel_mlp__decode"

WS_EPOCH = 0
WS_ML = 0x1000
WS_H  = 0x1E8000
WS_OP = 0x8000
WS_HP = 0x88000
WS_QB = 0x108000
WS_GP = 0x108000
WS_STAMP = 0x400000
L_W = 0
L_W2 = 32768
L_WQ = 65536
L_RED = 81920
L_R1 = 90112
L_YB = 98304
L_QPB = 102400
L_PB = 106496
L_T1 = 110592
L_GB = 114688
L_QL = 116736
L_FLAGS = 117760
L_MLB = 118016
L_WR = 118784
L_WQ2 = 122880
L_QPB2 = 139264
LDS_BYTES = 122880
F_Y, F_QP, F_Q, F_ML, F_P, F_W, F_O, F_WR, F_Q2, F_VI = 0, 16, 32, 48, 64, 80, 96, 112, 128, 144

LOG2E = 0x3fb8aa3b
SCALE = 0x3db504f3
EPS = 0x3727c5ac
TAGC = 0x9E3779B9
POLL_MAX = 20000

def gen(stamps=False, outf='', psleep=2, tsleep=1, qearly=6, mlsleep=8, rot=True, no_w=False, no_pwait=False, no_q=False, khold=0, lanemask=True, delay=None, NA=(20,20,20,20,14,12,12,10), NB=(7,7,7,7,7,7,7,7), NC=(5,5,5,5,11,11,11,11), QL=None, QH=4, vigate=31, vearly=0, touch=(), epoch_late=True):
    a = Asm()
    NT = " nt"
    OUTF = outf
    uid = [0]
    def lab(p):
        uid[0] += 1
        return f"L_{p}_{uid[0]}"
    SB = 240
    def stamp(idx):
        if stamps:
            a("s_memrealtime s[78:79]")
            a("s_waitcnt lgkmcnt(0)")
            a(f"v_mov_b32 v{SB+idx}, s78")
    def allreduce(op, rs, tmps):
        k = len(rs)
        for rot in (8, 4, 2, 1):
            if k == 1: a("s_nop 1")
            elif k == 2: a("s_nop 0")
            for r in rs:
                a(f"{op}_dpp v{r}, v{r}, v{r} row_ror:{rot} row_mask:0xf bank_mask:0xf")
        for sw in ("v_permlane16_swap_b32", "v_permlane32_swap_b32"):
            for r, t in zip(rs, tmps): a(f"v_mov_b32 v{t}, v{r}")
            a("s_nop 1" if k == 1 else "s_nop 0")
            if k == 2: pass
            for r, t in zip(rs, tmps): a(f"{sw} v{r}, v{t}")
            for r, t in zip(rs, tmps): a(f"{op} v{r}, v{r}, v{t}")
    def rb(dst, src):
        a(f"v_cvt_pk_bf16_f32 v{dst}, v{src}, v{src}")
        a(f"v_lshlrev_b32 v{dst}, 16, v{dst}")
    def setflag(off): a(f"ds_write_b32 v11, v0 offset:{off}")
    def wait_flags4(off, tmp, sleep=0):
        L = lab("wf")
        a.label(L)
        if sleep: a(f"s_sleep {sleep}")
        a(f"ds_read_b128 v[{tmp}:{tmp+3}], v7 offset:{off}")
        a("s_waitcnt lgkmcnt(0)")
        a(f"v_and_b32 v{tmp}, v{tmp}, v{tmp+1}"); a(f"v_and_b32 v{tmp+2}, v{tmp+2}, v{tmp+3}")
        a(f"v_and_b32 v{tmp}, v{tmp}, v{tmp+2}")
        a(f"v_cmp_ne_u32 vcc, 1, v{tmp}")
        a(f"s_cbranch_vccnz {L}")
    def wait_flag1(off, tmp, sleep=0):
        L = lab("wf")
        a.label(L)
        if sleep: a(f"s_sleep {sleep}")
        a(f"ds_read_b32 v{tmp}, v11 offset:{off}")
        a("s_waitcnt lgkmcnt(0)")
        a(f"v_cmp_ne_u32 vcc, 1, v{tmp}")
        a(f"s_cbranch_vccnz {L}")
    def tagcheck(tagregs, acc, t1, retry_label, cnt=67, sleep=0, tag="s8"):
        first = True; i = 0
        while i < len(tagregs):
            if i + 1 < len(tagregs):
                a(f"v_xor_b32 v{t1}, {tag}, v{tagregs[i]}")
                if first:
                    a(f"v_xor_b32 v{acc}, {tag}, v{tagregs[i+1]}")
                    a(f"v_or_b32 v{acc}, v{acc}, v{t1}")
                else:
                    a(f"v_xor_b32 v{t1+1}, {tag}, v{tagregs[i+1]}")
                    a(f"v_or3_b32 v{acc}, v{acc}, v{t1}, v{t1+1}")
                i += 2
            else:
                if first: a(f"v_xor_b32 v{acc}, {tag}, v{tagregs[i]}")
                else:
                    a(f"v_xor_b32 v{t1}, {tag}, v{tagregs[i]}")
                    a(f"v_or_b32 v{acc}, v{acc}, v{t1}")
                i += 1
            first = False
        a(f"v_cmp_ne_u32 vcc, 0, v{acc}")
        done = lab("pd")
        a(f"s_cbranch_vccz {done}")
        if lanemask: a("s_mov_b64 exec, vcc")
        if sleep: a(f"s_sleep {sleep}")
        a(f"s_add_u32 s{cnt}, s{cnt}, 1")
        a(f"s_cmp_lt_u32 s{cnt}, {POLL_MAX}")
        a(f"s_cbranch_scc1 {retry_label}")
        a.label(done)
        if lanemask: a("s_mov_b64 exec, -1")
    def layernorm8(e, t):
        a(f"v_readfirstlane_b32 s12, v{e}")
        a("s_nop 1")
        for i in range(8): a(f"v_subrev_f32 v{t+4+(i&3)+ (0)}, s12, v{e+i}") if False else None
        a(f"v_subrev_f32 v{t+2}, s12, v{e}"); a(f"v_subrev_f32 v{t+3}, s12, v{e+1}")
        a(f"v_add_f32 v{t}, v{t+2}, v{t+3}"); a(f"v_mul_f32 v{t+1}, v{t+2}, v{t+2}"); a(f"v_fmac_f32 v{t+1}, v{t+3}, v{t+3}")
        for i in range(2, 8, 2):
            a(f"v_subrev_f32 v{t+2}, s12, v{e+i}"); a(f"v_subrev_f32 v{t+3}, s12, v{e+i+1}")
            a(f"v_add_f32 v{t}, v{t}, v{t+2}"); a(f"v_fmac_f32 v{t+1}, v{t+2}, v{t+2}")
            a(f"v_add_f32 v{t}, v{t}, v{t+3}"); a(f"v_fmac_f32 v{t+1}, v{t+3}, v{t+3}")
        allreduce("v_add_f32", [t, t+1], [t+2, t+3])
        a(f"v_mul_f32 v{t}, 0x3b000000, v{t}")
        a(f"v_mul_f32 v{t+1}, 0x3b000000, v{t+1}")
        a(f"v_fma_f32 v{t+1}, -v{t}, v{t}, v{t+1}")
        a(f"v_add_f32 v{t}, s12, v{t}")
        a(f"v_max_f32 v{t+1}, 0, v{t+1}")
        a(f"v_cvt_pk_bf16_f32 v{t+2}, v{t}, v{t+1}")
        a(f"v_and_b32 v{t+1}, s63, v{t+2}")
        a(f"v_lshlrev_b32 v{t}, 16, v{t+2}")
        a(f"v_add_f32 v{t+1}, {EPS}, v{t+1}")
        for i in range(4): a(f"v_sub_f32 v{e+i}, v{e+i}, v{t}")
        rb(t+1, t+1)
        a(f"v_sqrt_f32 v{t+1}, v{t+1}")
        for i in range(4, 8): a(f"v_sub_f32 v{e+i}, v{e+i}, v{t}")
        rb(t+1, t+1)
        a(f"v_rcp_f32 v{t+1}, v{t+1}")
        for i in range(4): a(f"v_cvt_pk_bf16_f32 v{t+8+i}, v{e+2*i}, v{e+2*i+1}")
        for i in range(4):
            a(f"v_lshlrev_b32 v{e+2*i}, 16, v{t+8+i}"); a(f"v_and_b32 v{e+2*i+1}, s63, v{t+8+i}")
        for i in range(8): a(f"v_mul_f32 v{e+i}, v{e+i}, v{t+1}")
        for i in range(4): a(f"v_cvt_pk_bf16_f32 v{t+8+i}, v{e+2*i}, v{e+2*i+1}")
    def kvstep():
        a("s_add_u32 s83, s83, 4096"); a("s_and_b32 s83, s83, 0x7fff"); a("s_add_u32 s65, s64, s83")
    def role_setup():
        assert sum(NA) == 128 and sum(NB) == 56 and sum(NC) == 64 and all(x + y + z <= 32 for x, y, z in zip(NA, NB, NC))
        def pack(v): return sum(x << (8*i) for i, x in enumerate(v))
        def pre(v): return [sum(v[:i]) for i in range(8)]
        a("s_lshl_b32 s87, s4, 3")
        def look(dst, v):
            p = pack(v)
            a(f"s_mov_b32 s98, {p & 0xffffffff}"); a(f"s_mov_b32 s99, {p >> 32}")
            a("s_lshr_b64 s[98:99], s[98:99], s87"); a(f"s_and_b32 s{dst}, s98, 0xff")
        look(10, NA); look(12, NB); look(13, NC)
        look(14, pre(NA)); a("s_add_u32 s15, s14, s7")
        look(14, pre(NB)); a("s_sub_u32 s10, s7, s10"); a("s_add_u32 s9, s14, s10")
        a("s_mov_b32 s97, 3")
        a("s_sub_u32 s76, s10, s12")
        a("s_cmp_lt_u32 s76, s13"); a("s_cselect_b32 s97, 2, s97")
        a("s_cmp_lt_u32 s10, s12"); a("s_cselect_b32 s97, 1, s97")
        a("s_cmp_gt_u32 s10, s7"); a("s_cselect_b32 s97, 0, s97")
        look(14, pre(NC)); a("s_add_u32 s13, s14, s76")
        a("s_lshr_b32 s84, s15, 4"); a("s_and_b32 s84, s84, 7")
        a("s_lshr_b32 s85, s15, 2"); a("s_and_b32 s85, s85, 3")
        a("s_and_b32 s86, s15, 3")
        a("s_lshr_b32 s76, s13, 4"); a("s_and_b32 s76, s76, 3")
        a("s_and_b32 s10, s13, 15"); a("s_lshl_b32 s62, s10, 5")
    def role_branch(la, lb, lc):
        a("s_cmp_eq_u32 s97, 0"); a(f"s_cbranch_scc1 {la}")
        a("s_cmp_eq_u32 s97, 1"); a(f"s_cbranch_scc1 {lb}")
        if lc: a("s_cmp_eq_u32 s97, 2"); a(f"s_cbranch_scc1 {lc}")
        a("s_branch L_endrole" if lc else "s_branch L_fin")
    def srd(sr, sz):
        a(f"s_mov_b32 s{sr+2}, {sz}"); a(f"s_mov_b32 s{sr+3}, 0x20000")
    SZ = {16: 4096, 20: 33554432, 24: 33554432, 28: 4194304, 32: 4194304, 36: 1835008, 40: 3584, 44: 1835008, 48: 1024, 52: 4096, 56: 268435456}

    if stamps: a("s_memrealtime s[78:79]")
    for (sr, off) in ((56, 96), (20, 8), (16, 0), (28, 24), (24, 16), (32, 32), (36, 48), (40, 56), (44, 64), (48, 72), (52, 80)):
        a(f"s_load_dwordx2 s[{sr}:{sr+1}], s[0:1], {off}")
    a("s_cmp_ge_u32 s2, 256")
    a("s_cbranch_scc1 L_end")
    a("v_lshrrev_b32 v4, 6, v0")
    a("v_and_b32 v1, 63, v0")
    a("v_readfirstlane_b32 s3, v4")
    a("v_and_b32 v2, 15, v1")
    a("v_lshrrev_b32 v3, 4, v1")
    a("s_and_b32 s4, s2, 7")
    a("s_lshr_b32 s7, s2, 3")
    a("s_lshr_b32 s5, s7, 3")
    a("s_and_b32 s6, s7, 7")
    if delay:
        if delay[0] >= 0:
            a(f"s_cmp_lg_u32 s4, {delay[0]}"); a("s_cbranch_scc1 L_nodelay")
        else:
            a(f"s_cmp_eq_u32 s4, {-delay[0]-1}"); a("s_cbranch_scc1 L_nodelay")
        a("s_memrealtime s[78:79]"); a("s_waitcnt lgkmcnt(0)"); a(f"s_add_u32 s77, s78, {delay[1]}")
        a.label("L_dl"); a("s_memrealtime s[78:79]"); a("s_waitcnt lgkmcnt(0)"); a("s_cmp_lt_u32 s78, s77"); a("s_cbranch_scc1 L_dl")
        a.label("L_nodelay")
    srd(56, SZ[56]); srd(20, SZ[20]); srd(16, SZ[16]); srd(28, SZ[28])
    a("s_and_b32 s11, s3, 3")
    a("s_lshl_b32 s70, s5, 3"); a("s_add_u32 s70, s70, s4")
    a("s_lshl_b32 s64, s70, 20"); a("s_lshl_b32 s10, s6, 17"); a("s_add_u32 s64, s64, s10")
    a("s_lshl_b32 s10, s11, 15"); a("s_add_u32 s64, s64, s10")
    a("s_lshl_b32 s83, s5, 13") if rot else a("s_mov_b32 s83, 0")
    a("s_add_u32 s65, s64, s83")
    a("v_mov_b32 v6, 0")
    a("v_lshlrev_b32 v14, 4, v1")
    a("s_cmp_ge_u32 s3, 4")
    a("s_cbranch_scc1 L_v1")
    a("v_lshlrev_b32 v47, 8, v2"); a("v_lshlrev_b32 v10, 4, v3"); a("v_add_u32 v47, v47, v10")
    a("s_lshl_b32 s10, s4, 2"); a("s_add_u32 s10, s10, s5"); a("s_lshl_b32 s10, s10, 14"); a("s_lshl_b32 s12, s11, 10"); a("s_add_u32 s10, s10, s12"); a(f"s_add_u32 s66, s10, {WS_QB}")
    for k in range(1, 4): a(f"s_add_u32 s{71+k}, s66, {k*4096}")
    a("s_setprio 2")
    a("s_waitcnt lgkmcnt(0)")
    if not epoch_late: a("buffer_load_dword v5, v6, s[56:59], 0 offen sc1")
    def qloads():
        for k in range(4):
            a(f"buffer_load_dwordx4 v[{16+4*k}:{19+4*k}], v14, s[56:59], s{66 if k == 0 else 71+k} offen sc1")
    for t in range(8):
        for i in range(4):
            r = 64 + 16*t + 4*i
            a(f"buffer_load_dwordx4 v[{r}:{r+3}], v47, s[20:23], s65 offen offset:{i*64}{NT}")
        if t < 7: kvstep()
        if t == 1:
            if epoch_late: a("buffer_load_dword v5, v6, s[56:59], 0 offen sc1")
            a("v_lshlrev_b32 v9, 2, v1"); a(f"v_add_u32 v9, {L_FLAGS}, v9"); a("ds_write_b32 v9, v6"); a("v_mov_b32 v0, 1")
            a("s_waitcnt lgkmcnt(0)"); a("s_barrier")
            if touch:
                for sr in (24, 32, 36, 40, 44, 48): srd(sr, SZ[sr])
                a("v_lshlrev_b32 v9, 21, v1")
                a("s_cmp_lg_u32 s11, 3"); a("s_cbranch_scc1 L_notouch")
                for sr in touch:
                    if sr == 24: a("buffer_load_dword v4, v6, s[24:27], s64 offen nt")
                    else: a(f"buffer_load_dword v4, v9, s[{sr}:{sr+3}], 0 offen nt")
                a.label("L_notouch")
        if t == qearly - 1: qloads()
    a("s_branch L_k2")
    a.label("L_v1")
    a("v_lshrrev_b32 v10, 3, v1"); a("v_lshlrev_b32 v10, 13, v10"); a("v_and_b32 v9, 7, v1"); a("v_lshlrev_b32 v9, 4, v9"); a("v_add_u32 v10, v10, v9")
    a("s_lshl_b32 s13, s5, 20"); a("s_lshl_b32 s12, s11, 18"); a("s_add_u32 s13, s13, s12")
    a("s_lshl_b32 s12, s4, 10"); a("s_add_u32 s13, s13, s12"); a("s_lshl_b32 s12, s6, 7"); a("s_add_u32 s13, s13, s12")
    a("s_lshl_b32 s12, s11, 12"); a(f"s_add_u32 s12, s12, {L_WQ}")
    a("s_lshl_b32 s10, s11, 10")
    a("s_setprio 3")
    a("s_waitcnt lgkmcnt(0)")
    if not epoch_late: a("buffer_load_dword v5, v6, s[56:59], 0 offen sc1")
    if QL is not None:
        a(f"s_cmp_eq_u32 s4, {QL}"); a("s_cbranch_scc1 L_v_noq1")
    a("buffer_load_dwordx4 v[16:19], v14, s[16:19], s10 offen")
    a("s_mov_b32 s14, s13")
    for i in range(4):
        a("s_mov_b32 m0, s12"); a("s_add_u32 s12, s12, 1024")
        a(f"buffer_load_dwordx4 v10, s[28:31], s13 offen{NT} lds"); a("s_add_u32 s13, s13, 0x10000")
    if epoch_late: a("buffer_load_dword v5, v6, s[56:59], 0 offen sc1")
    if QL is not None:
        a(f"s_cmp_lg_u32 s4, {QH}"); a("s_cbranch_scc1 L_v_noq1")
        a(f"s_add_u32 s14, s14, {((QL - QH) * 1024) & 0xffffffff}")
        a("s_lshl_b32 s12, s11, 12"); a(f"s_add_u32 s12, s12, {L_WQ2}")
        for i in range(4):
            a("s_mov_b32 m0, s12"); a("s_add_u32 s12, s12, 1024")
            a(f"buffer_load_dwordx4 v10, s[28:31], s14 offen{NT} lds"); a("s_add_u32 s14, s14, 0x10000")
        a.label("L_v_noq1")
    a("v_lshlrev_b32 v9, 2, v1"); a(f"v_add_u32 v9, {L_FLAGS}, v9"); a("ds_write_b32 v9, v6"); a("v_mov_b32 v0, 1")
    a("s_waitcnt lgkmcnt(0)"); a("s_barrier")
    srd(24, SZ[24])
    for k in range(vearly):
        r = 64 + 4*k
        a(f"buffer_load_dwordx4 v[{r}:{r+3}], v14, s[24:27], s65 offen offset:{(k%4)*1024}{NT}")
        if k % 4 == 3: kvstep()

    if stamps:
        a("s_waitcnt lgkmcnt(0)")
        for i in range(16): a(f"v_mov_b32 v{SB+i}, 0")
        a(f"v_mov_b32 v{SB}, s78")
    for sr in (24, 32, 36, 40, 44, 48, 52): srd(sr, SZ[sr])
    role_setup()
    a("s_mov_b32 s60, 0x05040100"); a("s_mov_b32 s61, 0x07060302"); a("s_mov_b32 s63, 0xffff0000")
    a(f"v_mov_b32 v7, {L_FLAGS}"); a("s_lshl_b32 s10, s11, 2"); a("v_add_u32 v11, s10, v7")
    a("v_lshlrev_b32 v13, 3, v1")
    a("v_lshrrev_b32 v9, 2, v2"); a("v_lshlrev_b32 v10, 3, v3"); a("v_add_u32 v9, v9, v10"); a("v_lshlrev_b32 v44, 7, v9")
    a("v_and_b32 v10, 3, v2"); a("v_lshlrev_b32 v10, 3, v10"); a("v_add_u32 v44, v44, v10")
    a("s_lshl_b32 s10, s11, 12"); a(f"s_add_u32 s10, s10, {L_WQ}"); a("v_add_u32 v44, s10, v44"); a("v_mov_b32 v48, v44")
    a("v_and_b32 v45, 3, v2"); a("v_lshlrev_b32 v45, 10, v45"); a("v_lshlrev_b32 v46, 4, v3"); a("v_add_u32 v45, v45, v46")
    a("s_lshl_b32 s10, s5, 8"); a("s_lshl_b32 s12, s11, 6"); a("s_add_u32 s10, s10, s12"); a(f"s_add_u32 s10, s10, {L_YB}"); a("v_add_u32 v45, s10, v45")
    a("v_lshlrev_b32 v46, 4, v2"); a("s_lshl_b32 s10, s11, 10"); a(f"s_add_u32 s10, s10, {L_QPB}"); a("v_add_u32 v46, s10, v46")
    a("s_lshl_b32 s10, s11, 2"); a(f"s_add_u32 s10, s10, {L_QPB}"); a("v_add_u32 v47, s10, v14")
    a("s_lshl_b32 s10, s11, 10"); a(f"s_add_u32 s10, s10, {L_YB}"); a("v_add_u32 v9, s10, v14")
    a("s_lshl_b32 s10, s4, 2"); a("s_add_u32 s10, s10, s11"); a("s_lshl_b32 s10, s10, 2"); a("s_add_u32 s10, s10, s5"); a("s_lshl_b32 s10, s10, 12")
    a("s_lshl_b32 s12, s6, 9"); a("s_add_u32 s10, s10, s12"); a(f"s_add_u32 s66, s10, {WS_QB}")
    if QL is not None:
        a(f"s_cmp_eq_u32 s4, {QL}"); a("s_cbranch_scc1 L_v_noq2")
        a(f"s_cmp_eq_u32 s4, {QH}"); a("s_cbranch_scc1 L_v_w8")
        a(f"s_waitcnt vmcnt({4+vearly})"); a("s_branch L_v_w")
        a.label("L_v_w8"); a(f"s_waitcnt vmcnt({8+vearly})"); a.label("L_v_w")
    else:
        a(f"s_waitcnt vmcnt({4+vearly+(1 if epoch_late else 0)})")
    stamp(6)
    if not epoch_late: a("v_readfirstlane_b32 s8, v5")
    for i in range(4):
        a(f"v_lshlrev_b32 v{20+2*i}, 16, v{16+i}"); a(f"v_and_b32 v{21+2*i}, s63, v{16+i}")
    if not epoch_late:
        a(f"s_add_u32 s8, s8, {TAGC}")
        a("v_mov_b32 v15, s8")
    layernorm8(20, 32)
    a("ds_write_b128 v9, v[40:43]")
    setflag(F_Y)
    wait_flags4(F_Y, 40)
    a("ds_read_b128 v[192:195], v45")
    if QL is not None:
        a(f"s_cmp_eq_u32 s4, {QH}"); a("s_cbranch_scc1 L_v_w4")
        a(f"s_waitcnt vmcnt({vearly})"); a("s_branch L_v_w0")
        a.label("L_v_w4"); a(f"s_waitcnt vmcnt({4+vearly})"); a.label("L_v_w0")
    else:
        a(f"s_waitcnt vmcnt({vearly})")
    if epoch_late:
        a("v_readfirstlane_b32 s8, v5"); a("s_nop 1"); a(f"s_add_u32 s8, s8, {TAGC}"); a("v_mov_b32 v15, s8")
    stamp(7)
    for nt in range(4):
        a(f"ds_read_b64_tr_b16 v[{196+4*nt}:{197+4*nt}], v44 offset:{nt*32}")
        a(f"ds_read_b64_tr_b16 v[{198+4*nt}:{199+4*nt}], v44 offset:{nt*32+512}")
    a("s_waitcnt lgkmcnt(0)")
    for nt in range(4):
        a(f"v_mfma_f32_16x16x32_bf16 v[{212+4*nt}:{215+4*nt}], v[192:195], v[{196+4*nt}:{199+4*nt}], 0")
    a("v_mov_b32 v45, s8")
    a("s_nop 3")
    for nt in range(4): a(f"ds_write_b128 v46, v[{212+4*nt}:{215+4*nt}] offset:{nt*256}")
    setflag(F_QP)
    wait_flags4(F_QP, 40)
    for w in range(4): a(f"ds_read_b32 v{40+w}, v47 offset:{w*1024}")
    a("s_waitcnt lgkmcnt(0)")
    a("v_add_f32 v40, v40, v41"); a("v_add_f32 v42, v42, v43"); a("v_add_f32 v44, v40, v42")
    a("buffer_store_dwordx2 v[44:45], v13, s[56:59], s66 offen sc1")
    if QL is not None:
        a(f"s_cmp_lg_u32 s4, {QH}"); a("s_cbranch_scc1 L_v_q_done")
        a(f"v_add_u32 v44, {L_WQ2 - L_WQ}, v48")
        a(f"s_waitcnt vmcnt({1+vearly})")
        for nt in range(4):
            a(f"ds_read_b64_tr_b16 v[{196+4*nt}:{197+4*nt}], v44 offset:{nt*32}")
            a(f"ds_read_b64_tr_b16 v[{198+4*nt}:{199+4*nt}], v44 offset:{nt*32+512}")
        a(f"v_add_u32 v46, {L_QPB2 - L_QPB}, v46"); a(f"v_add_u32 v47, {L_QPB2 - L_QPB}, v47")
        a("s_waitcnt lgkmcnt(0)")
        for nt in range(4):
            a(f"v_mfma_f32_16x16x32_bf16 v[{212+4*nt}:{215+4*nt}], v[192:195], v[{196+4*nt}:{199+4*nt}], 0")
        a(f"s_add_u32 s66, s66, {((QL - QH) * 65536) & 0xffffffff}")
        a("s_nop 6")
        for nt in range(4): a(f"ds_write_b128 v46, v[{212+4*nt}:{215+4*nt}] offset:{nt*256}")
        setflag(F_Q2)
        wait_flags4(F_Q2, 40)
        for w in range(4): a(f"ds_read_b32 v{40+w}, v47 offset:{w*1024}")
        a("s_waitcnt lgkmcnt(0)")
        a("v_add_f32 v40, v40, v41"); a("v_add_f32 v42, v42, v43"); a("v_add_f32 v44, v40, v42")
        a("buffer_store_dwordx2 v[44:45], v13, s[56:59], s66 offen sc1")
        a("s_branch L_v_q_done")
        a.label("L_v_noq2")
        a(f"s_waitcnt vmcnt({vearly})")
        a("v_readfirstlane_b32 s8, v5")
        a("s_nop 1")
        a(f"s_add_u32 s8, s8, {TAGC}")
        a("v_mov_b32 v15, s8")
        a.label("L_v_q_done")
    a("s_setprio 1")
    stamp(1)
    for k in range(vearly, 32):
        r = 64 + 4*k
        a(f"buffer_load_dwordx4 v[{r}:{r+3}], v14, s[24:27], s65 offen offset:{(k%4)*1024}{NT}")
        if k % 4 == 3 and k < 31: kvstep()
        if vigate is not None and k == vigate: setflag(F_VI)
    stamp(2)
    a("v_lshlrev_b32 v10, 2, v2")
    a("s_lshl_b32 s10, s76, 10"); a("s_lshl_b32 s12, s62, 1"); a("s_add_u32 s10, s10, s12")
    a("buffer_load_dword v12, v10, s[16:19], s10 offen")
    a("s_lshl_b32 s95, s4, 3"); a("s_add_u32 s95, s95, s6"); a("s_lshl_b32 s95, s95, 3")
    a("v_and_b32 v9, 3, v1"); a("v_lshlrev_b32 v9, 2, v9"); a("s_lshl_b32 s12, s95, 1")
    a("buffer_load_dword v8, v9, s[48:51], s12 offen")
    a("buffer_load_dword v4, v9, s[52:55], s12 offen")
    NSM = 3
    a("v_lshlrev_b32 v20, 9, v3"); a("v_lshlrev_b32 v9, 5, v2"); a("v_add_u32 v20, v20, v9")
    a("s_lshl_b32 s10, s11, 11"); a(f"s_add_u32 s10, s10, {L_RED}"); a("v_add_u32 v20, s10, v20")
    a("s_lshl_b32 s10, s11, 9"); a(f"s_add_u32 s10, s10, {L_RED}"); a("v_add_u32 v21, s10, v13")
    a("s_lshl_b32 s10, s70, 3"); a("s_add_u32 s10, s10, s6"); a("s_lshl_b32 s10, s10, 11"); a("s_lshl_b32 s12, s11, 9"); a("s_add_u32 s10, s10, s12"); a(f"s_add_u32 s66, s10, {WS_OP}")
    a("v_lshrrev_b32 v10, 2, v2"); a("v_lshlrev_b32 v10, 6, v10"); a("v_lshlrev_b32 v9, 4, v3"); a("v_add_u32 v10, v10, v9")
    a("s_lshl_b32 s10, s11, 10"); a(f"s_add_u32 s10, s10, {L_PB}"); a("v_add_u32 v10, s10, v10")
    if not no_pwait: wait_flag1(F_P, 40, sleep=1)
    PF = 224
    for T in range(4): a(f"ds_read_b128 v[{PF+4*T}:{PF+3+4*T}], v10 offset:{T*256}")
    stamp(3)
    def perms(T, dst, ulist):
        raw = 64 + 32*T
        for u in ulist:
            for jj in range(4):
                s1 = raw + 4*(2*u) + jj; s0 = raw + 4*(2*u+1) + jj
                a(f"v_perm_b32 v{dst + 4*(2*jj) + u}, v{s0}, v{s1}, s60")
                a(f"v_perm_b32 v{dst + 4*(2*jj+1) + u}, v{s0}, v{s1}, s61")
    ACC = 32
    def mfmas(T, src, js):
        for j in js:
            c = "0" if T == 0 else f"v[{ACC+4*j}:{ACC+4*j+3}]"
            a(f"v_mfma_f32_16x16x32_bf16 v[{ACC+4*j}:{ACC+4*j+3}], v[{PF+4*T}:{PF+3+4*T}], v[{src+4*j}:{src+4*j+3}], {c}")
    F = [192, 64, 96, 128]
    def after(k): return min(63, (31 - k) + NSM)
    a(f"s_waitcnt vmcnt({after(7)})")
    perms(0, F[0], range(4))
    a(f"s_waitcnt vmcnt({after(15)}) lgkmcnt(0)")
    for u in range(4):
        perms(1, F[1], [u]); mfmas(0, F[0], [2*u, 2*u+1])
    a(f"s_waitcnt vmcnt({after(23)})")
    for u in range(4):
        perms(2, F[2], [u]); mfmas(1, F[1], [2*u, 2*u+1])
    mfmas(2, F[2], range(4))
    for u in range(4):
        a(f"s_waitcnt vmcnt({after(24+2*u+1)})")
        perms(3, F[3], [u])
        mfmas(2, F[2], [4+u])
    a("s_nop 0")
    mfmas(3, F[3], range(8))
    stamp(4)
    a("v_mov_b32 v17, s8")
    a("s_nop 6")
    for j in range(0, 8, 2):
        a(f"ds_write2_b32 v20, v{ACC+4*j}, v{ACC+4*(j+1)} offset0:{j} offset1:{j+1}")
    setflag(F_O)
    wait_flags4(F_O, 24)
    for w in range(4): a(f"ds_read_b64 v[{24+2*w}:{25+2*w}], v21 offset:{w*2048}")
    a("s_waitcnt lgkmcnt(0)")
    for c in range(2):
        a(f"v_add_f32 v{24+c}, v{24+c}, v{26+c}"); a(f"v_add_f32 v{28+c}, v{28+c}, v{30+c}")
    for c in range(2): a(f"v_add_f32 v{24+c}, v{24+c}, v{28+c}")
    a("v_cvt_pk_bf16_f32 v16, v24, v25")
    a("buffer_store_dwordx2 v[16:17], v13, s[56:59], s66 offen sc1")
    stamp(5)
    a("s_setprio 3")
    a(f"s_mov_b32 s69, {LOG2E}")
    role_branch("L_roleA", "L_roleB", "L_roleC")

    a.label("L_k2")
    if stamps:
        a("s_waitcnt lgkmcnt(0)")
        for i in range(16): a(f"v_mov_b32 v{SB+i}, 0")
        a(f"v_mov_b32 v{SB}, s78")
    stamp(2)
    if stamps:
        a("s_getreg_b32 s12, hwreg(HW_REG_HW_ID)"); a(f"v_mov_b32 v{SB+6}, s12")
        a("s_getreg_b32 s12, hwreg(HW_REG_XCC_ID)"); a("s_add_u32 s12, s12, 1"); a(f"v_mov_b32 v{SB+7}, s12")
    for sr in (24, 32, 36, 40, 44, 48, 52): srd(sr, SZ[sr])
    role_setup()
    a("s_mov_b32 s63, 0xffff0000")
    a(f"v_mov_b32 v7, {L_FLAGS}"); a("s_lshl_b32 s10, s11, 2"); a("v_add_u32 v11, s10, v7")
    a("v_lshlrev_b32 v13, 3, v1")
    a(f"s_waitcnt vmcnt({(8 - qearly) * 4})")
    a("v_readfirstlane_b32 s8, v5")
    a("s_mov_b32 s67, 0")
    a(f"s_add_u32 s8, s8, {TAGC}")
    a("v_mov_b32 v15, s8")
    Lq = lab("qg"); Lq2 = lab("qg2")
    a(f"s_branch {Lq2}")
    a.label(Lq)
    qloads()
    a("s_waitcnt vmcnt(0)")
    a.label(Lq2)
    tagcheck([17+2*i for i in range(8)], 40, 44, Lq, sleep=psleep)
    if stamps: a(f"v_mov_b32 v{SB+1}, s67")
    a("v_add_f32 v16, v16, v20"); a("v_add_f32 v24, v24, v28"); a("v_add_f32 v18, v18, v22"); a("v_add_f32 v26, v26, v30")
    a("v_add_f32 v16, v16, v24"); a("v_add_f32 v18, v18, v26")
    a("v_cvt_pk_bf16_f32 v40, v16, v18")
    a("s_lshl_b32 s10, s11, 8"); a(f"s_add_u32 s10, s10, {L_QL}")
    a("v_lshlrev_b32 v10, 2, v1"); a("v_add_u32 v10, s10, v10")
    a("ds_write_b32 v10, v40")
    setflag(F_Q)
    stamp(3)
    a("v_and_b32 v10, 3, v2"); a("v_lshlrev_b32 v10, 8, v10"); a("v_lshlrev_b32 v44, 4, v3"); a("v_add_u32 v10, v10, v44")
    a(f"v_add_u32 v10, {L_QL}, v10")
    wait_flags4(F_Q, 40)
    for i in range(4): a(f"ds_read_b128 v[{16+4*i}:{19+4*i}], v10 offset:{i*64}")
    a("s_waitcnt lgkmcnt(0)")
    for t in range(8):
        if t >= qearly: a(f"s_waitcnt vmcnt({(7-t)*4})")
        for i in range(4):
            r = 64 + 16*t + 4*i
            c = "0" if i == 0 else f"v[{32+4*t}:{35+4*t}]"
            a(f"v_mfma_f32_16x16x32_bf16 v[{32+4*t}:{35+4*t}], v[{16+4*i}:{19+4*i}], v[{r}:{r+3}], {c}")
    a(f"s_mov_b32 s68, {SCALE}"); a(f"s_mov_b32 s69, {LOG2E}")
    a("s_nop 5")
    for aa in range(2):
        for q in range(1, 4):
            for h in range(4):
                a(f"v_mov_b32_dpp v{32+16*aa+h}, v{32+16*aa+4*q+h} quad_perm:[0,1,2,3] row_mask:{hex(1<<q)} bank_mask:0xf")
    S = [[32+16*aa+h for h in range(4)] for aa in range(2)]
    for rnd in range(2):
        for aa in range(2):
            for hp in range(2): a(f"v_cvt_pk_bf16_f32 v{36+2*aa+hp}, v{S[aa][2*hp]}, v{S[aa][2*hp+1]}")
        for aa in range(2):
            for hp in range(2):
                a(f"v_lshlrev_b32 v{S[aa][2*hp]}, 16, v{36+2*aa+hp}")
                a(f"v_and_b32 v{S[aa][2*hp+1]}, s63, v{36+2*aa+hp}")
        if rnd == 0:
            for aa in range(2):
                for h in range(4): a(f"v_mul_f32 v{S[aa][h]}, s68, v{S[aa][h]}")
    for h in range(4): a(f"v_max_f32 v{40+h}, v{S[0][h]}, v{S[1][h]}")
    allreduce("v_max_f32", [40, 41, 42, 43], [44, 45, 46, 47])
    for aa in range(2):
        for h in range(4): a(f"v_sub_f32 v{S[aa][h]}, v{S[aa][h]}, v{40+h}")
    for aa in range(2):
        for h in range(4): a(f"v_mul_f32 v{S[aa][h]}, s69, v{S[aa][h]}")
    for aa in range(2):
        for h in range(4): a(f"v_exp_f32 v{S[aa][h]}, v{S[aa][h]}")
    a("s_nop 0")
    for h in range(4): a(f"v_add_f32 v{52+h}, v{S[0][h]}, v{S[1][h]}")
    allreduce("v_add_f32", [52, 53, 54, 55], [44, 45, 46, 47])
    for h in range(4):
        a(f"v_mov_b32 v{56+2*h}, v{40+h}"); a(f"v_mov_b32 v{57+2*h}, v{52+h}")
    a("s_lshl_b32 s10, s11, 5"); a(f"s_add_u32 s10, s10, {L_MLB}")
    a("v_mov_b32 v10, s10")
    a("ds_write_b128 v10, v[56:59]")
    a("ds_write_b128 v10, v[60:63] offset:16")
    setflag(F_ML)
    a("v_lshlrev_b32 v10, 3, v2"); a(f"v_add_u32 v10, {L_MLB}, v10")
    a("v_lshrrev_b32 v9, 5, v1"); a("v_lshlrev_b32 v9, 8, v9")
    a("v_and_b32 v44, 3, v1"); a("v_lshlrev_b32 v44, 4, v44"); a("v_add_u32 v9, v9, v44")
    a("v_and_b32 v44, 31, v1"); a("v_lshrrev_b32 v44, 2, v44"); a("v_lshlrev_b32 v44, 1, v44"); a("v_add_u32 v9, v9, v44")
    a("s_lshl_b32 s10, s11, 10"); a(f"s_add_u32 s10, s10, {L_PB}"); a("v_add_u32 v9, s10, v9")
    wait_flags4(F_ML, 44)
    a("ds_read_b64 v[192:193], v10")
    a("s_waitcnt lgkmcnt(0)")
    a("v_mov_b32 v194, v192")
    a("s_nop 1")
    a("v_max_f32_dpp v194, v194, v194 row_ror:4 row_mask:0xf bank_mask:0xf")
    a("s_nop 1")
    a("v_max_f32_dpp v194, v194, v194 row_ror:8 row_mask:0xf bank_mask:0xf")
    a("v_sub_f32 v195, v192, v194"); a("v_mul_f32 v195, s69, v195"); a("v_exp_f32 v195, v195"); a("s_nop 0")
    a("v_mul_f32 v196, v193, v195")
    a("s_nop 1")
    a("v_add_f32_dpp v196, v196, v196 row_ror:4 row_mask:0xf bank_mask:0xf")
    a("s_nop 1")
    a("v_add_f32_dpp v196, v196, v196 row_ror:8 row_mask:0xf bank_mask:0xf")
    a("v_rcp_f32 v197, v196"); a("s_nop 0")
    a("v_mul_f32 v197, v197, v195")
    a("s_lshl_b32 s10, s11, 2")
    for h in range(4):
        a(f"s_add_u32 s12, s10, {h}")
        a(f"v_readlane_b32 s{72+h}, v197, s12")
    a("v_mov_b32 v56, v194"); a("v_mov_b32 v57, s8"); a("v_mov_b32 v58, v196"); a("v_mov_b32 v59, s8")
    for aa in range(2):
        for h in range(4): a(f"v_mul_f32 v{S[aa][h]}, s{72+h}, v{S[aa][h]}")
    for aa in range(2):
        for hp in range(2): a(f"v_cvt_pk_bf16_f32 v{36+2*aa+hp}, v{S[aa][2*hp]}, v{S[aa][2*hp+1]}")
    for aa in range(2):
        for hp in range(2):
            a(f"ds_write_b16 v9, v{36+2*aa+hp} offset:{aa*512 + (2*hp)*64}")
            a(f"ds_write_b16_d16_hi v9, v{36+2*aa+hp} offset:{aa*512 + (2*hp+1)*64}")
    setflag(F_P)
    a("s_lshl_b32 s10, s70, 3"); a("s_add_u32 s10, s10, s6"); a("s_lshl_b32 s10, s10, 6")
    a("s_lshl_b32 s12, s11, 4"); a("s_add_u32 s10, s10, s12"); a(f"s_add_u32 s10, s10, {WS_ML}")
    a("s_lshl_b64 s[12:13], 1, s11")
    a("s_mov_b64 exec, s[12:13]")
    a("buffer_store_dwordx4 v[56:59], v6, s[56:59], s10 offen sc1")
    a("s_mov_b64 exec, -1")
    stamp(4)
    role_branch("L_kA", "L_kB", None)

    a.label("L_kA")
    a("s_mov_b32 s72, s85")
    a("v_lshrrev_b32 v22, 1, v2"); a("v_xor_b32 v22, v22, v3"); a("v_lshlrev_b32 v22, 5, v22")
    a("v_lshlrev_b32 v23, 10, v3"); a("v_add_u32 v22, v22, v23"); a("v_and_b32 v23, 1, v1"); a("v_lshlrev_b32 v23, 4, v23"); a("v_add_u32 v22, v22, v23")
    a("v_xor_b32 v23, 0x80, v22")
    a("s_lshl_b32 s14, s84, 2"); a("s_add_u32 s14, s14, s72"); a("s_lshl_b32 s14, s14, 17")
    a("s_lshl_b32 s13, s11, 15"); a("s_add_u32 s14, s14, s13"); a("s_lshl_b32 s13, s86, 8"); a("s_add_u32 s14, s14, s13")
    a("s_lshl_b32 s15, s11, 13")
    if L_W: a(f"s_add_u32 s15, s15, {L_W}")
    a("s_cmp_lg_u32 s3, 0"); a("s_cbranch_scc1 L_kA_dma")
    a("v_lshrrev_b32 v10, 3, v1"); a("v_and_b32 v10, 3, v10"); a("v_lshlrev_b32 v10, 12, v10"); a("v_and_b32 v9, 7, v1"); a("v_lshlrev_b32 v9, 6, v9"); a("v_add_u32 v10, v10, v9")
    a("s_lshl_b32 s12, s84, 9"); a("s_lshl_b32 s10, s72, 4"); a("s_add_u32 s10, s10, s12"); a(f"s_add_u32 s66, s10, {WS_ML}")
    a("s_mov_b32 s67, 0")
    Lm = lab("mg"); a.label(Lm)
    a(f"s_sleep {mlsleep}")
    a("buffer_load_dwordx4 v[192:195], v10, s[56:59], s66 offen sc1")
    a("s_waitcnt vmcnt(0)")
    tagcheck([193, 195], 40, 44, Lm, sleep=0)
    def red8(op, r, t):
        for mod in ("quad_perm:[1,0,3,2]", "quad_perm:[2,3,0,1]", "row_half_mirror"):
            a("s_nop 1")
            a(f"{op}_dpp v{r}, v{r}, v{r} {mod} row_mask:0xf bank_mask:0xf")
    a("v_mov_b32 v40, v192")
    red8("v_max_f32", 40, 41)
    a("v_sub_f32 v41, v192, v40"); a("v_mul_f32 v41, s69, v41"); a("v_exp_f32 v41, v41"); a("s_nop 0")
    a("v_mul_f32 v41, v41, v194")
    a("v_mov_b32 v42, v41")
    red8("v_add_f32", 42, 43)
    a("v_rcp_f32 v42, v42"); a("s_nop 0")
    a("v_mul_f32 v41, v41, v42")
    a("v_and_b32 v9, 31, v1"); a("v_lshlrev_b32 v9, 2, v9"); a(f"v_add_u32 v9, {L_WR}, v9")
    a("ds_write_b32 v9, v41")
    setflag(F_WR)
    a.label("L_kA_dma")
    a("s_setprio 0")
    if vigate is not None: wait_flags4(F_VI, 44, sleep=2)
    for i in range(8):
        a("s_mov_b32 m0, s15"); a("s_add_u32 s15, s15, 1024")
        if not no_w: a(f"buffer_load_dwordx4 v{22 + ((i>>1)&1)}, s[32:35], s14 offen{NT} lds")
        a("s_add_u32 s14, s14, 4096")
    a("s_branch L_roleA")

    a.label("L_kB")
    a("s_setprio 0")
    a("v_lshrrev_b32 v22, 2, v1"); a("v_mul_u32_u24 v22, 3584, v22")
    a("v_lshrrev_b32 v23, 1, v1"); a("v_and_b32 v23, 1, v23"); a("v_lshrrev_b32 v24, 5, v1"); a("v_xor_b32 v23, v23, v24"); a("v_lshlrev_b32 v23, 5, v23"); a("v_add_u32 v22, v22, v23")
    a("v_and_b32 v23, 1, v1"); a("v_lshlrev_b32 v23, 4, v23"); a("v_add_u32 v22, v22, v23")
    a(f"s_mul_i32 s12, s11, {128*3584}"); a("s_lshl_b32 s13, s9, 6"); a("s_add_u32 s12, s12, s13")
    a("s_lshl_b32 s13, s11, 13")
    if L_W: a(f"s_add_u32 s13, s13, {L_W}")
    a("s_and_b32 s10, s11, 1"); a("s_lshl_b32 s10, s10, 7"); a("v_xor_b32 v24, s10, v14")
    a("v_xor_b32 v25, 32, v24"); a("v_xor_b32 v26, 64, v24"); a("v_xor_b32 v27, 0x60, v24")
    a("s_lshl_b32 s14, s9, 15"); a("s_lshl_b32 s15, s11, 13"); a("s_add_u32 s14, s14, s15"); a(f"s_add_u32 s15, s15, {L_W2}")
    wait_flags4(F_O, 44, sleep=2)
    for i in range(8):
        a("s_mov_b32 m0, s13"); a("s_add_u32 s13, s13, 1024")
        if not no_w: a(f"buffer_load_dwordx4 v22, s[36:39], s12 offen{NT} lds")
        a(f"s_add_u32 s12, s12, {16*3584}")
    for i in range(8):
        a("s_mov_b32 m0, s15"); a("s_add_u32 s15, s15, 1024")
        if not no_w: a(f"buffer_load_dwordx4 v{24 + (i&3)}, s[44:47], s14 offen{NT} lds")
        a("s_add_u32 s14, s14, 1024")
    a("s_waitcnt vmcnt(0)")
    setflag(F_W)
    stamp(5)
    a("s_branch L_roleB")

    a.label("L_roleA")
    a("s_lshr_b32 s71, s3, 2")
    a("s_mov_b32 s72, s85")
    a("s_mov_b32 s73, s86")
    a("v_lshrrev_b32 v21, 3, v2"); a("v_lshlrev_b32 v21, 17, v21"); a("v_and_b32 v9, 7, v2"); a("v_lshlrev_b32 v9, 11, v9"); a("v_add_u32 v21, v21, v9")
    a("v_lshlrev_b32 v9, 5, v3"); a("v_add_u32 v21, v21, v9")
    a("s_lshl_b32 s10, s71, 18"); a("s_lshl_b32 s12, s84, 14"); a("s_add_u32 s10, s10, s12"); a("s_lshl_b32 s12, s72, 9"); a("s_add_u32 s10, s10, s12")
    a("s_lshl_b32 s12, s11, 7"); a("s_add_u32 s10, s10, s12"); a(f"s_add_u32 s75, s10, {WS_OP}")
    a("s_cmp_lt_u32 s3, 4"); a("s_cbranch_scc1 L_A_common")
    a("buffer_load_dwordx4 v[192:195], v21, s[56:59], s75 offen sc1")
    a("buffer_load_dwordx4 v[196:199], v21, s[56:59], s75 offen offset:16 sc1")
    a.label("L_A_common")
    a("v_lshrrev_b32 v9, 2, v2"); a("v_lshlrev_b32 v10, 3, v3"); a("v_add_u32 v10, v10, v9"); a("v_lshlrev_b32 v10, 8, v10")
    a("v_and_b32 v44, 3, v2"); a("v_lshlrev_b32 v44, 3, v44"); a("v_add_u32 v10, v10, v44")
    a("v_and_b32 v44, 1, v3"); a("v_lshlrev_b32 v44, 2, v44"); a("v_or_b32 v44, v44, v9"); a("v_lshlrev_b32 v44, 5, v44"); a("v_add_u32 v10, v10, v44")
    a("s_lshl_b32 s10, s11, 13")
    if L_W: a(f"s_add_u32 s10, s10, {L_W}")
    a("v_add_u32 v24, s10, v10")
    for nt in range(1, 8): a(f"v_xor_b32 v{24+nt}, {nt*32}, v24")
    a("v_lshrrev_b32 v9, 1, v3"); a("v_lshlrev_b32 v9, 9, v9"); a("v_and_b32 v44, 1, v3"); a("v_lshlrev_b32 v44, 6, v44"); a("v_add_u32 v9, v9, v44")
    a("v_lshlrev_b32 v44, 2, v2"); a("v_add_u32 v9, v9, v44")
    a("s_lshl_b32 s10, s11, 11"); a("s_lshl_b32 s12, s71, 10"); a("s_add_u32 s10, s10, s12"); a(f"s_add_u32 s10, s10, {L_R1}"); a("v_add_u32 v60, s10, v9")
    a("s_lshl_b32 s10, s3, 8"); a(f"s_add_u32 s10, s10, {L_R1}"); a("v_lshlrev_b32 v9, 2, v1"); a("v_add_u32 v61, s10, v9")
    a("s_lshr_b32 s10, s3, 1"); a("s_lshl_b32 s10, s10, 5"); a("s_lshl_b32 s12, s84, 2"); a("s_add_u32 s10, s10, s12"); a("s_add_u32 s10, s10, s72"); a("s_lshl_b32 s10, s10, 12")
    a("s_lshl_b32 s12, s73, 10"); a("s_add_u32 s10, s10, s12"); a("s_and_b32 s12, s3, 1"); a("s_lshl_b32 s12, s12, 9"); a("s_add_u32 s10, s10, s12"); a(f"s_add_u32 s74, s10, {WS_HP}")
    a("v_mov_b32 v63, s8")
    a("s_mov_b32 s67, 0")
    a("v_lshlrev_b32 v62, 4, v3"); a("s_lshl_b32 s10, s71, 6"); a(f"s_add_u32 s10, s10, {L_WR}"); a("v_add_u32 v62, s10, v62")
    def wr_read():
        L = lab("wr"); a.label(L)
        a(f"ds_read_b32 v40, v7 offset:{F_WR}")
        a("s_waitcnt lgkmcnt(0)")
        a("v_cmp_ne_u32 vcc, 1, v40")
        a(f"s_cbranch_vccnz {L}")
        a("ds_read_b128 v[48:51], v62")
    a("s_cmp_lt_u32 s3, 4"); a("s_cbranch_scc1 L_A_k")
    wait_flag1(F_W, 40)
    for nt in range(8):
        a(f"ds_read_b64_tr_b16 v[{64+4*nt}:{65+4*nt}], v{24+nt}")
        a(f"ds_read_b64_tr_b16 v[{66+4*nt}:{67+4*nt}], v{24+nt} offset:1024")
        if nt == 3: a("s_waitcnt lgkmcnt(0)")
    wr_read()
    Lo = lab("og"); Lo2 = lab("og2")
    stamp(13)
    a(f"s_branch {Lo2}")
    a.label("L_A_k")
    a("s_waitcnt vmcnt(0)")
    setflag(F_W)
    stamp(5)
    a("s_setprio 3")
    for nt in range(8):
        a(f"ds_read_b64_tr_b16 v[{64+4*nt}:{65+4*nt}], v{24+nt}")
        a(f"ds_read_b64_tr_b16 v[{66+4*nt}:{67+4*nt}], v{24+nt} offset:1024")
        if nt == 3: a("s_waitcnt lgkmcnt(0)")
    wr_read()
    wait_flags4(F_O, 40, sleep=1)
    stamp(13)
    a.label(Lo)
    a("buffer_load_dwordx4 v[192:195], v21, s[56:59], s75 offen sc1")
    a("buffer_load_dwordx4 v[196:199], v21, s[56:59], s75 offen offset:16 sc1")
    a.label(Lo2)
    a("s_waitcnt vmcnt(0) lgkmcnt(0)")
    tagcheck([193, 195, 197, 199], 40, 44, Lo, sleep=tsleep)
    stamp(8)
    a("v_mov_b32 v193, v194"); a("v_mov_b32 v194, v196"); a("v_mov_b32 v195, v198")
    a("s_nop 1")
    for nt in range(8):
        a(f"v_mfma_f32_16x16x32_bf16 v[{96+4*nt}:{99+4*nt}], v[192:195], v[{64+4*nt}:{67+4*nt}], 0")
    a("s_nop 0")
    for r in range(4):
        for nt in range(8):
            if r == 0: a(f"v_mul_f32 v{128+nt}, v48, v{96+4*nt}")
            else: a(f"v_fmac_f32 v{128+nt}, v{48+r}, v{96+4*nt+r}")
    for p in range(4): a(f"v_permlane16_swap_b32 v{128+2*p}, v{129+2*p}") if p else (a("s_nop 0"), a(f"v_permlane16_swap_b32 v128, v129"))
    for p in range(4): a(f"v_add_f32 v{128+2*p}, v{128+2*p}, v{129+2*p}")
    stamp(10)
    for p in range(4): a(f"ds_write_b32 v60, v{128+2*p} offset:{p*128}")
    a("s_waitcnt lgkmcnt(0)")
    a("s_barrier")
    stamp(11)
    for kt in range(4): a(f"ds_read_b32 v{40+kt}, v61 offset:{kt*2048}")
    a("s_waitcnt lgkmcnt(0)")
    a("v_add_f32 v40, v40, v41"); a("v_add_f32 v42, v42, v43"); a("v_add_f32 v62, v40, v42")
    a("buffer_store_dwordx2 v[62:63], v13, s[56:59], s74 offen sc1")
    stamp(9)
    a("s_branch L_endrole")

    a.label("L_roleB")
    a("s_setprio 3")
    a("s_add_u32 s96, s8, 1")
    a("v_and_b32 v10, 31, v1"); a("v_lshlrev_b32 v10, 1, v10"); a("s_lshl_b32 s10, s9, 6")
    a("buffer_load_ushort v16, v10, s[40:43], s10 offen")
    a("v_lshrrev_b32 v9, 2, v2"); a("v_lshlrev_b32 v10, 3, v3"); a("v_add_u32 v9, v10, v9")
    a("v_and_b32 v44, 3, v2"); a("v_lshlrev_b32 v44, 3, v44")
    a("v_lshlrev_b32 v10, 6, v9"); a("v_add_u32 v10, v10, v44"); a("v_and_b32 v45, 1, v3"); a("v_lshlrev_b32 v46, 5, v45"); a("v_add_u32 v10, v10, v46")
    a("s_lshl_b32 s10, s3, 12")
    if L_W: a(f"s_add_u32 s10, s10, {L_W}")
    a("v_add_u32 v52, s10, v10"); a("v_xor_b32 v53, 32, v52")
    a("v_lshlrev_b32 v10, 10, v9"); a("v_add_u32 v10, v10, v44")
    a("v_lshrrev_b32 v46, 2, v2"); a("v_lshlrev_b32 v45, 2, v45"); a("v_or_b32 v46, v46, v45"); a("v_lshlrev_b32 v46, 5, v46"); a("v_add_u32 v10, v10, v46")
    a("s_lshl_b32 s10, s3, 7"); a("v_xor_b32 v10, s10, v10"); a(f"v_add_u32 v54, {L_W2}, v10")
    for q in range(1, 4): a(f"v_xor_b32 v{54+q}, {q*32}, v54")
    a("v_and_b32 v58, 3, v2"); a("v_lshlrev_b32 v58, 10, v58"); a("v_lshlrev_b32 v9, 4, v3"); a("v_add_u32 v58, v58, v9")
    a("s_lshl_b32 s10, s3, 7"); a(f"s_add_u32 s10, s10, {L_YB}"); a("v_add_u32 v58, s10, v58")
    a("v_lshlrev_b32 v59, 4, v2"); a("s_lshl_b32 s10, s3, 9"); a(f"s_add_u32 s10, s10, {L_T1}"); a("v_add_u32 v59, s10, v59")
    a("v_and_b32 v60, 31, v1"); a("v_lshlrev_b32 v60, 4, v60"); a("v_lshrrev_b32 v9, 5, v1"); a("v_lshlrev_b32 v9, 11, v9"); a("v_add_u32 v60, v60, v9"); a(f"v_add_u32 v60, {L_T1}, v60")
    a("v_and_b32 v61, 31, v1"); a("v_lshlrev_b32 v61, 1, v61"); a("v_lshrrev_b32 v9, 5, v1"); a("v_lshlrev_b32 v9, 7, v9"); a("v_add_u32 v61, v61, v9")
    a("s_lshl_b32 s10, s3, 8"); a(f"s_add_u32 s10, s10, {L_GB}"); a("v_add_u32 v61, s10, v61")
    a("v_and_b32 v62, 3, v2"); a("v_lshlrev_b32 v62, 6, v62"); a("v_lshlrev_b32 v9, 4, v3"); a("v_add_u32 v62, v62, v9"); a("v_add_u32 v62, s10, v62")
    a("s_lshl_b32 s10, s9, 12"); a("s_lshl_b32 s12, s3, 9"); a("s_add_u32 s10, s10, s12"); a(f"s_add_u32 s72, s10, {WS_GP}")
    for bb in range(1, 4): a(f"s_add_u32 s{72+bb}, s72, {bb*56*4096}")
    for r in range(4): a(f"v_mov_b32 v{113+2*r}, s96")
    a("v_mov_b32 v46, 0x3d372713")
    a("s_lshl_b32 s10, s3, 10"); a(f"s_add_u32 s10, s10, {L_YB}"); a("v_add_u32 v63, s10, v14")
    a("v_lshlrev_b32 v10, 5, v1"); a("s_lshl_b32 s10, s3, 11"); a("s_lshl_b32 s12, s4, 13"); a("s_add_u32 s10, s10, s12"); a(f"s_add_u32 s66, s10, {WS_H}")
    wait_flags4(F_W, 40, sleep=1)
    for kt in range(2):
        for nt in range(2):
            r = 64 + (kt*2+nt)*4
            a(f"ds_read_b64_tr_b16 v[{r}:{r+1}], v{52+nt} offset:{kt*2048}")
            a(f"ds_read_b64_tr_b16 v[{r+2}:{r+3}], v{52+nt} offset:{kt*2048+256}")
    for q in range(4):
        r = 80 + 4*q
        a(f"ds_read_b64_tr_b16 v[{r}:{r+1}], v{54+q}")
        a(f"ds_read_b64_tr_b16 v[{r+2}:{r+3}], v{54+q} offset:4096")
    a("s_waitcnt vmcnt(0) lgkmcnt(0)")
    a("v_lshlrev_b32 v16, 16, v16")
    a("s_cmp_ge_u32 s3, 4"); a("s_cbranch_scc1 L_B_ln_done")
    a("s_mov_b32 s67, 0")
    Lh = lab("hg"); a.label(Lh)
    a("buffer_load_dwordx4 v[192:195], v10, s[56:59], s66 offen sc1")
    a("buffer_load_dwordx4 v[196:199], v10, s[56:59], s66 offen offset:16 sc1")
    a("s_waitcnt vmcnt(0)")
    tagcheck([193, 195, 197, 199], 40, 44, Lh, sleep=tsleep)
    stamp(10)
    for i in range(4):
        a(f"v_lshlrev_b32 v{20+2*i}, 16, v{192+2*i}"); a(f"v_and_b32 v{21+2*i}, s63, v{192+2*i}")
    layernorm8(20, 32)
    a("ds_write_b128 v63, v[40:43]")
    a("s_waitcnt lgkmcnt(0)")
    stamp(12)
    a.label("L_B_ln_done")
    a("s_barrier")
    for kt in range(2): a(f"ds_read_b128 v[{192+4*kt}:{195+4*kt}], v58 offset:{kt*64}")
    a("s_waitcnt lgkmcnt(0)")
    for kt in range(2):
        for nt in range(2):
            r = 64 + (kt*2+nt)*4
            c = "0" if kt == 0 else f"v[{96+4*nt}:{99+4*nt}]"
            a(f"v_mfma_f32_16x16x32_bf16 v[{96+4*nt}:{99+4*nt}], v[{192+4*kt}:{195+4*kt}], v[{r}:{r+3}], {c}")
    a("s_nop 6")
    a("ds_write_b128 v59, v[96:99]")
    a("s_nop 0")
    a("ds_write_b128 v59, v[100:103] offset:256")
    a("s_waitcnt lgkmcnt(0)")
    stamp(13)
    a("s_barrier")
    stamp(14)
    for i in range(4): a(f"ds_read_b128 v[{192+4*i}:{195+4*i}], v60 offset:{i*512}")
    a("s_waitcnt lgkmcnt(0)")
    for c in range(4):
        a(f"v_add_f32 v{192+c}, v{192+c}, v{196+c}"); a(f"v_add_f32 v{200+c}, v{200+c}, v{204+c}")
    for c in range(4): a(f"v_add_f32 v{192+c}, v{192+c}, v{200+c}")
    a("s_nop 0")
    a("v_permlane32_swap_b32 v192, v194"); a("v_permlane32_swap_b32 v193, v195")
    a("v_add_f32 v40, v192, v194"); a("v_add_f32 v41, v193, v195")
    a("v_cvt_pk_bf16_f32 v42, v40, v41"); a("v_lshlrev_b32 v40, 16, v42"); a("v_and_b32 v41, s63, v42")
    a("v_add_f32 v40, v40, v16"); a("v_add_f32 v41, v41, v16")
    a("v_cvt_pk_bf16_f32 v42, v40, v41"); a("v_lshlrev_b32 v40, 16, v42"); a("v_and_b32 v41, s63, v42")
    for c in range(2): a(f"v_mul_f32 v{42+c}, v{40+c}, v{40+c}")
    for c in range(2): a(f"v_fma_f32 v{42+c}, v{42+c}, v46, 1.0")
    for c in range(2): a(f"v_mul_f32 v{42+c}, v{42+c}, v{40+c}")
    for c in range(2): a(f"v_mul_f32 v{42+c}, 0xc0135761, v{42+c}")
    for c in range(2): a(f"v_exp_f32 v{42+c}, v{42+c}")
    a("s_nop 0")
    for c in range(2): a(f"v_add_f32 v{42+c}, 1.0, v{42+c}")
    for c in range(2): a(f"v_rcp_f32 v{42+c}, v{42+c}")
    a("s_nop 0")
    for c in range(2): a(f"v_mul_f32 v{40+c}, v{40+c}, v{42+c}")
    a("v_cvt_pk_bf16_f32 v40, v40, v41")
    stamp(8)
    a("ds_write_b16 v61, v40"); a("ds_write_b16_d16_hi v61, v40 offset:64")
    a("ds_read_b128 v[192:195], v62")
    a("s_waitcnt lgkmcnt(0)")
    for q in range(4):
        a(f"v_mfma_f32_16x16x32_bf16 v[{96+4*q}:{99+4*q}], v[192:195], v[{80+4*q}:{83+4*q}], 0")
    a("s_nop 4")
    for r in range(4): a(f"v_mov_b32 v{112+2*r}, v{96+r}")
    for q in range(1, 4):
        for r in range(4):
            a(f"v_mov_b32_dpp v{112+2*r}, v{96+4*q+r} quad_perm:[0,1,2,3] row_mask:{hex(1<<q)} bank_mask:0xf")
    for r in range(4): a(f"buffer_store_dwordx2 v[{112+2*r}:{113+2*r}], v13, s[56:59], s{72+r} offen sc1")
    stamp(11)
    a("s_branch L_endrole")

    a.label("L_roleC")
    a("s_cmp_lg_u32 s3, 7"); a("s_cbranch_scc1 L_fin")
    a("s_setprio 3")
    a("v_lshlrev_b32 v10, 12, v3"); a("v_lshlrev_b32 v9, 4, v2"); a("v_add_u32 v18, v10, v9")
    a("s_lshl_b32 s10, s76, 17"); a("s_lshl_b32 s12, s62, 3"); a("s_add_u32 s10, s10, s12"); a(f"s_add_u32 s80, s10, {WS_HP}")
    for t in range(1, 8): a(f"s_add_u32 s{80+t}, s80, {t*16384}")
    a("s_lshl_b32 s10, s76, 11"); a("s_lshl_b32 s12, s62, 2"); a("s_add_u32 s10, s10, s12"); a(f"s_add_u32 s72, s10, {WS_H}"); a("s_add_u32 s74, s72, 32768")
    a("v_lshlrev_b32 v17, 3, v2"); a("v_lshlrev_b32 v9, 13, v3"); a("v_add_u32 v17, v17, v9")
    a("s_mov_b32 s67, 0")
    Ls = lab("sg"); a.label(Ls)
    for t in range(8): a(f"buffer_load_dwordx4 v[{64+4*t}:{67+4*t}], v18, s[56:59], s{80+t} offen sc1")
    a("s_waitcnt vmcnt(0)")
    tagcheck([65+2*i for i in range(16)], 40, 44, Ls, sleep=tsleep)
    stamp(12)
    def tree2(n):
        ra = [64 + 4*t for t in range(n)]
        while len(ra) > 1:
            nxt = []
            for i in range(0, len(ra) - 1, 2):
                a(f"v_add_f32 v{ra[i]}, v{ra[i]}, v{ra[i+1]}"); a(f"v_add_f32 v{ra[i]+2}, v{ra[i]+2}, v{ra[i+1]+2}"); nxt.append(ra[i])
            if len(ra) % 2: nxt.append(ra[-1])
            ra = nxt
    def xrow():
        a("s_nop 1")
        a("v_permlane32_swap_b32 v64, v66")
        a("v_add_f32 v64, v64, v66")
        a("v_mov_b32 v66, v64"); a("s_nop 1")
        a("v_permlane16_swap_b32 v64, v66")
        a("v_add_f32 v64, v64, v66")
        a("v_mov_b32 v66, v64"); a("s_nop 1")
        a("v_permlane32_swap_b32 v64, v66")
    tree2(8)
    xrow()
    a("v_cvt_pk_bf16_f32 v40, v64, v66")
    a("v_lshlrev_b32 v43, 16, v12"); a("v_and_b32 v44, s63, v12")
    a("v_lshlrev_b32 v41, 16, v40"); a("v_and_b32 v42, s63, v40")
    a("v_add_f32 v41, v41, v43"); a("v_add_f32 v42, v42, v44")
    a("v_cvt_pk_bf16_f32 v40, v41, v42")
    a("v_mov_b32 v41, v15")
    a("buffer_store_dwordx2 v[40:41], v17, s[56:59], s72 offen sc1")
    a("buffer_store_dwordx2 v[40:41], v17, s[56:59], s74 offen sc1")
    stamp(13)
    a.label("L_endrole")
    a("s_cmp_lg_u32 s3, 7"); a("s_cbranch_scc1 L_fin")
    a("s_setprio 3")
    a("s_add_u32 s96, s8, 1")
    a("v_lshrrev_b32 v10, 2, v1"); a("v_lshlrev_b32 v10, 12, v10"); a("v_and_b32 v9, 3, v1"); a("v_lshlrev_b32 v17, 4, v9"); a("v_add_u32 v18, v10, v17")
    a(f"s_mul_i32 s10, s5, {56*4096}"); a("s_lshl_b32 s12, s95, 3"); a("s_add_u32 s10, s10, s12"); a(f"s_add_u32 s80, s10, {WS_GP}")
    for t in range(1, 4): a(f"s_add_u32 s{80+t}, s80, {t*65536}")
    a("s_lshl_b32 s10, s4, 13"); a("s_lshl_b32 s12, s5, 11"); a("s_add_u32 s10, s10, s12"); a("s_lshl_b32 s12, s95, 2"); a("s_add_u32 s10, s10, s12"); a(f"s_add_u32 s84, s10, {WS_H}")
    a("v_lshlrev_b32 v19, 3, v9")
    a("s_lshl_b32 s10, s5, 10"); a("s_lshl_b32 s12, s95, 1"); a("s_add_u32 s73, s10, s12")
    a("v_lshlrev_b32 v16, 2, v9")
    a("v_mov_b32 v76, 0"); a("v_mov_b32 v77, s96"); a("v_mov_b32 v78, 0"); a("v_mov_b32 v79, s96")
    a("s_mov_b32 s67, 0")
    Lh4 = lab("h4"); a.label(Lh4)
    a("buffer_load_dwordx2 v[20:21], v19, s[56:59], s84 offen sc1")
    a("s_waitcnt vmcnt(0)")
    tagcheck([21], 40, 44, Lh4, sleep=4)
    a("v_lshlrev_b32 v21, 16, v20"); a("v_and_b32 v22, s63, v20")
    a("v_lshlrev_b32 v23, 16, v8"); a("v_and_b32 v24, s63, v8")
    a("s_mov_b32 s67, 0")
    Lg = lab("gg"); a.label(Lg)
    for t in range(3): a(f"buffer_load_dwordx4 v[{64+4*t}:{67+4*t}], v18, s[56:59], s{80+t} offen sc1")
    a("s_mov_b64 s[98:99], exec")
    a("s_mov_b32 exec_hi, 0")
    Lx = lab("x"); a(f"s_cbranch_execz {Lx}")
    a("buffer_load_dwordx4 v[76:79], v18, s[56:59], s83 offen sc1")
    a.label(Lx)
    a("s_mov_b64 exec, s[98:99]")
    a("s_waitcnt vmcnt(0)")
    tagcheck([65+2*i for i in range(8)], 40, 44, Lg, sleep=tsleep, tag="s96")
    stamp(14)
    a("v_add_f32 v64, v64, v68"); a("v_add_f32 v66, v66, v70"); a("v_add_f32 v72, v72, v76"); a("v_add_f32 v74, v74, v78")
    a("v_add_f32 v64, v64, v72"); a("v_add_f32 v66, v66, v74")
    for rot in (4, 8):
        a("s_nop 0")
        a(f"v_add_f32_dpp v64, v64, v64 row_ror:{rot} row_mask:0xf bank_mask:0xf")
        a(f"v_add_f32_dpp v66, v66, v66 row_ror:{rot} row_mask:0xf bank_mask:0xf")
    a("s_nop 1")
    a("v_permlane32_swap_b32 v64, v66")
    a("v_add_f32 v64, v64, v66")
    a("v_mov_b32 v66, v64"); a("s_nop 1")
    a("v_permlane16_swap_b32 v64, v66")
    a("v_add_f32 v64, v64, v66")
    a("v_mov_b32 v66, v64"); a("s_nop 1")
    a("v_permlane32_swap_b32 v64, v66")
    a("v_cvt_pk_bf16_f32 v40, v64, v66")
    a("v_lshlrev_b32 v41, 16, v40"); a("v_and_b32 v42, s63, v40")
    a("v_add_f32 v41, v41, v23"); a("v_add_f32 v42, v42, v24")
    a("v_cvt_pk_bf16_f32 v40, v41, v42")
    a("v_lshlrev_b32 v41, 16, v40"); a("v_and_b32 v42, s63, v40")
    a("v_add_f32 v41, v41, v21"); a("v_add_f32 v42, v42, v22")
    a("v_cvt_pk_bf16_f32 v40, v41, v42")
    a("s_mov_b64 exec, 0xf")
    a(f"buffer_store_dword v40, v16, s[52:55], s73 offen{OUTF}")
    a("s_mov_b64 exec, -1")
    a("s_cmp_lg_u32 s2, 0"); a("s_cbranch_scc1 L_fin")
    a("s_mov_b64 exec, 1")
    a("buffer_store_dword v15, v6, s[56:59], 0 offen sc1")
    a("s_mov_b64 exec, -1")
    a.label("L_fin")
    if stamps == "dbg":
        stamp(15)
        a("s_cmp_lg_u32 s3, 7"); a("s_cbranch_scc1 L_end")
        a("s_load_dwordx2 s[88:89], s[0:1], 88")
        a("s_waitcnt lgkmcnt(0)")
        a("s_mov_b32 s90, 256"); a("s_mov_b32 s91, 0x20000")
        a(f"v_not_b32 v{SB}, v{SB}")
        a("v_mov_b32 v44, 0")
        a("s_mov_b64 exec, 1")
        for k, idx in enumerate((0, 6, 1, 2, 4, 5, 14, 15)):
            a(f"buffer_atomic_umax v{SB+idx}, v44, s[88:91], 0 offen offset:{4*k}")
        a("s_mov_b64 exec, -1")
    elif stamps:
        stamp(15)
        a("s_lshl_b32 s10, s2, 3"); a("s_add_u32 s10, s10, s3"); a("s_lshl_b32 s10, s10, 6"); a(f"s_add_u32 s10, s10, {WS_STAMP}")
        a("v_mov_b32 v44, 0")
        a("s_mov_b64 exec, 1")
        for i in range(4): a(f"buffer_store_dwordx4 v[{SB+4*i}:{SB+3+4*i}], v44, s[56:59], s10 offen offset:{16*i}")
        a("s_mov_b64 exec, -1")
    a.label("L_end")
    a("s_endpgm")
    return a

HDR = """; Fused decode block: h = x + Attn(LN(x)) ; out = h + MLP(LN(h))      (B=4, D=512, Hq=32, Hkv=8, Sk=4096, Dh=128, F=1792)
; @launch grid=(256,1,1) block=(512,1,1) lds={lds}
.amdgcn_target "amdgcn-amd-amdhsa--gfx950"
.text
.globl {name}_kernel
.p2align 8
.type {name}_kernel,@function
{name}_kernel:
"""
FTR = """
.section .rodata,"a"
.p2align 6
.amdhsa_kernel {name}_kernel
  .amdhsa_next_free_vgpr 256
  .amdhsa_next_free_sgpr 102
  .amdhsa_accum_offset 256
  .amdhsa_group_segment_fixed_size 0
  .amdhsa_kernarg_size 104
  .amdhsa_user_sgpr_count 2
  .amdhsa_user_sgpr_kernarg_segment_ptr 1
  .amdhsa_system_sgpr_workgroup_id_x 1
.end_amdhsa_kernel
"""
def build(path, **kw):
    a = gen(**kw)
    probs = check_hazards(a.lines)
    open(path, "w").write(HDR.format(name=NAME, lds=LDS_BYTES) + a.text() + FTR.format(name=NAME))
    return probs

if __name__ == "__main__":
    out = sys.argv[1] if len(sys.argv) > 1 else "k3.s"
    kw = {}
    for arg in sys.argv[2:]:
        if arg == "stamps": kw["stamps"] = True
        elif arg == "dbg": kw["stamps"] = "dbg"
        elif "=" in arg:
            k, v = arg.split("="); kw[k] = eval(v)
    probs = build(out, **kw)
    print("hazards:", len(probs))
```
